```python
import torch

def _softmax(x, axis=-1):
    return torch.softmax(x, dim=axis)
def _gelu(x):
    return torch.nn.functional.gelu(x, approximate="tanh")
def _silu(x):
    return torch.nn.functional.silu(x)
def _sigmoid(x):
    return torch.sigmoid(x)
def _layernorm(x, axis=-1, eps=1e-5):
    m = x.mean(dim=axis, keepdim=True)
    v = x.var(dim=axis, keepdim=True, unbiased=False)
    return (x - m) / torch.sqrt(v + eps)
def _scatter_add(tgt, idx, src, axis=0):
    return tgt.clone().index_add_(axis, idx, src)
def _segment_sum(src, seg, n):
    out = torch.zeros((n,) + src.shape[1:], dtype=src.dtype)
    return out.index_add_(0, seg, src)
def _pad(x, pw):
    flat = tuple(v for pair in reversed(pw) for v in pair)
    return torch.nn.functional.pad(x, flat)

kernel_name = 'gated_mix__ssm_conv_h3__glu_gated_glu__prompt'

def setup_inputs():

    _w = (lambda a: (lambda t: t.to(torch.bfloat16) if t.is_floating_point() else t)(torch.as_tensor(a)))
    def _A_setup():
        B, S, D = 1, 2048, 640
        ks = 4
        return {
            "q": _w((lambda *s: torch.randn(*s, dtype=torch.bfloat16) * 0.05)(B, S, D)),
            "k": _w((lambda *s: torch.randn(*s, dtype=torch.bfloat16) * 0.4)(B, S, D)),
            "v": _w((lambda *s: torch.randn(*s, dtype=torch.bfloat16) * 0.4)(B, S, D)),
            "shift_k": _w((lambda *s: torch.randn(*s, dtype=torch.bfloat16) * 0.4)(D, ks) * 0.5),
            "ssm_k": _w((lambda *s: torch.randn(*s, dtype=torch.bfloat16) * 1.6)(D, S) * (1.0 / S ** 0.5)),
            "ssm_D": _w((lambda *s: torch.randn(*s, dtype=torch.bfloat16) * 0.4)(D)),
        }
    _A_in = _A_setup()

    def _B_setup():
        B, S, D, F = 1, 2048, 640, 1536
        return {
            "x": _w((lambda *s: torch.randn(*s, dtype=torch.bfloat16) * 0.05)(B, S, D)),
            "w_gate": _w((lambda *s: torch.randn(*s, dtype=torch.bfloat16) * 0.4)(D, F)),
            "w_up": _w((lambda *s: torch.randn(*s, dtype=torch.bfloat16) * 0.05)(D, F)),
            "w_down": _w((lambda *s: torch.randn(*s, dtype=torch.bfloat16) * 0.05)(F, D)),
        }
    _B_in = _B_setup()

    return {
        "A_q": _A_in["q"],
        "A_k": _A_in["k"],
        "A_v": _A_in["v"],
        "A_shift_k": _A_in["shift_k"],
        "A_ssm_k": _A_in["ssm_k"],
        "A_ssm_D": _A_in["ssm_D"],
        "B_x": _B_in["x"],
        "B_w_gate": _B_in["w_gate"],
        "B_w_up": _B_in["w_up"],
        "B_w_down": _B_in["w_down"],
        "gate_w": _w((lambda *s: torch.randn(*s, dtype=torch.bfloat16) * 0.05)(640) * 16.0),
    }

def reference(A_q, A_k, A_v, A_shift_k, A_ssm_k, A_ssm_D, B_x, B_w_gate, B_w_up, B_w_down, gate_w):
    def _A_ref(q, k, v, shift_k, ssm_k, ssm_D):
        B, S, D = q.shape
        ks = shift_k.shape[-1]
        k_pad = _pad(k, ((0, 0), (ks - 1, 0), (0, 0)))
        k_shift = torch.zeros_like(k)
        for t in range(ks):
            k_shift = k_shift + k_pad[:, t:t + S, :] * shift_k[:, ks - 1 - t][None, None, :]
        kv = k_shift * v
        L = 2 * S
        kv_pad = _pad(kv, ((0, 0), (0, S), (0, 0)))
        kf_pad = _pad(ssm_k, ((0, 0), (0, S)))
        kv_f = (lambda x, axes=(-2,-1): torch.fft.rfft2(x.float(), dim=axes))(kv_pad[:, None, :, :], axes=(1, 2))
        kf_f = (lambda x, axes=(-2,-1): torch.fft.rfft2(x.float(), dim=axes))(kf_pad[:, None, :], axes=(1, 2))
        kf_f = (lambda x, *d: x.permute(*d))(kf_f, 1, 2, 0)
        y_f = kv_f * kf_f[None, :, :, :]
        y = (lambda x, s, axes=(-2,-1): torch.fft.irfft2(x, s=s, dim=axes).to(torch.bfloat16))(y_f, (1, L), axes=(1, 2))[:, 0, :S, :]
        y = y + kv * ssm_D[None, None, :]
        return q * y

    def _B_ref(x, w_gate, w_up, w_down):
        g = torch.einsum("bsd,df->bsf", x, w_gate)
        u = torch.einsum("bsd,df->bsf", x, w_up)
        h = _sigmoid(g) * u
        return torch.einsum("bsf,fd->bsd", h, w_down)

    x = A_q
    g = _sigmoid((x * gate_w).sum(-1, keepdims=True))
    a = _A_ref(x, A_k, A_v, A_shift_k, A_ssm_k, A_ssm_D)
    b = _B_ref(x, B_w_gate, B_w_up, B_w_down)
    return g * a + (1 - g) * b
```

```python
import sys
KN = "gated_mix__ssm_conv_h3__glu_gated_glu__prompt_kernel"

WS_HB = 0x000000; WS_WB = 0x600000; WS_KT = 0x800000; WS_YT = 0xB00000
WS_G = 0xE00000; WS_FA = 0xE10000; WS_FB = 0xE11000; WS_FH = 0xE12000; WS_FY = 0xE14000
WS_STAMP = 0xF00000
L_XR = 0; L_WR = 32768; L_CV = 81920; CV_SZ = 17728; L_QT = 152832; L_MISC = 163072; LDS_TOTAL = 163840
CV_A = 0; CV_B = 4224; CV_U0 = 8448; CV_U1 = 8448 + 4640
L_EPOCH = L_MISC; L_GF = L_MISC + 256
L_KVT = L_CV + CV_U0
def kvt_addr(ch): return L_CV + (ch // 40) * CV_SZ + CV_U0 + (ch % 40) * 128
L_WDS = L_CV + 2 * CV_SZ + CV_U0
SPIN_MAX = 40000

class Gen:
    def __init__(s, opt):
        s.L = []; s.opt = opt; s.vm = []; s.lab = 0
    def a(s, x): s.L.append("    " + x)
    def label(s, x): s.L.append(x + ":")
    def newlab(s, p="L"):
        s.lab += 1; return f"{p}_{s.lab}"
    def vm_reset(s): s.vm = []
    def vmem(s, tag, ins): s.a(ins); s.vm.append(tag)
    def vm_wait(s, tags):
        idx = -1
        for i, t in enumerate(s.vm):
            if t in tags: idx = i
        if idx < 0: return
        n = len(s.vm) - 1 - idx
        assert n <= 63
        s.a(f"s_waitcnt vmcnt({n})")
        s.vm = s.vm[idx + 1:]
    def vm_wait_all(s):
        s.a("s_waitcnt vmcnt(0)"); s.vm = []
    def ex(s, n):
        if n >= 64: s.a("s_mov_b64 exec, -1")
        elif n > 32: s.a("s_mov_b32 exec_lo, -1"); s.a(f"s_mov_b32 exec_hi, {hex((1 << (n - 32)) - 1)}")
        elif n == 32: s.a("s_mov_b32 exec_lo, -1"); s.a("s_mov_b32 exec_hi, 0")
        else: s.a(f"s_mov_b32 exec_lo, {hex((1 << n) - 1)}"); s.a("s_mov_b32 exec_hi, 0")
    def srd(s, d, p, nbytes):
        s.a(f"s_mov_b32 s{d}, s{p}"); s.a(f"s_and_b32 s{d+1}, s{p+1}, 0xffff")
        s.a(f"s_mov_b32 s{d+2}, {nbytes}"); s.a(f"s_mov_b32 s{d+3}, 0x20000")
    def stamp(s, idx):
        if s.opt.get("stamps"):
            s.a(f"s_memtime s[{76+0}:{76+1}]"); s.a("s_waitcnt lgkmcnt(0)")
            s.a(f"v_writelane_b32 v{s.vstamp}, s76, {idx}")
    def poll(s, vflag, voff, soff, scnt=94):
        l0 = s.newlab("L_poll"); l1 = s.newlab("L_pdone")
        s.a(f"s_mov_b32 s{scnt}, {SPIN_MAX}")
        s.label(l0)
        s.a(f"buffer_load_dwordx2 v[{vflag}:{vflag+1}], v{voff}, s[44:47], {soff} offen sc1")
        s.a("s_waitcnt vmcnt(0)")
        s.a(f"v_cmp_ne_u64 vcc, s[72:73], v[{vflag}:{vflag+1}]")
        s.a("s_nop 1")
        s.a(f"s_cbranch_vccz {l1}")
        s.a(f"s_sub_u32 s{scnt}, s{scnt}, 1")
        s.a(f"s_cbranch_scc0 {l0}")
        s.label(l1)
        s.vm = []
    def read_epoch(s, vt):
        s.a(f"v_mov_b32 v{vt}, {L_EPOCH}")
        s.a(f"ds_read_b64 v[{vt}:{vt+1}], v{vt}")
        s.a("s_waitcnt lgkmcnt(0)")
        s.a(f"v_readfirstlane_b32 s72, v{vt}")
        s.a(f"v_readfirstlane_b32 s73, v{vt+1}")
        s.a("s_nop 1")
    def write_flag(s, vt, soff_expr_sreg):
        s.a(f"v_mov_b32 v{vt}, s72"); s.a(f"v_mov_b32 v{vt+1}, s73"); s.a(f"v_mov_b32 v{vt+2}, 0")
        s.a("s_mov_b64 exec, 1")
        s.vmem("flag", f"buffer_store_dwordx2 v[{vt}:{vt+1}], v{vt+2}, s[44:47], s{soff_expr_sreg} offen sc1")
        s.a("s_mov_b64 exec, -1")

    def prologue(s):
        a = s.a
        a("s_cmp_ge_u32 s2, 256"); a("s_cbranch_scc1 L_end")
        a("s_load_dwordx16 s[16:31], s[0:1], 0")
        a("s_load_dwordx8 s[32:39], s[0:1], 64")
        a("s_load_dwordx4 s[40:43], s[0:1], 96")
        a("v_lshrrev_b32 v2, 6, v0")
        a("v_and_b32 v1, 63, v0")
        a("v_readfirstlane_b32 s3, v2")
        a("s_and_b32 s4, s2, 7"); a("s_lshr_b32 s5, s2, 3")
        a("s_lshr_b32 s6, s4, 2"); a("s_lshl_b32 s6, s6, 3"); a("s_and_b32 s11, s5, 7"); a("s_add_u32 s6, s6, s11")
        a("s_and_b32 s7, s4, 3"); a("s_lshl_b32 s7, s7, 2"); a("s_lshr_b32 s12, s5, 3"); a("s_add_u32 s7, s7, s12")
        a("s_lshl_b32 s8, s12, 1"); a("s_add_u32 s8, s8, s11"); a("s_and_b32 s8, s8, 7")
        if not s.opt.get("rot", 1): a("s_mov_b32 s8, 0")
        a("s_lshl_b32 s9, s4, 2"); a("s_and_b32 s13, s5, 3"); a("s_add_u32 s9, s9, s13"); a("s_lshr_b32 s10, s5, 2")
        if s.opt.get("stamps"):
            s.vstamp = 11
            a("v_mov_b32 v11, 0")
        a("s_waitcnt lgkmcnt(0)")
        s.srd(44, 42, 0x10000000)
        s.stamp(0)
        a("s_cmp_lt_u32 s3, 4"); a("s_cbranch_scc1 L_X")
        a("s_cmp_lt_u32 s3, 6"); a("s_cbranch_scc1 L_L")
        a("s_cmp_eq_u32 s3, 6"); a("s_cbranch_scc1 L_C0")
        a("s_branch L_C1")

    def loader(s):
        a = s.a; s.vm_reset()
        s.label("L_L")
        a("s_sub_u32 s74, s3, 4")
        s.srd(48, 16, 2621440)
        a("s_cmp_eq_u32 s74, 0")
        a("s_cselect_b32 s52, s30, s32"); a("s_cselect_b32 s53, s31, s33"); a("s_and_b32 s53, s53, 0xffff")
        a("s_mov_b32 s54, 1966080"); a("s_mov_b32 s55, 0x20000")
        a("v_lshrrev_b32 v4, 2, v1"); a("v_mul_u32_u24 v2, 3072, v4")
        a("s_lshl_b32 s75, s74, 1"); a("v_and_b32 v5, 3, v1"); a("v_xor_b32 v6, s75, v5"); a("v_lshl_add_u32 v2, v6, 4, v2")
        a("s_mul_i32 s75, s7, 192"); a("v_add_u32 v2, s75, v2")
        a("v_mul_u32_u24 v3, 1280, v4")
        a("v_lshrrev_b32 v6, 4, v1"); a("s_lshl_b32 s75, s74, 2"); a("v_add_u32 v6, s75, v6")
        a("v_lshrrev_b32 v7, 1, v6"); a("v_xor_b32 v6, v6, v7"); a("v_and_b32 v6, 3, v6"); a("v_xor_b32 v6, v6, v5")
        a("v_lshl_add_u32 v3, v6, 4, v3")
        a("s_lshl_b32 s75, s6, 3"); a("s_add_u32 s75, s75, s74"); a(f"s_mul_i32 s75, s75, {16*1280}"); a("v_add_u32 v3, s75, v3")
        a("s_lshl_b32 s78, s74, 10")
        a(f"s_mul_i32 s79, s74, 6144"); a(f"s_add_u32 s79, s79, {L_WR}")
        def dsel(D):
            if D < 8: a(f"s_add_u32 s80, s8, {D}"); a("s_and_b32 s80, s80, 7")
            else: a(f"s_add_u32 s80, s8, {D}"); a("s_and_b32 s80, s80, 1"); a("s_add_u32 s80, s80, 8")
        def issue_x(D):
            dsel(D); a("s_lshl_b32 s81, s80, 7")
            for gi in range(4):
                for h in range(2):
                    t = 2 * D + h
                    a(f"s_add_u32 m0, s78, {L_XR + (t & 3) * 8192 + gi * 2048}")
                    a(f"s_add_u32 s82, s81, {gi * 32 * 1280 + h * 64}")
                    s.vmem(("x", t), f"buffer_load_dwordx4 v3, s[48:51], s82 offen lds")
        def issue_w(t):
            dsel(t >> 1); a(f"s_mul_i32 s81, s80, {64*3072}")
            for rh in range(2):
                for pc in range(3):
                    a(f"s_add_u32 m0, s79, {(t & 3) * 12288 + pc * 2048 + rh * 1024}")
                    a(f"s_add_u32 s82, s81, {(32 * (t & 1) + 16 * rh) * 3072 + pc * 64}")
                    s.vmem(("w", t), f"buffer_load_dwordx4 v2, s[52:55], s82 offen lds")
        issue_w(0); issue_x(0); issue_w(1); issue_w(2); issue_x(1); issue_w(3)
        for t in range(20):
            s.vm_wait({("x", t), ("w", t), ("x", t | 1)})
            a("s_barrier")
            if t >= 1:
                if t % 2 == 0 and t + 2 < 20: issue_x((t + 2) // 2)
                if t + 3 < 20: issue_w(t + 3)
        a("s_branch L_Y")

    def kv_setup(s, nrg_lanes):
        a = s.a
        s.srd(48, 18, 2621440); s.srd(52, 20, 2621440); s.srd(56, 22, 5120)
        a("v_mul_u32_u24 v2, 6554, v1"); a("v_lshrrev_b32 v2, 16, v2")
        a("v_mul_u32_u24 v3, 10, v2"); a("v_sub_u32 v3, v1, v3")
        a("s_lshl_b32 s74, s9, 6"); a("s_sub_u32 s74, s74, 3"); a("s_mul_i32 s74, s74, 1280")
        a("s_mul_i32 s75, s10, 160"); a("s_add_u32 s74, s74, s75")
        a(f"v_mul_u32_u24 v4, {4*1280}, v2"); a("v_lshl_add_u32 v4, v3, 4, v4"); a("v_add_u32 v4, s74, v4")
        a("s_mul_i32 s75, s10, 640"); a("v_lshlrev_b32 v5, 6, v3"); a("v_add_u32 v5, s75, v5")
        a("v_cmp_lt_u32 vcc, 4, v3"); a(f"v_mov_b32 v7, {CV_SZ - 40*128}"); a("s_nop 1"); a("v_cndmask_b32 v7, 0, v7, vcc")
        a("v_lshl_add_u32 v6, v3, 10, v7"); a(f"v_add_u32 v6, {L_CV + CV_U0}, v6")
    def kv_loads(s, rg0, nlanes, kreg, tag):
        a = s.a
        a(f"v_add_u32 v8, {rg0*4*1280}, v4")
        a(f"v_add_u32 v9, {3*1280}, v8")
        s.ex(nlanes)
        for i in range(7):
            if i < 3: s.vmem(tag, f"buffer_load_dwordx4 v[{kreg+4*i}:{kreg+4*i+3}], v8, s[48:51], 0 offen offset:{i*1280} {s.nt}")
            else:     s.vmem(tag, f"buffer_load_dwordx4 v[{kreg+4*i}:{kreg+4*i+3}], v9, s[48:51], 0 offen offset:{(i-3)*1280} {s.nt}")
        for i in range(4):
            s.vmem(tag, f"buffer_load_dwordx4 v[{kreg+28+4*i}:{kreg+28+4*i+3}], v9, s[52:55], 0 offen offset:{i*1280} {s.nt}")
        a("s_mov_b64 exec, -1")
    def kv_weights_load(s):
        for i in range(4):
            s.vmem("shk", f"buffer_load_dwordx4 v[{16+4*i}:{16+4*i+3}], v5, s[56:59], 0 offen offset:{16*i}")
    def kv_weights_unpack(s):
        a = s.a
        for e in range(8):
            a(f"v_lshlrev_b32 v{32+e}, 16, v{16+2*e}"); a(f"v_and_b32 v{40+e}, 0xffff0000, v{16+2*e}")
            a(f"v_lshlrev_b32 v{48+e}, 16, v{17+2*e}"); a(f"v_and_b32 v{56+e}, 0xffff0000, v{17+2*e}")
    def kv_compute_dw(s, kreg, d, rg0):
        a = s.a
        for i in range(7):
            a(f"v_lshlrev_b32 v{200+2*i}, 16, v{kreg+4*i+d}"); a(f"v_and_b32 v{201+2*i}, 0xffff0000, v{kreg+4*i+d}")
        for i in range(4):
            a(f"v_lshlrev_b32 v{214+2*i}, 16, v{kreg+28+4*i+d}"); a(f"v_and_b32 v{215+2*i}, 0xffff0000, v{kreg+28+4*i+d}")
        for r in range(4):
            a(f"v_pk_mul_f32 v[{222+2*r}:{223+2*r}], v[{200+2*r}:{201+2*r}], v[{56+2*d}:{57+2*d}]")
        for j in (2, 1, 0):
            for r in range(4):
                kk = 200 + 2 * (r + 3 - j); w = 32 + 8 * j + 2 * d
                a(f"v_pk_fma_f32 v[{222+2*r}:{223+2*r}], v[{kk}:{kk+1}], v[{w}:{w+1}], v[{222+2*r}:{223+2*r}]")
        for r in range(4):
            a(f"v_pk_mul_f32 v[{222+2*r}:{223+2*r}], v[{222+2*r}:{223+2*r}], v[{214+2*r}:{215+2*r}]")
        for e in range(2):
            a(f"v_cvt_pk_bf16_f32 v{230+2*e}, v{228+e}, v{226+e}")
            a(f"v_cvt_pk_bf16_f32 v{231+2*e}, v{224+e}, v{222+e}")
        for e in range(2):
            a(f"ds_write_b64 v10, v[{230+2*e}:{231+2*e}] offset:{(2*d+e)*128}")
    def kv_addr(s, rg0):
        a = s.a
        a(f"v_sub_u32 v10, {15 - rg0}, v2"); a("v_and_b32 v7, 7, v3"); a("v_lshlrev_b32 v7, 1, v7"); a("v_xor_b32 v10, v10, v7")
        a("v_and_b32 v10, 15, v10")
        a("v_lshl_add_u32 v10, v10, 3, v6")
    def kv_store(s, half):
        a = s.a
        a("v_lshrrev_b32 v200, 3, v1"); a("v_and_b32 v201, 7, v1")
        a("s_mul_i32 s74, s10, 80"); a(f"s_add_u32 s74, s74, {40*half}"); a("s_lshl_b32 s74, s74, 12")
        a("s_lshl_b32 s75, s9, 7"); a("s_sub_u32 s74, s74, s75"); a(f"s_add_u32 s74, s74, {WS_KT + 3968}")
        a("v_lshlrev_b32 v202, 12, v200"); a("v_lshl_add_u32 v202, v201, 4, v202")
        for i in range(5):
            c = 5 * half + i
            a(f"v_xor_b32 v203, {c & 7}, v201"); a("v_lshlrev_b32 v203, 4, v203"); a("v_lshl_add_u32 v203, v200, 7, v203")
            a(f"v_add_u32 v203, {L_CV + half*CV_SZ + CV_U0 + i*1024}, v203")
            a(f"ds_read_b128 v[{204+4*i}:{207+4*i}], v203")
        a("s_waitcnt lgkmcnt(0)")
        for i in range(5):
            a(f"s_add_u32 s75, s74, {i*8*4096}")
            s.vmem("st", f"buffer_store_dwordx4 v[{204+4*i}:{207+4*i}], v202, s[44:47], s75 offen sc1")

    def h_loads(s, slot, reg, tag):
        a = s.a
        a("s_lshl_b32 s74, s2, 2"); a(f"s_add_u32 s74, s74, {slot}"); a("s_lshl_b32 s74, s74, 12")
        for i in range(4):
            s.vmem(tag, f"buffer_load_dwordx4 v[{reg+4*i}:{reg+4*i+3}], v12, s[60:63], s74 offen offset:{i*1024} {s.nt}")
    def h_copies(s, slot, reg):
        a = s.a
        base = L_CV + slot * CV_SZ
        a(f"v_add_u32 v13, {base}, v12")
        for i in range(4):
            r = reg + 4 * i
            if i == 0: a("v_mov_b32 v234, 0")
            else:
                a(f"v_readlane_b32 s74, v{r-1}, 63"); a("s_nop 1"); a("v_mov_b32 v234, s74")
            a("s_nop 1")
            a(f"v_mov_b32_dpp v234, v{r+3} wave_shr:1 row_mask:0xf bank_mask:0xf")
            a(f"ds_write_b128 v13, v[{r}:{r+3}] offset:{CV_B + 64 + i*1024}")
            a(f"v_alignbit_b32 v236, v{r}, v234, 16")
            a(f"v_alignbit_b32 v237, v{r+1}, v{r}, 16")
            a(f"v_alignbit_b32 v238, v{r+2}, v{r+1}, 16")
            a(f"v_alignbit_b32 v239, v{r+3}, v{r+2}, 16")
            a(f"ds_write_b128 v13, v[236:239] offset:{CV_A + 64 + i*1024}")
        a("v_lshrrev_b32 v234, 2, v1"); a("v_and_b32 v235, 1, v234"); a("v_mul_u32_u24 v235, 4160, v235")
        a("v_lshrrev_b32 v234, 1, v234"); a(f"v_mul_u32_u24 v234, {CV_B}, v234"); a("v_add_u32 v235, v235, v234")
        a("v_and_b32 v234, 3, v1"); a("v_lshl_add_u32 v235, v234, 4, v235"); a(f"v_add_u32 v235, {base}, v235")
        for r in range(236, 240): a(f"v_mov_b32 v{r}, 0")
        s.ex(16)
        a("ds_write_b128 v235, v[236:239]")
        a("s_mov_b64 exec, -1")

    def barrier(s):
        s.a("s_waitcnt lgkmcnt(0)"); s.a("s_barrier")

    def chore0(s):
        a = s.a; s.vm_reset()
        s.label("L_C0")
        s.kv_setup(60)
        s.srd(60, 24, 2621440)
        a("v_lshlrev_b32 v12, 4, v1")
        s.kv_weights_load()
        sched = {t: [] for t in range(-1, 20)}
        sched[0].append(lambda: s.kv_loads(0, 60, 64, "ka"))
        sched[1].append(lambda: s.kv_loads(6, 60, 108, "kb"))
        sched[2].append(lambda: (s.vm_wait({"shk"}), s.kv_weights_unpack(), s.kv_addr(0)))
        lconv = s.newlab("L_noconv")
        def hl():
            l = s.newlab("L_nh"); a("s_cmp_ge_u32 s2, 160"); a(f"s_cbranch_scc1 {l}")
            s.h_loads(0, 152, "h"); s.h_loads(1, 168, "h"); s.label(l)
        sched[2].append(hl)
        ex = s.ex
        for d in range(4):
            sched[4 + d].append((lambda d=d: ((s.vm_wait_all() if d == 0 else None), ex(60), s.kv_compute_dw(64, d, 0), a("s_mov_b64 exec, -1"))))
        sched[7].append(lambda: s.kv_addr(6))
        for d in range(4):
            sched[8 + d].append((lambda d=d: (ex(60), s.kv_compute_dw(108, d, 6), a("s_mov_b64 exec, -1"))))
        sched[12].append(lambda: s.kv_store(0))
        def hc(slot, reg):
            l = s.newlab("L_nh"); a("s_cmp_ge_u32 s2, 160"); a(f"s_cbranch_scc1 {l}")
            s.h_copies(slot, reg); s.label(l)
        sched[13].append(lambda: hc(0, 152))
        sched[14].append(lambda: s.vm_wait_all())
        sched[15].append(lambda: hc(1, 168))
        for t in range(20):
            s.barrier()
            for f in sched[t]: f()
        a("s_branch L_Y")

    def chore1(s):
        a = s.a; s.vm_reset()
        s.label("L_C1")
        s.srd(64, 40, 256)
        l = s.newlab("L_noep")
        a("s_cmp_lg_u32 s2, 0"); a(f"s_cbranch_scc1 {l}")
        a("s_memrealtime s[74:75]"); a("s_waitcnt lgkmcnt(0)"); a("s_or_b32 s75, s75, 0x40000000")
        a("v_mov_b32 v2, s74"); a("v_mov_b32 v3, s75"); a("v_mov_b32 v4, 0")
        a("s_mov_b64 exec, 1"); a("buffer_store_dwordx2 v[2:3], v4, s[64:67], 0 offen sc1"); a("s_mov_b64 exec, -1")
        s.label(l)
        s.kv_setup(40)
        s.srd(60, 24, 2621440)
        s.srd(68, 16, 2621440)
        a("v_lshlrev_b32 v12, 4, v1")
        s.kv_weights_load()
        sched = {t: [] for t in range(-1, 20)}
        sched[0].append(lambda: s.kv_loads(12, 40, 64, "ka"))
        def gl():
            a("s_lshl_b32 s74, s9, 6"); a("s_lshl_b32 s75, s10, 3"); a("s_add_u32 s74, s74, s75"); a("s_mul_i32 s74, s74, 1280")
            a("v_lshrrev_b32 v14, 3, v1"); a("v_mul_u32_u24 v14, 1280, v14"); a("v_and_b32 v15, 7, v1"); a("v_lshlrev_b32 v15, 4, v15")
            a("v_add_u32 v14, v14, v15")
            s.srd(84, 36, 1280)
            for i in range(10):
                s.vmem("gx", f"buffer_load_dwordx4 v[{108+4*i}:{111+4*i}], v14, s[68:71], s74 offen offset:{i*128}")
            for i in range(10):
                s.vmem("gx", f"buffer_load_dwordx4 v[{152+4*i}:{155+4*i}], v15, s[84:87], 0 offen offset:{i*128}")
        sched[1].append(gl)
        def dma_rows(srd, nrows, sbase, ldsbase, tag, nt):
            tot = nrows * 10
            for i in range((tot + 63) // 64):
                a(f"v_add_u32 v240, {64*i}, v1"); a("v_mul_u32_u24 v241, 6554, v240"); a("v_lshrrev_b32 v241, 16, v241")
                a("v_mul_u32_u24 v241, 1120, v241"); a("v_lshl_add_u32 v241, v240, 4, v241")
                a(f"s_mov_b32 m0, {ldsbase + 1024*i}")
                rem = tot - 64 * i
                if rem < 64: s.ex(rem)
                s.vmem(tag, f"buffer_load_dwordx4 v241, s[{srd}:{srd+3}], s{sbase} offen {nt} lds")
                if rem < 64: a("s_mov_b64 exec, -1")
        def wdl():
            s.srd(88, 34, 1966080)
            a(f"s_mul_i32 s74, s9, {48*1280}"); a("s_mul_i32 s75, s10, 160"); a("s_add_u32 s74, s74, s75")
            dma_rows(88, 48, 74, L_WDS, "wd", s.nt)
        sched[2].append(wdl)
        sched[2].append(lambda: (s.vm_wait({"shk"}), s.kv_weights_unpack(), s.kv_addr(12)))
        ex = s.ex
        def ql():
            a(f"s_mul_i32 s74, s9, {64*1280}"); a("s_mul_i32 s75, s10, 160"); a("s_add_u32 s74, s74, s75")
            dma_rows(68, 64, 74, L_QT, "q", "")
        sched[3].append(ql)
        for d in range(4):
            sched[4 + d].append((lambda d=d: ((s.vm_wait({"ka"}) if d == 0 else None), ex(40), s.kv_compute_dw(64, d, 12), a("s_mov_b64 exec, -1"))))
        def gc():
            s.vm_wait({"gx"})
            a("v_mov_b32 v240, 0"); a("v_mov_b32 v241, 0")
            for i in range(40):
                a(f"v_dot2_f32_bf16 v{240 + (i & 1)}, v{108+i}, v{152+i}, v{240 + (i & 1)}")
            a("s_nop 3"); a("v_add_f32 v240, v240, v241"); a("s_nop 1")
            a("v_add_f32_dpp v240, v240, v240 quad_perm:[1,0,3,2] row_mask:0xf bank_mask:0xf"); a("s_nop 1")
            a("v_add_f32_dpp v240, v240, v240 quad_perm:[2,3,0,1] row_mask:0xf bank_mask:0xf"); a("s_nop 1")
            a("v_add_f32_dpp v240, v240, v240 row_half_mirror row_mask:0xf bank_mask:0xf")
            a("v_cvt_pk_bf16_f32 v240, v240, v240"); a("v_and_b32 v240, 0xffff0000, v240")
            a("v_mul_f32 v240, 0xbfb8aa3b, v240"); a("v_exp_f32 v240, v240"); a("s_nop 0"); a("v_add_f32 v240, 1.0, v240")
            a("v_rcp_f32 v240, v240"); a("s_nop 0")
            a("v_cvt_pk_bf16_f32 v240, v240, v240"); a("v_and_b32 v240, 0xffff0000, v240")
            a("s_lshl_b32 s74, s9, 8"); a("s_lshl_b32 s75, s10, 5"); a("s_add_u32 s74, s74, s75"); a(f"s_add_u32 s74, s74, {WS_G}")
            a("v_lshrrev_b32 v241, 3, v1"); a("v_lshlrev_b32 v241, 2, v241")
            a("s_mov_b32 exec_lo, 0x01010101"); a("s_mov_b32 exec_hi, 0x01010101")
            s.vmem("st", "buffer_store_dword v240, v241, s[44:47], s74 offen sc1")
            a("s_mov_b64 exec, -1")
        sched[8].append(gc)
        def hl():
            l = s.newlab("L_nh"); a("s_cmp_ge_u32 s2, 160"); a(f"s_cbranch_scc1 {l}")
            a("s_lshl_b32 s74, s2, 2"); a("s_add_u32 s74, s74, 2"); a("s_lshl_b32 s74, s74, 12")
            for i in range(8):
                if i == 4: a("s_add_u32 s74, s74, 4096")
                a(f"buffer_load_dwordx4 v[{108+4*i}:{111+4*i}], v12, s[60:63], s74 offen offset:{(i&3)*1024} {s.nt}")
            s.label(l)
        sched[9].append(hl)
        def wdt():
            s.vm_wait_all()
            a("v_and_b32 v240, 15, v1"); a("v_lshrrev_b32 v241, 4, v1")
            a("v_lshrrev_b32 v242, 2, v240"); a("v_mul_u32_u24 v242, 160, v242"); a("v_and_b32 v243, 3, v240"); a("v_lshl_add_u32 v242, v243, 3, v242")
            a(f"v_add_u32 v242, {L_WDS}, v242")
            a("v_mul_u32_u24 v243, 1280, v241"); a("v_add_u32 v243, v243, v242")
            a("v_and_b32 v244, 1, v241"); a("v_add_u32 v244, 4, v244"); a("v_lshrrev_b32 v245, 1, v241")
            a("v_mul_u32_u24 v246, 1280, v244"); a("v_add_u32 v246, v246, v242"); a("v_lshl_add_u32 v246, v245, 5, v246")
            a("s_mul_i32 s74, s9, 6")
            for (oreg, dst) in ((241, 247), (244, 248)):
                a(f"v_add_u32 v249, s74, v{oreg}"); a("v_lshrrev_b32 v250, 2, v249"); a(f"v_mul_u32_u24 v{dst}, 5120, v250")
                a("v_and_b32 v249, 3, v249"); a(f"v_lshl_add_u32 v{dst}, v249, 8, v{dst}"); a(f"v_lshl_add_u32 v{dst}, v240, 4, v{dst}")
            a("v_lshl_add_u32 v248, v245, 10, v248")
            a(f"s_mul_i32 s74, s10, {48*5120}"); a(f"s_add_u32 s74, s74, {WS_WB}")
            for dt in range(5):
                a(f"ds_read_b64_tr_b16 v[{200+4*dt}:{201+4*dt}], v243 offset:{dt*32}")
                a(f"ds_read_b64_tr_b16 v[{202+4*dt}:{203+4*dt}], v243 offset:{dt*32 + 640}")
            for p in range(3):
                a(f"ds_read_b64_tr_b16 v[{220+4*p}:{221+4*p}], v246 offset:{p*64}")
                a(f"ds_read_b64_tr_b16 v[{222+4*p}:{223+4*p}], v246 offset:{p*64 + 640}")
            a("s_waitcnt lgkmcnt(0)")
            for dt in range(5):
                a(f"s_add_u32 s75, s74, {dt*1024}")
                s.vmem("st", f"buffer_store_dwordx4 v[{200+4*dt}:{203+4*dt}], v247, s[44:47], s75 offen sc1")
            for p in range(3):
                a(f"s_add_u32 s75, s74, {p*2048}")
                if p == 2: a("s_mov_b32 exec_hi, 0")
                s.vmem("st", f"buffer_store_dwordx4 v[{220+4*p}:{223+4*p}], v248, s[44:47], s75 offen sc1")
                if p == 2: a("s_mov_b64 exec, -1")
        sched[10].append(wdt)
        def ep():
            l0 = s.newlab("L_ep"); l1 = s.newlab("L_epd")
            a(f"s_mov_b32 s94, {SPIN_MAX}"); a("v_mov_b32 v240, 0")
            s.label(l0)
            a("buffer_load_dwordx2 v[242:243], v240, s[64:67], 0 offen sc1")
            a("s_waitcnt vmcnt(0)")
            a("v_readfirstlane_b32 s72, v242"); a("v_readfirstlane_b32 s73, v243"); a("s_nop 1")
            a("s_cmp_lg_u32 s73, 0"); a(f"s_cbranch_scc1 {l1}")
            a("s_sub_u32 s94, s94, 1"); a(f"s_cbranch_scc0 {l0}")
            s.label(l1); s.vm = []
            a(f"v_mov_b32 v240, {L_EPOCH}"); a("ds_write_b64 v240, v[242:243]")
        sched[11].append(ep)
        sched[12].append(lambda: s.kv_store(1))
        def hc(slot, reg):
            l = s.newlab("L_nh"); a("s_cmp_ge_u32 s2, 160"); a(f"s_cbranch_scc1 {l}")
            s.h_copies(slot, reg); s.label(l)
        sched[13].append(lambda: hc(3, 124))
        sched[14].append(lambda: s.vm_wait_all())
        def fl():
            a("s_lshl_b32 s74, s10, 8"); a("s_lshl_b32 s75, s9, 3"); a("s_add_u32 s74, s74, s75"); a(f"s_add_u32 s74, s74, {WS_FA}")
            s.write_flag(240, 74)
            a("s_lshl_b32 s74, s9, 6"); a("s_lshl_b32 s75, s10, 3"); a("s_add_u32 s74, s74, s75"); a(f"s_add_u32 s74, s74, {WS_FB}")
            s.write_flag(244, 74)
        sched[15].append(fl)
        sched[16].append(lambda: hc(2, 108))
        for t in range(20):
            s.barrier()
            for f in sched[t]: f()
        a("s_branch L_Y")

    def ywave(s):
        a = s.a; s.vm_reset()
        s.label("L_Y")
        s.stamp(1)
        a("s_sub_u32 s83, s3, 4")
        a(f"s_mul_i32 s84, s83, {CV_SZ}"); a(f"s_add_u32 s84, s84, {L_CV}")
        s.read_epoch(2)
        a("s_barrier")
        a("v_lshlrev_b32 v12, 4, v1")
        a("s_cmp_ge_u32 s2, 160"); a("s_cbranch_scc1 L_apart")
        a("v_min_u32 v2, 31, v1"); a("v_lshlrev_b32 v2, 3, v2")
        a("s_mul_i32 s74, s2, 3277"); a("s_lshr_b32 s74, s74, 16")
        a("s_lshl_b32 s74, s74, 8"); a(f"s_add_u32 s74, s74, {WS_FA}")
        s.poll(4, 2, "s74")
        s.stamp(2)
        a("s_lshl_b32 s85, s2, 2"); a("s_add_u32 s85, s85, s83")
        a("s_lshl_b32 s74, s85, 12"); a(f"s_add_u32 s74, s74, {WS_KT}")
        for i in range(4):
            s.vmem("u", f"buffer_load_dwordx4 v[{16+4*i}:{19+4*i}], v12, s[44:47], s74 offen offset:{i*1024} sc1")
        for r in range(32, 36): a(f"v_mov_b32 v{r}, 0")
        a("v_add_u32 v13, s84, v12")
        a(f"ds_write_b128 v13, v[32:35] offset:{CV_U0 + 4112}")
        a("s_mov_b64 exec, 3"); a(f"ds_write_b128 v13, v[32:35] offset:{CV_U0}")
        a("s_mov_b32 exec_lo, -1"); a("s_mov_b32 exec_hi, 1"); a(f"ds_write_b128 v13, v[32:35] offset:{CV_U1 + 4112}")
        a("s_mov_b64 exec, -1")
        for r in range(224, 256): a(f"v_mov_b32 v{r}, 0")
        a("v_and_b32 v2, 15, v1"); a("v_lshrrev_b32 v3, 4, v1"); a("v_and_b32 v4, 1, v2"); a("v_lshrrev_b32 v5, 1, v2")
        a(f"v_mul_u32_u24 v6, {CV_B}, v4"); a("v_lshl_add_u32 v6, v3, 4, v6"); a("v_lshl_add_u32 v6, v5, 3, v6"); a("v_add_u32 v6, s84, v6")
        a(f"v_mul_u32_u24 v7, {CV_U1 - CV_U0 - 8}, v4"); a("v_lshl_add_u32 v7, v3, 4, v7"); a("v_lshlrev_b32 v8, 6, v5"); a("v_sub_u32 v7, v7, v8")
        a(f"v_add_u32 v7, {CV_U0 + 2*(2056 - 1792 - 32)}, v7"); a("v_add_u32 v7, s84, v7")
        a(f"v_add_u32 v14, {CV_U0 + 20}, v13")
        for i in range(4):
            a(f"s_waitcnt vmcnt({3-i})")
            r = 16 + 4 * i
            a(f"ds_write_b128 v13, v[{r}:{r+3}] offset:{CV_U1 + 16 + i*1024}")
            a(f"ds_write2_b32 v14, v{r}, v{r+1} offset0:0 offset1:1")
            a(f"ds_write2_b32 v14, v{r+2}, v{r+3} offset0:2 offset1:3")
            if i < 3: a("v_add_u32 v14, 1024, v14")
        s.vm = []
        SA = (96, 160); SB = (128, 192)
        def reads(st, par):
            R = []
            for c in range(8):
                for hh in range(2):
                    R.append(f"ds_read_b64 v[{SA[st]+4*c+2*hh}:{SA[st]+4*c+2*hh+1}], v6 offset:{512*c + 8*hh + 64*par}")
                b = c
                for hh in range(2):
                    R.append(f"ds_read_b64 v[{SB[st]+4*b+2*hh}:{SB[st]+4*b+2*hh+1}], v7 offset:{512*(7-b) + 8*hh + 64*par}")
            return R
        def mfmas(st, full=True):
            M = []
            for c in range(8):
                for b in range(8 - c if full else 1):
                    o = 224 + 4 * (c + b)
                    M.append(f"v_mfma_f32_16x16x32_bf16 v[{o}:{o+3}], v[{SA[st]+4*c}:{SA[st]+4*c+3}], v[{SB[st]+4*b}:{SB[st]+4*b+3}], v[{o}:{o+3}]")
            return M
        def inter(M, R):
            ri = 0
            for mi, m in enumerate(M):
                a(m)
                k = 2 if mi % 3 == 0 else 1
                for _ in range(k):
                    if ri < len(R): a(R[ri]); ri += 1
            assert ri == len(R)
        for r in reads(0, 0): a(r)
        s.stamp(3)
        a("s_mov_b32 s86, 0")
        s.label("L_cv")
        a("s_waitcnt lgkmcnt(0)")
        inter(mfmas(0), reads(1, 1))
        a("v_add_u32 v6, 128, v6"); a("v_add_u32 v7, 128, v7")
        a("s_waitcnt lgkmcnt(0)")
        inter(mfmas(1), reads(0, 0))
        a("s_add_u32 s86, s86, 1"); a("s_cmp_lt_u32 s86, 4"); a("s_cbranch_scc1 L_cv")
        a("s_waitcnt lgkmcnt(0)")
        for m in mfmas(0, False): a(m)
        a("v_lshlrev_b32 v8, 4, v3"); a("v_lshl_add_u32 v8, v4, 2, v8"); a("v_lshl_add_u32 v8, v5, 6, v8")
        a(f"v_sub_u32 v8, {CV_U0 + 2*(2046 - 4) - 512}, v8"); a("v_add_u32 v8, s84, v8")
        a("s_nop 4")
        for t in range(8):
            o = 224 + 4 * t
            a(f"v_cvt_pk_bf16_f32 v{16+2*t}, v{o+3}, v{o+2}")
            a(f"v_cvt_pk_bf16_f32 v{17+2*t}, v{o+1}, v{o}")
        for t in range(8):
            off = 128 if t % 2 == 0 else 0
            a(f"ds_write2_b32 v8, v{16+2*t}, v{17+2*t} offset0:{off} offset1:{off+2}")
            if t % 2 == 1 and t < 7: a("v_subrev_u32 v8, 1024, v8")
        a("s_waitcnt lgkmcnt(0)")
        for i in range(4):
            a(f"ds_read_b128 v[{32+4*i}:{35+4*i}], v13 offset:{CV_U0 + i*1024}")
        a("s_lshl_b32 s74, s85, 12"); a(f"s_add_u32 s74, s74, {WS_YT}")
        for i in range(4):
            a(f"s_waitcnt lgkmcnt({3-i})")
            a(f"buffer_store_dwordx4 v[{32+4*i}:{35+4*i}], v12, s[44:47], s74 offen offset:{i*1024} sc1")
        s.stamp(4)
        a("s_waitcnt vmcnt(0)")
        a("s_lshl_b32 s74, s85, 3"); a(f"s_add_u32 s74, s74, {WS_FY}")
        s.write_flag(48, 74)
        s.label("L_apart")
        s.stamp(5)
        a("v_min_u32 v2, 7, v1"); a("v_lshlrev_b32 v2, 3, v2")
        a("s_lshl_b32 s74, s9, 6"); a(f"s_add_u32 s74, s74, {WS_FB}")
        s.poll(4, 2, "s74")
        a("v_sub_u32 v3, 63, v1"); a("v_lshlrev_b32 v2, 2, v3")
        a("s_lshl_b32 s74, s9, 8"); a(f"s_add_u32 s74, s74, {WS_G}")
        a("buffer_load_dword v15, v2, s[44:47], s74 offen sc1")
        a("s_mul_i32 s87, s10, 80"); a("s_mul_i32 s74, s83, 20"); a("s_add_u32 s87, s87, s74")
        a("s_lshl_b32 s88, s87, 12"); a("s_lshl_b32 s74, s9, 7"); a("s_sub_u32 s88, s88, s74"); a("s_add_u32 s88, s88, 3968")
        a("v_lshrrev_b32 v5, 3, v1"); a("v_lshlrev_b32 v5, 12, v5"); a("v_and_b32 v6, 7, v1"); a("v_lshl_add_u32 v5, v6, 4, v5")
        def tile_loads(base, reg):
            for i in range(3):
                a(f"s_add_u32 s74, s88, {base + i*8*4096}")
                if i == 2: a("s_mov_b32 exec_hi, 0")
                a(f"buffer_load_dwordx4 v[{reg+4*i}:{reg+4*i+3}], v5, s[44:47], s74 offen sc1")
                if i == 2: a("s_mov_b64 exec, -1")
        tile_loads(WS_KT, 16)
        a("s_lshl_b32 s74, s87, 1"); a("s_add_u32 s26, s26, s74"); a("s_addc_u32 s27, s27, 0")
        a("s_load_dwordx8 s[48:55], s[26:27], 0"); a("s_load_dwordx2 s[56:57], s[26:27], 32")
        a("v_add_u32 v13, s84, v12")
        a("v_mul_u32_u24 v7, 160, v3"); a("s_mul_i32 s74, s83, 40"); a(f"s_add_u32 s74, s74, {L_QT}"); a("v_add_u32 v7, s74, v7")
        for gq in range(5): a(f"ds_read_b64 v[{64+2*gq}:{65+2*gq}], v7 offset:{8*gq}")
        a("s_waitcnt vmcnt(0)")
        for i in range(3):
            if i == 2: a("s_mov_b32 exec_hi, 0")
            a(f"ds_write_b128 v13, v[{16+4*i}:{19+4*i}] offset:{i*1024}")
            if i == 2: a("s_mov_b64 exec, -1")
        a("v_and_b32 v8, 15, v1"); a("v_lshrrev_b32 v9, 2, v8"); a("v_lshlrev_b32 v9, 7, v9"); a("v_and_b32 v8, 3, v8"); a("v_lshl_add_u32 v9, v8, 3, v9")
        a("v_lshrrev_b32 v8, 4, v1"); a("v_lshl_add_u32 v9, v8, 5, v9"); a("v_add_u32 v9, s84, v9")
        a(f"v_add_u32 v2, {L_GF}, v2"); a("ds_write_b32 v2, v15")
        a("s_waitcnt lgkmcnt(0)")
        for gq in range(5): a(f"ds_read_b64_tr_b16 v[{74+2*gq}:{75+2*gq}], v9 offset:{512*gq}")
        for gq in range(5):
            for e in range(2):
                a(f"v_lshlrev_b32 v{96+4*gq+2*e}, 16, v{64+2*gq+e}"); a(f"v_and_b32 v{97+4*gq+2*e}, 0xffff0000, v{64+2*gq+e}")
                a(f"v_pk_mul_f32 v[{96+4*gq+2*e}:{97+4*gq+2*e}], v[{96+4*gq+2*e}:{97+4*gq+2*e}], v[14:15] op_sel:[0,1] op_sel_hi:[1,1]")
        a("s_waitcnt lgkmcnt(0)")
        for gq in range(5):
            for e in range(2):
                sd = 48 + 2 * gq + e
                a(f"s_lshl_b32 s58, s{sd}, 16"); a(f"s_and_b32 s59, s{sd}, 0xffff0000")
                a(f"v_lshlrev_b32 v{120+4*gq+2*e}, 16, v{74+2*gq+e}"); a(f"v_and_b32 v{121+4*gq+2*e}, 0xffff0000, v{74+2*gq+e}")
                a(f"v_pk_mul_f32 v[{120+4*gq+2*e}:{121+4*gq+2*e}], v[{120+4*gq+2*e}:{121+4*gq+2*e}], s[58:59]")
        a("v_min_u32 v2, 19, v1"); a("v_lshlrev_b32 v2, 3, v2")
        a("s_lshl_b32 s74, s87, 3"); a(f"s_add_u32 s74, s74, {WS_FY}")
        s.poll(146, 2, "s74")
        s.stamp(6)
        tile_loads(WS_YT, 16)
        a("s_waitcnt vmcnt(0)")
        for i in range(3):
            if i == 2: a("s_mov_b32 exec_hi, 0")
            a(f"ds_write_b128 v13, v[{16+4*i}:{19+4*i}] offset:{i*1024}")
            if i == 2: a("s_mov_b64 exec, -1")
        a("s_waitcnt lgkmcnt(0)")
        for gq in range(5): a(f"ds_read_b64_tr_b16 v[{74+2*gq}:{75+2*gq}], v9 offset:{512*gq}")
        a("s_waitcnt lgkmcnt(0)")
        for gq in range(5):
            for e in range(2):
                a(f"v_lshlrev_b32 v144, 16, v{74+2*gq+e}"); a(f"v_and_b32 v145, 0xffff0000, v{74+2*gq+e}")
                a(f"v_pk_add_f32 v[144:145], v[144:145], v[{120+4*gq+2*e}:{121+4*gq+2*e}]")
                a(f"v_pk_mul_f32 v[144:145], v[144:145], v[{96+4*gq+2*e}:{97+4*gq+2*e}]")
                a(f"v_cvt_pk_bf16_f32 v{64+2*gq+e}, v144, v145")
            a(f"ds_write_b64 v7, v[{64+2*gq}:{65+2*gq}] offset:{8*gq}")
        s.stamp(7)
        a("s_branch L_final")

    def xwave(s):
        a = s.a; s.vm_reset()
        s.label("L_X")
        a("s_setprio 1")
        a("s_lshr_b32 s74, s3, 1"); a("s_and_b32 s75, s3, 1")
        a("v_and_b32 v12, 31, v1"); a("v_lshrrev_b32 v13, 2, v12"); a("v_lshrrev_b32 v14, 1, v13"); a("v_xor_b32 v13, v13, v14"); a("v_and_b32 v13, 3, v13")
        a("v_lshrrev_b32 v14, 5, v1"); a("v_xor_b32 v15, v14, v13"); a("v_xor_b32 v16, 2, v15")
        a("v_lshlrev_b32 v17, 6, v12"); a("s_lshl_b32 s76, s74, 12"); a("v_add_u32 v17, s76, v17")
        a("v_lshl_add_u32 v5, v15, 4, v17"); a("v_lshl_add_u32 v6, v16, 4, v17")
        a("v_bfe_u32 v15, v1, 4, 1"); a("v_bfe_u32 v16, v1, 2, 2"); a("v_lshl_add_u32 v16, v14, 3, v16"); a("v_lshlrev_b32 v16, 6, v16")
        a("v_mul_u32_u24 v17, 6144, v15"); a("v_add_u32 v16, v16, v17")
        a("v_and_b32 v17, 1, v1"); a("v_lshl_add_u32 v16, v17, 4, v16"); a("v_bfe_u32 v17, v1, 1, 1"); a("v_lshl_add_u32 v16, v17, 3, v16")
        a(f"v_add_u32 v16, {L_WR}, v16")
        a("s_mul_i32 s76, s75, 3")
        for T in range(3):
            a(f"s_add_u32 s77, s76, {T}"); a("s_and_b32 s78, s77, 1"); a("s_lshr_b32 s77, s77, 1"); a("s_lshl_b32 s77, s77, 11")
            a("v_xor_b32 v17, s78, v15"); a(f"v_lshl_add_u32 v{2+T}, v17, 5, v16"); a(f"v_add_u32 v{2+T}, s77, v{2+T}")
        a("v_lshlrev_b32 v7, 4, v1"); a("v_add_u32 v8, 4096, v7")
        a("v_bfe_u32 v9, v1, 4, 1"); a("v_lshlrev_b32 v9, 10, v9"); a("v_lshl_add_u32 v9, v14, 8, v9"); a("v_and_b32 v17, 15, v1"); a("v_lshl_add_u32 v9, v17, 4, v9")
        for r in range(140, 256): a(f"v_mov_b32 v{r}, 0")
        BW = (120, 140); BX = (132, 152)
        def reads(buf, slot, sub):
            R = []
            for T in range(3):
                for hh in range(2):
                    R.append(f"ds_read_b64_tr_b16 v[{BW[buf]+4*T+2*hh}:{BW[buf]+4*T+2*hh+1}], v{2+T} offset:{slot*12288 + sub*1024 + hh*256}")
            X = [f"ds_read_b128 v[{BX[buf]+4*nt}:{BX[buf]+4*nt+3}], v{5+sub} offset:{slot*8192 + nt*2048}" for nt in range(2)]
            return [X[0], R[0], R[1], X[1], R[2], R[3], R[4], R[5]]
        def mfmas(buf):
            M = []
            for T in range(3):
                for nt in range(2):
                    o = 160 + 16 * (2 * T + nt)
                    M.append(f"v_mfma_f32_32x32x16_bf16 v[{o}:{o+15}], v[{BW[buf]+4*T}:{BW[buf]+4*T+3}], v[{BX[buf]+4*nt}:{BX[buf]+4*nt+3}], v[{o}:{o+15}]")
            return M
        def inter(M, R):
            a(M[0]); a(R[0]); a(R[1]); a(R[2]); a(M[1]); a(R[3]); a(R[4]); a(R[5]); a(M[2]); a(R[6]); a(R[7]); a(M[3]); a(M[4]); a(M[5])
        a("s_mov_b32 s86, 0")
        s.label("L_g1")
        for slot in range(4):
            a("s_barrier")
            inter(mfmas(1), reads(0, slot, 0))
            a("s_waitcnt lgkmcnt(0)")
            inter(mfmas(0), reads(1, slot, 1))
            a("s_waitcnt lgkmcnt(0)")
        a("s_add_u32 s86, s86, 1"); a("s_cmp_lt_u32 s86, 5"); a("s_cbranch_scc1 L_g1")
        a("s_barrier")
        for m in mfmas(1): a(m)
        s.stamp(1)
        s.read_epoch(112)
        a("v_min_u32 v114, 31, v1"); a("v_lshlrev_b32 v114, 3, v114")
        a("s_lshl_b32 s76, s10, 8"); a(f"s_add_u32 s76, s76, {WS_FA}")
        s.poll(112, 114, "s76")
        s.stamp(2)
        a("s_mul_i32 s78, s10, 3"); a("s_lshr_b32 s78, s78, 1")
        a("s_mul_i32 s79, s3, 12")
        a(f"s_mul_i32 s80, s10, {48*5120}"); a(f"s_add_u32 s80, s80, {WS_WB}")
        a(f"s_mul_i32 s81, s9, {48*4096}"); a(f"s_add_u32 s81, s81, {WS_HB}")
        def kt_of(i, dst):
            a(f"s_add_u32 s{dst}, s78, {i}"); a(f"s_cmp_ge_u32 s{dst}, 12"); a(f"s_cselect_b32 s82, 12, 0"); a(f"s_sub_u32 s{dst}, s{dst}, s82")
            a(f"s_add_u32 s{dst}, s{dst}, s79")
        def wb_loads(i):
            kt_of(i, 83); a("s_mul_i32 s83, s83, 5120"); a("s_add_u32 s83, s83, s80")
            r = 12 + 20 * (i % 5); L = []
            for dt in range(5):
                if dt < 4: s.vmem(("wb", i), f"buffer_load_dwordx4 v[{r+4*dt}:{r+4*dt+3}], v7, s[44:47], s83 offen offset:{dt*1024} sc1")
                else: s.vmem(("wb", i), f"buffer_load_dwordx4 v[{r+4*dt}:{r+4*dt+3}], v8, s[44:47], s83 offen sc1")
        def hb_loads(i):
            kt_of(i, 83); a("s_lshl_b32 s83, s83, 12"); a("s_add_u32 s83, s83, s81")
            r = 112 + 16 * (i % 4)
            for sb in range(4):
                s.vmem(("hb", i), f"buffer_load_dwordx4 v[{r+4*sb}:{r+4*sb+3}], v7, s[44:47], s83 offen offset:{sb*1024} sc1")
        a("s_mov_b32 s84, 0xbfb8aa3b"); a("s_mov_b32 s85, 0xbfb8aa3b")
        a("s_lshl_b32 s87, s6, 1"); a("s_add_u32 s87, s87, s74")
        a(f"s_mul_i32 s88, s87, {48*4096}")
        a("s_mul_i32 s89, s7, 6"); a("s_mul_i32 s90, s75, 3"); a("s_add_u32 s89, s89, s90")
        for T in range(3):
            a(f"s_add_u32 s90, s89, {T}"); a("s_and_b32 s91, s90, 1"); a("s_lshr_b32 s90, s90, 1")
            a("s_lshl_b32 s90, s90, 12"); a("s_lshl_b32 s91, s91, 9"); a("s_add_u32 s90, s90, s91"); a("s_add_u32 s90, s90, s88")
            for nt in range(2):
                ti = 2 * T + nt
                o = 160 + 16 * ti; p = 120 + 4 * ti
                if ti < 5: wb_loads(ti)
                for e in range(4): a(f"v_pk_mul_f32 v[{o+2*e}:{o+2*e+1}], v[{o+2*e}:{o+2*e+1}], s[84:85]")
                for e in range(8): a(f"v_exp_f32 v{o+e}, v{o+e}")
                for e in range(4): a(f"v_pk_add_f32 v[{o+2*e}:{o+2*e+1}], v[{o+2*e}:{o+2*e+1}], 1.0 op_sel_hi:[1,0]")
                for e in range(8): a(f"v_rcp_f32 v{o+e}, v{o+e}")
                for e in range(4): a(f"v_pk_mul_f32 v[{o+2*e}:{o+2*e+1}], v[{o+2*e}:{o+2*e+1}], v[{o+8+2*e}:{o+9+2*e}]")
                for e in range(4): a(f"v_cvt_pk_bf16_f32 v{p+e}, v{o+2*e}, v{o+2*e+1}")
                s.vmem("hst", f"buffer_store_dwordx4 v[{p}:{p+3}], v9, s[44:47], s90 offen offset:{nt*2048} sc1")
        s.stamp(3)
        s.vm_wait_all()
        a("s_lshl_b32 s90, s87, 8"); a("s_lshl_b32 s91, s7, 4"); a("s_add_u32 s90, s90, s91"); a("s_lshl_b32 s91, s75, 3"); a("s_add_u32 s90, s90, s91")
        a(f"s_add_u32 s90, s90, {WS_FH}")
        s.write_flag(144, 90)
        s.stamp(4)
        a("v_min_u32 v114, 7, v1"); a("v_lshlrev_b32 v114, 3, v114")
        a("s_lshl_b32 s90, s9, 8"); a("s_lshl_b32 s91, s3, 6"); a("s_add_u32 s90, s90, s91"); a(f"s_add_u32 s90, s90, {WS_FH}")
        s.poll(112, 114, "s90")
        s.stamp(5)
        for i in range(4): hb_loads(i)
        for i in range(12):
            s.vm_wait({("hb", i), ("wb", i)})
            rw = 12 + 20 * (i % 5); rh = 112 + 16 * (i % 4)
            for dt in range(5):
                for sb in range(4):
                    o = 176 + 4 * (4 * dt + sb)
                    c = "0" if i == 0 else f"v[{o}:{o+3}]"
                    a(f"v_mfma_f32_16x16x32_bf16 v[{o}:{o+3}], v[{rw+4*dt}:{rw+4*dt+3}], v[{rh+4*sb}:{rh+4*sb+3}], {c}")
            if i + 4 < 12: hb_loads(i + 4)
            if i + 5 < 12: wb_loads(i + 5)
        s.stamp(6)
        a("v_and_b32 v12, 15, v1"); a("v_lshrrev_b32 v13, 4, v1"); a("v_bfe_u32 v14, v1, 1, 2"); a("v_xor_b32 v13, v13, v14")
        a("v_mul_u32_u24 v12, 320, v12"); a("v_lshl_add_u32 v12, v13, 4, v12"); a("s_mul_i32 s76, s3, 20480"); a("v_add_u32 v12, s76, v12")
        a("s_nop 4")
        for dt in range(5):
            for sb in range(4):
                o = 176 + 4 * (4 * dt + sb)
                a(f"ds_write_b128 v12, v[{o}:{o+3}] offset:{sb*5120 + dt*64}")
        s.stamp(7)

    def final(s):
        a = s.a
        s.label("L_final")
        a("s_waitcnt lgkmcnt(0)"); a("s_barrier")
        s.stamp(8)
        s.srd(48, 38, 2621440)
        a(f"s_mul_i32 s74, s9, {64*1280}"); a("s_mul_i32 s75, s10, 160"); a("s_add_u32 s74, s74, s75")
        def item(first):
            a("v_mul_u32_u24 v13, 6554, v12"); a("v_lshrrev_b32 v13, 16, v13")
            a("v_mul_u32_u24 v14, 10, v13"); a("v_sub_u32 v14, v12, v14")
            a("v_bfe_u32 v15, v13, 1, 2"); a("v_lshlrev_b32 v16, 1, v14"); a("v_xor_b32 v16, v16, v15"); a("v_xor_b32 v17, 1, v16")
            a("v_mul_u32_u24 v18, 320, v13"); a("v_lshl_add_u32 v16, v16, 4, v18"); a("v_lshl_add_u32 v17, v17, 4, v18")
            for w in range(4):
                a(f"ds_read_b128 v[{32+8*w}:{35+8*w}], v16 offset:{w*20480}")
                a(f"ds_read_b128 v[{36+8*w}:{39+8*w}], v17 offset:{w*20480}")
            a(f"v_lshlrev_b32 v19, 4, v12"); a(f"v_add_u32 v19, {L_QT}, v19"); a("ds_read_b128 v[24:27], v19")
            a(f"v_lshlrev_b32 v19, 2, v13"); a(f"v_add_u32 v19, {L_GF}, v19"); a("ds_read_b32 v20, v19")
            a("v_mul_u32_u24 v22, 1120, v13"); a("v_lshl_add_u32 v22, v12, 4, v22")
            a("s_waitcnt lgkmcnt(2)")
            for e in range(4):
                a(f"v_pk_add_f32 v[{32+2*e}:{33+2*e}], v[{32+2*e}:{33+2*e}], v[{40+2*e}:{41+2*e}]")
                a(f"v_pk_add_f32 v[{48+2*e}:{49+2*e}], v[{48+2*e}:{49+2*e}], v[{56+2*e}:{57+2*e}]")
            for e in range(4):
                a(f"v_pk_add_f32 v[{32+2*e}:{33+2*e}], v[{32+2*e}:{33+2*e}], v[{48+2*e}:{49+2*e}]")
            a("s_waitcnt lgkmcnt(0)")
            a("v_sub_f32 v20, 1.0, v20"); a("v_cvt_pk_bf16_f32 v20, v20, v20"); a("v_and_b32 v20, 0xffff0000, v20")
            for e in range(4):
                a(f"v_lshlrev_b32 v{40+2*e}, 16, v{24+e}"); a(f"v_and_b32 v{41+2*e}, 0xffff0000, v{24+e}")
                a(f"v_pk_fma_f32 v[{40+2*e}:{41+2*e}], v[{32+2*e}:{33+2*e}], v[20:21], v[{40+2*e}:{41+2*e}] op_sel_hi:[1,0,1]")
            for e in range(4):
                a(f"v_cvt_pk_bf16_f32 v{28+e}, v{40+2*e}, v{41+2*e}")
            a("buffer_store_dwordx4 v[28:31], v22, s[48:51], s74 offen")
        a("v_mov_b32 v12, v0")
        item(True)
        a("s_cmp_lt_u32 s3, 6"); a("s_cbranch_scc1 L_fin2")
        a("v_add_u32 v12, 128, v0")
        item(False)
        s.label("L_fin2")
        if s.opt.get("stamps"):
            s.stamp(9)
            a("s_waitcnt vmcnt(0)")
            s.stamp(10)
            a("s_memrealtime s[76:77]"); a("s_waitcnt lgkmcnt(0)"); a("v_writelane_b32 v11, s76, 11")
            a("s_lshl_b32 s74, s2, 3"); a("s_add_u32 s74, s74, s3"); a("s_lshl_b32 s74, s74, 8"); a(f"s_add_u32 s74, s74, {WS_STAMP}")
            a("v_lshlrev_b32 v12, 2, v1")
            a("buffer_store_dword v11, v12, s[44:47], s74 offen")
        s.label("L_end")
        a("s_endpgm")

    def build(s):
        s.nt = "nt" if s.opt.get("nt", 1) else ""
        hdr = open("gated_mix__ssm_conv_h3__glu_gated_glu__prompt.s.ref").read().split("; Override launch")[0]
        out = hdr + f"; @launch grid=(256,1,1) block=(512,1,1) lds={LDS_TOTAL}\n"
        out += '.amdgcn_target "amdgcn-amd-amdhsa--gfx950"\n.text\n' + f".globl {KN}\n.p2align 8\n.type {KN},@function\n{KN}:\n"
        s.prologue(); s.loader(); s.chore0(); s.chore1(); s.ywave(); s.xwave(); s.final()
        out += "\n".join(s.L) + "\n"
        out += f""".section .rodata,"a"
.p2align 6
.amdhsa_kernel {KN}
  .amdhsa_next_free_vgpr 256
  .amdhsa_next_free_sgpr 96
  .amdhsa_accum_offset 256
  .amdhsa_group_segment_fixed_size 0
  .amdhsa_kernarg_size 112
  .amdhsa_user_sgpr_count 2
  .amdhsa_user_sgpr_kernarg_segment_ptr 1
  .amdhsa_system_sgpr_workgroup_id_x 1
.end_amdhsa_kernel
"""
        return out

if __name__ == "__main__":
    opt = {}
    outp = sys.argv[1]
    for x in sys.argv[2:]:
        k, v = x.split("="); opt[k] = int(v)
    open(outp, "w").write(Gen(opt).build())
```

```python
import sys
KN = "gated_mix__ssm_conv_h3__glu_gated_glu__prompt_kernel"

WS_HB = 0x000000; WS_WB = 0x600000; WS_KT = 0x800000; WS_YT = 0xB00000
WS_G = 0xE00000; WS_FA = 0xE10000; WS_FB = 0xE12000; WS_FH = 0xE14000; WS_FY = 0xE16000
WS_STAMP = 0xF00000
L_XR = 0; L_WR = 32768; L_CV = 81920; CV_SZ = 17728; H_SZ = 8448; L_QT = 152832; L_MISC = 163072; LDS_TOTAL = 163840
CV_A = 0; CV_B = 4224; CV_U0 = 0; CV_U1 = 4640
L_FULL = L_MISC; L_FREE = L_MISC + 16; L_EPOCH = L_MISC + 32; L_QDONE = L_MISC + 40; L_SDONE = L_MISC + 48; L_XG2 = L_MISC + 56; L_GF = L_MISC + 256
SC_K = 0; SC_V = 6720; SC_SHK = 13440; L_T = L_CV; L_WDS = L_CV + CV_SZ
SPIN_MAX = 30000
NCONV = 160

class Gen:
    def __init__(s, opt):
        s.L = []; s.opt = opt; s.vm = []; s.lab = 0; s.vstamp = 11
    def a(s, x): s.L.append("    " + x)
    def label(s, x): s.L.append(x + ":")
    def newlab(s, p="L"):
        s.lab += 1; return f"{p}_{s.lab}"
    def vm_reset(s): s.vm = []
    def vmem(s, tag, ins): s.a(ins); s.vm.append(tag)
    def vm_wait(s, tags):
        idx = -1
        for i, t in enumerate(s.vm):
            if t in tags: idx = i
        if idx < 0: return
        n = len(s.vm) - 1 - idx
        assert n <= 63
        s.a(f"s_waitcnt vmcnt({n})")
        s.vm = s.vm[idx + 1:]
    def vm_wait_all(s):
        s.a("s_waitcnt vmcnt(0)"); s.vm = []
    def ex(s, n):
        if n >= 64: s.a("s_mov_b64 exec, -1")
        elif n > 32: s.a("s_mov_b32 exec_lo, -1"); s.a(f"s_mov_b32 exec_hi, {hex((1 << (n - 32)) - 1)}")
        elif n == 32: s.a("s_mov_b32 exec_hi, 0")
        else: s.a(f"s_mov_b32 exec_lo, {hex((1 << n) - 1)}"); s.a("s_mov_b32 exec_hi, 0")
    def srd(s, d, p, nbytes):
        s.a(f"s_mov_b32 s{d}, s{p}"); s.a(f"s_and_b32 s{d+1}, s{p+1}, 0xffff")
        s.a(f"s_mov_b32 s{d+2}, {nbytes}"); s.a(f"s_mov_b32 s{d+3}, 0x20000")
    def stamp(s, idx, lvl=1):
        if s.opt.get("stamps", 0) >= 1 and (lvl == 1 or s.opt.get("stamps", 0) == lvl):
            s.a("s_memtime s[96:97]"); s.a("s_waitcnt lgkmcnt(0)")
            s.a(f"v_writelane_b32 v{s.vstamp}, s96, {idx}")
    def poll(s, vflag, voff, soff, scnt=94, slp=None):
        l0 = s.newlab("L_poll"); l1 = s.newlab("L_pdone")
        s.a(f"s_mov_b32 s{scnt}, {SPIN_MAX}")
        s.label(l0)
        s.a(f"buffer_load_dwordx2 v[{vflag}:{vflag+1}], v{voff}, s[44:47], {soff} offen sc1")
        s.a("s_waitcnt vmcnt(0)")
        s.a(f"v_cmp_ne_u64 vcc, s[72:73], v[{vflag}:{vflag+1}]")
        s.a("s_nop 1")
        s.a(f"s_cbranch_vccz {l1}")
        slp = s.opt.get("slp", 4) if slp is None else slp
        if slp: s.a(f"s_sleep {slp}")
        s.a(f"s_sub_u32 s{scnt}, s{scnt}, 1")
        s.a(f"s_cbranch_scc0 {l0}")
        s.label(l1)
        s.vm = []
    def lds_wait(s, addr, nw, need, vt, scache=None, scnt=94, slp=0):
        a = s.a
        sc = scache if scache is not None else 95
        l0 = s.newlab("L_lw"); l1 = s.newlab("L_lwd")
        if scache is not None:
            a(f"s_cmp_ge_u32 s{sc}, {need}"); a(f"s_cbranch_scc1 {l1}")
        a(f"s_mov_b32 s{scnt}, {SPIN_MAX * 8}")
        a(f"v_mov_b32 v{vt+4}, {addr}")
        s.label(l0)
        if nw == 1: a(f"ds_read_b32 v{vt}, v{vt+4}")
        elif nw == 2: a(f"ds_read_b64 v[{vt}:{vt+1}], v{vt+4}")
        else: a(f"ds_read_b128 v[{vt}:{vt+3}], v{vt+4}")
        a("s_waitcnt lgkmcnt(0)")
        if nw == 2: a(f"v_min_u32 v{vt}, v{vt}, v{vt+1}")
        if nw == 4: a(f"v_min_u32 v{vt}, v{vt}, v{vt+1}"); a(f"v_min3_u32 v{vt}, v{vt}, v{vt+2}, v{vt+3}")
        a("s_nop 0")
        a(f"v_readfirstlane_b32 s{sc}, v{vt}")
        a("s_nop 1")
        a(f"s_cmp_ge_u32 s{sc}, {need}"); a(f"s_cbranch_scc1 {l1}")
        if slp: a(f"s_sleep {slp}")
        a(f"s_sub_u32 s{scnt}, s{scnt}, 1"); a(f"s_cbranch_scc0 {l0}")
        s.label(l1)
    def read_epoch(s, vt):
        a = s.a; l0 = s.newlab("L_re"); l1 = s.newlab("L_red")
        a(f"s_mov_b32 s94, {SPIN_MAX * 8}"); a(f"v_mov_b32 v{vt+2}, {L_EPOCH}")
        s.label(l0)
        a(f"ds_read_b64 v[{vt}:{vt+1}], v{vt+2}")
        a("s_waitcnt lgkmcnt(0)")
        a(f"v_readfirstlane_b32 s72, v{vt}"); a(f"v_readfirstlane_b32 s73, v{vt+1}"); a("s_nop 1")
        a("s_cmp_lg_u32 s73, 0"); a(f"s_cbranch_scc1 {l1}")
        a("s_sub_u32 s94, s94, 1"); a(f"s_cbranch_scc0 {l0}")
        s.label(l1)
    def write_flag(s, vt, sreg):
        s.a(f"v_mov_b32 v{vt}, s72"); s.a(f"v_mov_b32 v{vt+1}, s73"); s.a(f"v_mov_b32 v{vt+2}, 0")
        s.a("s_mov_b64 exec, 1")
        s.vmem("flag", f"buffer_store_dwordx2 v[{vt}:{vt+1}], v{vt+2}, s[44:47], s{sreg} offen sc1")
        s.a("s_mov_b64 exec, -1")
    def lds_set(s, vt, addr_sreg_or_const, val):
        s.a(f"v_mov_b32 v{vt}, {addr_sreg_or_const}"); s.a(f"v_mov_b32 v{vt+1}, {val}"); s.a(f"ds_write_b32 v{vt}, v{vt+1}")

    def prologue(s):
        a = s.a
        a("s_cmp_ge_u32 s2, 256"); a("s_cbranch_scc1 L_end")
        a("s_load_dwordx16 s[16:31], s[0:1], 0")
        a("s_load_dwordx8 s[32:39], s[0:1], 64")
        a("s_load_dwordx4 s[40:43], s[0:1], 96")
        a("v_lshrrev_b32 v2, 6, v0")
        a("v_and_b32 v1, 63, v0")
        a("v_readfirstlane_b32 s3, v2")
        a("s_and_b32 s4, s2, 7"); a("s_lshr_b32 s5, s2, 3")
        a("s_lshr_b32 s6, s4, 2"); a("s_lshl_b32 s6, s6, 3"); a("s_and_b32 s11, s5, 7"); a("s_add_u32 s6, s6, s11")
        a("s_and_b32 s7, s4, 3"); a("s_lshl_b32 s7, s7, 2"); a("s_lshr_b32 s12, s5, 3"); a("s_add_u32 s7, s7, s12")
        a("s_lshl_b32 s8, s12, 1"); a("s_add_u32 s8, s8, s11"); a("s_and_b32 s8, s8, 7")
        a("s_lshl_b32 s9, s4, 2"); a("s_and_b32 s13, s5, 3"); a("s_add_u32 s9, s9, s13"); a("s_lshr_b32 s10, s5, 2")
        if s.opt.get("stamps"): a("v_mov_b32 v11, 0")
        a("v_lshlrev_b32 v12, 4, v1")
        a("s_waitcnt lgkmcnt(0)")
        s.srd(44, 42, 0x10000000)
        s.stamp(0)
        a("s_cmp_lt_u32 s3, 4"); a("s_cbranch_scc1 L_X")
        a("s_cmp_ge_u32 s3, 6"); a("s_cbranch_scc1 L_C")

    def loader(s):
        a = s.a; s.vm_reset()
        s.label("L_L")
        a(f"s_setprio {s.opt.get('lprio', 3)}")
        a("s_sub_u32 s74, s3, 4")
        s.srd(48, 16, 2621440)
        a("s_cmp_eq_u32 s74, 0")
        a("s_cselect_b32 s52, s30, s32"); a("s_cselect_b32 s53, s31, s33"); a("s_and_b32 s53, s53, 0xffff")
        a("s_mov_b32 s54, 1966080"); a("s_mov_b32 s55, 0x20000")
        a("v_lshrrev_b32 v4, 2, v1"); a("v_mul_u32_u24 v2, 3072, v4")
        a("s_lshl_b32 s75, s74, 1"); a("v_and_b32 v5, 3, v1"); a("v_xor_b32 v6, s75, v5"); a("v_lshl_add_u32 v2, v6, 4, v2")
        a("s_mul_i32 s75, s7, 192"); a("v_add_u32 v2, s75, v2")
        a("v_mul_u32_u24 v3, 1280, v4")
        a("v_lshrrev_b32 v6, 4, v1"); a("s_lshl_b32 s75, s74, 2"); a("v_add_u32 v6, s75, v6")
        a("v_lshrrev_b32 v7, 1, v6"); a("v_xor_b32 v6, v6, v7"); a("v_and_b32 v6, 3, v6"); a("v_xor_b32 v6, v6, v5")
        a("v_lshl_add_u32 v3, v6, 4, v3")
        a("s_lshl_b32 s75, s6, 3"); a("s_add_u32 s75, s75, s74"); a(f"s_mul_i32 s75, s75, {16*1280}"); a("v_add_u32 v3, s75, v3")
        a("s_lshl_b32 s78, s74, 10")
        a(f"s_mul_i32 s79, s74, 6144"); a(f"s_add_u32 s79, s79, {L_WR}")
        groups = s.opt.get("groups", (1,) * 10)
        if s.opt.get("cyc", 1): a("s_mul_i32 s8, s8, 5"); a("s_lshr_b32 s8, s8, 2")
        def dsel(D):
            if s.opt.get("cyc", 1):
                a(f"s_add_u32 s80, s8, {D}"); a("s_cmp_ge_u32 s80, 10"); a("s_cselect_b32 s15, 10, 0"); a("s_sub_u32 s80, s80, s15")
                return
            b = 0
            for g in groups:
                if D < b + g: break
                b += g
            if g == 1: a(f"s_mov_b32 s80, {D}"); return
            assert g in (2, 4, 8)
            src = "s8" if g == 8 else ("s14" if g == 4 else "s15")
            a(f"s_add_u32 s80, {src}, {D - b}"); a(f"s_and_b32 s80, s80, {g - 1}")
            if b: a(f"s_add_u32 s80, s80, {b}")
        a("s_add_u32 s14, s11, s12"); a("s_mov_b32 s15, s14")
        def issue_x(D):
            dsel(D); a("s_lshl_b32 s81, s80, 7")
            for gi in range(4):
                for h in range(2):
                    t = 2 * D + h
                    a(f"s_add_u32 m0, s78, {L_XR + (t & 3) * 8192 + gi * 2048}")
                    a(f"s_add_u32 s82, s81, {gi * 32 * 1280 + h * 64}")
                    s.vmem(("x", t), f"buffer_load_dwordx4 v3, s[48:51], s82 offen lds")
        def issue_w(t):
            dsel(t >> 1); a(f"s_mul_i32 s81, s80, {64*3072}")
            for rh in range(2):
                for pc in range(3):
                    a(f"s_add_u32 m0, s79, {(t & 3) * 12288 + pc * 2048 + rh * 1024}")
                    a(f"s_add_u32 s82, s81, {(32 * (t & 1) + 16 * rh) * 3072 + pc * 64}")
                    s.vmem(("w", t), f"buffer_load_dwordx4 v2, s[52:55], s82 offen lds")
        def publish(t):
            s.vm_wait({("x", t), ("w", t), ("x", t | 1)})
            s.stamp(40 + t, 2)
            a("s_barrier")
            s.stamp(16 + t, 2)
        if s.opt.get("lfill", 0):
            issue_w(0); issue_x(0); issue_w(1); issue_x(1); issue_w(2); issue_w(3); publish(0); publish(1)
        else:
            issue_w(0); issue_x(0); issue_w(1); publish(0)
            issue_x(1); issue_w(2); issue_w(3); publish(1)
        for n in range(1, 19):
            if n % 2 == 0 and n + 2 < 20: issue_x((n + 2) // 2)
            if n + 3 < 20: issue_w(n + 3)
            publish(n + 1)
        a("s_mov_b32 s83, s74")
        a("s_branch L_Y")

    def row_loads(s, srd, nrows, vfirst, vrest, reg, tag, nt):
        a = s.a
        for i in range((nrows + 4) // 5):
            n = min(5, nrows - 5 * i)
            if i == 0 or n < 5: s.ex(12 * n)
            r = reg + 4 * i
            if i == 0: s.vmem(tag, f"buffer_load_dwordx4 v[{r}:{r+3}], v{vfirst}, s[{srd}:{srd+3}], 0 offen {nt}")
            else:
                a(f"s_mov_b32 s77, {6400*(i-1)}")
                s.vmem(tag, f"buffer_load_dwordx4 v[{r}:{r+3}], v{vrest}, s[{srd}:{srd+3}], s77 offen {nt}")
        a("s_mov_b64 exec, -1")
    def img_write(s, sbase, off, n, reg):
        a = s.a
        a(f"v_add_u32 v13, s{sbase}, v12"); s.ex(60)
        for i in range(n): a(f"ds_write_b128 v13, v[{reg+4*i}:{reg+4*i+3}] offset:{off + 960*i}")
        a("s_mov_b64 exec, -1")
    def h_copies(s, sbase, reg, half=None):
        a = s.a
        a(f"v_add_u32 v13, s{sbase}, v12")
        for i in (range(4) if half is None else range(2 * half, 2 * half + 2)):
            r = reg + 4 * i
            if i == 0: a("v_mov_b32 v234, 0")
            else:
                a(f"v_readlane_b32 s74, v{r-1}, 63"); a("s_nop 1"); a("v_mov_b32 v234, s74")
            a("s_nop 1")
            a(f"v_mov_b32_dpp v234, v{r+3} wave_shr:1 row_mask:0xf bank_mask:0xf")
            a(f"ds_write_b128 v13, v[{r}:{r+3}] offset:{CV_B + 64 + i*1024}")
            a(f"v_alignbit_b32 v236, v{r}, v234, 16")
            a(f"v_alignbit_b32 v237, v{r+1}, v{r}, 16")
            a(f"v_alignbit_b32 v238, v{r+2}, v{r+1}, 16")
            a(f"v_alignbit_b32 v239, v{r+3}, v{r+2}, 16")
            a(f"ds_write_b128 v13, v[236:239] offset:{CV_A + 64 + i*1024}")
        if half == 0: return
        a("v_lshrrev_b32 v234, 2, v1"); a("v_and_b32 v235, 1, v234"); a("v_mul_u32_u24 v235, 4160, v235")
        a("v_lshrrev_b32 v234, 1, v234"); a(f"v_mul_u32_u24 v234, {CV_B}, v234"); a("v_add_u32 v235, v235, v234")
        a("v_and_b32 v234, 3, v1"); a("v_lshl_add_u32 v235, v234, 4, v235"); a(f"v_add_u32 v235, s{sbase}, v235")
        for r in range(236, 240): a(f"v_mov_b32 v{r}, 0")
        s.ex(16)
        a("ds_write_b128 v235, v[236:239]")
        a("s_mov_b64 exec, -1")
    def u_stage(s, sbase, reg, nwait0):
        a = s.a
        a(f"v_add_u32 v13, s{sbase}, v12")
        a(f"ds_write_b128 v13, v[32:35] offset:{CV_U0 + 4112}")
        a("s_mov_b64 exec, 3"); a(f"ds_write_b128 v13, v[32:35] offset:{CV_U0}")
        s.ex(33); a(f"ds_write_b128 v13, v[32:35] offset:{CV_U1 + 4112}")
        a("s_mov_b64 exec, -1")
        a(f"v_add_u32 v14, {CV_U0 + 20}, v13")
        for i in range(4):
            a(f"s_waitcnt vmcnt({nwait0 + 3 - i})")
            r = reg + 4 * i
            a(f"ds_write_b128 v13, v[{r}:{r+3}] offset:{CV_U1 + 16 + i*1024}")
            a(f"ds_write2_b32 v14, v{r}, v{r+1} offset0:0 offset1:1")
            a(f"ds_write2_b32 v14, v{r+2}, v{r+3} offset0:2 offset1:3")
            if i < 3: a("v_add_u32 v14, 1024, v14")

    def chore(s):
        a = s.a; s.vm_reset(); nt = s.nt
        s.label("L_C")
        a(f"s_setprio {s.opt.get('cprio', 2)}")
        a("s_sub_u32 s78, s3, 6")
        a(f"s_mul_i32 s79, s78, {CV_SZ}"); a(f"s_add_u32 s79, s79, {L_CV}")
        a(f"s_add_u32 s84, s79, {2*CV_SZ}")
        a("s_mul_i32 s93, s78, 4800"); a(f"s_add_u32 s93, s93, {L_WDS}")
        s.srd(64, 40, 256)
        l = s.newlab("L_noep")
        a("s_cmp_lg_u32 s2, 0"); a(f"s_cbranch_scc1 {l}"); a("s_cmp_lg_u32 s78, 0"); a(f"s_cbranch_scc1 {l}")
        a("s_memrealtime s[74:75]"); a("s_waitcnt lgkmcnt(0)"); a("s_or_b32 s75, s75, 0x40000000")
        a("v_mov_b32 v2, s74"); a("v_mov_b32 v3, s75"); a("v_mov_b32 v4, 0")
        a("s_mov_b64 exec, 1"); a("buffer_store_dwordx2 v[2:3], v4, s[64:67], 0 offen sc1"); a("s_mov_b64 exec, -1")
        s.label(l)
        s.srd(48, 18, 2621440); s.srd(52, 20, 2621440); s.srd(56, 22, 5120); s.srd(60, 24, 2621440)
        s.srd(68, 16, 2621440); s.srd(88, 34, 1966080)
        a("s_and_b32 s85, s10, 1"); a("s_lshl_b32 s85, s85, 5")
        a("s_mul_i32 s80, s10, 160"); a("s_sub_u32 s80, s80, s85")
        a("s_lshl_b32 s81, s9, 6"); a("s_lshl_b32 s74, s78, 5"); a("s_add_u32 s81, s81, s74")
        a("v_mul_u32_u24 v4, 5462, v1"); a("v_lshrrev_b32 v4, 16, v4")
        a("v_mul_u32_u24 v5, 12, v4"); a("v_sub_u32 v5, v1, v5")
        a("v_mul_u32_u24 v6, 1280, v4"); a("v_lshl_add_u32 v6, v5, 4, v6"); a("v_add_u32 v6, s80, v6")
        a("s_mul_i32 s74, s9, 48"); a("s_mul_i32 s75, s78, 24"); a("s_add_u32 s74, s74, s75"); a("s_mul_i32 s74, s74, 1280")
        a("v_add_u32 v16, s74, v6"); a("v_add_u32 v17, 6400, v16")
        a("s_mul_i32 s74, s81, 1280")
        a("v_add_u32 v20, s74, v6"); a("v_add_u32 v21, 6400, v20")
        a(f"v_subrev_u32 v18, {3*1280}, v20"); a("v_add_u32 v19, 6400, v18")
        a("s_lshr_b32 s74, s85, 4"); a("v_subrev_u32 v7, s74, v5")
        a("v_cmp_gt_u32 s[86:87], 10, v7"); a("v_cmp_gt_u32 vcc, 60, v1"); a("s_and_b64 s[86:87], s[86:87], vcc")
        a("v_mul_u32_u24 v22, 160, v4"); a("v_lshl_add_u32 v22, v7, 4, v22")
        a(f"s_mul_i32 s76, s78, 5120"); a(f"s_add_u32 s76, s76, {L_QT}"); a("v_add_u32 v22, s76, v22")
        a("s_lshl_b32 s75, s9, 6"); a("s_lshl_b32 s76, s10, 3"); a("s_add_u32 s75, s75, s76"); a("s_lshl_b32 s76, s78, 2"); a("s_add_u32 s82, s75, s76")
        a("v_lshrrev_b32 v14, 4, v1"); a("v_mul_u32_u24 v14, 1280, v14"); a("v_and_b32 v15, 15, v1"); a("v_lshlrev_b32 v15, 4, v15"); a("v_add_u32 v14, v14, v15")
        a("v_and_b32 v240, 15, v1"); a("v_lshrrev_b32 v241, 4, v1")
        a("v_lshrrev_b32 v242, 2, v240"); a("v_mul_u32_u24 v242, 192, v242"); a("v_and_b32 v243, 3, v240"); a("v_lshl_add_u32 v242, v243, 3, v242")
        a(f"v_add_u32 v242, s93, v242"); a("v_add_u32 v242, s85, v242")
        a("s_mul_i32 s74, s9, 6"); a("s_mul_i32 s75, s78, 3"); a("s_add_u32 s74, s74, s75")
        for p in range(4):
            a(f"v_add_u32 v243, {4*p}, v241"); a("v_mul_u32_u24 v244, 52, v243"); a("v_lshrrev_b32 v244, 8, v244")
            a("v_mul_u32_u24 v245, 5, v244"); a("v_sub_u32 v245, v243, v245")
            a(f"v_mul_u32_u24 v{24+p}, 1536, v244"); a(f"v_lshl_add_u32 v{24+p}, v245, 5, v{24+p}"); a(f"v_add_u32 v{24+p}, v{24+p}, v242")
            a("v_add_u32 v244, s74, v244"); a("v_lshrrev_b32 v247, 2, v244"); a(f"v_mul_u32_u24 v{28+p}, 5120, v247")
            a("v_and_b32 v244, 3, v244"); a(f"v_lshl_add_u32 v{28+p}, v244, 8, v{28+p}"); a(f"v_lshl_add_u32 v{28+p}, v245, 10, v{28+p}")
            a(f"v_lshl_add_u32 v{28+p}, v240, 4, v{28+p}")
        a("v_lshrrev_b32 v6, 3, v1"); a("v_and_b32 v7, 7, v1"); a("s_mul_i32 s74, s78, 40"); a("v_add_u32 v6, s74, v6")
        for i in range(5):
            a(f"v_add_u32 v8, {8*i}, v6"); a("v_mul_u32_u24 v9, 3277, v8"); a("v_lshrrev_b32 v9, 16, v9")
            a("v_mul_u32_u24 v10, 20, v9"); a("v_sub_u32 v8, v8, v10")
            a("v_lshl_add_u32 v9, v8, 2, v9"); a("v_xor_b32 v8, v8, v7"); a("v_and_b32 v8, 7, v8"); a("v_lshlrev_b32 v8, 4, v8")
            a(f"v_lshl_add_u32 v{32+i}, v9, 12, v8")
        a("v_mov_b32 v23, 0")
        sched = {t: [] for t in range(21)}
        dl = s.opt.get("dl", 3)
        def rowl(srd, nrows, vfirst, vrest, reg, tag, ntf):
            out = []
            for i in range((nrows + 4) // 5):
                def f(i=i):
                    n = min(5, nrows - 5 * i); r = reg + 4 * i
                    s.ex(12 * n)
                    if i == 0: s.vmem(tag, f"buffer_load_dwordx4 v[{r}:{r+3}], v{vfirst}, s[{srd}:{srd+3}], 0 offen {ntf}")
                    else:
                        a(f"s_mov_b32 s77, {6400*(i-1)}")
                        s.vmem(tag, f"buffer_load_dwordx4 v[{r}:{r+3}], v{vrest}, s[{srd}:{srd+3}], s77 offen {ntf}")
                    a("s_mov_b64 exec, -1")
                out.append(f)
            return out
        Lk = rowl(48, 35, 18, 19, 40, "k", nt); Lv = rowl(52, 32, 20, 21, 68, "v", nt); Lw = rowl(88, 24, 16, 17, 96, "wd", nt)
        Lq = rowl(68, 32, 20, 21, 196, "q", "")
        def lshk():
            a("s_mul_i32 s75, s10, 640"); s.ex(40)
            s.vmem("v", "buffer_load_dwordx4 v[116:119], v12, s[56:59], s75 offen")
            a("s_mov_b64 exec, -1")
            s.vmem("ep", "buffer_load_dwordx2 v[38:39], v23, s[64:67], 0 offen sc1")
        def lgx(i):
            a("s_mul_i32 s75, s82, 1280")
            s.vmem("gx", f"buffer_load_dwordx4 v[{124+4*i}:{127+4*i}], v14, s[68:71], s75 offen offset:{i*256}")
        def lgw():
            s.srd(56, 36, 1280)
            for i in range(5):
                s.vmem("gx", f"buffer_load_dwordx4 v[{144+4*i}:{147+4*i}], v15, s[56:59], 0 offen offset:{i*256}")
        def lh(i):
            a("s_lshl_b32 s74, s2, 2"); a(f"s_add_u32 s74, s74, {2*(i//4)}"); a("s_add_u32 s74, s74, s78"); a("s_lshl_b32 s74, s74, 12")
            s.vmem("h", f"buffer_load_dwordx4 v[{164+4*i}:{167+4*i}], v12, s[60:63], s74 offen offset:{(i&3)*1024} {nt}")
        def two(f, g): return lambda: (f(), g())
        cold = Lk + [two(Lv[0], lshk)] + Lv[1:] + Lw
        def w1(): s.vm_wait({"k"}); s.stamp(2); s.img_write(84, SC_K, 7, 40)
        def w2():
            s.vm_wait({"v"}); s.img_write(84, SC_V, 7, 68)
            s.ex(40); a(f"ds_write_b128 v13, v[116:119] offset:{SC_SHK}"); a("s_mov_b64 exec, -1")
        def w3(): s.vm_wait({"wd"}); s.img_write(93, 0, 5, 96); a("s_waitcnt lgkmcnt(0)")
        def wd():
            for p in range(4):
                a(f"ds_read_b64_tr_b16 v[{96+4*p}:{97+4*p}], v{24+p}")
                a(f"ds_read_b64_tr_b16 v[{98+4*p}:{99+4*p}], v{24+p} offset:768")
            a(f"s_mul_i32 s74, s10, {48*5120}"); a(f"s_add_u32 s74, s74, {WS_WB}")
            a("s_waitcnt lgkmcnt(0)")
            for p in range(4):
                if p == 3: s.ex(48)
                s.vmem("st", f"buffer_store_dwordx4 v[{96+4*p}:{99+4*p}], v{28+p}, s[44:47], s74 offen sc1")
            a("s_mov_b64 exec, -1")
        def gate():
            s.vm_wait({"gx", "ep"})
            a("v_mov_b32 v240, 0"); a("v_mov_b32 v241, 0")
            for i in range(20): a(f"v_dot2_f32_bf16 v{240 + (i & 1)}, v{124+i}, v{144+i}, v{240 + (i & 1)}")
            l0 = s.newlab("L_ep"); l1_ = s.newlab("L_epd")
            a(f"s_mov_b32 s94, {SPIN_MAX}")
            s.label(l0)
            a("v_readfirstlane_b32 s72, v38"); a("v_readfirstlane_b32 s73, v39"); a("s_nop 1")
            a("s_cmp_lg_u32 s73, 0"); a(f"s_cbranch_scc1 {l1_}")
            a("buffer_load_dwordx2 v[38:39], v23, s[64:67], 0 offen sc1")
            a("s_waitcnt vmcnt(0)")
            a("s_sub_u32 s94, s94, 1"); a(f"s_cbranch_scc0 {l0}")
            s.label(l1_)
            a(f"v_mov_b32 v242, {L_EPOCH}"); a("ds_write_b64 v242, v[38:39]")
            a("v_add_f32 v240, v240, v241"); a("s_nop 1")
            for ctl in ("quad_perm:[1,0,3,2]", "quad_perm:[2,3,0,1]", "row_half_mirror", "row_mirror"):
                a(f"v_add_f32_dpp v240, v240, v240 {ctl} row_mask:0xf bank_mask:0xf"); a("s_nop 1")
            a("v_cvt_pk_bf16_f32 v240, v240, v240"); a("v_and_b32 v240, 0xffff0000, v240")
            a("v_mul_f32 v240, 0xbfb8aa3b, v240"); a("v_exp_f32 v240, v240"); a("s_nop 0"); a("v_add_f32 v240, 1.0, v240")
            a("v_rcp_f32 v240, v240"); a("s_nop 0")
            a("v_cvt_pk_bf16_f32 v240, v240, v240"); a("v_and_b32 v240, 0xffff0000, v240")
            a("s_lshl_b32 s74, s82, 2"); a(f"s_add_u32 s74, s74, {WS_G}")
            a("v_lshrrev_b32 v241, 4, v1"); a("v_lshlrev_b32 v241, 2, v241")
            a("s_mov_b32 exec_lo, 0x00010001"); a("s_mov_b32 exec_hi, 0x00010001")
            s.vmem("st", "buffer_store_dword v240, v241, s[44:47], s74 offen sc1")
            a("s_mov_b64 exec, -1")
        def qc():
            s.vm_wait({"q"})
            a("s_mov_b64 exec, s[86:87]")
            for i in range(7):
                if i == 6: a("s_and_b32 exec_lo, exec_lo, 0xffffff"); a("s_mov_b32 exec_hi, 0")
                a(f"ds_write_b128 v22, v[{196+4*i}:{199+4*i}] offset:{800*i}")
            a("s_mov_b64 exec, -1")
        def ktst():
            a("s_mul_i32 s74, s78, 5120"); a(f"s_add_u32 s74, s74, {L_T}"); a("v_add_u32 v13, s74, v12")
            for i in range(5): a(f"ds_read_b128 v[{40+4*i}:{43+4*i}], v13 offset:{i*1024}")
            a("s_mul_i32 s74, s10, 80"); a("s_lshl_b32 s74, s74, 12"); a("s_lshl_b32 s75, s9, 7"); a("s_sub_u32 s74, s74, s75")
            a(f"s_add_u32 s74, s74, {WS_KT + 3968}")
            for i in range(5):
                a(f"s_waitcnt lgkmcnt({4-i})")
                s.vmem("st", f"buffer_store_dwordx4 v[{40+4*i}:{43+4*i}], v{32+i}, s[44:47], s74 offen sc1")
        def hc(base, reg, half):
            s.vm_wait({"h"})
            l = s.newlab("L_nh"); a(f"s_cmp_ge_u32 s2, {NCONV}"); a(f"s_cbranch_scc1 {l}")
            s.h_copies(base, reg, half); s.label(l)
        def flags():
            s.vm_wait({"st"})
            a("s_lshl_b32 s74, s10, 9"); a("s_lshl_b32 s75, s9, 4"); a("s_add_u32 s74, s74, s75"); a("s_lshl_b32 s76, s78, 3"); a("s_add_u32 s74, s74, s76")
            a(f"s_add_u32 s74, s74, {WS_FA}")
            s.write_flag(244, 74)
            a("s_lshl_b32 s74, s9, 7"); a("s_lshl_b32 s75, s10, 4"); a("s_add_u32 s74, s74, s75"); a("s_add_u32 s74, s74, s76"); a(f"s_add_u32 s74, s74, {WS_FB}")
            s.write_flag(248, 74)
            s.stamp(5)
        KVT = s.kvt
        rate = s.opt.get("rate", 19)
        pre = s.opt.get("cpre", 0)
        for f in cold[:pre]: f()
        when = {}
        tt = dl; n = pre
        while n < len(cold):
            for j in range(n, min(n + rate, len(cold))): sched[tt].append(cold[j]); when[j] = tt
            n += rate; tt += 1
        last = lambda j: when.get(j, -1)
        assert last(6) < KVT - 3 and last(13) < KVT - 2
        sched[KVT - 3].insert(0, w1); sched[KVT - 2].insert(0, w2); sched[KVT - 1].insert(0, lambda: a("s_waitcnt lgkmcnt(0)"))
        tw = s.opt.get("tw", KVT); assert last(18) < tw
        sched[tw].insert(0, w3); sched[tw].insert(1, wd)
        sched[KVT + 1].insert(0, ktst)
        tg = s.opt.get("tg", KVT + 2)
        sched[tg - 3] += [lambda i=i: lgx(i) for i in range(5)] + [lgw]
        sched[tg].insert(0, gate)
        tf = s.opt.get("tf", KVT + 4); assert tf > max(tg, tw, KVT + 1)
        sched[tf].insert(0, flags)
        tq = s.opt.get("tq", 17)
        sched[tq] += Lq
        sched[20].append(qc)
        for t in range(21):
            if t == 20: a("s_waitcnt lgkmcnt(0)")
            s.stamp(40 + t, 2)
            a("s_barrier")
            if not s.opt.get("noc"):
                for f in sched[t]: f()
        a("s_waitcnt lgkmcnt(0)")
        a("s_lshl_b32 s74, s78, 2"); a(f"s_add_u32 s74, s74, {L_SDONE}"); s.lds_set(2, "s74", 1)
        a("s_add_u32 s83, s78, 2")
        a("s_branch L_Y2")

    def ywave(s):
        a = s.a; s.vm_reset()
        s.label("L_Y")
        a("s_barrier")
        s.label("L_Y2")
        s.stamp(1)
        if s.opt.get("g1only"): a("s_branch L_fin2")
        a(f"s_mul_i32 s84, s83, {CV_SZ}"); a(f"s_add_u32 s84, s84, {L_CV}"); a(f"s_add_u32 s93, s84, {H_SZ}")
        s.read_epoch(16)
        if s.opt.get("noconv"): a("s_branch L_apart")
        a(f"s_cmp_ge_u32 s2, {NCONV}"); a("s_cbranch_scc1 L_apart")
        a("s_setprio 1")
        s.srd(60, 24, 2621440)
        a("s_lshl_b32 s85, s2, 2"); a("s_add_u32 s85, s85, s83"); a("s_lshl_b32 s74, s85, 12")
        for i in range(4):
            a(f"buffer_load_dwordx4 v[{164+4*i}:{167+4*i}], v12, s[60:63], s74 offen offset:{i*1024} {s.nt}")
        a("v_lshlrev_b32 v2, 3, v1")
        a("s_mul_i32 s74, s2, 3277"); a("s_lshr_b32 s74, s74, 16"); a("s_lshl_b32 s74, s74, 9"); a(f"s_add_u32 s74, s74, {WS_FA}")
        s.poll(4, 2, "s74")
        s.stamp(6)
        a("s_lshl_b32 s85, s2, 2"); a("s_add_u32 s85, s85, s83")
        a("s_lshl_b32 s74, s85, 12"); a(f"s_add_u32 s74, s74, {WS_KT}")
        for i in range(4):
            a(f"buffer_load_dwordx4 v[{48+4*i}:{51+4*i}], v12, s[44:47], s74 offen offset:{i*1024} sc1")
        for r in range(32, 36): a(f"v_mov_b32 v{r}, 0")
        s.h_copies(84, 164)
        s.u_stage(93, 48, 0)
        s.stamp(7)
        a("v_add_u32 v13, s93, v12")
        a("v_and_b32 v2, 15, v1"); a("v_lshrrev_b32 v3, 4, v1"); a("v_and_b32 v4, 1, v2"); a("v_lshrrev_b32 v5, 1, v2")
        a(f"v_mul_u32_u24 v6, {CV_B}, v4"); a("v_lshl_add_u32 v6, v3, 4, v6"); a("v_lshl_add_u32 v6, v5, 3, v6"); a("v_add_u32 v6, s84, v6")
        a(f"v_mul_u32_u24 v7, {CV_U1 - CV_U0 - 8}, v4"); a("v_lshl_add_u32 v7, v3, 4, v7"); a("v_lshlrev_b32 v8, 6, v5"); a("v_sub_u32 v7, v7, v8")
        a(f"v_add_u32 v7, {CV_U0 + 2*(2056 - 1792 - 32)}, v7"); a("v_add_u32 v7, s93, v7")
        SA = (96, 160); SB = (128, 192)
        def reads(st, par):
            R = []
            for c in range(8):
                for hh in range(2):
                    R.append(f"ds_read_b64 v[{SA[st]+4*c+2*hh}:{SA[st]+4*c+2*hh+1}], v6 offset:{512*c + 8*hh + 64*par}")
                for hh in range(2):
                    R.append(f"ds_read_b64 v[{SB[st]+4*c+2*hh}:{SB[st]+4*c+2*hh+1}], v7 offset:{512*(7-c) + 8*hh + 64*par}")
            return R
        def mfmas(st, full=True):
            M = []
            for c in range(8):
                for b in range(8 - c if full else 1):
                    o = 224 + 4 * (c + b)
                    M.append(f"v_mfma_f32_16x16x32_bf16 v[{o}:{o+3}], v[{SA[st]+4*c}:{SA[st]+4*c+3}], v[{SB[st]+4*b}:{SB[st]+4*b+3}], v[{o}:{o+3}]")
            return M
        def inter(M, R):
            ri = 0
            for mi, m in enumerate(M):
                a(m)
                for _ in range(2 if mi % 3 == 0 else 1):
                    if ri < len(R): a(R[ri]); ri += 1
            assert ri == len(R)
        a("s_waitcnt lgkmcnt(0)")
        for r in reads(0, 0): a(r)
        for r in range(224, 256): a(f"v_mov_b32 v{r}, 0")
        a("s_mov_b32 s86, 0")
        s.label("L_cv")
        a("s_waitcnt lgkmcnt(0)")
        inter(mfmas(0), reads(1, 1))
        a("v_add_u32 v6, 128, v6"); a("v_add_u32 v7, 128, v7")
        a("s_waitcnt lgkmcnt(0)")
        inter(mfmas(1), reads(0, 0))
        a("s_add_u32 s86, s86, 1"); a("s_cmp_lt_u32 s86, 4"); a("s_cbranch_scc1 L_cv")
        a("s_waitcnt lgkmcnt(0)")
        for m in mfmas(0, False): a(m)
        a("v_lshlrev_b32 v8, 4, v3"); a("v_lshl_add_u32 v8, v4, 2, v8"); a("v_lshl_add_u32 v8, v5, 6, v8")
        a(f"v_sub_u32 v8, {CV_U0 + 2*(2046 - 4) - 512}, v8"); a("v_add_u32 v8, s93, v8")
        a("s_nop 4")
        for t in range(8):
            o = 224 + 4 * t
            a(f"v_cvt_pk_bf16_f32 v{16+2*t}, v{o+3}, v{o+2}")
            a(f"v_cvt_pk_bf16_f32 v{17+2*t}, v{o+1}, v{o}")
        for t in range(8):
            off = 128 if t % 2 == 0 else 0
            a(f"ds_write2_b32 v8, v{16+2*t}, v{17+2*t} offset0:{off} offset1:{off+2}")
            if t % 2 == 1 and t < 7: a("v_subrev_u32 v8, 1024, v8")
        a("s_waitcnt lgkmcnt(0)")
        for i in range(4): a(f"ds_read_b128 v[{32+4*i}:{35+4*i}], v13 offset:{CV_U0 + i*1024}")
        a("s_lshl_b32 s74, s85, 12"); a(f"s_add_u32 s74, s74, {WS_YT}")
        for i in range(4):
            a(f"s_waitcnt lgkmcnt({3-i})")
            a(f"buffer_store_dwordx4 v[{32+4*i}:{35+4*i}], v12, s[44:47], s74 offen offset:{i*1024} sc1")
        s.stamp(8)
        a("s_waitcnt vmcnt(0)")
        a("s_lshl_b32 s74, s85, 3"); a(f"s_add_u32 s74, s74, {WS_FY}")
        s.write_flag(48, 74)
        a("s_setprio 0")
        s.label("L_apart")
        a("s_setprio 0")
        s.stamp(9)
        a("v_min_u32 v2, 15, v1"); a("v_lshlrev_b32 v2, 3, v2")
        a("s_lshl_b32 s74, s9, 7"); a(f"s_add_u32 s74, s74, {WS_FB}")
        s.poll(4, 2, "s74")
        a("v_sub_u32 v3, 63, v1"); a("v_lshlrev_b32 v2, 2, v3")
        a("s_lshl_b32 s74, s9, 8"); a(f"s_add_u32 s74, s74, {WS_G}")
        a("buffer_load_dword v15, v2, s[44:47], s74 offen sc1")
        a("s_mul_i32 s87, s10, 80"); a("s_mul_i32 s74, s83, 20"); a("s_add_u32 s87, s87, s74")
        a("s_lshl_b32 s88, s87, 12"); a("s_lshl_b32 s74, s9, 7"); a("s_sub_u32 s88, s88, s74"); a("s_add_u32 s88, s88, 3968")
        a("v_lshrrev_b32 v5, 3, v1"); a("v_lshlrev_b32 v5, 12, v5"); a("v_and_b32 v6, 7, v1"); a("v_lshl_add_u32 v5, v6, 4, v5")
        def tile_loads(base, reg):
            for i in range(3):
                a(f"s_add_u32 s74, s88, {base + i*8*4096}")
                if i == 2: a("s_mov_b32 exec_hi, 0")
                a(f"buffer_load_dwordx4 v[{reg+4*i}:{reg+4*i+3}], v5, s[44:47], s74 offen sc1")
                if i == 2: a("s_mov_b64 exec, -1")
        tile_loads(WS_KT, 16)
        a("s_lshl_b32 s74, s87, 1"); a("s_add_u32 s26, s26, s74"); a("s_addc_u32 s27, s27, 0")
        a("s_load_dwordx8 s[48:55], s[26:27], 0"); a("s_load_dwordx2 s[56:57], s[26:27], 32")
        a("v_add_u32 v13, s84, v12")
        s.lds_wait(L_SDONE, 2, 1, 148, slp=1)
        a("v_mul_u32_u24 v7, 160, v3"); a("s_mul_i32 s74, s83, 40"); a(f"s_add_u32 s74, s74, {L_QT}"); a("v_add_u32 v7, s74, v7")
        for gq in range(5): a(f"ds_read_b64 v[{64+2*gq}:{65+2*gq}], v7 offset:{8*gq}")
        a("s_waitcnt vmcnt(0)")
        for i in range(3):
            if i == 2: a("s_mov_b32 exec_hi, 0")
            a(f"ds_write_b128 v13, v[{16+4*i}:{19+4*i}] offset:{i*1024}")
            if i == 2: a("s_mov_b64 exec, -1")
        a("v_and_b32 v8, 15, v1"); a("v_lshrrev_b32 v9, 2, v8"); a("v_lshlrev_b32 v9, 7, v9"); a("v_and_b32 v8, 3, v8"); a("v_lshl_add_u32 v9, v8, 3, v9")
        a("v_lshrrev_b32 v8, 4, v1"); a("v_lshl_add_u32 v9, v8, 5, v9"); a("v_add_u32 v9, s84, v9")
        a(f"v_add_u32 v2, {L_GF}, v2"); a("ds_write_b32 v2, v15")
        a("s_waitcnt lgkmcnt(0)")
        for gq in range(5): a(f"ds_read_b64_tr_b16 v[{74+2*gq}:{75+2*gq}], v9 offset:{512*gq}")
        for gq in range(5):
            for e in range(2):
                r = 96 + 4 * gq + 2 * e
                a(f"v_lshlrev_b32 v{r}, 16, v{64+2*gq+e}"); a(f"v_and_b32 v{r+1}, 0xffff0000, v{64+2*gq+e}")
                a(f"v_mul_f32 v{r}, v{r}, v15"); a(f"v_mul_f32 v{r+1}, v{r+1}, v15")
        a("s_waitcnt lgkmcnt(0)")
        for gq in range(5):
            for e in range(2):
                sd = 48 + 2 * gq + e; r = 120 + 4 * gq + 2 * e
                a(f"s_lshl_b32 s58, s{sd}, 16"); a(f"s_and_b32 s59, s{sd}, 0xffff0000")
                a(f"v_lshlrev_b32 v{r}, 16, v{74+2*gq+e}"); a(f"v_and_b32 v{r+1}, 0xffff0000, v{74+2*gq+e}")
                a(f"v_mul_f32 v{r}, s58, v{r}"); a(f"v_mul_f32 v{r+1}, s59, v{r+1}")
        s.lds_wait(L_XG2, 1, 1, 148, slp=2)
        a("v_min_u32 v2, 19, v1"); a("v_lshlrev_b32 v2, 3, v2")
        a("s_lshl_b32 s74, s87, 3"); a(f"s_add_u32 s74, s74, {WS_FY}")
        if not s.opt.get("noconv"): s.poll(146, 2, "s74", slp=s.opt.get("yslp", 12))
        s.stamp(10)
        tile_loads(WS_YT, 16)
        for i in range(3):
            a(f"s_waitcnt vmcnt({2-i})")
            if i == 2: a("s_mov_b32 exec_hi, 0")
            a(f"ds_write_b128 v13, v[{16+4*i}:{19+4*i}] offset:{i*1024}")
            if i == 2: a("s_mov_b64 exec, -1")
        a("s_waitcnt lgkmcnt(0)")
        for gq in range(5): a(f"ds_read_b64_tr_b16 v[{74+2*gq}:{75+2*gq}], v9 offset:{512*gq}")
        for gq in range(5):
            a("s_waitcnt lgkmcnt(4)")
            for e in range(2):
                a(f"v_lshlrev_b32 v144, 16, v{74+2*gq+e}"); a(f"v_and_b32 v145, 0xffff0000, v{74+2*gq+e}")
                a(f"v_add_f32 v144, v144, v{120+4*gq+2*e}"); a(f"v_add_f32 v145, v145, v{121+4*gq+2*e}")
                a(f"v_mul_f32 v144, v144, v{96+4*gq+2*e}"); a(f"v_mul_f32 v145, v145, v{97+4*gq+2*e}")
                a(f"v_cvt_pk_bf16_f32 v{64+2*gq+e}, v144, v145")
            a(f"ds_write_b64 v7, v[{64+2*gq}:{65+2*gq}] offset:{8*gq}")
        s.stamp(11)
        a("s_branch L_final")

    def xwave(s):
        a = s.a; s.vm_reset()
        s.label("L_X")
        a("s_setprio 2")
        a("v_mov_b32 v16, 0"); a("v_mov_b32 v17, 0"); a("v_mov_b32 v18, 0"); a("v_mov_b32 v19, 0")
        a(f"v_add_u32 v20, {L_MISC}, v12")
        a("s_mov_b64 exec, 15"); a("ds_write_b128 v20, v[16:19]"); a("s_mov_b64 exec, -1")
        a("s_lshr_b32 s74, s3, 1"); a("s_and_b32 s75, s3, 1")
        a("v_and_b32 v20, 31, v1"); a("v_lshrrev_b32 v13, 2, v20"); a("v_lshrrev_b32 v14, 1, v13"); a("v_xor_b32 v13, v13, v14"); a("v_and_b32 v13, 3, v13")
        a("v_lshrrev_b32 v14, 5, v1"); a("v_xor_b32 v15, v14, v13"); a("v_xor_b32 v16, 2, v15")
        a("v_lshlrev_b32 v17, 6, v20"); a("s_lshl_b32 s76, s74, 12"); a("v_add_u32 v17, s76, v17")
        a("v_lshl_add_u32 v5, v15, 4, v17"); a("v_lshl_add_u32 v6, v16, 4, v17")
        a("v_bfe_u32 v15, v1, 4, 1"); a("v_bfe_u32 v16, v1, 2, 2"); a("v_lshl_add_u32 v16, v14, 3, v16"); a("v_lshlrev_b32 v16, 6, v16")
        a("v_mul_u32_u24 v17, 6144, v15"); a("v_add_u32 v16, v16, v17")
        a("v_and_b32 v17, 1, v1"); a("v_lshl_add_u32 v16, v17, 4, v16"); a("v_bfe_u32 v17, v1, 1, 1"); a("v_lshl_add_u32 v16, v17, 3, v16")
        a(f"v_add_u32 v16, {L_WR}, v16")
        a("s_mul_i32 s76, s75, 3")
        for T in range(3):
            a(f"s_add_u32 s77, s76, {T}"); a("s_and_b32 s78, s77, 1"); a("s_lshr_b32 s77, s77, 1"); a("s_lshl_b32 s77, s77, 11")
            a("v_xor_b32 v17, s78, v15"); a(f"v_lshl_add_u32 v{2+T}, v17, 5, v16"); a(f"v_add_u32 v{2+T}, s77, v{2+T}")
        a("v_mov_b32 v7, v12"); a("v_add_u32 v8, 4096, v7")
        a("v_bfe_u32 v9, v1, 4, 1"); a("v_lshlrev_b32 v9, 10, v9"); a("v_lshl_add_u32 v9, v14, 8, v9"); a("v_and_b32 v17, 15, v1"); a("v_lshl_add_u32 v9, v17, 4, v9")
        for r in range(160, 256): a(f"v_mov_b32 v{r}, 0")
        touch = s.opt.get("touch", 0)
        if touch:
            lw = s.newlab("L_tw"); le = s.newlab("L_te")
            a("s_cmp_ge_u32 s3, 2"); a(f"s_cbranch_scc1 {lw}")
            s.srd(48, 16, 2621440)
            a("s_lshr_b32 s76, s4, 2"); a("s_lshl_b32 s76, s76, 6"); a("s_lshl_b32 s77, s5, 1"); a("s_add_u32 s76, s76, s77"); a("s_add_u32 s76, s76, s3")
            a(f"s_mul_i32 s98, s76, {16*1280}")
            a("v_and_b32 v92, 15, v1"); a("v_mul_u32_u24 v92, 1280, v92"); a("v_bfe_u32 v93, v1, 4, 1"); a("v_lshl_add_u32 v92, v93, 7, v92")
            a("s_mov_b32 s99, 256"); a("s_mov_b32 s100, -1")
            a(f"s_branch {le}")
            s.label(lw)
            a("s_cmp_eq_u32 s3, 2")
            a("s_cselect_b32 s48, s30, s32"); a("s_cselect_b32 s49, s31, s33"); a("s_and_b32 s49, s49, 0xffff")
            a("s_mov_b32 s50, 1966080"); a("s_mov_b32 s51, 0x20000")
            a("v_mul_u32_u24 v93, 5462, v1"); a("v_lshrrev_b32 v93, 16, v93"); a("v_mul_u32_u24 v94, 12, v93"); a("v_sub_u32 v94, v1, v94")
            a("v_cmp_lt_u32 vcc, 5, v94"); a(f"v_mul_u32_u24 v92, {64*3072}, v93"); a(f"v_mov_b32 v95, {3072 - 768}"); a("v_cndmask_b32 v95, 0, v95, vcc")
            a("v_lshl_add_u32 v92, v94, 7, v92"); a("v_add_u32 v92, v92, v95")
            a("s_and_b32 s76, s4, 3"); a("s_mul_i32 s76, s76, 768"); a(f"s_mul_i32 s77, s5, {2*3072}"); a("s_add_u32 s98, s76, s77")
            a(f"s_mov_b32 s99, {2*64*3072}"); a("s_mov_b32 s100, 0xffffff")
            s.label(le)
        def do_touch():
            a("s_mov_b32 exec_lo, s100"); a("s_mov_b32 exec_hi, 0")
            a("buffer_load_dword v93, v92, s[48:51], s98 offen")
            a("s_mov_b64 exec, -1"); a("s_add_u32 s98, s98, s99")
        tpre = s.opt.get("tpre", 2)
        if touch:
            for _ in range(tpre if touch == 2 else 5): do_touch()
        SB = (12, 52)
        def reads(st, slot):
            R = []
            for sub in range(2):
                W = []
                for T in range(3):
                    for hh in range(2):
                        r = SB[st] + 12 * sub + 4 * T + 2 * hh
                        W.append(f"ds_read_b64_tr_b16 v[{r}:{r+1}], v{2+T} offset:{slot*12288 + sub*1024 + hh*256}")
                X = [f"ds_read_b128 v[{SB[st]+24+8*sub+4*nt}:{SB[st]+24+8*sub+4*nt+3}], v{5+sub} offset:{slot*8192 + nt*2048}" for nt in range(2)]
                R += [X[0], W[0], W[1], X[1], W[2], W[3], W[4], W[5]]
            return R
        def mfmas(st):
            M = []
            for sub in range(2):
                for T in range(3):
                    for nt in range(2):
                        o = 160 + 16 * (2 * T + nt); w = SB[st] + 12 * sub + 4 * T; x = SB[st] + 24 + 8 * sub + 4 * nt
                        M.append(f"v_mfma_f32_32x32x16_bf16 v[{o}:{o+15}], v[{w}:{w+3}], v[{x}:{x+3}], v[{o}:{o+15}]")
            return M
        a("s_mov_b32 s86, 0")
        a("s_waitcnt lgkmcnt(0)")
        a("s_barrier")
        for r in reads(0, 0): a(r)
        a("s_waitcnt lgkmcnt(0)")
        s.label("L_g1")
        for slot in range(4):
            M = mfmas(slot & 1); R = reads((slot + 1) & 1, (slot + 1) & 3)
            if s.opt.get("stamps", 0) == 2:
                a("s_memtime s[96:97]"); a(f"s_add_u32 m0, s86, {41 + slot}"); a("s_waitcnt lgkmcnt(0)"); a("v_writelane_b32 v11, s96, m0")
            a(M[0])
            a("s_barrier")
            for i in range(5):
                for r in R[3 * i:3 * i + 3]: a(r)
                a(M[1 + i])
            a(R[15])
            if touch == 2 and slot == s.opt.get("tslot", 0):
                lt = s.newlab("L_nt")
                a(f"s_cmp_ge_u32 s86, {4 * (5 - tpre)}"); a(f"s_cbranch_scc1 {lt}"); do_touch(); s.label(lt)
            for m in M[6:]: a(m)
            a("s_waitcnt lgkmcnt(0)")
            if not s.opt.get("noc") and (slot + 1) % 4 == s.kvt % 4:
                a(f"s_cmp_eq_u32 s86, {s.kvt - slot - 1}"); a("s_cbranch_scc1 L_kv")
                s.label("L_kvret")
        if s.opt.get("noc"): s.label("L_kvret")
        a("s_add_u32 s86, s86, 4")
        a("s_cmp_lt_u32 s86, 20"); a("s_cbranch_scc1 L_g1")
        s.stamp(1)
        if s.opt.get("g1only"): a("s_branch L_fin2")
        s.read_epoch(116)
        a("v_lshlrev_b32 v114, 3, v1")
        a("s_lshl_b32 s76, s10, 9"); a(f"s_add_u32 s76, s76, {WS_FA}")
        s.poll(112, 114, "s76")
        s.stamp(2)
        a("s_mul_i32 s78, s10, 3"); a("s_lshr_b32 s78, s78, 1"); a("s_mul_i32 s79, s13, 3"); a("s_add_u32 s78, s78, s79")
        a("s_cmp_ge_u32 s78, 12"); a("s_cselect_b32 s79, 12, 0"); a("s_sub_u32 s78, s78, s79")
        if s.opt.get("g2rot") == 0: a("s_mov_b32 s78, 0")
        a("s_mul_i32 s79, s3, 12")
        a(f"s_mul_i32 s80, s10, {48*5120}"); a(f"s_add_u32 s80, s80, {WS_WB}")
        a(f"s_mul_i32 s81, s9, {48*4096}"); a(f"s_add_u32 s81, s81, {WS_HB}")
        a("s_mul_i32 s92, s3, 20480")
        def kt_of(i, dst):
            a(f"s_add_u32 s{dst}, s78, {i}"); a(f"s_cmp_ge_u32 s{dst}, 12"); a(f"s_cselect_b32 s82, 12, 0"); a(f"s_sub_u32 s{dst}, s{dst}, s82")
            a(f"s_add_u32 s{dst}, s{dst}, s79")
        def wb_loads(i):
            kt_of(i, 83); a("s_mul_i32 s83, s83, 5120"); a("s_add_u32 s83, s83, s80")
            r = 12 + 20 * (i % 5)
            for dt in range(5):
                if dt < 4: s.vmem(("wb", i), f"buffer_load_dwordx4 v[{r+4*dt}:{r+4*dt+3}], v7, s[44:47], s83 offen offset:{dt*1024} sc1")
                else: s.vmem(("wb", i), f"buffer_load_dwordx4 v[{r+4*dt}:{r+4*dt+3}], v8, s[44:47], s83 offen sc1")
        def wb_dma(i):
            kt_of(i, 83); a("s_mul_i32 s83, s83, 5120"); a("s_add_u32 s83, s83, s80")
            a(f"s_add_u32 m0, s92, {(i - 5) * 5120}"); a("s_nop 0")
            for dt in range(4):
                s.vmem(("wd", i), f"buffer_load_dwordx4 v7, s[44:47], s83 offen offset:{dt*1024} sc1 lds")
            a(f"s_add_u32 m0, s92, {(i - 5) * 5120 + 4096}"); a("s_nop 0")
            s.vmem(("wd", i), f"buffer_load_dwordx4 v8, s[44:47], s83 offen sc1 lds")
        def wb_lds(i):
            r = 12 + 20 * (i % 5)
            for dt in range(5): a(f"ds_read_b128 v[{r+4*dt}:{r+4*dt+3}], v10 offset:{(i - 5) * 5120 + dt*1024}")
        def hb_loads(i):
            kt_of(i, 83); a("s_lshl_b32 s83, s83, 12"); a("s_add_u32 s83, s83, s81")
            r = 112 + 16 * (i % 4)
            for sb in range(4):
                s.vmem(("hb", i), f"buffer_load_dwordx4 v[{r+4*sb}:{r+4*sb+3}], v7, s[44:47], s83 offen offset:{sb*1024} {s.opt.get('hsc', 'sc1')}")
        npre = s.opt.get("npre", 0)
        for i in range(npre): wb_loads(i)
        a("s_mov_b32 s84, 0xbfb8aa3b")
        a("s_lshl_b32 s87, s6, 1"); a("s_add_u32 s87, s87, s74")
        a(f"s_mul_i32 s88, s87, {48*4096}")
        a("s_mul_i32 s89, s7, 6"); a("s_mul_i32 s90, s75, 3"); a("s_add_u32 s89, s89, s90")
        for T in range(3):
            a(f"s_add_u32 s90, s89, {T}"); a("s_and_b32 s91, s90, 1"); a("s_lshr_b32 s90, s90, 1")
            a("s_lshl_b32 s90, s90, 12"); a("s_lshl_b32 s91, s91, 9"); a("s_add_u32 s90, s90, s91"); a("s_add_u32 s90, s90, s88")
            for nt in range(2):
                ti = 2 * T + nt
                o = 160 + 16 * ti; p = 120 + 4 * ti
                for e in range(8): a(f"v_mul_f32 v{o+e}, s84, v{o+e}")
                for e in range(8): a(f"v_exp_f32 v{o+e}, v{o+e}")
                for e in range(8): a(f"v_add_f32 v{o+e}, 1.0, v{o+e}")
                for e in range(8): a(f"v_rcp_f32 v{o+e}, v{o+e}")
                for e in range(8): a(f"v_mul_f32 v{o+e}, v{o+e}, v{o+8+e}")
                for e in range(4): a(f"v_cvt_pk_bf16_f32 v{p+e}, v{o+2*e}, v{o+2*e+1}")
                s.vmem("hst", f"buffer_store_dwordx4 v[{p}:{p+3}], v9, s[44:47], s90 offen offset:{nt*2048} sc1")
        a("s_setprio 0")
        s.stamp(3)
        for i in range(npre, min(5, npre + 2)): wb_loads(i)
        s.vm_wait({"hst"})
        a("s_lshl_b32 s90, s87, 8"); a("s_lshl_b32 s91, s7, 4"); a("s_add_u32 s90, s90, s91"); a("s_lshl_b32 s91, s75, 3"); a("s_add_u32 s90, s90, s91")
        a(f"s_add_u32 s90, s90, {WS_FH}")
        s.write_flag(144, 90)
        s.stamp(4)
        for i in range(min(5, npre + 2), 5): wb_loads(i)
        for i in range(5, 9): wb_dma(i)
        a("v_add_u32 v10, s92, v7")
        a("v_min_u32 v114, 7, v1"); a("v_lshlrev_b32 v114, 3, v114")
        a("s_lshl_b32 s90, s9, 8"); a("s_lshl_b32 s91, s3, 6"); a("s_add_u32 s90, s90, s91"); a(f"s_add_u32 s90, s90, {WS_FH}")
        s.poll(112, 114, "s90")
        s.stamp(5)
        h0 = s.opt.get("h0", 2)
        for i in range(h0): hb_loads(i)
        for i in range(12):
            if i == s.opt.get("xg2", 5): s.lds_set(2, L_XG2, 1)
            s.vm_wait({("hb", i), ("wb", i)})
            if i == 0:
                for k in range(h0, 4): hb_loads(k)
            s.stamp(16 + i, 3)
            if 5 <= i < 9: a("s_waitcnt lgkmcnt(0)")
            rw = 12 + 20 * (i % 5); rh = 112 + 16 * (i % 4)
            for dt in range(5):
                for sb in range(4):
                    o = 176 + 4 * (4 * dt + sb)
                    c = "0" if i == 0 else f"v[{o}:{o+3}]"
                    a(f"v_mfma_f32_16x16x32_bf16 v[{o}:{o+3}], v[{rw+4*dt}:{rw+4*dt+3}], v[{rh+4*sb}:{rh+4*sb+3}], {c}")
            if i + 4 < 12: hb_loads(i + 4)
            if 5 <= i + 5 < 9: wb_lds(i + 5)
            elif i + 5 < 12: wb_loads(i + 5)
        s.stamp(6)
        a("v_and_b32 v12, 15, v1"); a("v_lshrrev_b32 v13, 4, v1"); a("v_bfe_u32 v14, v1, 1, 2"); a("v_xor_b32 v13, v13, v14")
        a("v_mul_u32_u24 v12, 320, v12"); a("v_lshl_add_u32 v12, v13, 4, v12"); a("v_add_u32 v12, s92, v12")
        a("s_nop 4")
        for dt in range(5):
            for sb in range(4):
                o = 176 + 4 * (4 * dt + sb)
                a(f"ds_write_b128 v12, v[{o}:{o+3}] offset:{sb*5120 + dt*64}")
        s.stamp(7)

    def final(s):
        a = s.a
        s.label("L_final")
        a("s_waitcnt lgkmcnt(0)"); a("s_barrier")
        s.stamp(12)
        s.srd(48, 38, 2621440)
        a(f"s_mul_i32 s74, s9, {64*1280}"); a("s_mul_i32 s75, s10, 160"); a("s_add_u32 s74, s74, s75")
        def item():
            a("v_mul_u32_u24 v13, 6554, v12"); a("v_lshrrev_b32 v13, 16, v13")
            a("v_mul_u32_u24 v14, 10, v13"); a("v_sub_u32 v14, v12, v14")
            a("v_bfe_u32 v15, v13, 1, 2"); a("v_lshlrev_b32 v16, 1, v14"); a("v_xor_b32 v16, v16, v15"); a("v_xor_b32 v17, 1, v16")
            a("v_mul_u32_u24 v18, 320, v13"); a("v_lshl_add_u32 v16, v16, 4, v18"); a("v_lshl_add_u32 v17, v17, 4, v18")
            for w in range(4):
                a(f"ds_read_b128 v[{32+8*w}:{35+8*w}], v16 offset:{w*20480}")
                a(f"ds_read_b128 v[{36+8*w}:{39+8*w}], v17 offset:{w*20480}")
            a(f"v_lshlrev_b32 v19, 4, v12"); a(f"v_add_u32 v19, {L_QT}, v19"); a("ds_read_b128 v[24:27], v19")
            a(f"v_lshlrev_b32 v19, 2, v13"); a(f"v_add_u32 v19, {L_GF}, v19"); a("ds_read_b32 v20, v19")
            a("v_mul_u32_u24 v22, 1120, v13"); a("v_lshl_add_u32 v22, v12, 4, v22")
            a("s_waitcnt lgkmcnt(2)")
            for e in range(4):
                a(f"v_pk_add_f32 v[{32+2*e}:{33+2*e}], v[{32+2*e}:{33+2*e}], v[{40+2*e}:{41+2*e}]")
                a(f"v_pk_add_f32 v[{48+2*e}:{49+2*e}], v[{48+2*e}:{49+2*e}], v[{56+2*e}:{57+2*e}]")
            for e in range(4):
                a(f"v_pk_add_f32 v[{32+2*e}:{33+2*e}], v[{32+2*e}:{33+2*e}], v[{48+2*e}:{49+2*e}]")
            a("s_waitcnt lgkmcnt(0)")
            a("v_sub_f32 v20, 1.0, v20"); a("v_cvt_pk_bf16_f32 v20, v20, v20"); a("v_and_b32 v20, 0xffff0000, v20")
            for e in range(4):
                a(f"v_lshlrev_b32 v{40+2*e}, 16, v{24+e}"); a(f"v_and_b32 v{41+2*e}, 0xffff0000, v{24+e}")
                a(f"v_pk_fma_f32 v[{40+2*e}:{41+2*e}], v[{32+2*e}:{33+2*e}], v[20:21], v[{40+2*e}:{41+2*e}] op_sel_hi:[1,0,1]")
            for e in range(4): a(f"v_cvt_pk_bf16_f32 v{28+e}, v{40+2*e}, v{41+2*e}")
            a(f"buffer_store_dwordx4 v[28:31], v22, s[48:51], s74 offen {s.opt.get('ost', '')}")
        a("v_mov_b32 v12, v0")
        item()
        a("s_cmp_lt_u32 s3, 6"); a("s_cbranch_scc1 L_fin2")
        a("v_add_u32 v12, 128, v0")
        item()
        s.label("L_fin2")
        if s.opt.get("stamps"):
            s.stamp(13)
            a("s_waitcnt vmcnt(0)")
            s.stamp(14)
            a("s_memrealtime s[96:97]"); a("s_waitcnt lgkmcnt(0)"); a("v_writelane_b32 v11, s96, 15")
            a("s_lshl_b32 s74, s2, 3"); a("s_add_u32 s74, s74, s3"); a("s_lshl_b32 s74, s74, 8"); a(f"s_add_u32 s74, s74, {WS_STAMP}")
            a("v_lshlrev_b32 v12, 2, v1")
            a("buffer_store_dword v11, v12, s[44:47], s74 offen")
        s.label("L_end")
        a("s_endpgm")

    def kvblock(s):
        a = s.a
        s.label("L_kv")
        a("v_mul_u32_u24 v90, 3277, v1"); a("v_lshrrev_b32 v90, 16, v90"); a("v_mul_u32_u24 v91, 20, v90"); a("v_sub_u32 v91, v1, v91")
        a(f"s_mul_i32 s76, s74, {CV_SZ}"); a(f"s_add_u32 s76, s76, {L_CV + 2*CV_SZ}")
        a("v_lshlrev_b32 v96, 5, v91"); a("v_add_u32 v96, s76, v96")
        a(f"ds_read_b128 v[82:85], v96 offset:{SC_SHK}"); a(f"ds_read_b128 v[86:89], v96 offset:{SC_SHK + 16}")
        a(f"s_mul_i32 s77, s75, {16*192}"); a("s_add_u32 s76, s76, s77"); a("s_and_b32 s77, s10, 1"); a("s_lshl_b32 s77, s77, 5"); a("s_add_u32 s76, s76, s77")
        a(f"v_mul_u32_u24 v97, {6*192}, v90"); a("v_lshl_add_u32 v97, v91, 3, v97"); a("v_add_u32 v97, s76, v97")
        for i in range(9): a(f"ds_read_b64 v[{52+2*i}:{53+2*i}], v97 offset:{SC_K + 192*i}")
        a("s_waitcnt lgkmcnt(9)")
        for i in range(6): a(f"ds_read_b64 v[{70+2*i}:{71+2*i}], v97 offset:{SC_V + 192*i}")
        for e in range(4):
            a(f"v_lshlrev_b32 v{96+e}, 16, v{82+2*e}"); a(f"v_and_b32 v{100+e}, 0xffff0000, v{82+2*e}")
            a(f"v_lshlrev_b32 v{104+e}, 16, v{83+2*e}"); a(f"v_and_b32 v{108+e}, 0xffff0000, v{83+2*e}")
        a("s_lshl_b32 s77, s3, 3"); a("v_mul_u32_u24 v85, 3, v90"); a("v_add_u32 v85, s77, v85"); a("v_and_b32 v86, 7, v91")
        for m in range(3):
            a(f"v_sub_u32 v87, {29+m}, v85"); a("v_lshrrev_b32 v88, 2, v87"); a("v_xor_b32 v88, v88, v86"); a("v_lshlrev_b32 v88, 4, v88")
            a("v_and_b32 v87, 3, v87"); a("v_lshl_add_u32 v88, v87, 2, v88"); a(f"v_lshl_add_u32 v{82+m}, v91, 7, v88")
            a(f"v_add_u32 v{82+m}, {L_T}, v{82+m}")
        a("s_waitcnt lgkmcnt(0)")
        s.ex(60)
        for d in range(2):
            for i in range(9):
                a(f"v_lshlrev_b32 v{112+2*i}, 16, v{52+2*i+d}"); a(f"v_and_b32 v{113+2*i}, 0xffff0000, v{52+2*i+d}")
            for i in range(6):
                a(f"v_lshlrev_b32 v{130+2*i}, 16, v{70+2*i+d}"); a(f"v_and_b32 v{131+2*i}, 0xffff0000, v{70+2*i+d}")
            for r in range(6):
                a(f"v_pk_mul_f32 v[{142+2*r}:{143+2*r}], v[{112+2*r}:{113+2*r}], v[{108+2*d}:{109+2*d}]")
            for j in (2, 1, 0):
                for r in range(6):
                    k = 112 + 2 * (r + 3 - j); w = 96 + 4 * j + 2 * d
                    a(f"v_pk_fma_f32 v[{142+2*r}:{143+2*r}], v[{k}:{k+1}], v[{w}:{w+1}], v[{142+2*r}:{143+2*r}]")
            for r in range(6):
                a(f"v_pk_mul_f32 v[{142+2*r}:{143+2*r}], v[{142+2*r}:{143+2*r}], v[{130+2*r}:{131+2*r}]")
            for e in range(2):
                for m in range(3):
                    hi = 4 - 2 * m
                    a(f"v_cvt_pk_bf16_f32 v{154+3*e+m}, v{142+2*(hi+1)+e}, v{142+2*hi+e}")
            for m in (1, 2, 0):
                if m == 0: a("s_mov_b32 exec_hi, 0xff")
                for e in range(2):
                    a(f"ds_write_b32 v{82+m}, v{154+3*e+m} offset:{(2*d+e)*2560}")
            a("s_mov_b32 exec_hi, 0xfffffff")
        a("s_mov_b64 exec, -1")
        a("s_waitcnt lgkmcnt(0)")
        a("s_branch L_kvret")

    def build(s):
        s.kvt = s.opt.get("kvt", 8)
        s.nt = "nt" if s.opt.get("nt", 1) else ""
        hdr = open("gated_mix__ssm_conv_h3__glu_gated_glu__prompt.s.ref").read().split("; Override launch")[0]
        out = hdr + f"; @launch grid=(256,1,1) block=(512,1,1) lds={LDS_TOTAL}\n"
        out += '.amdgcn_target "amdgcn-amd-amdhsa--gfx950"\n.text\n' + f".globl {KN}\n.p2align 8\n.type {KN},@function\n{KN}:\n"
        s.prologue(); s.loader(); s.chore(); s.ywave(); s.xwave(); s.final(); s.kvblock()
        out += "\n".join(s.L) + "\n"
        out += f""".section .rodata,"a"
.p2align 6
.amdhsa_kernel {KN}
  .amdhsa_next_free_vgpr 256
  .amdhsa_next_free_sgpr 102
  .amdhsa_accum_offset 256
  .amdhsa_group_segment_fixed_size 0
  .amdhsa_kernarg_size 112
  .amdhsa_user_sgpr_count 2
  .amdhsa_user_sgpr_kernarg_segment_ptr 1
  .amdhsa_system_sgpr_workgroup_id_x 1
.end_amdhsa_kernel
"""
        return out

if __name__ == "__main__":
    opt = {}
    outp = sys.argv[1]
    for x in sys.argv[2:]:
        k, v = x.split("=")
        if "," in v: opt[k] = tuple(int(z) for z in v.split(","))
        else:
            try: opt[k] = int(v)
            except ValueError: opt[k] = v
    open(outp, "w").write(Gen(opt).build())
```

```python
import sys
KN = "gated_mix__ssm_conv_h3__glu_gated_glu__prompt_kernel"

WS_HB = 0x000000; WS_WB = 0x600000; WS_KT = 0x800000; WS_YT = 0xB00000
WS_G = 0xE00000; WS_FA = 0xE10000; WS_FB = 0xE12000; WS_FH = 0xE14000; WS_FY = 0xE16000
WS_STAMP = 0xF00000
TS = 4224
L_XR = 0; L_WR = 32768; L_CV = 81920; CV_SZ = 17728; H_SZ = 8448; L_QT = 152832; L_MISC = 163072; LDS_TOTAL = 163840
CV_A = 0; CV_B = 4224; CV_U0 = 0; CV_U1 = 4616
L_FULL = L_MISC; L_FREE = L_MISC + 16; L_EPOCH = L_MISC + 32; L_QDONE = L_MISC + 40; L_SDONE = L_MISC + 48; L_XG2 = L_MISC + 56; L_XH = L_MISC + 60; L_GF = L_MISC + 256
SC_K = 0; SC_V = 6720; SC_SHK = 13440; L_T = L_CV; L_WDS = L_CV + CV_SZ
SPIN_MAX = 30000
NCONV = 160

class Gen:
    def __init__(s, opt):
        s.L = []; s.opt = opt; s.vm = []; s.lab = 0; s.vstamp = 11
    def a(s, x): s.L.append("    " + x)
    def label(s, x): s.L.append(x + ":")
    def newlab(s, p="L"):
        s.lab += 1; return f"{p}_{s.lab}"
    def vm_reset(s): s.vm = []
    def vmem(s, tag, ins): s.a(ins); s.vm.append(tag)
    def vm_wait(s, tags):
        idx = -1
        for i, t in enumerate(s.vm):
            if t in tags: idx = i
        if idx < 0: return
        n = len(s.vm) - 1 - idx
        assert n <= 63
        s.a(f"s_waitcnt vmcnt({n})")
        s.vm = s.vm[idx + 1:]
    def vm_wait_all(s):
        s.a("s_waitcnt vmcnt(0)"); s.vm = []
    def ex(s, n):
        if n >= 64: s.a("s_mov_b64 exec, -1")
        elif n > 32: s.a("s_mov_b32 exec_lo, -1"); s.a(f"s_mov_b32 exec_hi, {hex((1 << (n - 32)) - 1)}")
        elif n == 32: s.a("s_mov_b32 exec_hi, 0")
        else: s.a(f"s_mov_b32 exec_lo, {hex((1 << n) - 1)}"); s.a("s_mov_b32 exec_hi, 0")
    def srd(s, d, p, nbytes):
        s.a(f"s_mov_b32 s{d}, s{p}"); s.a(f"s_and_b32 s{d+1}, s{p+1}, 0xffff")
        s.a(f"s_mov_b32 s{d+2}, {nbytes}"); s.a(f"s_mov_b32 s{d+3}, 0x20000")
    def stamp(s, idx, lvl=1):
        if s.opt.get("stamps", 0) >= 1 and (lvl == 1 or s.opt.get("stamps", 0) == lvl):
            s.a("s_memtime s[96:97]"); s.a("s_waitcnt lgkmcnt(0)")
            s.a(f"v_writelane_b32 v{s.vstamp}, s96, {idx}")
    def poll(s, vflag, voff, soff, scnt=94, slp=None):
        l0 = s.newlab("L_poll"); l1 = s.newlab("L_pdone")
        s.a(f"s_mov_b32 s{scnt}, {SPIN_MAX}")
        s.label(l0)
        s.a(f"buffer_load_dwordx2 v[{vflag}:{vflag+1}], v{voff}, s[44:47], {soff} offen sc1")
        s.a("s_waitcnt vmcnt(0)")
        s.a(f"v_cmp_ne_u64 vcc, s[72:73], v[{vflag}:{vflag+1}]")
        s.a("s_nop 1")
        s.a(f"s_cbranch_vccz {l1}")
        slp = s.opt.get("slp", 4) if slp is None else slp
        if slp: s.a(f"s_sleep {slp}")
        s.a(f"s_sub_u32 s{scnt}, s{scnt}, 1")
        s.a(f"s_cbranch_scc0 {l0}")
        s.label(l1)
        s.vm = []
    def lds_wait(s, addr, nw, need, vt, scache=None, scnt=94, slp=0):
        a = s.a
        sc = scache if scache is not None else 95
        l0 = s.newlab("L_lw"); l1 = s.newlab("L_lwd")
        if scache is not None:
            a(f"s_cmp_ge_u32 s{sc}, {need}"); a(f"s_cbranch_scc1 {l1}")
        a(f"s_mov_b32 s{scnt}, {SPIN_MAX * 8}")
        a(f"v_mov_b32 v{vt+4}, {addr}")
        s.label(l0)
        if nw == 1: a(f"ds_read_b32 v{vt}, v{vt+4}")
        elif nw == 2: a(f"ds_read_b64 v[{vt}:{vt+1}], v{vt+4}")
        else: a(f"ds_read_b128 v[{vt}:{vt+3}], v{vt+4}")
        a("s_waitcnt lgkmcnt(0)")
        if nw == 2: a(f"v_min_u32 v{vt}, v{vt}, v{vt+1}")
        if nw == 4: a(f"v_min_u32 v{vt}, v{vt}, v{vt+1}"); a(f"v_min3_u32 v{vt}, v{vt}, v{vt+2}, v{vt+3}")
        a("s_nop 0")
        a(f"v_readfirstlane_b32 s{sc}, v{vt}")
        a("s_nop 1")
        a(f"s_cmp_ge_u32 s{sc}, {need}"); a(f"s_cbranch_scc1 {l1}")
        if slp: a(f"s_sleep {slp}")
        a(f"s_sub_u32 s{scnt}, s{scnt}, 1"); a(f"s_cbranch_scc0 {l0}")
        s.label(l1)
    def read_epoch(s, vt):
        a = s.a; l0 = s.newlab("L_re"); l1 = s.newlab("L_red")
        a(f"s_mov_b32 s94, {SPIN_MAX * 8}"); a(f"v_mov_b32 v{vt+2}, {L_EPOCH}")
        s.label(l0)
        a(f"ds_read_b64 v[{vt}:{vt+1}], v{vt+2}")
        a("s_waitcnt lgkmcnt(0)")
        a(f"v_readfirstlane_b32 s72, v{vt}"); a(f"v_readfirstlane_b32 s73, v{vt+1}"); a("s_nop 1")
        a("s_cmp_lg_u32 s73, 0"); a(f"s_cbranch_scc1 {l1}")
        a("s_sub_u32 s94, s94, 1"); a(f"s_cbranch_scc0 {l0}")
        s.label(l1)
    def write_flag(s, vt, sreg):
        s.a(f"v_mov_b32 v{vt}, s72"); s.a(f"v_mov_b32 v{vt+1}, s73"); s.a(f"v_mov_b32 v{vt+2}, 0")
        s.a("s_mov_b64 exec, 1")
        s.vmem("flag", f"buffer_store_dwordx2 v[{vt}:{vt+1}], v{vt+2}, s[44:47], s{sreg} offen sc1")
        s.a("s_mov_b64 exec, -1")
    def lds_set(s, vt, addr_sreg_or_const, val):
        s.a(f"v_mov_b32 v{vt}, {addr_sreg_or_const}"); s.a(f"v_mov_b32 v{vt+1}, {val}"); s.a(f"ds_write_b32 v{vt}, v{vt+1}")

    def prologue(s):
        a = s.a
        a("s_cmp_ge_u32 s2, 256"); a("s_cbranch_scc1 L_end")
        a("s_load_dwordx16 s[16:31], s[0:1], 0")
        a("s_load_dwordx8 s[32:39], s[0:1], 64")
        a("s_load_dwordx4 s[40:43], s[0:1], 96")
        a("v_lshrrev_b32 v2, 6, v0")
        a("v_and_b32 v1, 63, v0")
        a("v_readfirstlane_b32 s3, v2")
        a("s_and_b32 s4, s2, 7"); a("s_lshr_b32 s5, s2, 3")
        a("s_lshr_b32 s6, s4, 2"); a("s_lshl_b32 s6, s6, 3"); a("s_and_b32 s11, s5, 7"); a("s_add_u32 s6, s6, s11")
        a("s_and_b32 s7, s4, 3"); a("s_lshl_b32 s7, s7, 2"); a("s_lshr_b32 s12, s5, 3"); a("s_add_u32 s7, s7, s12")
        a("s_lshl_b32 s8, s12, 1"); a("s_add_u32 s8, s8, s11"); a("s_and_b32 s8, s8, 7")
        a("s_lshl_b32 s9, s4, 2"); a("s_and_b32 s13, s5, 3"); a("s_add_u32 s9, s9, s13"); a("s_lshr_b32 s10, s5, 2")
        if s.opt.get("stamps"): a("v_mov_b32 v11, 0")
        a("v_lshlrev_b32 v12, 4, v1")
        a("s_waitcnt lgkmcnt(0)")
        s.srd(44, 42, 0x10000000)
        s.stamp(0)
        a("s_cmp_lt_u32 s3, 4"); a("s_cbranch_scc1 L_X")
        a("s_cmp_ge_u32 s3, 6"); a("s_cbranch_scc1 L_C")

    def loader(s):
        a = s.a; s.vm_reset()
        s.label("L_L")
        a(f"s_setprio {s.opt.get('lprio', 3)}")
        a("s_sub_u32 s74, s3, 4")
        s.srd(48, 16, 2621440)
        a("s_cmp_eq_u32 s74, 0")
        a("s_cselect_b32 s52, s30, s32"); a("s_cselect_b32 s53, s31, s33"); a("s_and_b32 s53, s53, 0xffff")
        a("s_mov_b32 s54, 1966080"); a("s_mov_b32 s55, 0x20000")
        a("v_lshrrev_b32 v4, 2, v1"); a("v_mul_u32_u24 v2, 3072, v4")
        a("s_lshl_b32 s75, s74, 1"); a("v_and_b32 v5, 3, v1"); a("v_xor_b32 v6, s75, v5"); a("v_lshl_add_u32 v2, v6, 4, v2")
        a("s_mul_i32 s75, s7, 192"); a("v_add_u32 v2, s75, v2")
        a("v_mul_u32_u24 v3, 1280, v4")
        a("v_lshrrev_b32 v6, 4, v1"); a("s_lshl_b32 s75, s74, 2"); a("v_add_u32 v6, s75, v6")
        a("v_lshrrev_b32 v7, 1, v6"); a("v_xor_b32 v6, v6, v7"); a("v_and_b32 v6, 3, v6"); a("v_xor_b32 v6, v6, v5")
        a("v_lshl_add_u32 v3, v6, 4, v3")
        a("s_lshl_b32 s75, s6, 3"); a("s_add_u32 s75, s75, s74"); a(f"s_mul_i32 s75, s75, {16*1280}"); a("v_add_u32 v3, s75, v3")
        a("s_lshl_b32 s78, s74, 10")
        a(f"s_mul_i32 s79, s74, 6144"); a(f"s_add_u32 s79, s79, {L_WR}")
        groups = s.opt.get("groups", (1,) * 10)
        if s.opt.get("cyc", 1): a("s_mul_i32 s8, s8, 5"); a("s_lshr_b32 s8, s8, 2")
        def dsel(D):
            if s.opt.get("cyc", 1):
                a(f"s_add_u32 s80, s8, {D}"); a("s_cmp_ge_u32 s80, 10"); a("s_cselect_b32 s15, 10, 0"); a("s_sub_u32 s80, s80, s15")
                return
            b = 0
            for g in groups:
                if D < b + g: break
                b += g
            if g == 1: a(f"s_mov_b32 s80, {D}"); return
            assert g in (2, 4, 8)
            src = "s8" if g == 8 else ("s14" if g == 4 else "s15")
            a(f"s_add_u32 s80, {src}, {D - b}"); a(f"s_and_b32 s80, s80, {g - 1}")
            if b: a(f"s_add_u32 s80, s80, {b}")
        a("s_add_u32 s14, s11, s12"); a("s_mov_b32 s15, s14")
        def issue_x(D):
            dsel(D); a("s_lshl_b32 s81, s80, 7")
            for gi in range(4):
                for h in range(2):
                    t = 2 * D + h
                    a(f"s_add_u32 m0, s78, {L_XR + (t & 3) * 8192 + gi * 2048}")
                    a(f"s_add_u32 s82, s81, {gi * 32 * 1280 + h * 64}")
                    s.vmem(("x", t), f"buffer_load_dwordx4 v3, s[48:51], s82 offen lds")
        def issue_w(t):
            dsel(t >> 1); a(f"s_mul_i32 s81, s80, {64*3072}")
            for rh in range(2):
                for pc in range(3):
                    a(f"s_add_u32 m0, s79, {(t & 3) * 12288 + pc * 2048 + rh * 1024}")
                    a(f"s_add_u32 s82, s81, {(32 * (t & 1) + 16 * rh) * 3072 + pc * 64}")
                    s.vmem(("w", t), f"buffer_load_dwordx4 v2, s[52:55], s82 offen lds")
        def publish(t):
            s.vm_wait({("x", t), ("w", t), ("x", t | 1)})
            s.stamp(40 + t, 2)
            a("s_barrier")
            s.stamp(16 + t, 2)
        issue_w(0); issue_x(0); issue_w(1)
        a("s_barrier")
        publish(0); publish(1)
        if s.opt.get("rtouch", 2):
            a("s_barrier")
            issue_x(1); issue_w(2)
        else:
            issue_x(1); issue_w(2)
            a("s_barrier")
        issue_w(3)
        hold = -5
        pend = []
        for n in range(1, 17):
            if n % 2 == 0 and n + 2 < 20: pend.append(lambda n=n: issue_x((n + 2) // 2))
            if n + 3 < 20: pend.append(lambda n=n: issue_w(n + 3))
            if n != hold:
                for f in pend: f()
                pend = []
            if n < 16: publish(n + 1)
        a("s_mov_b32 s83, s74")
        a("s_branch L_Yt")

    def row_loads(s, srd, nrows, vfirst, vrest, reg, tag, nt):
        a = s.a
        for i in range((nrows + 4) // 5):
            n = min(5, nrows - 5 * i)
            if i == 0 or n < 5: s.ex(12 * n)
            r = reg + 4 * i
            if i == 0: s.vmem(tag, f"buffer_load_dwordx4 v[{r}:{r+3}], v{vfirst}, s[{srd}:{srd+3}], 0 offen {nt}")
            else:
                a(f"s_mov_b32 s77, {6400*(i-1)}")
                s.vmem(tag, f"buffer_load_dwordx4 v[{r}:{r+3}], v{vrest}, s[{srd}:{srd+3}], s77 offen {nt}")
        a("s_mov_b64 exec, -1")
    def dma_rows(s, srd, nrows, vfirst, vrest, ldsbase_s, ldsoff, tag, nt):
        a = s.a
        for i in range((nrows + 4) // 5):
            a(f"s_add_u32 m0, s{ldsbase_s}, {ldsoff + 960*i}")
            n = min(5, nrows - 5 * i)
            if i == 0 or n < 5: s.ex(12 * n)
            if i == 0: s.vmem(tag, f"buffer_load_dwordx4 v{vfirst}, s[{srd}:{srd+3}], 0 offen {nt} lds")
            else:
                a(f"s_mov_b32 s77, {6400*(i-1)}")
                s.vmem(tag, f"buffer_load_dwordx4 v{vrest}, s[{srd}:{srd+3}], s77 offen {nt} lds")
        a("s_mov_b64 exec, -1")
    def img_write(s, sbase, off, n, reg):
        a = s.a
        a(f"v_add_u32 v13, s{sbase}, v12"); s.ex(60)
        for i in range(n): a(f"ds_write_b128 v13, v[{reg+4*i}:{reg+4*i+3}] offset:{off + 960*i}")
        a("s_mov_b64 exec, -1")
    def h_copies(s, sbase, reg, half=None):
        a = s.a
        a(f"v_add_u32 v13, s{sbase}, v12")
        for i in (range(4) if half is None else range(2 * half, 2 * half + 2)):
            r = reg + 4 * i
            if i == 0: a("v_mov_b32 v234, 0")
            else:
                a(f"v_readlane_b32 s74, v{r-1}, 63"); a("s_nop 1"); a("v_mov_b32 v234, s74")
            a("s_nop 1")
            a(f"v_mov_b32_dpp v234, v{r+3} wave_shr:1 row_mask:0xf bank_mask:0xf")
            a(f"ds_write_b128 v13, v[{r}:{r+3}] offset:{CV_B + 64 + i*1024}")
            a(f"v_alignbit_b32 v236, v{r}, v234, 16")
            a(f"v_alignbit_b32 v237, v{r+1}, v{r}, 16")
            a(f"v_alignbit_b32 v238, v{r+2}, v{r+1}, 16")
            a(f"v_alignbit_b32 v239, v{r+3}, v{r+2}, 16")
            a(f"ds_write_b128 v13, v[236:239] offset:{CV_A + 64 + i*1024}")
        if half == 0: return
        a("v_lshrrev_b32 v234, 2, v1"); a("v_and_b32 v235, 1, v234"); a("v_mul_u32_u24 v235, 4160, v235")
        a("v_lshrrev_b32 v234, 1, v234"); a(f"v_mul_u32_u24 v234, {CV_B}, v234"); a("v_add_u32 v235, v235, v234")
        a("v_and_b32 v234, 3, v1"); a("v_lshl_add_u32 v235, v234, 4, v235"); a(f"v_add_u32 v235, s{sbase}, v235")
        for r in range(236, 240): a(f"v_mov_b32 v{r}, 0")
        s.ex(16)
        a("ds_write_b128 v235, v[236:239]")
        a("s_mov_b64 exec, -1")
    def u_addr(s, sbase):
        a = s.a
        def swz(dst, off):
            a(f"v_add_u32 v{dst}, {off}, v12"); a(f"v_lshrrev_b32 v41, 3, v{dst}"); a("v_and_b32 v41, 32, v41"); a(f"v_xor_b32 v{dst}, v{dst}, v41")
            a(f"v_add_u32 v{dst}, s{sbase}, v{dst}"); a(f"v_subrev_u32 v{dst}, 64, v{dst}")
        swz(14, 68); swz(15, 80); swz(40, 72)
        a(f"v_add_u32 v13, s{sbase}, v12")
        for r in range(32, 36): a(f"v_mov_b32 v{r}, 0")
        s.ex(34); a("ds_write_b128 v13, v[32:35] offset:4096")
        s.ex(33); a(f"ds_write_b128 v13, v[32:35] offset:{CV_U1 + 4096 - 8}")
        a("s_mov_b64 exec, 1"); a("ds_write_b128 v13, v[32:35]")
        a("s_mov_b64 exec, -1")
    def u_stage(s, reg, nwait0):
        a = s.a
        for i in range(4):
            a(f"s_waitcnt vmcnt({nwait0 + 3 - i})")
            r = reg + 4 * i
            a(f"ds_write_b64 v40, v[{r}:{r+1}] offset:{CV_U1 + i*1024}")
            a(f"ds_write_b64 v15, v[{r+2}:{r+3}] offset:{CV_U1 + i*1024}")
            a(f"ds_write_b64 v14, v[{r}:{r+1}] offset:{i*1024}") if False else None
            a(f"ds_write_b32 v14, v{r} offset:{i*1024}")
            a(f"ds_write_b64 v14, v[{r+1}:{r+2}] offset:{i*1024 + 4}") if False else None
            a(f"ds_write_b32 v14, v{r+1} offset:{i*1024 + 4}")
            a(f"ds_write_b32 v14, v{r+2} offset:{i*1024 + 8}")
            a(f"ds_write_b32 v15, v{r+3} offset:{i*1024}")

    def chore(s):
        a = s.a; s.vm_reset(); nt = s.nt
        s.label("L_C")
        a(f"s_setprio {s.opt.get('cprio', 2)}")
        a("s_sub_u32 s78, s3, 6")
        a(f"s_mul_i32 s79, s78, {CV_SZ}"); a(f"s_add_u32 s79, s79, {L_CV}")
        a(f"s_add_u32 s84, s79, {2*CV_SZ}")
        a("s_mul_i32 s93, s78, 4800"); a(f"s_add_u32 s93, s93, {L_WDS}")
        s.srd(64, 40, 256)
        l = s.newlab("L_noep")
        a("s_cmp_lg_u32 s2, 0"); a(f"s_cbranch_scc1 {l}"); a("s_cmp_lg_u32 s78, 0"); a(f"s_cbranch_scc1 {l}")
        a("s_memrealtime s[74:75]"); a("s_waitcnt lgkmcnt(0)"); a("s_or_b32 s75, s75, 0x40000000")
        a("v_mov_b32 v2, s74"); a("v_mov_b32 v3, s75"); a("v_mov_b32 v4, 0")
        a("s_mov_b64 exec, 1"); a("buffer_store_dwordx2 v[2:3], v4, s[64:67], 0 offen sc1"); a("s_mov_b64 exec, -1")
        s.label(l)
        s.srd(48, 18, 2621440); s.srd(52, 20, 2621440); s.srd(56, 22, 5120); s.srd(60, 24, 2621440)
        s.srd(68, 16, 2621440); s.srd(88, 34, 1966080)
        a("s_and_b32 s85, s10, 1"); a("s_lshl_b32 s85, s85, 5")
        a("s_mul_i32 s80, s10, 160"); a("s_sub_u32 s80, s80, s85")
        a("s_lshl_b32 s81, s9, 6"); a("s_lshl_b32 s74, s78, 5"); a("s_add_u32 s81, s81, s74")
        a("v_mul_u32_u24 v4, 5462, v1"); a("v_lshrrev_b32 v4, 16, v4")
        a("v_mul_u32_u24 v5, 12, v4"); a("v_sub_u32 v5, v1, v5")
        a("v_mul_u32_u24 v6, 1280, v4"); a("v_lshl_add_u32 v6, v5, 4, v6"); a("v_add_u32 v6, s80, v6")
        a("s_mul_i32 s74, s9, 48"); a("s_mul_i32 s75, s78, 24"); a("s_add_u32 s74, s74, s75"); a("s_mul_i32 s74, s74, 1280")
        a("v_add_u32 v16, s74, v6"); a("v_add_u32 v17, 6400, v16")
        a("s_mul_i32 s74, s81, 1280")
        a("v_add_u32 v20, s74, v6"); a("v_add_u32 v21, 6400, v20")
        a(f"v_subrev_u32 v18, {3*1280}, v20"); a("v_add_u32 v19, 6400, v18")
        a("v_mov_b32 v23, 0"); a("v_mov_b32 v37, 1")
        if s.opt.get("ticket", 0):
            lt = s.newlab("L_tk")
            a("s_cmp_eq_u32 s78, 0"); a(f"s_cbranch_scc1 {lt}")
            a("s_mov_b64 exec, 1"); a("buffer_atomic_add v37, v23, s[64:67], 0 offen offset:64 sc0"); a("s_mov_b64 exec, -1")
            s.label(lt)
        elif s.opt.get("cmap", 1):
            a("s_mul_i32 s74, s5, 5"); a("s_add_u32 s74, s74, s4"); a("s_cmp_lt_u32 s4, 5"); a("s_cselect_b32 s74, s74, 255"); a("v_mov_b32 v37, s74")
        else: a("v_mov_b32 v37, s2")
        a("s_barrier")
        s.dma_rows(48, 35, 18, 19, 84, SC_K, "k", nt)
        s.dma_rows(52, 32, 20, 21, 84, SC_V, "k", nt)
        a("s_mul_i32 s75, s10, 640"); a(f"s_add_u32 m0, s84, {SC_SHK}"); s.ex(40)
        s.vmem("k", "buffer_load_dwordx4 v12, s[56:59], s75 offen lds")
        a("s_mov_b64 exec, -1")
        s.vmem("ep", "buffer_load_dwordx2 v[38:39], v23, s[64:67], 0 offen sc1")
        s.stamp(40, 2); a("s_barrier")
        if s.opt.get("rtouch", 2):
            a("s_mov_b32 s76, 0x986431"); a("s_bitcmp1_b32 s11, 0"); a("s_cselect_b32 s76, 0x975420, s76")
            a("v_lshrrev_b32 v240, 4, v1"); a("v_lshlrev_b32 v240, 2, v240"); a("v_lshrrev_b32_e64 v241, v240, s76"); a("v_and_b32 v241, 15, v241")
            a("s_lshr_b32 s76, s76, 16"); a("v_lshrrev_b32_e64 v242, v240, s76"); a("v_and_b32 v242, 15, v242")
            a("v_and_b32 v243, 15, v1"); a("v_mul_u32_u24 v243, 1280, v243")
            a("v_lshl_add_u32 v241, v241, 7, v243"); a("v_lshl_add_u32 v242, v242, 7, v243")
            a("s_lshl_b32 s76, s6, 3"); a("s_lshl_b32 s77, s12, 1"); a("s_add_u32 s76, s76, s77"); a("s_add_u32 s76, s76, s78"); a(f"s_mul_i32 s98, s76, {16*1280}")
            a("v_bfe_u32 v243, v1, 4, 1"); a(f"v_mul_u32_u24 v243, {5*64*3072}, v243"); a("v_bfe_u32 v244, v1, 1, 3"); a("v_mul_u32_u24 v244, 3072, v244"); a("v_add_u32 v243, v243, v244")
            a("v_and_b32 v244, 1, v1"); a("v_lshl_add_u32 v243, v244, 7, v243")
            a("s_mul_i32 s76, s7, 192"); a("s_and_b32 s76, s76, 0xffffff80"); a(f"s_mul_i32 s77, s11, {8*3072}"); a("s_add_u32 s76, s76, s77"); a(f"s_add_u32 s99, s76, {4*64*3072}")
            a("s_cmp_eq_u32 s78, 0")
            a("s_cselect_b32 s48, s30, s32"); a("s_cselect_b32 s49, s31, s33"); a("s_and_b32 s49, s49, 0xffff"); a("s_mov_b32 s50, 1966080"); a("s_mov_b32 s51, 0x20000")
        s.stamp(41, 2); a("s_barrier")
        if s.opt.get("rtouch", 2):
            a("s_mov_b32 exec_hi, 0")
            s.vmem("t", "buffer_load_dword v250, v243, s[48:51], s99 offen")
            if s.opt.get("rtouch", 2) == 1:
                s.vmem("t", "buffer_load_dword v251, v242, s[68:71], s98 offen")
                a("s_mov_b64 exec, -1")
                s.vmem("t", "buffer_load_dword v252, v241, s[68:71], s98 offen")
            a("s_mov_b64 exec, -1")
        s.dma_rows(88, 24, 16, 17, 93, 0, "wd", nt)
        a("s_lshr_b32 s74, s85, 4"); a("v_subrev_u32 v7, s74, v5")
        a("v_cmp_gt_u32 s[86:87], 10, v7"); a("v_cmp_gt_u32 vcc, 60, v1"); a("s_and_b64 s[86:87], s[86:87], vcc")
        a("v_mul_u32_u24 v22, 160, v4"); a("v_lshl_add_u32 v22, v7, 4, v22")
        a(f"s_mul_i32 s76, s78, 5120"); a(f"s_add_u32 s76, s76, {L_QT}"); a("v_add_u32 v22, s76, v22")
        a("s_lshl_b32 s75, s9, 6"); a("s_lshl_b32 s76, s10, 3"); a("s_add_u32 s75, s75, s76"); a("s_lshl_b32 s76, s78, 2"); a("s_add_u32 s82, s75, s76")
        a("v_lshrrev_b32 v14, 4, v1"); a("v_mul_u32_u24 v14, 1280, v14"); a("v_and_b32 v15, 15, v1"); a("v_lshlrev_b32 v15, 4, v15"); a("v_add_u32 v14, v14, v15")
        a("v_and_b32 v240, 15, v1"); a("v_lshrrev_b32 v241, 4, v1")
        a("v_lshrrev_b32 v242, 2, v240"); a("v_mul_u32_u24 v242, 192, v242"); a("v_and_b32 v243, 3, v240"); a("v_lshl_add_u32 v242, v243, 3, v242")
        a(f"v_add_u32 v242, s93, v242"); a("v_add_u32 v242, s85, v242")
        a("s_mul_i32 s74, s9, 6"); a("s_mul_i32 s75, s78, 3"); a("s_add_u32 s74, s74, s75")
        for p in range(4):
            a(f"v_add_u32 v243, {4*p}, v241"); a("v_mul_u32_u24 v244, 52, v243"); a("v_lshrrev_b32 v244, 8, v244")
            a("v_mul_u32_u24 v245, 5, v244"); a("v_sub_u32 v245, v243, v245")
            a(f"v_mul_u32_u24 v{24+p}, 1536, v244"); a(f"v_lshl_add_u32 v{24+p}, v245, 5, v{24+p}"); a(f"v_add_u32 v{24+p}, v{24+p}, v242")
            a("v_add_u32 v244, s74, v244"); a("v_lshrrev_b32 v247, 2, v244"); a(f"v_mul_u32_u24 v{28+p}, 5120, v247")
            a("v_and_b32 v244, 3, v244"); a(f"v_lshl_add_u32 v{28+p}, v244, 8, v{28+p}"); a(f"v_lshl_add_u32 v{28+p}, v245, 10, v{28+p}")
            a(f"v_lshl_add_u32 v{28+p}, v240, 4, v{28+p}")
        a("v_lshrrev_b32 v6, 3, v1"); a("v_and_b32 v7, 7, v1"); a("s_mul_i32 s74, s78, 40"); a("v_add_u32 v6, s74, v6")
        for i in range(5):
            a(f"v_add_u32 v8, {8*i}, v6"); a("v_mul_u32_u24 v9, 3277, v8"); a("v_lshrrev_b32 v9, 16, v9")
            a("v_mul_u32_u24 v10, 20, v9"); a("v_sub_u32 v8, v8, v10")
            a("v_lshl_add_u32 v9, v8, 2, v9"); a("v_xor_b32 v8, v8, v7"); a("v_and_b32 v8, 7, v8"); a("v_lshlrev_b32 v8, 4, v8")
            a(f"v_mul_u32_u24 v9, {TS}, v9"); a(f"v_add_u32 v{32+i}, v9, v8")
        a("v_mov_b32 v23, 0")
        sched = {t: [] for t in range(21)}
        dl = s.opt.get("dl", 3)
        def rowl(srd, nrows, vfirst, vrest, reg, tag, ntf):
            out = []
            for i in range((nrows + 4) // 5):
                def f(i=i):
                    n = min(5, nrows - 5 * i); r = reg + 4 * i
                    s.ex(12 * n)
                    if i == 0: s.vmem(tag, f"buffer_load_dwordx4 v[{r}:{r+3}], v{vfirst}, s[{srd}:{srd+3}], 0 offen {ntf}")
                    else:
                        a(f"s_mov_b32 s77, {6400*(i-1)}")
                        s.vmem(tag, f"buffer_load_dwordx4 v[{r}:{r+3}], v{vrest}, s[{srd}:{srd+3}], s77 offen {ntf}")
                    a("s_mov_b64 exec, -1")
                out.append(f)
            return out
        Lk = rowl(48, 35, 18, 19, 40, "k", nt); Lv = rowl(52, 32, 20, 21, 68, "v", nt); Lw = rowl(88, 24, 16, 17, 96, "wd", nt)
        Lq = rowl(68, 32, 20, 21, 196, "q", "")
        def lshk():
            a("s_mul_i32 s75, s10, 640"); s.ex(40)
            s.vmem("v", "buffer_load_dwordx4 v[116:119], v12, s[56:59], s75 offen")
            a("s_mov_b64 exec, -1")
        def lgx(i):
            a("s_mul_i32 s75, s82, 1280")
            s.vmem("gx", f"buffer_load_dwordx4 v[{124+4*i}:{127+4*i}], v14, s[68:71], s75 offen offset:{i*256}")
        def lgw():
            s.srd(56, 36, 1280)
            for i in range(5):
                s.vmem("gx", f"buffer_load_dwordx4 v[{144+4*i}:{147+4*i}], v15, s[56:59], 0 offen offset:{i*256}")
        def lh(i):
            a("s_lshl_b32 s74, s2, 2"); a(f"s_add_u32 s74, s74, {2*(i//4)}"); a("s_add_u32 s74, s74, s78"); a("s_lshl_b32 s74, s74, 12")
            s.vmem("h", f"buffer_load_dwordx4 v[{164+4*i}:{167+4*i}], v12, s[60:63], s74 offen offset:{(i&3)*1024} {nt}")
        def two(f, g): return lambda: (f(), g())
        cold = Lk + [two(Lv[0], lshk)] + Lv[1:] + Lw
        def w1(): s.vm_wait({"k"}); s.stamp(2); s.img_write(84, SC_K, 7, 40)
        def w2():
            s.vm_wait({"v"}); s.img_write(84, SC_V, 7, 68)
            s.ex(40); a(f"ds_write_b128 v13, v[116:119] offset:{SC_SHK}"); a("s_mov_b64 exec, -1")
        def w3(): s.vm_wait({"wd"}); s.img_write(93, 0, 5, 96); a("s_waitcnt lgkmcnt(0)")
        def wd():
            for p in range(4):
                a(f"ds_read_b64_tr_b16 v[{96+4*p}:{97+4*p}], v{24+p}")
                a(f"ds_read_b64_tr_b16 v[{98+4*p}:{99+4*p}], v{24+p} offset:768")
            a(f"s_mul_i32 s74, s10, {48*5120}"); a(f"s_add_u32 s74, s74, {WS_WB}")
            a("s_waitcnt lgkmcnt(0)")
            for p in range(4):
                if p == 3: s.ex(48)
                s.vmem("st", f"buffer_store_dwordx4 v[{96+4*p}:{99+4*p}], v{28+p}, s[44:47], s74 offen sc1")
            a("s_mov_b64 exec, -1")
        def epoch():
            s.vm_wait({"ep"})
            l0 = s.newlab("L_ep"); l1_ = s.newlab("L_epd")
            a(f"s_mov_b32 s94, {SPIN_MAX}")
            s.label(l0)
            a("v_readfirstlane_b32 s72, v38"); a("v_readfirstlane_b32 s73, v39"); a("s_nop 1")
            a("s_cmp_lg_u32 s73, 0"); a(f"s_cbranch_scc1 {l1_}")
            a("buffer_load_dwordx2 v[38:39], v23, s[64:67], 0 offen sc1")
            a("s_waitcnt vmcnt(0)")
            a("s_sub_u32 s94, s94, 1"); a(f"s_cbranch_scc0 {l0}")
            s.label(l1_)
            a(f"v_mov_b32 v242, {L_EPOCH}"); a("ds_write_b64 v242, v[38:39]")
            lt2 = s.newlab("L_tk")
            a("s_cmp_eq_u32 s78, 0"); a(f"s_cbranch_scc1 {lt2}")
            a("s_mov_b64 exec, 1"); a("ds_write_b32 v242, v37 offset:16"); a("s_mov_b64 exec, -1")
            s.label(lt2)
        def gate():
            s.vm_wait({"gx"})
            a("v_mov_b32 v240, 0"); a("v_mov_b32 v241, 0")
            for i in range(20): a(f"v_dot2_f32_bf16 v{240 + (i & 1)}, v{124+i}, v{144+i}, v{240 + (i & 1)}")
            a("s_nop 2")
            a("v_add_f32 v240, v240, v241"); a("s_nop 1")
            for ctl in ("quad_perm:[1,0,3,2]", "quad_perm:[2,3,0,1]", "row_half_mirror", "row_mirror"):
                a(f"v_add_f32_dpp v240, v240, v240 {ctl} row_mask:0xf bank_mask:0xf"); a("s_nop 1")
            a("v_cvt_pk_bf16_f32 v240, v240, v240"); a("v_and_b32 v240, 0xffff0000, v240")
            a("v_mul_f32 v240, 0xbfb8aa3b, v240"); a("v_exp_f32 v240, v240"); a("s_nop 0"); a("v_add_f32 v240, 1.0, v240")
            a("v_rcp_f32 v240, v240"); a("s_nop 0")
            a("v_cvt_pk_bf16_f32 v240, v240, v240"); a("v_and_b32 v240, 0xffff0000, v240")
            a("s_lshl_b32 s74, s82, 2"); a(f"s_add_u32 s74, s74, {WS_G}")
            a("v_lshrrev_b32 v241, 4, v1"); a("v_lshlrev_b32 v241, 2, v241")
            a("s_mov_b32 exec_lo, 0x00010001"); a("s_mov_b32 exec_hi, 0x00010001")
            s.vmem("st", "buffer_store_dword v240, v241, s[44:47], s74 offen sc1")
            a("s_mov_b64 exec, -1")
        def qc():
            a("s_mov_b64 exec, s[86:87]")
            for i in range(7):
                if i == 6: a("s_and_b32 exec_lo, exec_lo, 0xffffff"); a("s_mov_b32 exec_hi, 0")
                a(f"ds_write_b128 v22, v[{196+4*i}:{199+4*i}] offset:{800*i}")
            a("s_mov_b64 exec, -1")
        def ktst_rd():
            a("s_mul_i32 s74, s78, 5120"); a(f"s_add_u32 s74, s74, {L_T}"); a("v_add_u32 v13, s74, v12")
            for i in range(5): a(f"ds_read_b128 v[{40+4*i}:{43+4*i}], v13 offset:{i*1024}")
        def ktst_st():
            a(f"s_mul_i32 s74, s10, {80*TS}"); a("s_lshl_b32 s75, s9, 7"); a("s_sub_u32 s74, s74, s75")
            a(f"s_add_u32 s74, s74, {WS_KT + 3968}")
            for i in range(5):
                s.vmem("st", f"buffer_store_dwordx4 v[{40+4*i}:{43+4*i}], v{32+i}, s[44:47], s74 offen sc1")
        def hc(base, reg, half):
            s.vm_wait({"h"})
            l = s.newlab("L_nh"); a(f"s_cmp_ge_u32 s2, {NCONV}"); a(f"s_cbranch_scc1 {l}")
            s.h_copies(base, reg, half); s.label(l)
        def flagsA():
            s.vm_wait({"st"})
            a("s_lshl_b32 s74, s10, 9"); a("s_lshl_b32 s75, s9, 4"); a("s_add_u32 s74, s74, s75"); a("s_lshl_b32 s76, s78, 3"); a("s_add_u32 s74, s74, s76")
            a(f"s_add_u32 s74, s74, {WS_FA}")
            s.write_flag(244, 74)
            s.stamp(5)
        def flagsB():
            lb = s.newlab("L_nb")
            a("s_cmp_lt_u32 s83, 2"); a(f"s_cbranch_scc1 {lb}")
            a("s_waitcnt vmcnt(0)")
            a("s_lshl_b32 s76, s78, 3")
            a("s_lshl_b32 s74, s9, 7"); a("s_lshl_b32 s75, s10, 4"); a("s_add_u32 s74, s74, s75"); a("s_add_u32 s74, s74, s76"); a(f"s_add_u32 s74, s74, {WS_FB}")
            s.write_flag(8, 74)
            s.label(lb)
        KVT = s.kvt
        s.vm_wait({"k"}); s.stamp(2)
        a("s_barrier")
        epoch()
        ts = s.opt.get("ts", 3)
        sched[ts].append(lambda: (s.vm_wait({"wd"}), ktst_rd(), wd(), ktst_st(), s.stamp(3)))
        tf = s.opt.get("tf", 6); sched[tf].append(flagsA)
        tg = s.opt.get("tg", 16)
        sched[tg - 3] += [lambda i=i: lgx(i) for i in range(5)] + [lgw]
        sched[tg].append(gate)
        s.flagsB = flagsB
        tp = s.opt.get("tp", 12)
        def fa_ld():
            a(f"v_mov_b32 v2, {L_SDONE}"); a("ds_read_b32 v2, v2"); a("s_waitcnt lgkmcnt(0)"); a("v_readfirstlane_b32 s14, v2"); a("s_nop 1")
            a("s_mul_i32 s74, s14, 3277"); a("s_lshr_b32 s74, s74, 16"); a("s_min_u32 s74, s74, 7")
            a("s_cmp_eq_u32 s78, 0"); a("s_cselect_b32 s74, s74, s10"); a("s_lshl_b32 s74, s74, 9"); a(f"s_add_u32 s74, s74, {WS_FA}")
            a("v_lshlrev_b32 v2, 3, v1")
            s.vmem("fa", "buffer_load_dwordx2 v[4:5], v2, s[44:47], s74 offen sc1")
        def fa_ck():
            s.vm_wait({"fa"})
            a("v_cmp_ne_u64 vcc, s[72:73], v[4:5]"); a("s_nop 1")
            lf = s.newlab("L_nf")
            a(f"s_cbranch_vccnz {lf}")
            a("s_lshl_b32 s74, s78, 2"); a(f"s_add_u32 s74, s74, {L_QDONE}"); s.lds_set(8, "s74", 1)
            s.label(lf)
        sched[4].append(lambda: a("s_waitcnt lgkmcnt(0)"))
        sched[tp].append(fa_ld); sched[tp + 2].insert(0, fa_ck); sched[tp + 3].append(lambda: a("s_waitcnt lgkmcnt(0)"))
        tq = s.opt.get("tq", 14)
        sched[tq] += Lq
        for t in range(2, 17):
            s.stamp(40 + t, 2)
            a("s_barrier")
            if not s.opt.get("noc"):
                for f in sched[t]: f()
        assert all(not sched[t] for t in range(17, 21))
        s.qc = qc
        a("s_add_u32 s83, s78, 2")

    def ywave(s):
        a = s.a; s.vm_reset()
        s.label("L_Yt")
        a(f"s_mul_i32 s84, s83, {CV_SZ}"); a(f"s_add_u32 s84, s84, {L_CV}"); a(f"s_add_u32 s93, s84, {H_SZ}")
        s.srd(60, 24, 2621440)
        a(f"v_mov_b32 v16, {L_EPOCH}"); a("ds_read_b32 v20, v16 offset:16"); a("ds_read_b128 v[16:19], v16")
        a("v_lshlrev_b32 v2, 3, v1")
        a("s_waitcnt lgkmcnt(0)")
        a("v_readfirstlane_b32 s14, v20")
        a("v_readfirstlane_b32 s72, v16"); a("v_readfirstlane_b32 s73, v17"); a("v_readfirstlane_b32 s99, v18")
        a("s_mul_i32 s98, s14, 3277"); a("s_lshr_b32 s98, s98, 16"); a("s_lshl_b32 s98, s98, 9"); a(f"s_add_u32 s98, s98, {WS_FA}")
        a("s_lshl_b32 s85, s14, 2"); a("s_add_u32 s85, s85, s83"); a("s_lshl_b32 s74, s85, 12")
        a(f"s_mul_i32 s100, s85, {TS}"); a(f"s_add_u32 s100, s100, {WS_KT}")
        a("s_waitcnt vmcnt(20)"); s.stamp(57, 2); a("s_barrier"); s.stamp(33, 2)
        a(f"s_cmp_lt_u32 s14, {NCONV}"); a("s_cselect_b32 s99, s99, 0")
        a("s_cmp_lg_u32 s99, 0"); a("s_cselect_b32 s101, s100, 0x7ff00000")
        for i in range(4):
            a(f"buffer_load_dwordx4 v[{164+4*i}:{167+4*i}], v12, s[60:63], s74 offen offset:{i*1024} {s.nt}")
        for i in range(4):
            a(f"buffer_load_dwordx4 v[{48+4*i}:{51+4*i}], v12, s[44:47], s101 offen offset:{i*1024} sc1")
        a("s_waitcnt vmcnt(14)"); s.stamp(58, 2); a("s_barrier"); s.stamp(34, 2)
        s.u_addr(93)
        a("s_waitcnt vmcnt(8)")
        lq = s.newlab("L_nq")
        a("s_cmp_lt_u32 s83, 2"); a(f"s_cbranch_scc1 {lq}")
        if not s.opt.get("noc"): s.qc()
        s.label(lq)
        s.stamp(59, 2); a("s_barrier"); s.stamp(35, 2)
        a("s_waitcnt lgkmcnt(0)")
        a("s_barrier")
        s.stamp(1)
        if s.opt.get("g1only"): a("s_branch L_fin2")
        if s.opt.get("noconv"): a("s_branch L_apart")
        lcv = s.newlab("L_cvgo")
        a(f"s_cmp_lt_u32 s14, {NCONV}"); a(f"s_cbranch_scc1 {lcv}")
        s.flagsB()
        a("s_branch L_apart")
        s.label(lcv)
        a("s_setprio 1")
        lk2 = s.newlab("L_hk")
        a("s_cmp_lg_u32 s99, 0"); a(f"s_cbranch_scc1 {lk2}")
        s.poll(4, 2, "s98")
        for i in range(4):
            a(f"buffer_load_dwordx4 v[{48+4*i}:{51+4*i}], v12, s[44:47], s100 offen offset:{i*1024} sc1")
        s.label(lk2)
        s.stamp(6)
        a("s_waitcnt vmcnt(4)")
        s.h_copies(84, 164)
        s.u_stage(48, 0)
        s.flagsB()
        s.stamp(7)
        a("v_add_u32 v13, s93, v12")
        a("v_and_b32 v2, 15, v1"); a("v_lshrrev_b32 v3, 4, v1"); a("v_and_b32 v4, 1, v2"); a("v_lshrrev_b32 v5, 1, v2")
        a(f"v_mul_u32_u24 v6, {CV_B}, v4"); a("v_lshl_add_u32 v6, v3, 4, v6"); a("v_lshl_add_u32 v6, v5, 3, v6"); a("v_add_u32 v6, s84, v6")
        a("v_lshlrev_b32 v7, 4, v3"); a("v_lshlrev_b32 v8, 6, v5"); a("v_sub_u32 v7, v7, v8"); a("v_add_u32 v7, 512, v7")
        a(f"v_mul_u32_u24 v9, {CV_U1}, v4"); a("v_add_u32 v9, s93, v9"); a("v_subrev_u32 v9, 64, v9")
        def baddr():
            a("v_lshrrev_b32 v10, 3, v7"); a("v_and_b32 v10, 32, v10"); a("v_xor_b32 v10, v10, v7"); a("v_add_u32 v10, v10, v9"); a("v_add_u32 v7, 64, v7")
        SA = (96, 160); SB = (128, 192)
        def reads(st, par):
            R = []
            for c in range(8):
                for hh in range(2):
                    R.append(f"ds_read_b64 v[{SA[st]+4*c+2*hh}:{SA[st]+4*c+2*hh+1}], v6 offset:{512*c + 8*hh + 64*par}")
                for hh in range(2):
                    R.append(f"ds_read_b64 v[{SB[st]+4*c+2*hh}:{SB[st]+4*c+2*hh+1}], v10 offset:{512*(7-c) + 8*hh}")
            return R
        def mfmas(st, full=True):
            M = []
            for aa in range(8):
                for c in (range(aa + 1) if full else [aa]):
                    b = aa - c; o = 224 + 4 * aa
                    M.append(f"v_mfma_f32_16x16x32_bf16 v[{o}:{o+3}], v[{SA[st]+4*c}:{SA[st]+4*c+3}], v[{SB[st]+4*b}:{SB[st]+4*b+3}], v[{o}:{o+3}]")
            return M
        def inter(M, R):
            a("s_waitcnt lgkmcnt(12)")
            for mi, m in enumerate(M):
                if mi == 15: a("s_waitcnt lgkmcnt(15)")
                a(m)
                if mi < len(R): a(R[mi])
        baddr()
        a("s_waitcnt lgkmcnt(0)")
        for r in reads(0, 0): a(r)
        for r in range(224, 256): a(f"v_mov_b32 v{r}, 0")
        a("s_mov_b32 s86, 0")
        s.label("L_cv")
        baddr()
        inter(mfmas(0), reads(1, 1))
        a("v_add_u32 v6, 128, v6"); baddr()
        inter(mfmas(1), reads(0, 0))
        a("s_add_u32 s86, s86, 1"); a("s_cmp_lt_u32 s86, 4"); a("s_cbranch_scc1 L_cv")
        a("s_waitcnt lgkmcnt(0)")
        for m in mfmas(0, False): a(m)
        a("v_lshlrev_b32 v8, 4, v3"); a("v_lshl_add_u32 v8, v4, 2, v8"); a("v_lshl_add_u32 v8, v5, 6, v8")
        a(f"v_sub_u32 v8, {CV_U0 + 2*(2046 - 4) - 512}, v8"); a("v_add_u32 v8, s93, v8")
        a("s_nop 4")
        for t in range(8):
            o = 224 + 4 * t
            a(f"v_cvt_pk_bf16_f32 v{16+2*t}, v{o+3}, v{o+2}")
            a(f"v_cvt_pk_bf16_f32 v{17+2*t}, v{o+1}, v{o}")
        for t in range(8):
            off = 128 if t % 2 == 0 else 0
            a(f"ds_write2_b32 v8, v{16+2*t}, v{17+2*t} offset0:{off} offset1:{off+2}")
            if t % 2 == 1 and t < 7: a("v_subrev_u32 v8, 1024, v8")
        a("s_waitcnt lgkmcnt(0)")
        for i in range(4): a(f"ds_read_b128 v[{32+4*i}:{35+4*i}], v13 offset:{CV_U0 + i*1024}")
        a(f"s_mul_i32 s74, s85, {TS}"); a(f"s_add_u32 s74, s74, {WS_YT}")
        for i in range(4):
            a(f"s_waitcnt lgkmcnt({3-i})")
            a(f"buffer_store_dwordx4 v[{32+4*i}:{35+4*i}], v12, s[44:47], s74 offen offset:{i*1024} sc1")
        s.stamp(8)
        a("s_waitcnt vmcnt(0)")
        a("s_lshl_b32 s74, s85, 3"); a(f"s_add_u32 s74, s74, {WS_FY}")
        s.write_flag(48, 74)
        a("s_setprio 0")
        s.label("L_apart")
        a("s_setprio 0")
        if s.opt.get("xh", 1): s.lds_wait(L_XH, 1, 1, 148, slp=2)
        s.stamp(9)
        a("v_min_u32 v2, 15, v1"); a("v_lshlrev_b32 v2, 3, v2")
        a("s_lshl_b32 s74, s9, 7"); a(f"s_add_u32 s74, s74, {WS_FB}")
        s.poll(4, 2, "s74")
        a("v_sub_u32 v3, 63, v1"); a("v_lshlrev_b32 v2, 2, v3")
        a("s_lshl_b32 s74, s9, 8"); a(f"s_add_u32 s74, s74, {WS_G}")
        a("buffer_load_dword v15, v2, s[44:47], s74 offen sc1")
        a("s_mul_i32 s87, s10, 80"); a("s_mul_i32 s74, s83, 20"); a("s_add_u32 s87, s87, s74")
        a(f"s_mul_i32 s88, s87, {TS}"); a("s_lshl_b32 s74, s9, 7"); a("s_sub_u32 s88, s88, s74"); a("s_add_u32 s88, s88, 3968")
        a("v_lshrrev_b32 v5, 3, v1"); a(f"v_mul_u32_u24 v5, {TS}, v5"); a("v_and_b32 v6, 7, v1"); a("v_lshl_add_u32 v5, v6, 4, v5")
        def tile_loads(base, reg):
            for i in range(3):
                a(f"s_add_u32 s74, s88, {base + i*8*TS}")
                if i == 2: a("s_mov_b32 exec_hi, 0")
                a(f"buffer_load_dwordx4 v[{reg+4*i}:{reg+4*i+3}], v5, s[44:47], s74 offen sc1")
                if i == 2: a("s_mov_b64 exec, -1")
        tile_loads(WS_KT, 16)
        a("s_lshl_b32 s74, s87, 1"); a("s_add_u32 s26, s26, s74"); a("s_addc_u32 s27, s27, 0")
        a("s_load_dwordx8 s[48:55], s[26:27], 0"); a("s_load_dwordx2 s[56:57], s[26:27], 32")
        a("v_add_u32 v13, s84, v12")
        a("v_mul_u32_u24 v7, 160, v3"); a("s_mul_i32 s74, s83, 40"); a(f"s_add_u32 s74, s74, {L_QT}"); a("v_add_u32 v7, s74, v7")
        for gq in range(5): a(f"ds_read_b64 v[{64+2*gq}:{65+2*gq}], v7 offset:{8*gq}")
        a("s_waitcnt vmcnt(0)")
        for i in range(3):
            if i == 2: a("s_mov_b32 exec_hi, 0")
            a(f"ds_write_b128 v13, v[{16+4*i}:{19+4*i}] offset:{i*1024}")
            if i == 2: a("s_mov_b64 exec, -1")
        a("v_and_b32 v8, 15, v1"); a("v_lshrrev_b32 v9, 2, v8"); a("v_lshlrev_b32 v9, 7, v9"); a("v_and_b32 v8, 3, v8"); a("v_lshl_add_u32 v9, v8, 3, v9")
        a("v_lshrrev_b32 v8, 4, v1"); a("v_lshl_add_u32 v9, v8, 5, v9"); a("v_add_u32 v9, s84, v9")
        a(f"v_add_u32 v2, {L_GF}, v2"); a("ds_write_b32 v2, v15")
        a("s_waitcnt lgkmcnt(0)")
        for gq in range(5): a(f"ds_read_b64_tr_b16 v[{74+2*gq}:{75+2*gq}], v9 offset:{512*gq}")
        for gq in range(5):
            for e in range(2):
                r = 96 + 4 * gq + 2 * e
                a(f"v_lshlrev_b32 v{r}, 16, v{64+2*gq+e}"); a(f"v_and_b32 v{r+1}, 0xffff0000, v{64+2*gq+e}")
                a(f"v_mul_f32 v{r}, v{r}, v15"); a(f"v_mul_f32 v{r+1}, v{r+1}, v15")
        a("s_waitcnt lgkmcnt(0)")
        for gq in range(5):
            for e in range(2):
                sd = 48 + 2 * gq + e; r = 120 + 4 * gq + 2 * e
                a(f"s_lshl_b32 s58, s{sd}, 16"); a(f"s_and_b32 s59, s{sd}, 0xffff0000")
                a(f"v_lshlrev_b32 v{r}, 16, v{74+2*gq+e}"); a(f"v_and_b32 v{r+1}, 0xffff0000, v{74+2*gq+e}")
                a(f"v_mul_f32 v{r}, s58, v{r}"); a(f"v_mul_f32 v{r+1}, s59, v{r+1}")
        s.lds_wait(L_XG2, 1, 1, 148, slp=2)
        a("v_min_u32 v2, 19, v1"); a("v_lshlrev_b32 v2, 3, v2")
        a("s_lshl_b32 s74, s87, 3"); a(f"s_add_u32 s74, s74, {WS_FY}")
        if not s.opt.get("noconv"): s.poll(146, 2, "s74", slp=s.opt.get("yslp", 12))
        s.stamp(10)
        tile_loads(WS_YT, 16)
        for i in range(3):
            a(f"s_waitcnt vmcnt({2-i})")
            if i == 2: a("s_mov_b32 exec_hi, 0")
            a(f"ds_write_b128 v13, v[{16+4*i}:{19+4*i}] offset:{i*1024}")
            if i == 2: a("s_mov_b64 exec, -1")
        a("s_waitcnt lgkmcnt(0)")
        for gq in range(5): a(f"ds_read_b64_tr_b16 v[{74+2*gq}:{75+2*gq}], v9 offset:{512*gq}")
        for gq in range(5):
            a("s_waitcnt lgkmcnt(4)")
            for e in range(2):
                a(f"v_lshlrev_b32 v144, 16, v{74+2*gq+e}"); a(f"v_and_b32 v145, 0xffff0000, v{74+2*gq+e}")
                a(f"v_add_f32 v144, v144, v{120+4*gq+2*e}"); a(f"v_add_f32 v145, v145, v{121+4*gq+2*e}")
                a(f"v_mul_f32 v144, v144, v{96+4*gq+2*e}"); a(f"v_mul_f32 v145, v145, v{97+4*gq+2*e}")
                a(f"v_cvt_pk_bf16_f32 v{64+2*gq+e}, v144, v145")
            a(f"ds_write_b64 v7, v[{64+2*gq}:{65+2*gq}] offset:{8*gq}")
        s.stamp(11)
        a("s_branch L_final")

    def xwave(s):
        a = s.a; s.vm_reset()
        s.label("L_X")
        a("s_setprio 2")
        a("v_mov_b32 v16, 0"); a("v_mov_b32 v17, 0"); a("v_mov_b32 v18, 0"); a("v_mov_b32 v19, 0")
        a(f"v_add_u32 v20, {L_MISC}, v12")
        a("s_mov_b64 exec, 15"); a("ds_write_b128 v20, v[16:19]"); a("s_mov_b64 exec, -1")
        a("s_lshr_b32 s74, s3, 1"); a("s_and_b32 s75, s3, 1")
        a("v_and_b32 v20, 31, v1"); a("v_lshrrev_b32 v13, 2, v20"); a("v_lshrrev_b32 v14, 1, v13"); a("v_xor_b32 v13, v13, v14"); a("v_and_b32 v13, 3, v13")
        a("v_lshrrev_b32 v14, 5, v1"); a("v_xor_b32 v15, v14, v13"); a("v_xor_b32 v16, 2, v15")
        a("v_lshlrev_b32 v17, 6, v20"); a("s_lshl_b32 s76, s74, 12"); a("v_add_u32 v17, s76, v17")
        a("v_lshl_add_u32 v5, v15, 4, v17"); a("v_lshl_add_u32 v6, v16, 4, v17")
        a("v_bfe_u32 v15, v1, 4, 1"); a("v_bfe_u32 v16, v1, 2, 2"); a("v_lshl_add_u32 v16, v14, 3, v16"); a("v_lshlrev_b32 v16, 6, v16")
        a("v_mul_u32_u24 v17, 6144, v15"); a("v_add_u32 v16, v16, v17")
        a("v_and_b32 v17, 1, v1"); a("v_lshl_add_u32 v16, v17, 4, v16"); a("v_bfe_u32 v17, v1, 1, 1"); a("v_lshl_add_u32 v16, v17, 3, v16")
        a(f"v_add_u32 v16, {L_WR}, v16")
        a("s_mul_i32 s76, s75, 3")
        for T in range(3):
            a(f"s_add_u32 s77, s76, {T}"); a("s_and_b32 s78, s77, 1"); a("s_lshr_b32 s77, s77, 1"); a("s_lshl_b32 s77, s77, 11")
            a("v_xor_b32 v17, s78, v15"); a(f"v_lshl_add_u32 v{2+T}, v17, 5, v16"); a(f"v_add_u32 v{2+T}, s77, v{2+T}")
        a("v_mov_b32 v7, v12"); a("v_add_u32 v8, 4096, v7")
        a("v_bfe_u32 v9, v1, 4, 1"); a("v_lshlrev_b32 v9, 10, v9"); a("v_lshl_add_u32 v9, v14, 8, v9"); a("v_and_b32 v17, 15, v1"); a("v_lshl_add_u32 v9, v17, 4, v9")
        for r in range(160, 256): a(f"v_mov_b32 v{r}, 0")
        touch = s.opt.get("touch", 0)
        if touch:
            lw = s.newlab("L_tw"); le = s.newlab("L_te")
            a("s_cmp_ge_u32 s3, 2"); a(f"s_cbranch_scc1 {lw}")
            s.srd(48, 16, 2621440)
            a("s_lshr_b32 s76, s4, 2"); a("s_lshl_b32 s76, s76, 6"); a("s_lshl_b32 s77, s5, 1"); a("s_add_u32 s76, s76, s77"); a("s_add_u32 s76, s76, s3")
            a(f"s_mul_i32 s98, s76, {16*1280}")
            a("v_and_b32 v92, 15, v1"); a("v_mul_u32_u24 v92, 1280, v92"); a("v_bfe_u32 v93, v1, 4, 1"); a("v_lshl_add_u32 v92, v93, 7, v92")
            a("s_mov_b32 s99, 256"); a("s_mov_b32 s100, -1")
            a(f"s_branch {le}")
            s.label(lw)
            a("s_cmp_eq_u32 s3, 2")
            a("s_cselect_b32 s48, s30, s32"); a("s_cselect_b32 s49, s31, s33"); a("s_and_b32 s49, s49, 0xffff")
            a("s_mov_b32 s50, 1966080"); a("s_mov_b32 s51, 0x20000")
            a("v_mul_u32_u24 v93, 5462, v1"); a("v_lshrrev_b32 v93, 16, v93"); a("v_mul_u32_u24 v94, 12, v93"); a("v_sub_u32 v94, v1, v94")
            a("v_cmp_lt_u32 vcc, 5, v94"); a(f"v_mul_u32_u24 v92, {64*3072}, v93"); a(f"v_mov_b32 v95, {3072 - 768}"); a("v_cndmask_b32 v95, 0, v95, vcc")
            a("v_lshl_add_u32 v92, v94, 7, v92"); a("v_add_u32 v92, v92, v95")
            a("s_and_b32 s76, s4, 3"); a("s_mul_i32 s76, s76, 768"); a(f"s_mul_i32 s77, s5, {2*3072}"); a("s_add_u32 s98, s76, s77")
            a(f"s_mov_b32 s99, {2*64*3072}"); a("s_mov_b32 s100, 0xffffff")
            s.label(le)
        def do_touch():
            a("s_mov_b32 exec_lo, s100"); a("s_mov_b32 exec_hi, 0")
            a("buffer_load_dword v93, v92, s[48:51], s98 offen")
            a("s_mov_b64 exec, -1"); a("s_add_u32 s98, s98, s99")
        tpre = s.opt.get("tpre", 2)
        if touch:
            for _ in range(tpre if touch == 2 else 5): do_touch()
        SB = (12, 52)
        def reads(st, slot):
            R = []
            for sub in range(2):
                W = []
                for T in range(3):
                    for hh in range(2):
                        r = SB[st] + 12 * sub + 4 * T + 2 * hh
                        W.append(f"ds_read_b64_tr_b16 v[{r}:{r+1}], v{2+T} offset:{slot*12288 + sub*1024 + hh*256}")
                X = [f"ds_read_b128 v[{SB[st]+24+8*sub+4*nt}:{SB[st]+24+8*sub+4*nt+3}], v{5+sub} offset:{slot*8192 + nt*2048}" for nt in range(2)]
                R += [X[0], W[0], W[1], X[1], W[2], W[3], W[4], W[5]]
            return R
        def mfmas(st):
            M = []
            for sub in range(2):
                for T in range(3):
                    for nt in range(2):
                        o = 160 + 16 * (2 * T + nt); w = SB[st] + 12 * sub + 4 * T; x = SB[st] + 24 + 8 * sub + 4 * nt
                        M.append(f"v_mfma_f32_32x32x16_bf16 v[{o}:{o+15}], v[{w}:{w+3}], v[{x}:{x+3}], v[{o}:{o+15}]")
            return M
        a("s_mov_b32 s86, 0")
        a("s_waitcnt lgkmcnt(0)")
        if s.opt.get("ctouch", 1):
            lct = s.newlab("L_ct")
            a("s_cmp_lg_u32 s3, 1"); a(f"s_cbranch_scc1 {lct}")
            a("s_getpc_b64 s[76:77]")
            s.label("L_pc")
            a(f"s_sub_u32 s76, s76, L_pc-{KN}"); a("s_subb_u32 s77, s77, 0")
            a("s_mul_i32 s78, s5, 7"); a("v_add_u32 v50, s78, v1"); a("v_lshlrev_b32 v50, 7, v50"); a(f"v_min_u32 v50, L_codeend-{KN}-4, v50")
            a("s_mov_b64 exec, 0x7f"); a("global_load_dword v51, v50, s[76:77]"); a("s_mov_b64 exec, -1")
            s.label(lct)
        a("s_barrier")
        s.kv_pre()
        a("s_waitcnt vmcnt(0)")
        a("s_barrier")
        for r in reads(0, 0): a(r)
        a("s_waitcnt lgkmcnt(0)")
        s.label("L_g1")
        for slot in range(4):
            M = mfmas(slot & 1); R = reads((slot + 1) & 1, (slot + 1) & 3)
            if s.opt.get("stamps", 0) == 2:
                a("s_memtime s[96:97]"); a(f"s_add_u32 m0, s86, {41 + slot}"); a("s_waitcnt lgkmcnt(0)"); a("v_writelane_b32 v11, s96, m0")
            a(M[0])
            a("s_barrier")
            for i in range(5):
                for r in R[3 * i:3 * i + 3]: a(r)
                a(M[1 + i])
            a(R[15])
            if touch == 2 and slot == s.opt.get("tslot", 0):
                lt = s.newlab("L_nt")
                a(f"s_cmp_ge_u32 s86, {4 * (5 - tpre)}"); a(f"s_cbranch_scc1 {lt}"); do_touch(); s.label(lt)
            for m in M[6:]: a(m)
            a("s_waitcnt lgkmcnt(0)")
            if slot == 0:
                a("s_cmp_eq_u32 s86, 0"); a("s_cbranch_scc1 L_kv")
                s.label("L_kvret")
        a("s_add_u32 s86, s86, 4")
        a("s_cmp_lt_u32 s86, 20"); a("s_cbranch_scc1 L_g1")
        s.stamp(1)
        if s.opt.get("g1only"): a("s_branch L_fin2")
        if s.opt.get("xidle"): s.lds_set(2, L_XG2, 1); a("s_branch L_final")
        a(f"v_mov_b32 v116, {L_EPOCH}"); a("ds_read_b128 v[116:119], v116"); a("s_waitcnt lgkmcnt(0)")
        a("v_readfirstlane_b32 s72, v116"); a("v_readfirstlane_b32 s73, v117"); a("v_readfirstlane_b32 s76, v119"); a("s_nop 1")
        lfa = s.newlab("L_faok")
        a("s_cmp_lg_u32 s76, 0"); a(f"s_cbranch_scc1 {lfa}")
        a("v_lshlrev_b32 v114, 3, v1")
        a("s_lshl_b32 s76, s10, 9"); a(f"s_add_u32 s76, s76, {WS_FA}")
        s.poll(112, 114, "s76")
        s.label(lfa)
        s.stamp(2)
        a("s_mul_i32 s78, s10, 3"); a("s_lshr_b32 s78, s78, 1"); a("s_mul_i32 s79, s13, 3"); a("s_add_u32 s78, s78, s79")
        a("s_cmp_ge_u32 s78, 12"); a("s_cselect_b32 s79, 12, 0"); a("s_sub_u32 s78, s78, s79")
        if s.opt.get("g2rot") == 0: a("s_mov_b32 s78, 0")
        a("s_mul_i32 s79, s3, 12")
        a(f"s_mul_i32 s80, s10, {48*5120}"); a(f"s_add_u32 s80, s80, {WS_WB}")
        a(f"s_mul_i32 s81, s9, {48*4096}"); a(f"s_add_u32 s81, s81, {WS_HB}")
        a("s_mul_i32 s92, s3, 20480")
        def kt_of(i, dst):
            a(f"s_add_u32 s{dst}, s78, {i}"); a(f"s_cmp_ge_u32 s{dst}, 12"); a(f"s_cselect_b32 s82, 12, 0"); a(f"s_sub_u32 s{dst}, s{dst}, s82")
            a(f"s_add_u32 s{dst}, s{dst}, s79")
        def wb_loads(i):
            kt_of(i, 83); a("s_mul_i32 s83, s83, 5120"); a("s_add_u32 s83, s83, s80")
            r = 12 + 20 * (i % 5)
            for dt in range(5):
                if dt < 4: s.vmem(("wb", i), f"buffer_load_dwordx4 v[{r+4*dt}:{r+4*dt+3}], v7, s[44:47], s83 offen offset:{dt*1024} sc1")
                else: s.vmem(("wb", i), f"buffer_load_dwordx4 v[{r+4*dt}:{r+4*dt+3}], v8, s[44:47], s83 offen sc1")
        def wb_dma(i):
            kt_of(i, 83); a("s_mul_i32 s83, s83, 5120"); a("s_add_u32 s83, s83, s80")
            a(f"s_add_u32 m0, s92, {(i - 5) * 5120}"); a("s_nop 0")
            for dt in range(4):
                s.vmem(("wd", i), f"buffer_load_dwordx4 v7, s[44:47], s83 offen offset:{dt*1024} sc1 lds")
            a(f"s_add_u32 m0, s92, {(i - 5) * 5120 + 4096}"); a("s_nop 0")
            s.vmem(("wd", i), f"buffer_load_dwordx4 v8, s[44:47], s83 offen sc1 lds")
        def wb_lds(i):
            r = 12 + 20 * (i % 5)
            for dt in range(5): a(f"ds_read_b128 v[{r+4*dt}:{r+4*dt+3}], v10 offset:{(i - 5) * 5120 + dt*1024}")
        def hb_loads(i):
            kt_of(i, 83); a("s_lshl_b32 s83, s83, 12"); a("s_add_u32 s83, s83, s81")
            r = 112 + 16 * (i % 4)
            for sb in range(4):
                s.vmem(("hb", i), f"buffer_load_dwordx4 v[{r+4*sb}:{r+4*sb+3}], v7, s[44:47], s83 offen offset:{sb*1024} {s.opt.get('hsc', 'sc1')}")
        wq = [(i, dt) for i in range(5) for dt in range(5)]
        def wb_some(n):
            for _ in range(n):
                if not wq: return
                i, dt = wq.pop(0)
                if dt == 0: kt_of(i, 98); a("s_mul_i32 s98, s98, 5120"); a("s_add_u32 s98, s98, s80")
                r = 12 + 20 * (i % 5)
                if dt < 4: s.vmem(("wb", i), f"buffer_load_dwordx4 v[{r+4*dt}:{r+4*dt+3}], v7, s[44:47], s98 offen offset:{dt*1024} sc1")
                else: s.vmem(("wb", i), f"buffer_load_dwordx4 v[{r+4*dt}:{r+4*dt+3}], v8, s[44:47], s98 offen sc1")
        wpt = s.opt.get("wpt", 1)
        wb_some(s.opt.get("npre", 0))
        a("s_mov_b32 s84, 0xbfb8aa3b")
        a("s_lshl_b32 s87, s6, 1"); a("s_add_u32 s87, s87, s74")
        a(f"s_mul_i32 s88, s87, {48*4096}")
        a("s_mul_i32 s89, s7, 6"); a("s_mul_i32 s90, s75, 3"); a("s_add_u32 s89, s89, s90")
        for T in range(3):
            a(f"s_add_u32 s90, s89, {T}"); a("s_and_b32 s91, s90, 1"); a("s_lshr_b32 s90, s90, 1")
            a("s_lshl_b32 s90, s90, 12"); a("s_lshl_b32 s91, s91, 9"); a("s_add_u32 s90, s90, s91"); a("s_add_u32 s90, s90, s88")
            for nt in range(2):
                ti = 2 * T + nt
                o = 160 + 16 * ti; p = 120 + 4 * ti
                for e in range(8): a(f"v_mul_f32 v{o+e}, s84, v{o+e}")
                for e in range(8): a(f"v_exp_f32 v{o+e}, v{o+e}")
                for e in range(8): a(f"v_add_f32 v{o+e}, 1.0, v{o+e}")
                for e in range(8): a(f"v_rcp_f32 v{o+e}, v{o+e}")
                for e in range(8): a(f"v_mul_f32 v{o+e}, v{o+e}, v{o+8+e}")
                for e in range(4): a(f"v_cvt_pk_bf16_f32 v{p+e}, v{o+2*e}, v{o+2*e+1}")
                s.vmem("hst", f"buffer_store_dwordx4 v[{p}:{p+3}], v9, s[44:47], s90 offen offset:{nt*2048} sc1")
                if ti < 5: wb_some(wpt)
        a("s_setprio 0")
        s.stamp(3)
        wb_some(s.opt.get("wmid", 6))
        s.vm_wait({"hst"})
        a("s_lshl_b32 s90, s87, 8"); a("s_lshl_b32 s91, s7, 4"); a("s_add_u32 s90, s90, s91"); a("s_lshl_b32 s91, s75, 3"); a("s_add_u32 s90, s90, s91")
        a(f"s_add_u32 s90, s90, {WS_FH}")
        s.write_flag(144, 90)
        s.lds_set(2, L_XH, 1)
        s.stamp(4)
        wb_some(25)
        for i in range(5, 9): wb_dma(i)
        a("v_add_u32 v10, s92, v7")
        a("v_min_u32 v114, 7, v1"); a("v_lshlrev_b32 v114, 3, v114")
        a("s_lshl_b32 s90, s9, 8"); a("s_lshl_b32 s91, s3, 6"); a("s_add_u32 s90, s90, s91"); a(f"s_add_u32 s90, s90, {WS_FH}")
        s.poll(112, 114, "s90")
        s.stamp(5)
        h0 = s.opt.get("h0", 2)
        for i in range(h0): hb_loads(i)
        for i in range(12):
            if i == s.opt.get("xg2", 8): s.lds_set(2, L_XG2, 1)
            s.vm_wait({("hb", i), ("wb", i)})
            if i == 0:
                for k in range(h0, 4): hb_loads(k)
            s.stamp(16 + i, 3)
            if 5 <= i < 9: a("s_waitcnt lgkmcnt(0)")
            rw = 12 + 20 * (i % 5); rh = 112 + 16 * (i % 4)
            for dt in range(5):
                for sb in range(4):
                    o = 176 + 4 * (4 * dt + sb)
                    c = "0" if i == 0 else f"v[{o}:{o+3}]"
                    a(f"v_mfma_f32_16x16x32_bf16 v[{o}:{o+3}], v[{rw+4*dt}:{rw+4*dt+3}], v[{rh+4*sb}:{rh+4*sb+3}], {c}")
            if i + 4 < 12: hb_loads(i + 4)
            if 5 <= i + 5 < 9: wb_lds(i + 5)
            elif i + 5 < 12: wb_loads(i + 5)
        s.stamp(6)
        a("v_and_b32 v12, 15, v1"); a("v_lshrrev_b32 v13, 4, v1"); a("v_bfe_u32 v14, v1, 1, 2"); a("v_xor_b32 v13, v13, v14")
        a("v_mul_u32_u24 v12, 320, v12"); a("v_lshl_add_u32 v12, v13, 4, v12"); a("v_add_u32 v12, s92, v12")
        a("s_nop 4")
        for dt in range(5):
            for sb in range(4):
                o = 176 + 4 * (4 * dt + sb)
                a(f"ds_write_b128 v12, v[{o}:{o+3}] offset:{sb*5120 + dt*64}")
        s.stamp(7)

    def final(s):
        a = s.a
        s.label("L_final")
        a("s_waitcnt lgkmcnt(0)"); a("s_barrier")
        s.stamp(12)
        s.srd(48, 38, 2621440)
        a(f"s_mul_i32 s74, s9, {64*1280}"); a("s_mul_i32 s75, s10, 160"); a("s_add_u32 s74, s74, s75")
        def item():
            a("v_mul_u32_u24 v13, 6554, v12"); a("v_lshrrev_b32 v13, 16, v13")
            a("v_mul_u32_u24 v14, 10, v13"); a("v_sub_u32 v14, v12, v14")
            a("v_bfe_u32 v15, v13, 1, 2"); a("v_lshlrev_b32 v16, 1, v14"); a("v_xor_b32 v16, v16, v15"); a("v_xor_b32 v17, 1, v16")
            a("v_mul_u32_u24 v18, 320, v13"); a("v_lshl_add_u32 v16, v16, 4, v18"); a("v_lshl_add_u32 v17, v17, 4, v18")
            for w in range(4):
                a(f"ds_read_b128 v[{32+8*w}:{35+8*w}], v16 offset:{w*20480}")
                a(f"ds_read_b128 v[{36+8*w}:{39+8*w}], v17 offset:{w*20480}")
            a(f"v_lshlrev_b32 v19, 4, v12"); a(f"v_add_u32 v19, {L_QT}, v19"); a("ds_read_b128 v[24:27], v19")
            a(f"v_lshlrev_b32 v19, 2, v13"); a(f"v_add_u32 v19, {L_GF}, v19"); a("ds_read_b32 v20, v19")
            a("v_mul_u32_u24 v22, 1120, v13"); a("v_lshl_add_u32 v22, v12, 4, v22")
            a("s_waitcnt lgkmcnt(2)")
            for e in range(4):
                a(f"v_pk_add_f32 v[{32+2*e}:{33+2*e}], v[{32+2*e}:{33+2*e}], v[{40+2*e}:{41+2*e}]")
                a(f"v_pk_add_f32 v[{48+2*e}:{49+2*e}], v[{48+2*e}:{49+2*e}], v[{56+2*e}:{57+2*e}]")
            for e in range(4):
                a(f"v_pk_add_f32 v[{32+2*e}:{33+2*e}], v[{32+2*e}:{33+2*e}], v[{48+2*e}:{49+2*e}]")
            a("s_waitcnt lgkmcnt(0)")
            a("v_sub_f32 v20, 1.0, v20"); a("v_cvt_pk_bf16_f32 v20, v20, v20"); a("v_and_b32 v20, 0xffff0000, v20")
            for e in range(4):
                a(f"v_lshlrev_b32 v{40+2*e}, 16, v{24+e}"); a(f"v_and_b32 v{41+2*e}, 0xffff0000, v{24+e}")
                a(f"v_pk_fma_f32 v[{40+2*e}:{41+2*e}], v[{32+2*e}:{33+2*e}], v[20:21], v[{40+2*e}:{41+2*e}] op_sel_hi:[1,0,1]")
            for e in range(4): a(f"v_cvt_pk_bf16_f32 v{28+e}, v{40+2*e}, v{41+2*e}")
            a(f"buffer_store_dwordx4 v[28:31], v22, s[48:51], s74 offen {s.opt.get('ost', '')}")
        a("v_mov_b32 v12, v0")
        item()
        a("s_cmp_lt_u32 s3, 6"); a("s_cbranch_scc1 L_fin2")
        a("v_add_u32 v12, 128, v0")
        item()
        s.label("L_fin2")
        if s.opt.get("stamps"):
            s.stamp(13)
            a("s_waitcnt vmcnt(0)")
            s.stamp(14)
            a("s_memrealtime s[96:97]"); a("s_waitcnt lgkmcnt(0)"); a("v_writelane_b32 v11, s96, 15")
            a("s_lshl_b32 s74, s2, 3"); a("s_add_u32 s74, s74, s3"); a("s_lshl_b32 s74, s74, 8"); a(f"s_add_u32 s74, s74, {WS_STAMP}")
            a("v_lshlrev_b32 v12, 2, v1")
            a("buffer_store_dword v11, v12, s[44:47], s74 offen")
            if s.opt.get("dbgout"):
                ld = s.newlab("L_dbo")
                a("s_cmp_lg_u32 s2, 9"); a(f"s_cbranch_scc1 {ld}"); a("s_cmp_lg_u32 s3, 0"); a(f"s_cbranch_scc1 {ld}")
                s.srd(64, 40, 256)
                a("v_readlane_b32 s74, v11, 0"); a("s_nop 1"); a("v_subrev_u32 v11, s74, v11")
                a("v_add_u32 v12, 4, v12")
                a("s_mov_b64 exec, 0x7ffe"); a("buffer_store_dword v11, v12, s[64:67], 0 offen"); a("s_mov_b64 exec, -1")
                s.label(ld)
        s.label("L_end")
        a("s_endpgm")

    def kv_pre(s):
        a = s.a
        a("v_mul_u32_u24 v90, 3277, v1"); a("v_lshrrev_b32 v90, 16, v90"); a("v_mul_u32_u24 v91, 20, v90"); a("v_sub_u32 v91, v1, v91")
        a(f"s_mul_i32 s76, s74, {CV_SZ}"); a(f"s_add_u32 s76, s76, {L_CV + 2*CV_SZ}")
        a("v_lshlrev_b32 v95, 5, v91"); a("v_add_u32 v95, s76, v95")
        a(f"s_mul_i32 s77, s75, {16*192}"); a("s_add_u32 s76, s76, s77"); a("s_and_b32 s77, s10, 1"); a("s_lshl_b32 s77, s77, 5"); a("s_add_u32 s76, s76, s77")
        a(f"v_mul_u32_u24 v10, {6*192}, v90"); a("v_lshl_add_u32 v10, v91, 3, v10"); a("v_add_u32 v10, s76, v10")
        a("s_lshl_b32 s77, s3, 3"); a("v_mul_u32_u24 v85, 3, v90"); a("v_add_u32 v85, s77, v85"); a("v_and_b32 v86, 7, v91")
        for m in range(3):
            a(f"v_sub_u32 v87, {29+m}, v85"); a("v_lshrrev_b32 v88, 2, v87"); a("v_xor_b32 v88, v88, v86"); a("v_lshlrev_b32 v88, 4, v88")
            a("v_and_b32 v87, 3, v87"); a("v_lshl_add_u32 v88, v87, 2, v88"); a(f"v_lshl_add_u32 v{92+m}, v91, 7, v88")
            a(f"v_add_u32 v{92+m}, {L_T}, v{92+m}")
    def kv_main(s):
        a = s.a
        s.label("L_kv")
        a("s_barrier")
        s.stamp(8)
        a(f"ds_read_b128 v[42:45], v95 offset:{SC_SHK}"); a(f"ds_read_b128 v[46:49], v95 offset:{SC_SHK + 16}")
        for i in range(9): a(f"ds_read_b64 v[{12+2*i}:{13+2*i}], v10 offset:{SC_K + 192*i}")
        a("s_waitcnt lgkmcnt(9)")
        for i in range(6): a(f"ds_read_b64 v[{30+2*i}:{31+2*i}], v10 offset:{SC_V + 192*i}")
        for e in range(4):
            a(f"v_lshlrev_b32 v{96+e}, 16, v{42+2*e}"); a(f"v_and_b32 v{100+e}, 0xffff0000, v{42+2*e}")
            a(f"v_lshlrev_b32 v{104+e}, 16, v{43+2*e}"); a(f"v_and_b32 v{108+e}, 0xffff0000, v{43+2*e}")
        a("s_waitcnt lgkmcnt(0)")
        s.ex(60)
        for d in range(2):
            for i in range(9):
                a(f"v_lshlrev_b32 v{112+2*i}, 16, v{12+2*i+d}"); a(f"v_and_b32 v{113+2*i}, 0xffff0000, v{12+2*i+d}")
            for i in range(6):
                a(f"v_lshlrev_b32 v{130+2*i}, 16, v{30+2*i+d}"); a(f"v_and_b32 v{131+2*i}, 0xffff0000, v{30+2*i+d}")
            for r in range(6):
                a(f"v_pk_mul_f32 v[{142+2*r}:{143+2*r}], v[{112+2*r}:{113+2*r}], v[{108+2*d}:{109+2*d}]")
            for j in (2, 1, 0):
                for r in range(6):
                    k = 112 + 2 * (r + 3 - j); w = 96 + 4 * j + 2 * d
                    a(f"v_pk_fma_f32 v[{142+2*r}:{143+2*r}], v[{k}:{k+1}], v[{w}:{w+1}], v[{142+2*r}:{143+2*r}]")
            for r in range(6):
                a(f"v_pk_mul_f32 v[{142+2*r}:{143+2*r}], v[{142+2*r}:{143+2*r}], v[{130+2*r}:{131+2*r}]")
            for e in range(2):
                for m in range(3):
                    hi = 4 - 2 * m
                    a(f"v_cvt_pk_bf16_f32 v{154+3*e+m}, v{142+2*(hi+1)+e}, v{142+2*hi+e}")
            for m in (1, 2, 0):
                if m == 0: a("s_mov_b32 exec_hi, 0xff")
                for e in range(2):
                    a(f"ds_write_b32 v{92+m}, v{154+3*e+m} offset:{(2*d+e)*2560}")
            a("s_mov_b32 exec_hi, 0xfffffff")
        a("s_mov_b64 exec, -1")
        a("s_waitcnt lgkmcnt(0)")
        s.stamp(9)
        a("s_branch L_kvret")
        s.label("L_codeend")

    def build(s):
        s.kvt = s.opt.get("kvt", 6)
        s.nt = "nt" if s.opt.get("nt", 1) else ""
        hdr = open("gated_mix__ssm_conv_h3__glu_gated_glu__prompt.s.ref").read().split("; Override launch")[0]
        out = hdr + f"; @launch grid=(256,1,1) block=(512,1,1) lds={LDS_TOTAL}\n"
        out += '.amdgcn_target "amdgcn-amd-amdhsa--gfx950"\n.text\n' + f".globl {KN}\n.p2align 8\n.type {KN},@function\n{KN}:\n"
        s.prologue(); s.loader(); s.chore(); s.ywave(); s.xwave(); s.final(); s.kv_main()
        out += "\n".join(s.L) + "\n"
        out += f""".section .rodata,"a"
.p2align 6
.amdhsa_kernel {KN}
  .amdhsa_next_free_vgpr 256
  .amdhsa_next_free_sgpr 102
  .amdhsa_accum_offset 256
  .amdhsa_group_segment_fixed_size 0
  .amdhsa_kernarg_size 112
  .amdhsa_user_sgpr_count 2
  .amdhsa_user_sgpr_kernarg_segment_ptr 1
  .amdhsa_system_sgpr_workgroup_id_x 1
.end_amdhsa_kernel
"""
        return out

if __name__ == "__main__":
    opt = {}
    outp = sys.argv[1]
    for x in sys.argv[2:]:
        k, v = x.split("=")
        if "," in v: opt[k] = tuple(int(z) for z in v.split(","))
        else:
            try: opt[k] = int(v)
            except ValueError: opt[k] = v
    open(outp, "w").write(Gen(opt).build())
```

```python
import sys
KN = "gated_mix__ssm_conv_h3__glu_gated_glu__prompt_kernel"

WS_HB = 0x000000; WS_WB = 0x600000; WS_KT = 0x800000; WS_YT = 0xB00000
WS_G = 0xE00000; WS_FA = 0xE10000; WS_FB = 0xE12000; WS_FH = 0xE14000; WS_FY = 0xE16000
WS_STAMP = 0xF00000
TS = 4224
L_XR = 0; L_WR = 32768; L_CV = 81920; CV_SZ = 17728; H_SZ = 8448; L_QT = 152832; L_MISC = 163072; LDS_TOTAL = 163840
CV_A = 0; CV_B = 4224; CV_U0 = 0; CV_U1 = 4616
L_FULL = L_MISC; L_FREE = L_MISC + 16; L_EPOCH = L_MISC + 32; L_QDONE = L_MISC + 40; L_SDONE = L_MISC + 48; L_XG2 = L_MISC + 56; L_XH = L_MISC + 60; L_XCNT = L_MISC + 52; L_GF = L_MISC + 256
SC_K = 0; SC_V = 6720; SC_SHK = 13440; L_T = L_CV; L_WDS = L_CV + CV_SZ
SPIN_MAX = 30000
NCONV = 160

class Gen:
    def __init__(s, opt):
        s.L = []; s.opt = opt; s.vm = []; s.lab = 0; s.vstamp = 11
    def a(s, x): s.L.append("    " + x)
    def label(s, x): s.L.append(x + ":")
    def newlab(s, p="L"):
        s.lab += 1; return f"{p}_{s.lab}"
    def vm_reset(s): s.vm = []
    def vmem(s, tag, ins): s.a(ins); s.vm.append(tag)
    def vm_wait(s, tags):
        idx = -1
        for i, t in enumerate(s.vm):
            if t in tags: idx = i
        if idx < 0: return
        n = len(s.vm) - 1 - idx
        assert n <= 63
        s.a(f"s_waitcnt vmcnt({n})")
        s.vm = s.vm[idx + 1:]
    def vm_wait_all(s):
        s.a("s_waitcnt vmcnt(0)"); s.vm = []
    def ex(s, n):
        if n >= 64: s.a("s_mov_b64 exec, -1")
        elif n > 32: s.a("s_mov_b32 exec_lo, -1"); s.a(f"s_mov_b32 exec_hi, {hex((1 << (n - 32)) - 1)}")
        elif n == 32: s.a("s_mov_b32 exec_hi, 0")
        else: s.a(f"s_mov_b32 exec_lo, {hex((1 << n) - 1)}"); s.a("s_mov_b32 exec_hi, 0")
    def srd(s, d, p, nbytes):
        s.a(f"s_mov_b32 s{d}, s{p}"); s.a(f"s_and_b32 s{d+1}, s{p+1}, 0xffff")
        s.a(f"s_mov_b32 s{d+2}, {nbytes}"); s.a(f"s_mov_b32 s{d+3}, 0x20000")
    def stamp(s, idx, lvl=1):
        if s.opt.get("stamps", 0) >= 1 and (lvl == 1 or s.opt.get("stamps", 0) == lvl):
            s.a("s_memtime s[96:97]"); s.a("s_waitcnt lgkmcnt(0)")
            s.a(f"v_writelane_b32 v{s.vstamp}, s96, {idx}")
    def poll(s, vflag, voff, soff, scnt=94, slp=None):
        l0 = s.newlab("L_poll"); l1 = s.newlab("L_pdone")
        s.a(f"s_mov_b32 s{scnt}, {SPIN_MAX}")
        s.label(l0)
        s.a(f"buffer_load_dwordx2 v[{vflag}:{vflag+1}], v{voff}, s[44:47], {soff} offen sc1")
        s.a("s_waitcnt vmcnt(0)")
        s.a(f"v_cmp_ne_u64 vcc, s[72:73], v[{vflag}:{vflag+1}]")
        s.a("s_nop 1")
        s.a(f"s_cbranch_vccz {l1}")
        slp = s.opt.get("slp", 4) if slp is None else slp
        if slp: s.a(f"s_sleep {slp}")
        s.a(f"s_sub_u32 s{scnt}, s{scnt}, 1")
        s.a(f"s_cbranch_scc0 {l0}")
        s.label(l1)
        s.vm = []
    def lds_wait(s, addr, nw, need, vt, scache=None, scnt=94, slp=0):
        a = s.a
        sc = scache if scache is not None else 95
        l0 = s.newlab("L_lw"); l1 = s.newlab("L_lwd")
        if scache is not None:
            a(f"s_cmp_ge_u32 s{sc}, {need}"); a(f"s_cbranch_scc1 {l1}")
        a(f"s_mov_b32 s{scnt}, {SPIN_MAX * 8}")
        a(f"v_mov_b32 v{vt+4}, {addr}")
        s.label(l0)
        if nw == 1: a(f"ds_read_b32 v{vt}, v{vt+4}")
        elif nw == 2: a(f"ds_read_b64 v[{vt}:{vt+1}], v{vt+4}")
        else: a(f"ds_read_b128 v[{vt}:{vt+3}], v{vt+4}")
        a("s_waitcnt lgkmcnt(0)")
        if nw == 2: a(f"v_min_u32 v{vt}, v{vt}, v{vt+1}")
        if nw == 4: a(f"v_min_u32 v{vt}, v{vt}, v{vt+1}"); a(f"v_min3_u32 v{vt}, v{vt}, v{vt+2}, v{vt+3}")
        a("s_nop 0")
        a(f"v_readfirstlane_b32 s{sc}, v{vt}")
        a("s_nop 1")
        a(f"s_cmp_ge_u32 s{sc}, {need}"); a(f"s_cbranch_scc1 {l1}")
        if slp: a(f"s_sleep {slp}")
        a(f"s_sub_u32 s{scnt}, s{scnt}, 1"); a(f"s_cbranch_scc0 {l0}")
        s.label(l1)
    def read_epoch(s, vt):
        a = s.a; l0 = s.newlab("L_re"); l1 = s.newlab("L_red")
        a(f"s_mov_b32 s94, {SPIN_MAX * 8}"); a(f"v_mov_b32 v{vt+2}, {L_EPOCH}")
        s.label(l0)
        a(f"ds_read_b64 v[{vt}:{vt+1}], v{vt+2}")
        a("s_waitcnt lgkmcnt(0)")
        a(f"v_readfirstlane_b32 s72, v{vt}"); a(f"v_readfirstlane_b32 s73, v{vt+1}"); a("s_nop 1")
        a("s_cmp_lg_u32 s73, 0"); a(f"s_cbranch_scc1 {l1}")
        a("s_sub_u32 s94, s94, 1"); a(f"s_cbranch_scc0 {l0}")
        s.label(l1)
    def write_flag(s, vt, sreg):
        s.a(f"v_mov_b32 v{vt}, s72"); s.a(f"v_mov_b32 v{vt+1}, s73"); s.a(f"v_mov_b32 v{vt+2}, 0")
        s.a("s_mov_b64 exec, 1")
        s.vmem("flag", f"buffer_store_dwordx2 v[{vt}:{vt+1}], v{vt+2}, s[44:47], s{sreg} offen sc1")
        s.a("s_mov_b64 exec, -1")
    def lds_set(s, vt, addr_sreg_or_const, val):
        s.a(f"v_mov_b32 v{vt}, {addr_sreg_or_const}"); s.a(f"v_mov_b32 v{vt+1}, {val}"); s.a(f"ds_write_b32 v{vt}, v{vt+1}")

    def prologue(s):
        a = s.a
        a("s_cmp_ge_u32 s2, 256"); a("s_cbranch_scc1 L_end")
        a("s_load_dwordx16 s[16:31], s[0:1], 0")
        a("s_load_dwordx8 s[32:39], s[0:1], 64")
        a("s_load_dwordx4 s[40:43], s[0:1], 96")
        a("v_lshrrev_b32 v2, 6, v0")
        a("v_and_b32 v1, 63, v0")
        a("v_readfirstlane_b32 s3, v2")
        a("s_and_b32 s4, s2, 7"); a("s_lshr_b32 s5, s2, 3")
        a("s_lshr_b32 s6, s4, 2"); a("s_lshl_b32 s6, s6, 3"); a("s_and_b32 s11, s5, 7"); a("s_add_u32 s6, s6, s11")
        a("s_and_b32 s7, s4, 3"); a("s_lshl_b32 s7, s7, 2"); a("s_lshr_b32 s12, s5, 3"); a("s_add_u32 s7, s7, s12")
        a("s_lshl_b32 s8, s12, 1"); a("s_add_u32 s8, s8, s11"); a("s_and_b32 s8, s8, 7")
        a("s_lshl_b32 s9, s4, 2"); a("s_and_b32 s13, s5, 3"); a("s_add_u32 s9, s9, s13"); a("s_lshr_b32 s10, s5, 2")
        if s.opt.get("stamps"): a("v_mov_b32 v11, 0")
        a("v_lshlrev_b32 v12, 4, v1")
        a("s_waitcnt lgkmcnt(0)")
        s.srd(44, 42, 0x10000000)
        s.stamp(0)
        a("s_cmp_lt_u32 s3, 4"); a("s_cbranch_scc1 L_X")
        a("s_cmp_ge_u32 s3, 6"); a("s_cbranch_scc1 L_C")

    def loader(s):
        a = s.a; s.vm_reset()
        s.label("L_L")
        a(f"s_setprio {s.opt.get('lprio', 3)}")
        a("s_sub_u32 s74, s3, 4")
        s.srd(48, 16, 2621440)
        a("s_cmp_eq_u32 s74, 0")
        a("s_cselect_b32 s52, s30, s32"); a("s_cselect_b32 s53, s31, s33"); a("s_and_b32 s53, s53, 0xffff")
        a("s_mov_b32 s54, 1966080"); a("s_mov_b32 s55, 0x20000")
        a("v_lshrrev_b32 v4, 2, v1"); a("v_mul_u32_u24 v2, 3072, v4")
        a("s_lshl_b32 s75, s74, 1"); a("v_and_b32 v5, 3, v1"); a("v_xor_b32 v6, s75, v5"); a("v_lshl_add_u32 v2, v6, 4, v2")
        a("s_mul_i32 s75, s7, 192"); a("v_add_u32 v2, s75, v2")
        a("v_mul_u32_u24 v3, 1280, v4")
        a("v_lshrrev_b32 v6, 4, v1"); a("s_lshl_b32 s75, s74, 2"); a("v_add_u32 v6, s75, v6")
        a("v_lshrrev_b32 v7, 1, v6"); a("v_xor_b32 v6, v6, v7"); a("v_and_b32 v6, 3, v6"); a("v_xor_b32 v6, v6, v5")
        a("v_lshl_add_u32 v3, v6, 4, v3")
        a("s_lshl_b32 s75, s6, 3"); a("s_add_u32 s75, s75, s74"); a(f"s_mul_i32 s75, s75, {16*1280}"); a("v_add_u32 v3, s75, v3")
        a("s_lshl_b32 s78, s74, 10")
        a(f"s_mul_i32 s79, s74, 6144"); a(f"s_add_u32 s79, s79, {L_WR}")
        groups = s.opt.get("groups", (1,) * 10)
        if s.opt.get("cyc", 1): a("s_mul_i32 s8, s8, 5"); a("s_lshr_b32 s8, s8, 2")
        def dsel(D):
            if s.opt.get("cyc", 1):
                a(f"s_add_u32 s80, s8, {D}"); a("s_cmp_ge_u32 s80, 10"); a("s_cselect_b32 s15, 10, 0"); a("s_sub_u32 s80, s80, s15")
                return
            b = 0
            for g in groups:
                if D < b + g: break
                b += g
            if g == 1: a(f"s_mov_b32 s80, {D}"); return
            assert g in (2, 4, 8)
            src = "s8" if g == 8 else ("s14" if g == 4 else "s15")
            a(f"s_add_u32 s80, {src}, {D - b}"); a(f"s_and_b32 s80, s80, {g - 1}")
            if b: a(f"s_add_u32 s80, s80, {b}")
        a("s_add_u32 s14, s11, s12"); a("s_mov_b32 s15, s14")
        def issue_x(D):
            dsel(D); a("s_lshl_b32 s81, s80, 7")
            for gi in range(4):
                for h in range(2):
                    t = 2 * D + h
                    a(f"s_add_u32 m0, s78, {L_XR + (t & 3) * 8192 + gi * 2048}")
                    a(f"s_add_u32 s82, s81, {gi * 32 * 1280 + h * 64}")
                    s.vmem(("x", t), f"buffer_load_dwordx4 v3, s[48:51], s82 offen lds")
        def issue_w(t):
            dsel(t >> 1); a(f"s_mul_i32 s81, s80, {64*3072}")
            for rh in range(2):
                for pc in range(3):
                    a(f"s_add_u32 m0, s79, {(t & 3) * 12288 + pc * 2048 + rh * 1024}")
                    a(f"s_add_u32 s82, s81, {(32 * (t & 1) + 16 * rh) * 3072 + pc * 64}")
                    s.vmem(("w", t), f"buffer_load_dwordx4 v2, s[52:55], s82 offen lds")
        def publish(t):
            s.vm_wait({("x", t), ("w", t), ("x", t | 1)})
            s.stamp(40 + t, 2)
            a("s_barrier")
            s.stamp(16 + t, 2)
        issue_w(0); issue_x(0); issue_w(1)
        a("s_barrier")
        publish(0); publish(1)
        if s.opt.get("rtouch", 2):
            a("s_barrier")
            issue_x(1); issue_w(2)
        else:
            issue_x(1); issue_w(2)
            a("s_barrier")
        issue_w(3)
        hold = -5
        pend = []
        for n in range(1, 17):
            if n % 2 == 0 and n + 2 < 20: pend.append(lambda n=n: issue_x((n + 2) // 2))
            if n + 3 < 20: pend.append(lambda n=n: issue_w(n + 3))
            if n != hold:
                for f in pend: f()
                pend = []
            if n < 16: publish(n + 1)
        a("s_mov_b32 s83, s74")
        a("s_branch L_Yt")

    def row_loads(s, srd, nrows, vfirst, vrest, reg, tag, nt):
        a = s.a
        for i in range((nrows + 4) // 5):
            n = min(5, nrows - 5 * i)
            if i == 0 or n < 5: s.ex(12 * n)
            r = reg + 4 * i
            if i == 0: s.vmem(tag, f"buffer_load_dwordx4 v[{r}:{r+3}], v{vfirst}, s[{srd}:{srd+3}], 0 offen {nt}")
            else:
                a(f"s_mov_b32 s77, {6400*(i-1)}")
                s.vmem(tag, f"buffer_load_dwordx4 v[{r}:{r+3}], v{vrest}, s[{srd}:{srd+3}], s77 offen {nt}")
        a("s_mov_b64 exec, -1")
    def dma_rows(s, srd, nrows, vfirst, vrest, ldsbase_s, ldsoff, tag, nt):
        a = s.a
        for i in range((nrows + 4) // 5):
            a(f"s_add_u32 m0, s{ldsbase_s}, {ldsoff + 960*i}")
            n = min(5, nrows - 5 * i)
            if i == 0 or n < 5: s.ex(12 * n)
            if i == 0: s.vmem(tag, f"buffer_load_dwordx4 v{vfirst}, s[{srd}:{srd+3}], 0 offen {nt} lds")
            else:
                a(f"s_mov_b32 s77, {6400*(i-1)}")
                s.vmem(tag, f"buffer_load_dwordx4 v{vrest}, s[{srd}:{srd+3}], s77 offen {nt} lds")
        a("s_mov_b64 exec, -1")
    def img_write(s, sbase, off, n, reg):
        a = s.a
        a(f"v_add_u32 v13, s{sbase}, v12"); s.ex(60)
        for i in range(n): a(f"ds_write_b128 v13, v[{reg+4*i}:{reg+4*i+3}] offset:{off + 960*i}")
        a("s_mov_b64 exec, -1")
    def h_copies(s, sbase, reg, half=None):
        a = s.a
        a(f"v_add_u32 v13, s{sbase}, v12")
        for i in (range(4) if half is None else range(2 * half, 2 * half + 2)):
            r = reg + 4 * i
            if i == 0: a("v_mov_b32 v234, 0")
            else:
                a(f"v_readlane_b32 s74, v{r-1}, 63"); a("s_nop 1"); a("v_mov_b32 v234, s74")
            a("s_nop 1")
            a(f"v_mov_b32_dpp v234, v{r+3} wave_shr:1 row_mask:0xf bank_mask:0xf")
            a(f"ds_write_b128 v13, v[{r}:{r+3}] offset:{CV_B + 64 + i*1024}")
            a(f"v_alignbit_b32 v236, v{r}, v234, 16")
            a(f"v_alignbit_b32 v237, v{r+1}, v{r}, 16")
            a(f"v_alignbit_b32 v238, v{r+2}, v{r+1}, 16")
            a(f"v_alignbit_b32 v239, v{r+3}, v{r+2}, 16")
            a(f"ds_write_b128 v13, v[236:239] offset:{CV_A + 64 + i*1024}")
        if half == 0: return
        a("v_lshrrev_b32 v234, 2, v1"); a("v_and_b32 v235, 1, v234"); a("v_mul_u32_u24 v235, 4160, v235")
        a("v_lshrrev_b32 v234, 1, v234"); a(f"v_mul_u32_u24 v234, {CV_B}, v234"); a("v_add_u32 v235, v235, v234")
        a("v_and_b32 v234, 3, v1"); a("v_lshl_add_u32 v235, v234, 4, v235"); a(f"v_add_u32 v235, s{sbase}, v235")
        for r in range(236, 240): a(f"v_mov_b32 v{r}, 0")
        s.ex(16)
        a("ds_write_b128 v235, v[236:239]")
        a("s_mov_b64 exec, -1")
    def u_addr(s, sbase):
        a = s.a
        def swz(dst, off):
            a(f"v_add_u32 v{dst}, {off}, v12"); a(f"v_lshrrev_b32 v41, 3, v{dst}"); a("v_and_b32 v41, 32, v41"); a(f"v_xor_b32 v{dst}, v{dst}, v41")
            a(f"v_add_u32 v{dst}, s{sbase}, v{dst}"); a(f"v_subrev_u32 v{dst}, 64, v{dst}")
        swz(14, 68); swz(15, 80); swz(40, 72)
        a(f"v_add_u32 v13, s{sbase}, v12")
        for r in range(32, 36): a(f"v_mov_b32 v{r}, 0")
        s.ex(34); a("ds_write_b128 v13, v[32:35] offset:4096")
        s.ex(33); a(f"ds_write_b128 v13, v[32:35] offset:{CV_U1 + 4096 - 8}")
        a("s_mov_b64 exec, 1"); a("ds_write_b128 v13, v[32:35]")
        a("s_mov_b64 exec, -1")
    def u_stage(s, reg, nwait0):
        a = s.a
        for i in range(4):
            a(f"s_waitcnt vmcnt({nwait0 + 3 - i})")
            r = reg + 4 * i
            a(f"ds_write_b64 v40, v[{r}:{r+1}] offset:{CV_U1 + i*1024}")
            a(f"ds_write_b64 v15, v[{r+2}:{r+3}] offset:{CV_U1 + i*1024}")
            a(f"ds_write_b64 v14, v[{r}:{r+1}] offset:{i*1024}") if False else None
            a(f"ds_write_b32 v14, v{r} offset:{i*1024}")
            a(f"ds_write_b64 v14, v[{r+1}:{r+2}] offset:{i*1024 + 4}") if False else None
            a(f"ds_write_b32 v14, v{r+1} offset:{i*1024 + 4}")
            a(f"ds_write_b32 v14, v{r+2} offset:{i*1024 + 8}")
            a(f"ds_write_b32 v15, v{r+3} offset:{i*1024}")

    def chore(s):
        a = s.a; s.vm_reset(); nt = s.nt
        s.label("L_C")
        a(f"s_setprio {s.opt.get('cprio', 2)}")
        a("s_sub_u32 s78, s3, 6")
        a(f"s_mul_i32 s79, s78, {CV_SZ}"); a(f"s_add_u32 s79, s79, {L_CV}")
        a(f"s_add_u32 s84, s79, {2*CV_SZ}")
        a("s_mul_i32 s93, s78, 4800"); a(f"s_add_u32 s93, s93, {L_WDS}")
        s.srd(64, 40, 256)
        l = s.newlab("L_noep")
        a("s_cmp_lg_u32 s2, 0"); a(f"s_cbranch_scc1 {l}"); a("s_cmp_lg_u32 s78, 0"); a(f"s_cbranch_scc1 {l}")
        a("s_memrealtime s[74:75]"); a("s_waitcnt lgkmcnt(0)"); a("s_or_b32 s75, s75, 0x40000000")
        a("v_mov_b32 v2, s74"); a("v_mov_b32 v3, s75"); a("v_mov_b32 v4, 0")
        a("s_mov_b64 exec, 1"); a("buffer_store_dwordx2 v[2:3], v4, s[64:67], 0 offen sc1"); a("s_mov_b64 exec, -1")
        s.label(l)
        s.srd(48, 18, 2621440); s.srd(52, 20, 2621440); s.srd(56, 22, 5120); s.srd(60, 24, 2621440)
        s.srd(68, 16, 2621440); s.srd(88, 34, 1966080)
        a("s_and_b32 s85, s10, 1"); a("s_lshl_b32 s85, s85, 5")
        a("s_mul_i32 s80, s10, 160"); a("s_sub_u32 s80, s80, s85")
        a("s_lshl_b32 s81, s9, 6"); a("s_lshl_b32 s74, s78, 5"); a("s_add_u32 s81, s81, s74")
        a("v_mul_u32_u24 v4, 5462, v1"); a("v_lshrrev_b32 v4, 16, v4")
        a("v_mul_u32_u24 v5, 12, v4"); a("v_sub_u32 v5, v1, v5")
        a("v_mul_u32_u24 v6, 1280, v4"); a("v_lshl_add_u32 v6, v5, 4, v6"); a("v_add_u32 v6, s80, v6")
        a("s_mul_i32 s74, s9, 48"); a("s_mul_i32 s75, s78, 24"); a("s_add_u32 s74, s74, s75"); a("s_mul_i32 s74, s74, 1280")
        a("v_add_u32 v16, s74, v6"); a("v_add_u32 v17, 6400, v16")
        a("s_mul_i32 s74, s81, 1280")
        a("v_add_u32 v20, s74, v6"); a("v_add_u32 v21, 6400, v20")
        a(f"v_subrev_u32 v18, {3*1280}, v20"); a("v_add_u32 v19, 6400, v18")
        a("v_mov_b32 v23, 0"); a("v_mov_b32 v37, 1")
        if s.opt.get("ticket", 0):
            lt = s.newlab("L_tk")
            a("s_cmp_eq_u32 s78, 0"); a(f"s_cbranch_scc1 {lt}")
            a("s_mov_b64 exec, 1"); a("buffer_atomic_add v37, v23, s[64:67], 0 offen offset:64 sc0"); a("s_mov_b64 exec, -1")
            s.label(lt)
        elif s.opt.get("cmap", 1):
            a("s_mul_i32 s74, s5, 5"); a("s_add_u32 s74, s74, s4"); a("s_cmp_lt_u32 s4, 5"); a("s_cselect_b32 s74, s74, 255"); a("v_mov_b32 v37, s74")
        else: a("v_mov_b32 v37, s2")
        a("s_barrier")
        s.dma_rows(48, 35, 18, 19, 84, SC_K, "k", nt)
        s.dma_rows(52, 32, 20, 21, 84, SC_V, "k", nt)
        a("s_mul_i32 s75, s10, 640"); a(f"s_add_u32 m0, s84, {SC_SHK}"); s.ex(40)
        s.vmem("k", "buffer_load_dwordx4 v12, s[56:59], s75 offen lds")
        a("s_mov_b64 exec, -1")
        s.vmem("ep", "buffer_load_dwordx2 v[38:39], v23, s[64:67], 0 offen sc1")
        s.stamp(40, 2); a("s_barrier")
        if s.opt.get("rtouch", 2):
            a("s_mov_b32 s76, 0x986431"); a("s_bitcmp1_b32 s11, 0"); a("s_cselect_b32 s76, 0x975420, s76")
            a("v_lshrrev_b32 v240, 4, v1"); a("v_lshlrev_b32 v240, 2, v240"); a("v_lshrrev_b32_e64 v241, v240, s76"); a("v_and_b32 v241, 15, v241")
            a("s_lshr_b32 s76, s76, 16"); a("v_lshrrev_b32_e64 v242, v240, s76"); a("v_and_b32 v242, 15, v242")
            a("v_and_b32 v243, 15, v1"); a("v_mul_u32_u24 v243, 1280, v243")
            a("v_lshl_add_u32 v241, v241, 7, v243"); a("v_lshl_add_u32 v242, v242, 7, v243")
            a("s_lshl_b32 s76, s6, 3"); a("s_lshl_b32 s77, s12, 1"); a("s_add_u32 s76, s76, s77"); a("s_add_u32 s76, s76, s78"); a(f"s_mul_i32 s98, s76, {16*1280}")
            a("v_bfe_u32 v243, v1, 4, 1"); a(f"v_mul_u32_u24 v243, {5*64*3072}, v243"); a("v_bfe_u32 v244, v1, 1, 3"); a("v_mul_u32_u24 v244, 3072, v244"); a("v_add_u32 v243, v243, v244")
            a("v_and_b32 v244, 1, v1"); a("v_lshl_add_u32 v243, v244, 7, v243")
            a("s_mul_i32 s76, s7, 192"); a("s_and_b32 s76, s76, 0xffffff80"); a(f"s_mul_i32 s77, s11, {8*3072}"); a("s_add_u32 s76, s76, s77"); a(f"s_add_u32 s99, s76, {4*64*3072}")
            a("s_cmp_eq_u32 s78, 0")
            a("s_cselect_b32 s48, s30, s32"); a("s_cselect_b32 s49, s31, s33"); a("s_and_b32 s49, s49, 0xffff"); a("s_mov_b32 s50, 1966080"); a("s_mov_b32 s51, 0x20000")
        s.stamp(41, 2); a("s_barrier")
        if s.opt.get("rtouch", 2):
            a("s_mov_b32 exec_hi, 0")
            s.vmem("t", "buffer_load_dword v250, v243, s[48:51], s99 offen")
            if s.opt.get("rtouch", 2) == 1:
                s.vmem("t", "buffer_load_dword v251, v242, s[68:71], s98 offen")
                a("s_mov_b64 exec, -1")
                s.vmem("t", "buffer_load_dword v252, v241, s[68:71], s98 offen")
            a("s_mov_b64 exec, -1")
        s.dma_rows(88, 24, 16, 17, 93, 0, "wd", nt)
        a("s_lshr_b32 s74, s85, 4"); a("v_subrev_u32 v7, s74, v5")
        a("v_cmp_gt_u32 s[86:87], 10, v7"); a("v_cmp_gt_u32 vcc, 60, v1"); a("s_and_b64 s[86:87], s[86:87], vcc")
        a("v_mul_u32_u24 v22, 160, v4"); a("v_lshl_add_u32 v22, v7, 4, v22")
        a(f"s_mul_i32 s76, s78, 5120"); a(f"s_add_u32 s76, s76, {L_QT}"); a("v_add_u32 v22, s76, v22")
        a("s_lshl_b32 s75, s9, 6"); a("s_lshl_b32 s76, s10, 3"); a("s_add_u32 s75, s75, s76"); a("s_lshl_b32 s76, s78, 2"); a("s_add_u32 s82, s75, s76")
        a("v_lshrrev_b32 v14, 4, v1"); a("v_mul_u32_u24 v14, 1280, v14"); a("v_and_b32 v15, 15, v1"); a("v_lshlrev_b32 v15, 4, v15"); a("v_add_u32 v14, v14, v15")
        a("v_and_b32 v240, 15, v1"); a("v_lshrrev_b32 v241, 4, v1")
        a("v_lshrrev_b32 v242, 2, v240"); a("v_mul_u32_u24 v242, 192, v242"); a("v_and_b32 v243, 3, v240"); a("v_lshl_add_u32 v242, v243, 3, v242")
        a(f"v_add_u32 v242, s93, v242"); a("v_add_u32 v242, s85, v242")
        a("s_mul_i32 s74, s9, 6"); a("s_mul_i32 s75, s78, 3"); a("s_add_u32 s74, s74, s75")
        for p in range(4):
            a(f"v_add_u32 v243, {4*p}, v241"); a("v_mul_u32_u24 v244, 52, v243"); a("v_lshrrev_b32 v244, 8, v244")
            a("v_mul_u32_u24 v245, 5, v244"); a("v_sub_u32 v245, v243, v245")
            a(f"v_mul_u32_u24 v{24+p}, 1536, v244"); a(f"v_lshl_add_u32 v{24+p}, v245, 5, v{24+p}"); a(f"v_add_u32 v{24+p}, v{24+p}, v242")
            a("v_add_u32 v244, s74, v244"); a("v_lshrrev_b32 v247, 2, v244"); a(f"v_mul_u32_u24 v{28+p}, 5120, v247")
            a("v_and_b32 v244, 3, v244"); a(f"v_lshl_add_u32 v{28+p}, v244, 8, v{28+p}"); a(f"v_lshl_add_u32 v{28+p}, v245, 10, v{28+p}")
            a(f"v_lshl_add_u32 v{28+p}, v240, 4, v{28+p}")
        a("v_lshrrev_b32 v6, 3, v1"); a("v_and_b32 v7, 7, v1"); a("s_mul_i32 s74, s78, 40"); a("v_add_u32 v6, s74, v6")
        for i in range(5):
            a(f"v_add_u32 v8, {8*i}, v6"); a("v_mul_u32_u24 v9, 3277, v8"); a("v_lshrrev_b32 v9, 16, v9")
            a("v_mul_u32_u24 v10, 20, v9"); a("v_sub_u32 v8, v8, v10")
            a("v_lshl_add_u32 v9, v8, 2, v9"); a("v_xor_b32 v8, v8, v7"); a("v_and_b32 v8, 7, v8"); a("v_lshlrev_b32 v8, 4, v8")
            a(f"v_mul_u32_u24 v9, {TS}, v9"); a(f"v_add_u32 v{32+i}, v9, v8")
        a("v_mov_b32 v23, 0")
        sched = {t: [] for t in range(21)}
        dl = s.opt.get("dl", 3)
        def rowl(srd, nrows, vfirst, vrest, reg, tag, ntf):
            out = []
            for i in range((nrows + 4) // 5):
                def f(i=i):
                    n = min(5, nrows - 5 * i); r = reg + 4 * i
                    s.ex(12 * n)
                    if i == 0: s.vmem(tag, f"buffer_load_dwordx4 v[{r}:{r+3}], v{vfirst}, s[{srd}:{srd+3}], 0 offen {ntf}")
                    else:
                        a(f"s_mov_b32 s77, {6400*(i-1)}")
                        s.vmem(tag, f"buffer_load_dwordx4 v[{r}:{r+3}], v{vrest}, s[{srd}:{srd+3}], s77 offen {ntf}")
                    a("s_mov_b64 exec, -1")
                out.append(f)
            return out
        Lk = rowl(48, 35, 18, 19, 40, "k", nt); Lv = rowl(52, 32, 20, 21, 68, "v", nt); Lw = rowl(88, 24, 16, 17, 96, "wd", nt)
        Lq = rowl(68, 32, 20, 21, 196, "q", "")
        def lshk():
            a("s_mul_i32 s75, s10, 640"); s.ex(40)
            s.vmem("v", "buffer_load_dwordx4 v[116:119], v12, s[56:59], s75 offen")
            a("s_mov_b64 exec, -1")
        def lgx(i):
            a("s_mul_i32 s75, s82, 1280")
            s.vmem("gx", f"buffer_load_dwordx4 v[{124+4*i}:{127+4*i}], v14, s[68:71], s75 offen offset:{i*256}")
        def lgw():
            s.srd(56, 36, 1280)
            for i in range(5):
                s.vmem("gx", f"buffer_load_dwordx4 v[{144+4*i}:{147+4*i}], v15, s[56:59], 0 offen offset:{i*256}")
        def lh(i):
            a("s_lshl_b32 s74, s2, 2"); a(f"s_add_u32 s74, s74, {2*(i//4)}"); a("s_add_u32 s74, s74, s78"); a("s_lshl_b32 s74, s74, 12")
            s.vmem("h", f"buffer_load_dwordx4 v[{164+4*i}:{167+4*i}], v12, s[60:63], s74 offen offset:{(i&3)*1024} {nt}")
        def two(f, g): return lambda: (f(), g())
        cold = Lk + [two(Lv[0], lshk)] + Lv[1:] + Lw
        def w1(): s.vm_wait({"k"}); s.stamp(2); s.img_write(84, SC_K, 7, 40)
        def w2():
            s.vm_wait({"v"}); s.img_write(84, SC_V, 7, 68)
            s.ex(40); a(f"ds_write_b128 v13, v[116:119] offset:{SC_SHK}"); a("s_mov_b64 exec, -1")
        def w3(): s.vm_wait({"wd"}); s.img_write(93, 0, 5, 96); a("s_waitcnt lgkmcnt(0)")
        def wd():
            for p in range(4):
                a(f"ds_read_b64_tr_b16 v[{96+4*p}:{97+4*p}], v{24+p}")
                a(f"ds_read_b64_tr_b16 v[{98+4*p}:{99+4*p}], v{24+p} offset:768")
            a(f"s_mul_i32 s74, s10, {48*5120}"); a(f"s_add_u32 s74, s74, {WS_WB}")
            a("s_waitcnt lgkmcnt(0)")
            for p in range(4):
                if p == 3: s.ex(48)
                s.vmem("st", f"buffer_store_dwordx4 v[{96+4*p}:{99+4*p}], v{28+p}, s[44:47], s74 offen sc1")
            a("s_mov_b64 exec, -1")
        def epoch():
            s.vm_wait({"ep"})
            l0 = s.newlab("L_ep"); l1_ = s.newlab("L_epd")
            a(f"s_mov_b32 s94, {SPIN_MAX}")
            s.label(l0)
            a("v_readfirstlane_b32 s72, v38"); a("v_readfirstlane_b32 s73, v39"); a("s_nop 1")
            a("s_cmp_lg_u32 s73, 0"); a(f"s_cbranch_scc1 {l1_}")
            a("buffer_load_dwordx2 v[38:39], v23, s[64:67], 0 offen sc1")
            a("s_waitcnt vmcnt(0)")
            a("s_sub_u32 s94, s94, 1"); a(f"s_cbranch_scc0 {l0}")
            s.label(l1_)
            a(f"v_mov_b32 v242, {L_EPOCH}"); a("ds_write_b64 v242, v[38:39]")
            lt2 = s.newlab("L_tk")
            a("s_cmp_eq_u32 s78, 0"); a(f"s_cbranch_scc1 {lt2}")
            a("s_mov_b64 exec, 1"); a("ds_write_b32 v242, v37 offset:16"); a("s_mov_b64 exec, -1")
            s.label(lt2)
        def gate():
            s.vm_wait({"gx"})
            a("v_mov_b32 v240, 0"); a("v_mov_b32 v241, 0")
            for i in range(20): a(f"v_dot2_f32_bf16 v{240 + (i & 1)}, v{124+i}, v{144+i}, v{240 + (i & 1)}")
        def gate2():
            a("s_nop 2")
            a("v_add_f32 v240, v240, v241"); a("s_nop 1")
            for ctl in ("quad_perm:[1,0,3,2]", "quad_perm:[2,3,0,1]", "row_half_mirror", "row_mirror"):
                a(f"v_add_f32_dpp v240, v240, v240 {ctl} row_mask:0xf bank_mask:0xf"); a("s_nop 1")
            a("v_cvt_pk_bf16_f32 v240, v240, v240"); a("v_and_b32 v240, 0xffff0000, v240")
            a("v_mul_f32 v240, 0xbfb8aa3b, v240"); a("v_exp_f32 v240, v240"); a("s_nop 0"); a("v_add_f32 v240, 1.0, v240")
            a("v_rcp_f32 v240, v240"); a("s_nop 0")
            a("v_cvt_pk_bf16_f32 v240, v240, v240"); a("v_and_b32 v240, 0xffff0000, v240")
            a("s_lshl_b32 s74, s82, 2"); a(f"s_add_u32 s74, s74, {WS_G}")
            a("v_lshrrev_b32 v241, 4, v1"); a("v_lshlrev_b32 v241, 2, v241")
            a("s_mov_b32 exec_lo, 0x00010001"); a("s_mov_b32 exec_hi, 0x00010001")
            s.vmem("st", "buffer_store_dword v240, v241, s[44:47], s74 offen sc1")
            a("s_mov_b64 exec, -1")
        def qc():
            a("s_mov_b64 exec, s[86:87]")
            for i in range(7):
                if i == 6: a("s_and_b32 exec_lo, exec_lo, 0xffffff"); a("s_mov_b32 exec_hi, 0")
                a(f"ds_write_b128 v22, v[{196+4*i}:{199+4*i}] offset:{800*i}")
            a("s_mov_b64 exec, -1")
        def ktst_rd():
            a("s_mul_i32 s74, s78, 5120"); a(f"s_add_u32 s74, s74, {L_T}"); a("v_add_u32 v13, s74, v12")
            for i in range(5): a(f"ds_read_b128 v[{40+4*i}:{43+4*i}], v13 offset:{i*1024}")
        def ktst_st():
            a(f"s_mul_i32 s74, s10, {80*TS}"); a("s_lshl_b32 s75, s9, 7"); a("s_sub_u32 s74, s74, s75")
            a(f"s_add_u32 s74, s74, {WS_KT + 3968}")
            for i in range(5):
                s.vmem("st", f"buffer_store_dwordx4 v[{40+4*i}:{43+4*i}], v{32+i}, s[44:47], s74 offen sc1")
        def hc(base, reg, half):
            s.vm_wait({"h"})
            l = s.newlab("L_nh"); a(f"s_cmp_ge_u32 s2, {NCONV}"); a(f"s_cbranch_scc1 {l}")
            s.h_copies(base, reg, half); s.label(l)
        def flagsA():
            s.vm_wait({"st"})
            a("s_lshl_b32 s74, s10, 9"); a("s_lshl_b32 s75, s9, 4"); a("s_add_u32 s74, s74, s75"); a("s_lshl_b32 s76, s78, 3"); a("s_add_u32 s74, s74, s76")
            a(f"s_add_u32 s74, s74, {WS_FA}")
            s.write_flag(244, 74)
            s.stamp(5)
        def flagsB():
            lb = s.newlab("L_nb")
            a("s_cmp_lt_u32 s83, 2"); a(f"s_cbranch_scc1 {lb}")
            a("s_waitcnt vmcnt(0)")
            a("s_lshl_b32 s76, s78, 3")
            a("s_lshl_b32 s74, s9, 7"); a("s_lshl_b32 s75, s10, 4"); a("s_add_u32 s74, s74, s75"); a("s_add_u32 s74, s74, s76"); a(f"s_add_u32 s74, s74, {WS_FB}")
            s.write_flag(8, 74)
            s.label(lb)
        KVT = s.kvt
        s.vm_wait({"k"}); s.stamp(2)
        a("s_barrier")
        epoch()
        ts = s.opt.get("ts", 3)
        sched[ts].append(lambda: (ktst_rd(), a("s_waitcnt lgkmcnt(0)"), ktst_st()))
        sched[ts + 1].append(lambda: (s.vm_wait({"wd"}), wd(), s.stamp(3)))
        tf = s.opt.get("tf", 7); sched[tf].append(flagsA)
        tg = s.opt.get("tg", 16)
        sched[tg - 4] += [lambda i=i: lgx(i) for i in range(5)] + [lgw]
        sched[tg - 1].append(gate); sched[tg].append(gate2)
        s.flagsB = flagsB
        tp = s.opt.get("tp", 12)
        def fa_ld():
            a(f"v_mov_b32 v2, {L_SDONE}"); a("ds_read_b32 v2, v2"); a("s_waitcnt lgkmcnt(0)"); a("v_readfirstlane_b32 s14, v2"); a("s_nop 1")
            a("s_mul_i32 s74, s14, 3277"); a("s_lshr_b32 s74, s74, 16"); a("s_min_u32 s74, s74, 7")
            a("s_cmp_eq_u32 s78, 0"); a("s_cselect_b32 s74, s74, s10"); a("s_lshl_b32 s74, s74, 9"); a(f"s_add_u32 s74, s74, {WS_FA}")
            a("v_lshlrev_b32 v2, 3, v1")
            s.vmem("fa", "buffer_load_dwordx2 v[4:5], v2, s[44:47], s74 offen sc1")
        def fa_ck():
            s.vm_wait({"fa"})
            a("v_cmp_ne_u64 vcc, s[72:73], v[4:5]"); a("s_nop 1")
            lf = s.newlab("L_nf")
            a(f"s_cbranch_vccnz {lf}")
            a("s_lshl_b32 s74, s78, 2"); a(f"s_add_u32 s74, s74, {L_QDONE}"); s.lds_set(8, "s74", 1)
            s.label(lf)
        sched[4].append(lambda: a("s_waitcnt lgkmcnt(0)"))
        sched[tp].append(fa_ld); sched[tp + 2].insert(0, fa_ck); sched[tp + 3].append(lambda: a("s_waitcnt lgkmcnt(0)"))
        tq = s.opt.get("tq", 14)
        sched[tq] += Lq
        for t in range(2, 17):
            s.stamp(40 + t, 2)
            a("s_barrier")
            if not s.opt.get("noc"):
                for f in sched[t]: f()
        assert all(not sched[t] for t in range(17, 21))
        s.qc = qc
        a("s_add_u32 s83, s78, 2")

    def ywave(s):
        a = s.a; s.vm_reset()
        s.label("L_Yt")
        a(f"s_mul_i32 s84, s83, {CV_SZ}"); a(f"s_add_u32 s84, s84, {L_CV}"); a(f"s_add_u32 s93, s84, {H_SZ}")
        s.srd(60, 24, 2621440)
        a(f"v_mov_b32 v16, {L_EPOCH}"); a("ds_read_b32 v20, v16 offset:16"); a("ds_read_b128 v[16:19], v16")
        a("v_lshlrev_b32 v2, 3, v1")
        a("s_waitcnt lgkmcnt(0)")
        a("v_readfirstlane_b32 s14, v20")
        a("v_readfirstlane_b32 s72, v16"); a("v_readfirstlane_b32 s73, v17"); a("v_readfirstlane_b32 s99, v18")
        a("s_mul_i32 s98, s14, 3277"); a("s_lshr_b32 s98, s98, 16"); a("s_lshl_b32 s98, s98, 9"); a(f"s_add_u32 s98, s98, {WS_FA}")
        a("s_lshl_b32 s85, s14, 2"); a("s_add_u32 s85, s85, s83"); a("s_lshl_b32 s74, s85, 12")
        a(f"s_mul_i32 s100, s85, {TS}"); a(f"s_add_u32 s100, s100, {WS_KT}")
        a("s_waitcnt vmcnt(20)"); s.stamp(57, 2); a("s_barrier"); s.stamp(33, 2)
        a(f"s_cmp_lt_u32 s14, {NCONV}"); a("s_cselect_b32 s99, s99, 0")
        a("s_cmp_lg_u32 s99, 0"); a("s_cselect_b32 s101, s100, 0x7ff00000")
        a("s_cmp_lg_u32 s99, 0"); a("s_cselect_b32 s75, 0x7ff00000, s98")
        a(f"s_cmp_lt_u32 s14, {NCONV}"); a("s_cselect_b32 s75, s75, 0x7ff00000")
        a("buffer_load_dwordx2 v[4:5], v2, s[44:47], s75 offen sc1")
        for i in range(4):
            a(f"buffer_load_dwordx4 v[{164+4*i}:{167+4*i}], v12, s[60:63], s74 offen offset:{i*1024} {s.nt}")
        for i in range(4):
            a(f"buffer_load_dwordx4 v[{48+4*i}:{51+4*i}], v12, s[44:47], s101 offen offset:{i*1024} sc1")
        lq = s.newlab("L_nq")
        a("s_waitcnt vmcnt(15)")
        a("s_cmp_lt_u32 s83, 2"); a(f"s_cbranch_scc1 {lq}")
        a("s_waitcnt vmcnt(9)")
        s.qc()
        s.label(lq)
        s.stamp(58, 2); a("s_barrier"); s.stamp(34, 2)
        s.u_addr(93)
        a("s_waitcnt vmcnt(9)"); a("s_waitcnt lgkmcnt(0)")
        s.stamp(59, 2); a("s_barrier"); s.stamp(35, 2)
        s.stamp(1)
        if s.opt.get("g1only"): a("s_branch L_fin2")
        if s.opt.get("noconv"): a("s_branch L_apart")
        lcv = s.newlab("L_cvgo")
        a(f"s_cmp_lt_u32 s14, {NCONV}"); a(f"s_cbranch_scc1 {lcv}")
        s.flagsB()
        a("s_branch L_apart")
        s.label(lcv)
        a("s_setprio 1")
        lk2 = s.newlab("L_hk")
        a("s_cmp_lg_u32 s99, 0"); a(f"s_cbranch_scc1 {lk2}")
        lk3 = s.newlab("L_hk")
        a("s_waitcnt vmcnt(8)")
        a("v_cmp_ne_u64 vcc, s[72:73], v[4:5]"); a("s_nop 1"); a(f"s_cbranch_vccz {lk3}")
        s.poll(4, 2, "s98")
        s.label(lk3)
        for i in range(4):
            a(f"buffer_load_dwordx4 v[{48+4*i}:{51+4*i}], v12, s[44:47], s100 offen offset:{i*1024} sc1")
        s.label(lk2)
        s.stamp(6)
        a("s_waitcnt vmcnt(4)")
        s.h_copies(84, 164)
        s.u_stage(48, 0)
        s.flagsB()
        s.stamp(7)
        a("v_add_u32 v13, s93, v12")
        a("v_and_b32 v2, 15, v1"); a("v_lshrrev_b32 v3, 4, v1"); a("v_and_b32 v4, 1, v2"); a("v_lshrrev_b32 v5, 1, v2")
        a(f"v_mul_u32_u24 v6, {CV_B}, v4"); a("v_lshl_add_u32 v6, v3, 4, v6"); a("v_lshl_add_u32 v6, v5, 3, v6"); a("v_add_u32 v6, s84, v6")
        a("v_lshlrev_b32 v7, 4, v3"); a("v_lshlrev_b32 v8, 6, v5"); a("v_sub_u32 v7, v7, v8"); a("v_add_u32 v7, 512, v7")
        a(f"v_mul_u32_u24 v9, {CV_U1}, v4"); a("v_add_u32 v9, s93, v9"); a("v_subrev_u32 v9, 64, v9")
        def baddr():
            a("v_lshrrev_b32 v10, 3, v7"); a("v_and_b32 v10, 32, v10"); a("v_xor_b32 v10, v10, v7"); a("v_add_u32 v10, v10, v9"); a("v_add_u32 v7, 64, v7")
        SA = (96, 160); SB = (128, 192)
        def reads(st, par):
            R = []
            for c in range(8):
                for hh in range(2):
                    R.append(f"ds_read_b64 v[{SA[st]+4*c+2*hh}:{SA[st]+4*c+2*hh+1}], v6 offset:{512*c + 8*hh + 64*par}")
                for hh in range(2):
                    R.append(f"ds_read_b64 v[{SB[st]+4*c+2*hh}:{SB[st]+4*c+2*hh+1}], v10 offset:{512*(7-c) + 8*hh}")
            return R
        def mfmas(st, full=True):
            M = []
            for aa in range(8):
                for c in (range(aa + 1) if full else [aa]):
                    b = aa - c; o = 224 + 4 * aa
                    M.append(f"v_mfma_f32_16x16x32_bf16 v[{o}:{o+3}], v[{SA[st]+4*c}:{SA[st]+4*c+3}], v[{SB[st]+4*b}:{SB[st]+4*b+3}], v[{o}:{o+3}]")
            return M
        def inter(M, R):
            a("s_waitcnt lgkmcnt(12)")
            for mi, m in enumerate(M):
                if mi == 15: a("s_waitcnt lgkmcnt(15)")
                a(m)
                if mi < len(R): a(R[mi])
        baddr()
        a("s_waitcnt lgkmcnt(0)")
        for r in reads(0, 0): a(r)
        for r in range(224, 256): a(f"v_mov_b32 v{r}, 0")
        a("s_mov_b32 s86, 0")
        s.label("L_cv")
        baddr()
        inter(mfmas(0), reads(1, 1))
        a("v_add_u32 v6, 128, v6"); baddr()
        inter(mfmas(1), reads(0, 0))
        a("s_add_u32 s86, s86, 1"); a("s_cmp_lt_u32 s86, 4"); a("s_cbranch_scc1 L_cv")
        a("s_waitcnt lgkmcnt(0)")
        for m in mfmas(0, False): a(m)
        a("v_lshlrev_b32 v8, 4, v3"); a("v_lshl_add_u32 v8, v4, 2, v8"); a("v_lshl_add_u32 v8, v5, 6, v8")
        a(f"v_sub_u32 v8, {CV_U0 + 2*(2046 - 4) - 512}, v8"); a("v_add_u32 v8, s93, v8")
        a("s_nop 4")
        for t in range(8):
            o = 224 + 4 * t
            a(f"v_cvt_pk_bf16_f32 v{16+2*t}, v{o+3}, v{o+2}")
            a(f"v_cvt_pk_bf16_f32 v{17+2*t}, v{o+1}, v{o}")
        for t in range(8):
            off = 128 if t % 2 == 0 else 0
            a(f"ds_write2_b32 v8, v{16+2*t}, v{17+2*t} offset0:{off} offset1:{off+2}")
            if t % 2 == 1 and t < 7: a("v_subrev_u32 v8, 1024, v8")
        a("s_waitcnt lgkmcnt(0)")
        for i in range(4): a(f"ds_read_b128 v[{32+4*i}:{35+4*i}], v13 offset:{CV_U0 + i*1024}")
        a(f"s_mul_i32 s74, s85, {TS}"); a(f"s_add_u32 s74, s74, {WS_YT}")
        for i in range(4):
            a(f"s_waitcnt lgkmcnt({3-i})")
            a(f"buffer_store_dwordx4 v[{32+4*i}:{35+4*i}], v12, s[44:47], s74 offen offset:{i*1024} sc1")
        s.stamp(8)
        a("s_waitcnt vmcnt(0)")
        a("s_lshl_b32 s74, s85, 3"); a(f"s_add_u32 s74, s74, {WS_FY}")
        s.write_flag(48, 74)
        a("s_setprio 0")
        s.label("L_apart")
        a("s_setprio 0")
        if s.opt.get("xh", 1): s.lds_wait(L_XH, 1, 1, 148, slp=2)
        s.stamp(9)
        a("v_min_u32 v2, 15, v1"); a("v_lshlrev_b32 v2, 3, v2")
        a("s_lshl_b32 s74, s9, 7"); a(f"s_add_u32 s74, s74, {WS_FB}")
        s.poll(4, 2, "s74")
        a("v_sub_u32 v3, 63, v1"); a("v_lshlrev_b32 v2, 2, v3")
        a("s_lshl_b32 s74, s9, 8"); a(f"s_add_u32 s74, s74, {WS_G}")
        a("buffer_load_dword v15, v2, s[44:47], s74 offen sc1")
        a("s_mul_i32 s87, s10, 80"); a("s_mul_i32 s74, s83, 20"); a("s_add_u32 s87, s87, s74")
        a(f"s_mul_i32 s88, s87, {TS}"); a("s_lshl_b32 s74, s9, 7"); a("s_sub_u32 s88, s88, s74"); a("s_add_u32 s88, s88, 3968")
        a("v_lshrrev_b32 v5, 3, v1"); a(f"v_mul_u32_u24 v5, {TS}, v5"); a("v_and_b32 v6, 7, v1"); a("v_lshl_add_u32 v5, v6, 4, v5")
        def tile_loads(base, reg):
            for i in range(3):
                a(f"s_add_u32 s74, s88, {base + i*8*TS}")
                if i == 2: a("s_mov_b32 exec_hi, 0")
                a(f"buffer_load_dwordx4 v[{reg+4*i}:{reg+4*i+3}], v5, s[44:47], s74 offen sc1")
                if i == 2: a("s_mov_b64 exec, -1")
        tile_loads(WS_KT, 16)
        a("s_lshl_b32 s74, s87, 1"); a("s_add_u32 s26, s26, s74"); a("s_addc_u32 s27, s27, 0")
        a("s_load_dwordx8 s[48:55], s[26:27], 0"); a("s_load_dwordx2 s[56:57], s[26:27], 32")
        a("v_add_u32 v13, s84, v12")
        a("v_mul_u32_u24 v7, 160, v3"); a("s_mul_i32 s74, s83, 40"); a(f"s_add_u32 s74, s74, {L_QT}"); a("v_add_u32 v7, s74, v7")
        for gq in range(5): a(f"ds_read_b64 v[{64+2*gq}:{65+2*gq}], v7 offset:{8*gq}")
        a("s_waitcnt vmcnt(0)")
        for i in range(3):
            if i == 2: a("s_mov_b32 exec_hi, 0")
            a(f"ds_write_b128 v13, v[{16+4*i}:{19+4*i}] offset:{i*1024}")
            if i == 2: a("s_mov_b64 exec, -1")
        a("v_and_b32 v8, 15, v1"); a("v_lshrrev_b32 v9, 2, v8"); a("v_lshlrev_b32 v9, 7, v9"); a("v_and_b32 v8, 3, v8"); a("v_lshl_add_u32 v9, v8, 3, v9")
        a("v_lshrrev_b32 v8, 4, v1"); a("v_lshl_add_u32 v9, v8, 5, v9"); a("v_add_u32 v9, s84, v9")
        a(f"v_add_u32 v2, {L_GF}, v2"); a("ds_write_b32 v2, v15")
        a("s_waitcnt lgkmcnt(0)")
        for gq in range(5): a(f"ds_read_b64_tr_b16 v[{74+2*gq}:{75+2*gq}], v9 offset:{512*gq}")
        for gq in range(5):
            for e in range(2):
                r = 96 + 4 * gq + 2 * e
                a(f"v_lshlrev_b32 v{r}, 16, v{64+2*gq+e}"); a(f"v_and_b32 v{r+1}, 0xffff0000, v{64+2*gq+e}")
                a(f"v_mul_f32 v{r}, v{r}, v15"); a(f"v_mul_f32 v{r+1}, v{r+1}, v15")
        a("s_waitcnt lgkmcnt(0)")
        for gq in range(5):
            for e in range(2):
                sd = 48 + 2 * gq + e; r = 120 + 4 * gq + 2 * e
                a(f"s_lshl_b32 s58, s{sd}, 16"); a(f"s_and_b32 s59, s{sd}, 0xffff0000")
                a(f"v_lshlrev_b32 v{r}, 16, v{74+2*gq+e}"); a(f"v_and_b32 v{r+1}, 0xffff0000, v{74+2*gq+e}")
                a(f"v_mul_f32 v{r}, s58, v{r}"); a(f"v_mul_f32 v{r+1}, s59, v{r+1}")
        s.lds_wait(L_XG2, 1, 1, 148, slp=2)
        a("v_min_u32 v2, 19, v1"); a("v_lshlrev_b32 v2, 3, v2")
        a("s_lshl_b32 s74, s87, 3"); a(f"s_add_u32 s74, s74, {WS_FY}")
        if not s.opt.get("noconv"): s.poll(146, 2, "s74", slp=s.opt.get("yslp", 12))
        s.stamp(10)
        tile_loads(WS_YT, 16)
        for i in range(3):
            a(f"s_waitcnt vmcnt({2-i})")
            if i == 2: a("s_mov_b32 exec_hi, 0")
            a(f"ds_write_b128 v13, v[{16+4*i}:{19+4*i}] offset:{i*1024}")
            if i == 2: a("s_mov_b64 exec, -1")
        a("s_waitcnt lgkmcnt(0)")
        for gq in range(5): a(f"ds_read_b64_tr_b16 v[{74+2*gq}:{75+2*gq}], v9 offset:{512*gq}")
        for gq in range(5):
            a("s_waitcnt lgkmcnt(4)")
            for e in range(2):
                a(f"v_lshlrev_b32 v144, 16, v{74+2*gq+e}"); a(f"v_and_b32 v145, 0xffff0000, v{74+2*gq+e}")
                a(f"v_add_f32 v144, v144, v{120+4*gq+2*e}"); a(f"v_add_f32 v145, v145, v{121+4*gq+2*e}")
                a(f"v_mul_f32 v144, v144, v{96+4*gq+2*e}"); a(f"v_mul_f32 v145, v145, v{97+4*gq+2*e}")
                a(f"v_cvt_pk_bf16_f32 v{64+2*gq+e}, v144, v145")
            a(f"ds_write_b64 v7, v[{64+2*gq}:{65+2*gq}] offset:{8*gq}")
        s.stamp(11)
        a("s_branch L_final")

    def xwave(s):
        a = s.a; s.vm_reset()
        s.label("L_X")
        a("s_setprio 2")
        a("v_mov_b32 v16, 0"); a("v_mov_b32 v17, 0"); a("v_mov_b32 v18, 0"); a("v_mov_b32 v19, 0")
        a(f"v_add_u32 v20, {L_MISC}, v12")
        a("s_mov_b64 exec, 15"); a("ds_write_b128 v20, v[16:19]"); a("s_mov_b64 exec, -1")
        a("s_lshr_b32 s74, s3, 1"); a("s_and_b32 s75, s3, 1")
        a("v_and_b32 v20, 31, v1"); a("v_lshrrev_b32 v13, 2, v20"); a("v_lshrrev_b32 v14, 1, v13"); a("v_xor_b32 v13, v13, v14"); a("v_and_b32 v13, 3, v13")
        a("v_lshrrev_b32 v14, 5, v1"); a("v_xor_b32 v15, v14, v13"); a("v_xor_b32 v16, 2, v15")
        a("v_lshlrev_b32 v17, 6, v20"); a("s_lshl_b32 s76, s74, 12"); a("v_add_u32 v17, s76, v17")
        a("v_lshl_add_u32 v5, v15, 4, v17"); a("v_lshl_add_u32 v6, v16, 4, v17")
        a("v_bfe_u32 v15, v1, 4, 1"); a("v_bfe_u32 v16, v1, 2, 2"); a("v_lshl_add_u32 v16, v14, 3, v16"); a("v_lshlrev_b32 v16, 6, v16")
        a("v_mul_u32_u24 v17, 6144, v15"); a("v_add_u32 v16, v16, v17")
        a("v_and_b32 v17, 1, v1"); a("v_lshl_add_u32 v16, v17, 4, v16"); a("v_bfe_u32 v17, v1, 1, 1"); a("v_lshl_add_u32 v16, v17, 3, v16")
        a(f"v_add_u32 v16, {L_WR}, v16")
        a("s_mul_i32 s76, s75, 3")
        for T in range(3):
            a(f"s_add_u32 s77, s76, {T}"); a("s_and_b32 s78, s77, 1"); a("s_lshr_b32 s77, s77, 1"); a("s_lshl_b32 s77, s77, 11")
            a("v_xor_b32 v17, s78, v15"); a(f"v_lshl_add_u32 v{2+T}, v17, 5, v16"); a(f"v_add_u32 v{2+T}, s77, v{2+T}")
        a("v_mov_b32 v7, v12"); a("v_add_u32 v8, 4096, v7")
        a("v_bfe_u32 v9, v1, 4, 1"); a("v_lshlrev_b32 v9, 10, v9"); a("v_lshl_add_u32 v9, v14, 8, v9"); a("v_and_b32 v17, 15, v1"); a("v_lshl_add_u32 v9, v17, 4, v9")
        for r in range(160, 256): a(f"v_mov_b32 v{r}, 0")
        touch = s.opt.get("touch", 0)
        if touch:
            lw = s.newlab("L_tw"); le = s.newlab("L_te")
            a("s_cmp_ge_u32 s3, 2"); a(f"s_cbranch_scc1 {lw}")
            s.srd(48, 16, 2621440)
            a("s_lshr_b32 s76, s4, 2"); a("s_lshl_b32 s76, s76, 6"); a("s_lshl_b32 s77, s5, 1"); a("s_add_u32 s76, s76, s77"); a("s_add_u32 s76, s76, s3")
            a(f"s_mul_i32 s98, s76, {16*1280}")
            a("v_and_b32 v92, 15, v1"); a("v_mul_u32_u24 v92, 1280, v92"); a("v_bfe_u32 v93, v1, 4, 1"); a("v_lshl_add_u32 v92, v93, 7, v92")
            a("s_mov_b32 s99, 256"); a("s_mov_b32 s100, -1")
            a(f"s_branch {le}")
            s.label(lw)
            a("s_cmp_eq_u32 s3, 2")
            a("s_cselect_b32 s48, s30, s32"); a("s_cselect_b32 s49, s31, s33"); a("s_and_b32 s49, s49, 0xffff")
            a("s_mov_b32 s50, 1966080"); a("s_mov_b32 s51, 0x20000")
            a("v_mul_u32_u24 v93, 5462, v1"); a("v_lshrrev_b32 v93, 16, v93"); a("v_mul_u32_u24 v94, 12, v93"); a("v_sub_u32 v94, v1, v94")
            a("v_cmp_lt_u32 vcc, 5, v94"); a(f"v_mul_u32_u24 v92, {64*3072}, v93"); a(f"v_mov_b32 v95, {3072 - 768}"); a("v_cndmask_b32 v95, 0, v95, vcc")
            a("v_lshl_add_u32 v92, v94, 7, v92"); a("v_add_u32 v92, v92, v95")
            a("s_and_b32 s76, s4, 3"); a("s_mul_i32 s76, s76, 768"); a(f"s_mul_i32 s77, s5, {2*3072}"); a("s_add_u32 s98, s76, s77")
            a(f"s_mov_b32 s99, {2*64*3072}"); a("s_mov_b32 s100, 0xffffff")
            s.label(le)
        def do_touch():
            a("s_mov_b32 exec_lo, s100"); a("s_mov_b32 exec_hi, 0")
            a("buffer_load_dword v93, v92, s[48:51], s98 offen")
            a("s_mov_b64 exec, -1"); a("s_add_u32 s98, s98, s99")
        tpre = s.opt.get("tpre", 2)
        if touch:
            for _ in range(tpre if touch == 2 else 5): do_touch()
        SB = (12, 52)
        def reads(st, slot):
            R = []
            for sub in range(2):
                W = []
                for T in range(3):
                    for hh in range(2):
                        r = SB[st] + 12 * sub + 4 * T + 2 * hh
                        W.append(f"ds_read_b64_tr_b16 v[{r}:{r+1}], v{2+T} offset:{slot*12288 + sub*1024 + hh*256}")
                X = [f"ds_read_b128 v[{SB[st]+24+8*sub+4*nt}:{SB[st]+24+8*sub+4*nt+3}], v{5+sub} offset:{slot*8192 + nt*2048}" for nt in range(2)]
                R += [X[0], W[0], W[1], X[1], W[2], W[3], W[4], W[5]]
            return R
        def mfmas(st):
            M = []
            for sub in range(2):
                for T in range(3):
                    for nt in range(2):
                        o = 160 + 16 * (2 * T + nt); w = SB[st] + 12 * sub + 4 * T; x = SB[st] + 24 + 8 * sub + 4 * nt
                        M.append(f"v_mfma_f32_32x32x16_bf16 v[{o}:{o+15}], v[{w}:{w+3}], v[{x}:{x+3}], v[{o}:{o+15}]")
            return M
        a("s_mov_b32 s86, 0")
        a("s_waitcnt lgkmcnt(0)")
        if s.opt.get("ctouch", 1):
            lct = s.newlab("L_ct")
            a("s_cmp_lg_u32 s3, 1"); a(f"s_cbranch_scc1 {lct}")
            a("s_getpc_b64 s[76:77]")
            s.label("L_pc")
            a(f"s_sub_u32 s76, s76, L_pc-{KN}"); a("s_subb_u32 s77, s77, 0")
            a("s_mul_i32 s78, s5, 7"); a("v_add_u32 v50, s78, v1"); a("v_lshlrev_b32 v50, 7, v50"); a(f"v_min_u32 v50, L_codeend-{KN}-4, v50")
            a("s_mov_b64 exec, 0x7f"); a("global_load_dword v51, v50, s[76:77]"); a("s_mov_b64 exec, -1")
            s.label(lct)
        a("s_barrier")
        s.kv_pre()
        a("s_waitcnt vmcnt(0)")
        a("s_barrier")
        for r in reads(0, 0): a(r)
        a("s_waitcnt lgkmcnt(0)")
        s.label("L_g1")
        for slot in range(4):
            M = mfmas(slot & 1); R = reads((slot + 1) & 1, (slot + 1) & 3)
            if s.opt.get("stamps", 0) == 2:
                a("s_memtime s[96:97]"); a(f"s_add_u32 m0, s86, {41 + slot}"); a("s_waitcnt lgkmcnt(0)"); a("v_writelane_b32 v11, s96, m0")
            a(M[0])
            if slot == 3:
                lnb = s.newlab("L_nb"); a("s_cmp_eq_u32 s86, 16"); a(f"s_cbranch_scc1 {lnb}"); a("s_barrier"); s.label(lnb)
            else: a("s_barrier")
            for i in range(5):
                for r in R[3 * i:3 * i + 3]: a(r)
                a(M[1 + i])
            a(R[15])
            if touch == 2 and slot == s.opt.get("tslot", 0):
                lt = s.newlab("L_nt")
                a(f"s_cmp_ge_u32 s86, {4 * (5 - tpre)}"); a(f"s_cbranch_scc1 {lt}"); do_touch(); s.label(lt)
            for m in M[6:]: a(m)
            a("s_waitcnt lgkmcnt(0)")
            if slot == 0:
                a("s_cmp_eq_u32 s86, 0"); a("s_cbranch_scc1 L_kv")
                s.label("L_kvret")
        a("s_add_u32 s86, s86, 4")
        a("s_cmp_lt_u32 s86, 20"); a("s_cbranch_scc1 L_g1")
        s.stamp(1)
        if s.opt.get("g1only"): a("s_branch L_fin2")
        if s.opt.get("xidle"): s.lds_set(2, L_XG2, 1); a("s_branch L_final")
        a(f"v_mov_b32 v116, {L_EPOCH}"); a("v_mov_b32 v117, 1"); a("s_mov_b64 exec, 1"); a(f"ds_add_u32 v116, v117 offset:{L_XCNT - L_EPOCH}"); a("s_mov_b64 exec, -1")
        a("ds_read_b128 v[116:119], v116"); a("s_waitcnt lgkmcnt(0)")
        a("v_readfirstlane_b32 s72, v116"); a("v_readfirstlane_b32 s73, v117"); a("v_readfirstlane_b32 s76, v119"); a("s_nop 1")
        lfa = s.newlab("L_faok")
        a("s_cmp_lg_u32 s76, 0"); a(f"s_cbranch_scc1 {lfa}")
        a("v_lshlrev_b32 v114, 3, v1")
        a("s_lshl_b32 s76, s10, 9"); a(f"s_add_u32 s76, s76, {WS_FA}")
        s.poll(112, 114, "s76")
        s.label(lfa)
        s.stamp(2)
        a("s_mul_i32 s78, s10, 3"); a("s_lshr_b32 s78, s78, 1"); a("s_mul_i32 s79, s13, 3"); a("s_add_u32 s78, s78, s79")
        a("s_cmp_ge_u32 s78, 12"); a("s_cselect_b32 s79, 12, 0"); a("s_sub_u32 s78, s78, s79")
        if s.opt.get("g2rot") == 0: a("s_mov_b32 s78, 0")
        a("s_mul_i32 s79, s3, 12")
        a(f"s_mul_i32 s80, s10, {48*5120}"); a(f"s_add_u32 s80, s80, {WS_WB}")
        a(f"s_mul_i32 s81, s9, {48*4096}"); a(f"s_add_u32 s81, s81, {WS_HB}")
        a("s_mul_i32 s92, s3, 20480")
        def kt_of(i, dst):
            a(f"s_add_u32 s{dst}, s78, {i}"); a(f"s_cmp_ge_u32 s{dst}, 12"); a(f"s_cselect_b32 s82, 12, 0"); a(f"s_sub_u32 s{dst}, s{dst}, s82")
            a(f"s_add_u32 s{dst}, s{dst}, s79")
        def wb_loads(i):
            kt_of(i, 83); a("s_mul_i32 s83, s83, 5120"); a("s_add_u32 s83, s83, s80")
            r = 12 + 20 * (i % 5)
            for dt in range(5):
                if dt < 4: s.vmem(("wb", i), f"buffer_load_dwordx4 v[{r+4*dt}:{r+4*dt+3}], v7, s[44:47], s83 offen offset:{dt*1024} sc1")
                else: s.vmem(("wb", i), f"buffer_load_dwordx4 v[{r+4*dt}:{r+4*dt+3}], v8, s[44:47], s83 offen sc1")
        def wb_dma(i):
            kt_of(i, 83); a("s_mul_i32 s83, s83, 5120"); a("s_add_u32 s83, s83, s80")
            a(f"s_add_u32 m0, s92, {(i - 5) * 5120}"); a("s_nop 0")
            for dt in range(4):
                s.vmem(("wd", i), f"buffer_load_dwordx4 v7, s[44:47], s83 offen offset:{dt*1024} sc1 lds")
            a(f"s_add_u32 m0, s92, {(i - 5) * 5120 + 4096}"); a("s_nop 0")
            s.vmem(("wd", i), f"buffer_load_dwordx4 v8, s[44:47], s83 offen sc1 lds")
        def wb_lds(i):
            r = 12 + 20 * (i % 5)
            for dt in range(5): a(f"ds_read_b128 v[{r+4*dt}:{r+4*dt+3}], v10 offset:{(i - 5) * 5120 + dt*1024}")
        def hb_loads(i):
            kt_of(i, 83); a("s_lshl_b32 s83, s83, 12"); a("s_add_u32 s83, s83, s81")
            r = 112 + 16 * (i % 4)
            for sb in range(4):
                s.vmem(("hb", i), f"buffer_load_dwordx4 v[{r+4*sb}:{r+4*sb+3}], v7, s[44:47], s83 offen offset:{sb*1024} {s.opt.get('hsc', 'sc1')}")
        wq = [(i, dt) for i in range(5) for dt in range(5)]
        def wb_some(n):
            for _ in range(n):
                if not wq: return
                i, dt = wq.pop(0)
                if dt == 0: kt_of(i, 98); a("s_mul_i32 s98, s98, 5120"); a("s_add_u32 s98, s98, s80")
                r = 12 + 20 * (i % 5)
                if dt < 4: s.vmem(("wb", i), f"buffer_load_dwordx4 v[{r+4*dt}:{r+4*dt+3}], v7, s[44:47], s98 offen offset:{dt*1024} sc1")
                else: s.vmem(("wb", i), f"buffer_load_dwordx4 v[{r+4*dt}:{r+4*dt+3}], v8, s[44:47], s98 offen sc1")
        wpt = s.opt.get("wpt", 1)
        wb_some(s.opt.get("npre", 0))
        a("s_mov_b32 s84, 0xbfb8aa3b"); a("s_mov_b32 s85, 0xbfb8aa3b")
        a("s_lshl_b32 s87, s6, 1"); a("s_add_u32 s87, s87, s74")
        a(f"s_mul_i32 s88, s87, {48*4096}")
        a("s_mul_i32 s89, s7, 6"); a("s_mul_i32 s90, s75, 3"); a("s_add_u32 s89, s89, s90")
        for T in range(3):
            a(f"s_add_u32 s90, s89, {T}"); a("s_and_b32 s91, s90, 1"); a("s_lshr_b32 s90, s90, 1")
            a("s_lshl_b32 s90, s90, 12"); a("s_lshl_b32 s91, s91, 9"); a("s_add_u32 s90, s90, s91"); a("s_add_u32 s90, s90, s88")
            for nt in range(2):
                ti = 2 * T + nt
                o = 160 + 16 * ti; p = 120 + 4 * ti
                if ti < s.opt.get("pkt", 0):
                    for e in range(4): a(f"v_pk_mul_f32 v[{o+2*e}:{o+2*e+1}], v[{o+2*e}:{o+2*e+1}], s[84:85]")
                    for e in range(8): a(f"v_exp_f32 v{o+e}, v{o+e}")
                    for e in range(4): a(f"v_pk_add_f32 v[{o+2*e}:{o+2*e+1}], v[{o+2*e}:{o+2*e+1}], 1.0 op_sel_hi:[1,0]")
                    for e in range(8): a(f"v_rcp_f32 v{o+e}, v{o+e}")
                    for e in range(4): a(f"v_pk_mul_f32 v[{o+2*e}:{o+2*e+1}], v[{o+2*e}:{o+2*e+1}], v[{o+8+2*e}:{o+9+2*e}]")
                else:
                    for e in range(8): a(f"v_mul_f32 v{o+e}, s84, v{o+e}")
                    for e in range(8): a(f"v_exp_f32 v{o+e}, v{o+e}")
                    for e in range(8): a(f"v_add_f32 v{o+e}, 1.0, v{o+e}")
                    for e in range(8): a(f"v_rcp_f32 v{o+e}, v{o+e}")
                    for e in range(8): a(f"v_mul_f32 v{o+e}, v{o+e}, v{o+8+e}")
                for e in range(4): a(f"v_cvt_pk_bf16_f32 v{p+e}, v{o+2*e}, v{o+2*e+1}")
                s.vmem("hst", f"buffer_store_dwordx4 v[{p}:{p+3}], v9, s[44:47], s90 offen offset:{nt*2048} sc1")
                if ti < 5: wb_some(wpt)
        a("s_setprio 0")
        s.stamp(3)
        wb_some(s.opt.get("wmid", 6))
        s.vm_wait({"hst"})
        a("s_lshl_b32 s90, s87, 8"); a("s_lshl_b32 s91, s7, 4"); a("s_add_u32 s90, s90, s91"); a("s_lshl_b32 s91, s75, 3"); a("s_add_u32 s90, s90, s91")
        a(f"s_add_u32 s90, s90, {WS_FH}")
        s.write_flag(144, 90)
        s.lds_set(2, L_XH, 1)
        s.stamp(4)
        wb_some(25)
        s.lds_wait(L_XCNT, 1, 4, 148)
        for i in range(5, 9): wb_dma(i)
        a("v_add_u32 v10, s92, v7")
        a("v_min_u32 v114, 7, v1"); a("v_lshlrev_b32 v114, 3, v114")
        a("s_lshl_b32 s90, s9, 8"); a("s_lshl_b32 s91, s3, 6"); a("s_add_u32 s90, s90, s91"); a(f"s_add_u32 s90, s90, {WS_FH}")
        s.poll(112, 114, "s90")
        s.stamp(5)
        h0 = s.opt.get("h0", 2)
        for i in range(h0): hb_loads(i)
        for i in range(12):
            if i == s.opt.get("xg2", 8): s.lds_set(2, L_XG2, 1)
            s.vm_wait({("hb", i), ("wb", i)})
            if i == 0:
                for k in range(h0, 4): hb_loads(k)
            s.stamp(16 + i, 3)
            if 5 <= i < 9: a("s_waitcnt lgkmcnt(0)")
            rw = 12 + 20 * (i % 5); rh = 112 + 16 * (i % 4)
            n = i + 4
            extra = {k: [] for k in range(20)}
            if n < 12:
                extra[0].append(lambda n=n: (kt_of(n, 83), a("s_mul_i32 s98, s83, 5120"), a("s_add_u32 s98, s98, s80"), a("s_lshl_b32 s83, s83, 12"), a("s_add_u32 s83, s83, s81")))
                for sb in range(4):
                    extra[5 * sb + 4].append(lambda n=n, sb=sb: s.vmem(("hb", n), f"buffer_load_dwordx4 v[{rh+4*sb}:{rh+4*sb+3}], v7, s[44:47], s83 offen offset:{sb*1024} sc1"))
                if n >= 5:
                    r = 12 + 20 * (n % 5)
                    for dt in range(5):
                        if n < 9: f = lambda n=n, dt=dt, r=r: a(f"ds_read_b128 v[{r+4*dt}:{r+4*dt+3}], v10 offset:{(n - 5) * 5120 + dt*1024}")
                        elif dt < 4: f = lambda n=n, dt=dt, r=r: s.vmem(("wb", n), f"buffer_load_dwordx4 v[{r+4*dt}:{r+4*dt+3}], v7, s[44:47], s98 offen offset:{dt*1024} sc1")
                        else: f = lambda n=n, dt=dt, r=r: s.vmem(("wb", n), f"buffer_load_dwordx4 v[{r+4*dt}:{r+4*dt+3}], v8, s[44:47], s98 offen sc1")
                        extra[4 * dt + 2].append(f)
            def pw(k):
                sb, dt = divmod(k, 5); o = 176 + 4 * (4 * dt + sb)
                a(f"ds_write_b128 v12, v[{o}:{o+3}] offset:{sb*5120 + dt*64}")
            if i == 11:
                extra[0].append(lambda: (a("v_and_b32 v12, 15, v1"), a("v_lshrrev_b32 v13, 4, v1"), a("v_bfe_u32 v14, v1, 1, 2"), a("v_xor_b32 v13, v13, v14")))
                extra[1].append(lambda: (a("v_mul_u32_u24 v12, 320, v12"), a("v_lshl_add_u32 v12, v13, 4, v12"), a("v_add_u32 v12, s92, v12")))
                for k in range(12): extra[k + 8].append(lambda k=k: pw(k))
            for sb in range(4):
                for dt in range(5):
                    o = 176 + 4 * (4 * dt + sb)
                    c = "0" if i == 0 else f"v[{o}:{o+3}]"
                    a(f"v_mfma_f32_16x16x32_bf16 v[{o}:{o+3}], v[{rw+4*dt}:{rw+4*dt+3}], v[{rh+4*sb}:{rh+4*sb+3}], {c}")
                    for f in extra[5 * sb + dt]: f()
        s.stamp(6)
        for k in range(12, 20):
            if k == 19: a("s_nop 0")
            pw(k)
        s.stamp(7)

    def final(s):
        a = s.a
        s.label("L_final")
        s.srd(48, 38, 2621440)
        a(f"s_mul_i32 s74, s9, {64*1280}"); a("s_mul_i32 s75, s10, 160"); a("s_add_u32 s74, s74, s75")
        def addr(n, b):
            a(f"v_mul_u32_u24 v13, 6554, v{n}"); a("v_lshrrev_b32 v13, 16, v13")
            a("v_mul_u32_u24 v14, 10, v13"); a(f"v_sub_u32 v14, v{n}, v14")
            a("v_bfe_u32 v15, v13, 1, 2"); a(f"v_lshlrev_b32 v{b}, 1, v14"); a(f"v_xor_b32 v{b}, v{b}, v15"); a(f"v_xor_b32 v{b+1}, 1, v{b}")
            a("v_mul_u32_u24 v15, 320, v13"); a(f"v_lshl_add_u32 v{b}, v{b}, 4, v15"); a(f"v_lshl_add_u32 v{b+1}, v{b+1}, 4, v15")
            a(f"v_lshlrev_b32 v{b+2}, 4, v{n}"); a(f"v_add_u32 v{b+2}, {L_QT}, v{b+2}")
            a(f"v_lshlrev_b32 v{b+3}, 2, v13"); a(f"v_add_u32 v{b+3}, {L_GF}, v{b+3}")
            a(f"v_mul_u32_u24 v{b+4}, 1120, v13"); a(f"v_lshl_add_u32 v{b+4}, v{n}, 4, v{b+4}")
        def rd(b, d):
            for w in range(4):
                a(f"ds_read_b128 v[{d+8*w}:{d+3+8*w}], v{b} offset:{w*20480}")
                a(f"ds_read_b128 v[{d+4+8*w}:{d+7+8*w}], v{b+1} offset:{w*20480}")
            a(f"ds_read_b128 v[{d+32}:{d+35}], v{b+2}"); a(f"ds_read_b32 v{d+36}, v{b+3}")
        def comp(b, d):
            for e in range(4):
                a(f"v_pk_add_f32 v[{d+2*e}:{d+1+2*e}], v[{d+2*e}:{d+1+2*e}], v[{d+8+2*e}:{d+9+2*e}]")
                a(f"v_pk_add_f32 v[{d+16+2*e}:{d+17+2*e}], v[{d+16+2*e}:{d+17+2*e}], v[{d+24+2*e}:{d+25+2*e}]")
            a(f"v_sub_f32 v{d+36}, 1.0, v{d+36}"); a(f"v_cvt_pk_bf16_f32 v{d+36}, v{d+36}, v{d+36}"); a(f"v_and_b32 v{d+36}, 0xffff0000, v{d+36}")
            for e in range(4):
                a(f"v_pk_add_f32 v[{d+2*e}:{d+1+2*e}], v[{d+2*e}:{d+1+2*e}], v[{d+16+2*e}:{d+17+2*e}]")
            for e in range(4):
                a(f"v_lshlrev_b32 v{d+8+2*e}, 16, v{d+32+e}"); a(f"v_and_b32 v{d+9+2*e}, 0xffff0000, v{d+32+e}")
                a(f"v_pk_fma_f32 v[{d+8+2*e}:{d+9+2*e}], v[{d+2*e}:{d+1+2*e}], v[{d+36}:{d+37}], v[{d+8+2*e}:{d+9+2*e}] op_sel_hi:[1,0,1]")
            for e in range(4): a(f"v_cvt_pk_bf16_f32 v{d+32+e}, v{d+8+2*e}, v{d+9+2*e}")
            a(f"buffer_store_dwordx4 v[{d+32}:{d+35}], v{b+4}, s[48:51], s74 offen {s.opt.get('ost', '')}")
        addr(0, 16)
        a("s_lshl_b32 s75, s3, 4"); a("s_add_u32 s75, s75, 512"); a("v_and_b32 v12, 15, v1"); a("v_add_u32 v12, s75, v12")
        addr(12, 24)
        a("s_waitcnt lgkmcnt(0)"); a("s_barrier")
        s.stamp(12)
        rd(16, 32)
        a("s_mov_b64 exec, 0xffff");
        rd(24, 72)
        a("s_mov_b64 exec, -1")
        a("s_waitcnt lgkmcnt(10)")
        comp(16, 32)
        a("s_waitcnt lgkmcnt(0)")
        a("s_mov_b64 exec, 0xffff")
        comp(24, 72)
        a("s_mov_b64 exec, -1")
        s.label("L_fin2")
        if s.opt.get("stamps"):
            s.stamp(13)
            a("s_waitcnt vmcnt(0)")
            s.stamp(14)
            a("s_memrealtime s[96:97]"); a("s_waitcnt lgkmcnt(0)"); a("v_writelane_b32 v11, s96, 15")
            a("s_lshl_b32 s74, s2, 3"); a("s_add_u32 s74, s74, s3"); a("s_lshl_b32 s74, s74, 8"); a(f"s_add_u32 s74, s74, {WS_STAMP}")
            a("v_lshlrev_b32 v12, 2, v1")
            a("buffer_store_dword v11, v12, s[44:47], s74 offen")
            if s.opt.get("dbgout"):
                ld = s.newlab("L_dbo")
                a("s_cmp_lg_u32 s2, 9"); a(f"s_cbranch_scc1 {ld}"); a("s_cmp_lg_u32 s3, 0"); a(f"s_cbranch_scc1 {ld}")
                s.srd(64, 40, 256)
                a("v_readlane_b32 s74, v11, 0"); a("s_nop 1"); a("v_subrev_u32 v11, s74, v11")
                a("v_add_u32 v12, 4, v12")
                a("s_mov_b64 exec, 0x7ffe"); a("buffer_store_dword v11, v12, s[64:67], 0 offen"); a("s_mov_b64 exec, -1")
                s.label(ld)
        s.label("L_end")
        a("s_endpgm")

    def kv_pre(s):
        a = s.a
        a("v_mul_u32_u24 v90, 3277, v1"); a("v_lshrrev_b32 v90, 16, v90"); a("v_mul_u32_u24 v91, 20, v90"); a("v_sub_u32 v91, v1, v91")
        a(f"s_mul_i32 s76, s74, {CV_SZ}"); a(f"s_add_u32 s76, s76, {L_CV + 2*CV_SZ}")
        a("v_lshlrev_b32 v95, 5, v91"); a("v_add_u32 v95, s76, v95")
        a(f"s_mul_i32 s77, s75, {16*192}"); a("s_add_u32 s76, s76, s77"); a("s_and_b32 s77, s10, 1"); a("s_lshl_b32 s77, s77, 5"); a("s_add_u32 s76, s76, s77")
        a(f"v_mul_u32_u24 v10, {6*192}, v90"); a("v_lshl_add_u32 v10, v91, 3, v10"); a("v_add_u32 v10, s76, v10")
        a("s_lshl_b32 s77, s3, 3"); a("v_mul_u32_u24 v85, 3, v90"); a("v_add_u32 v85, s77, v85"); a("v_and_b32 v86, 7, v91")
        for m in range(3):
            a(f"v_sub_u32 v87, {29+m}, v85"); a("v_lshrrev_b32 v88, 2, v87"); a("v_xor_b32 v88, v88, v86"); a("v_lshlrev_b32 v88, 4, v88")
            a("v_and_b32 v87, 3, v87"); a("v_lshl_add_u32 v88, v87, 2, v88"); a(f"v_lshl_add_u32 v{92+m}, v91, 7, v88")
            a(f"v_add_u32 v{92+m}, {L_T}, v{92+m}")
    def kv_main(s):
        a = s.a
        s.label("L_kv")
        a("s_barrier")
        s.stamp(8)
        a(f"ds_read_b128 v[42:45], v95 offset:{SC_SHK}"); a(f"ds_read_b128 v[46:49], v95 offset:{SC_SHK + 16}")
        for i in range(9): a(f"ds_read_b64 v[{12+2*i}:{13+2*i}], v10 offset:{SC_K + 192*i}")
        a("s_waitcnt lgkmcnt(9)")
        for i in range(6): a(f"ds_read_b64 v[{30+2*i}:{31+2*i}], v10 offset:{SC_V + 192*i}")
        for e in range(4):
            a(f"v_lshlrev_b32 v{96+e}, 16, v{42+2*e}"); a(f"v_and_b32 v{100+e}, 0xffff0000, v{42+2*e}")
            a(f"v_lshlrev_b32 v{104+e}, 16, v{43+2*e}"); a(f"v_and_b32 v{108+e}, 0xffff0000, v{43+2*e}")
        a("s_waitcnt lgkmcnt(0)")
        s.ex(60)
        for d in range(2):
            for i in range(9):
                a(f"v_lshlrev_b32 v{112+2*i}, 16, v{12+2*i+d}"); a(f"v_and_b32 v{113+2*i}, 0xffff0000, v{12+2*i+d}")
            for i in range(6):
                a(f"v_lshlrev_b32 v{130+2*i}, 16, v{30+2*i+d}"); a(f"v_and_b32 v{131+2*i}, 0xffff0000, v{30+2*i+d}")
            for r in range(6):
                a(f"v_pk_mul_f32 v[{142+2*r}:{143+2*r}], v[{112+2*r}:{113+2*r}], v[{108+2*d}:{109+2*d}]")
            for j in (2, 1, 0):
                for r in range(6):
                    k = 112 + 2 * (r + 3 - j); w = 96 + 4 * j + 2 * d
                    a(f"v_pk_fma_f32 v[{142+2*r}:{143+2*r}], v[{k}:{k+1}], v[{w}:{w+1}], v[{142+2*r}:{143+2*r}]")
            for r in range(6):
                a(f"v_pk_mul_f32 v[{142+2*r}:{143+2*r}], v[{142+2*r}:{143+2*r}], v[{130+2*r}:{131+2*r}]")
            for e in range(2):
                for m in range(3):
                    hi = 4 - 2 * m
                    a(f"v_cvt_pk_bf16_f32 v{154+3*e+m}, v{142+2*(hi+1)+e}, v{142+2*hi+e}")
            for m in (1, 2, 0):
                if m == 0: a("s_mov_b32 exec_hi, 0xff")
                for e in range(2):
                    a(f"ds_write_b32 v{92+m}, v{154+3*e+m} offset:{(2*d+e)*2560}")
            a("s_mov_b32 exec_hi, 0xfffffff")
        a("s_mov_b64 exec, -1")
        s.stamp(9)
        a("s_branch L_kvret")
        s.label("L_codeend")

    def build(s):
        s.kvt = s.opt.get("kvt", 6)
        s.nt = "nt" if s.opt.get("nt", 1) else ""
        hdr = open("gated_mix__ssm_conv_h3__glu_gated_glu__prompt.s.ref").read().split("; Override launch")[0]
        out = hdr + f"; @launch grid=(256,1,1) block=(512,1,1) lds={LDS_TOTAL}\n"
        out += '.amdgcn_target "amdgcn-amd-amdhsa--gfx950"\n.text\n' + f".globl {KN}\n.p2align 8\n.type {KN},@function\n{KN}:\n"
        s.prologue(); s.loader(); s.chore(); s.ywave(); s.xwave(); s.final(); s.kv_main()
        out += "\n".join(s.L) + "\n"
        out += f""".section .rodata,"a"
.p2align 6
.amdhsa_kernel {KN}
  .amdhsa_next_free_vgpr 256
  .amdhsa_next_free_sgpr 102
  .amdhsa_accum_offset 256
  .amdhsa_group_segment_fixed_size 0
  .amdhsa_kernarg_size 112
  .amdhsa_user_sgpr_count 2
  .amdhsa_user_sgpr_kernarg_segment_ptr 1
  .amdhsa_system_sgpr_workgroup_id_x 1
.end_amdhsa_kernel
"""
        return out

if __name__ == "__main__":
    opt = {}
    outp = sys.argv[1]
    for x in sys.argv[2:]:
        k, v = x.split("=")
        if "," in v: opt[k] = tuple(int(z) for z in v.split(","))
        else:
            try: opt[k] = int(v)
            except ValueError: opt[k] = v
    open(outp, "w").write(Gen(opt).build())
```

```python
import sys
KN = "gated_mix__ssm_conv_h3__glu_gated_glu__prompt_kernel"

WS_HB = 0x000000; WS_WB = 0x600000; WS_KT = 0x800000; WS_YT = 0xB00000
WS_G = 0xE00000; WS_FA = 0xE10000; WS_FB = 0xE12000; WS_FH = 0xE14000; WS_FY = 0xE16000
WS_STAMP = 0xF00000
TS = 4224
L_XR = 0; L_WR = 32768; L_CV = 81920; CV_SZ = 17728; H_SZ = 8448; L_QT = 152832; L_MISC = 163072; LDS_TOTAL = 163840
CV_A = 0; CV_B = 4224; CV_U0 = 0; CV_U1 = 4616
L_FULL = L_MISC; L_FREE = L_MISC + 16; L_EPOCH = L_MISC + 32; L_QDONE = L_MISC + 40; L_SDONE = L_MISC + 48; L_XG2 = L_MISC + 56; L_XH = L_MISC + 60; L_XCNT = L_MISC + 52; L_GF = L_MISC + 256
SC_K = 0; SC_V = 6720; SC_SHK = 13440; L_T = L_CV; L_WDS = L_CV + CV_SZ
SPIN_MAX = 30000
NCONV = 160

class Gen:
    def __init__(s, opt):
        s.L = []; s.opt = opt; s.vm = []; s.lab = 0; s.vstamp = 11
    def a(s, x): s.L.append("    " + x)
    def label(s, x): s.L.append(x + ":")
    def newlab(s, p="L"):
        s.lab += 1; return f"{p}_{s.lab}"
    def vm_reset(s): s.vm = []
    def vmem(s, tag, ins): s.a(ins); s.vm.append(tag)
    def vm_wait(s, tags):
        idx = -1
        for i, t in enumerate(s.vm):
            if t in tags: idx = i
        if idx < 0: return
        n = len(s.vm) - 1 - idx
        assert n <= 63
        s.a(f"s_waitcnt vmcnt({n})")
        s.vm = s.vm[idx + 1:]
    def vm_wait_all(s):
        s.a("s_waitcnt vmcnt(0)"); s.vm = []
    def ex(s, n):
        if n >= 64: s.a("s_mov_b64 exec, -1")
        elif n > 32: s.a("s_mov_b32 exec_lo, -1"); s.a(f"s_mov_b32 exec_hi, {hex((1 << (n - 32)) - 1)}")
        elif n == 32: s.a("s_mov_b32 exec_hi, 0")
        else: s.a(f"s_mov_b32 exec_lo, {hex((1 << n) - 1)}"); s.a("s_mov_b32 exec_hi, 0")
    def srd(s, d, p, nbytes):
        s.a(f"s_mov_b32 s{d}, s{p}"); s.a(f"s_and_b32 s{d+1}, s{p+1}, 0xffff")
        s.a(f"s_mov_b32 s{d+2}, {nbytes}"); s.a(f"s_mov_b32 s{d+3}, 0x20000")
    def stamp(s, idx, lvl=1):
        if s.opt.get("stamps", 0) >= 1 and (lvl == 1 or s.opt.get("stamps", 0) == lvl):
            s.a("s_memtime s[96:97]"); s.a("s_waitcnt lgkmcnt(0)")
            s.a(f"v_writelane_b32 v{s.vstamp}, s96, {idx}")
    def poll(s, vflag, voff, soff, scnt=94, slp=None):
        l0 = s.newlab("L_poll"); l1 = s.newlab("L_pdone")
        s.a(f"s_mov_b32 s{scnt}, {SPIN_MAX}")
        s.label(l0)
        s.a(f"buffer_load_dwordx2 v[{vflag}:{vflag+1}], v{voff}, s[44:47], {soff} offen sc1")
        s.a("s_waitcnt vmcnt(0)")
        s.a(f"v_cmp_ne_u64 vcc, s[72:73], v[{vflag}:{vflag+1}]")
        s.a("s_nop 1")
        s.a(f"s_cbranch_vccz {l1}")
        slp = s.opt.get("slp", 4) if slp is None else slp
        if slp: s.a(f"s_sleep {slp}")
        s.a(f"s_sub_u32 s{scnt}, s{scnt}, 1")
        s.a(f"s_cbranch_scc0 {l0}")
        s.label(l1)
        s.vm = []
    def lds_wait(s, addr, nw, need, vt, scache=None, scnt=94, slp=0):
        a = s.a
        sc = scache if scache is not None else 95
        l0 = s.newlab("L_lw"); l1 = s.newlab("L_lwd")
        if scache is not None:
            a(f"s_cmp_ge_u32 s{sc}, {need}"); a(f"s_cbranch_scc1 {l1}")
        a(f"s_mov_b32 s{scnt}, {SPIN_MAX * 8}")
        a(f"v_mov_b32 v{vt+4}, {addr}")
        s.label(l0)
        if nw == 1: a(f"ds_read_b32 v{vt}, v{vt+4}")
        elif nw == 2: a(f"ds_read_b64 v[{vt}:{vt+1}], v{vt+4}")
        else: a(f"ds_read_b128 v[{vt}:{vt+3}], v{vt+4}")
        a("s_waitcnt lgkmcnt(0)")
        if nw == 2: a(f"v_min_u32 v{vt}, v{vt}, v{vt+1}")
        if nw == 4: a(f"v_min_u32 v{vt}, v{vt}, v{vt+1}"); a(f"v_min3_u32 v{vt}, v{vt}, v{vt+2}, v{vt+3}")
        a("s_nop 0")
        a(f"v_readfirstlane_b32 s{sc}, v{vt}")
        a("s_nop 1")
        a(f"s_cmp_ge_u32 s{sc}, {need}"); a(f"s_cbranch_scc1 {l1}")
        if slp: a(f"s_sleep {slp}")
        a(f"s_sub_u32 s{scnt}, s{scnt}, 1"); a(f"s_cbranch_scc0 {l0}")
        s.label(l1)
    def read_epoch(s, vt):
        a = s.a; l0 = s.newlab("L_re"); l1 = s.newlab("L_red")
        a(f"s_mov_b32 s94, {SPIN_MAX * 8}"); a(f"v_mov_b32 v{vt+2}, {L_EPOCH}")
        s.label(l0)
        a(f"ds_read_b64 v[{vt}:{vt+1}], v{vt+2}")
        a("s_waitcnt lgkmcnt(0)")
        a(f"v_readfirstlane_b32 s72, v{vt}"); a(f"v_readfirstlane_b32 s73, v{vt+1}"); a("s_nop 1")
        a("s_cmp_lg_u32 s73, 0"); a(f"s_cbranch_scc1 {l1}")
        a("s_sub_u32 s94, s94, 1"); a(f"s_cbranch_scc0 {l0}")
        s.label(l1)
    def write_flag(s, vt, sreg):
        s.a(f"v_mov_b32 v{vt}, s72"); s.a(f"v_mov_b32 v{vt+1}, s73"); s.a(f"v_mov_b32 v{vt+2}, 0")
        s.a("s_mov_b64 exec, 1")
        s.vmem("flag", f"buffer_store_dwordx2 v[{vt}:{vt+1}], v{vt+2}, s[44:47], s{sreg} offen sc1")
        s.a("s_mov_b64 exec, -1")
    def lds_set(s, vt, addr_sreg_or_const, val):
        s.a(f"v_mov_b32 v{vt}, {addr_sreg_or_const}"); s.a(f"v_mov_b32 v{vt+1}, {val}"); s.a(f"ds_write_b32 v{vt}, v{vt+1}")

    def prologue(s):
        a = s.a
        a("s_cmp_ge_u32 s2, 256"); a("s_cbranch_scc1 L_end")
        a("s_load_dwordx16 s[16:31], s[0:1], 0")
        a("s_load_dwordx8 s[32:39], s[0:1], 64")
        a("s_load_dwordx4 s[40:43], s[0:1], 96")
        a("v_lshrrev_b32 v2, 6, v0")
        a("v_and_b32 v1, 63, v0")
        a("v_readfirstlane_b32 s3, v2")
        a("s_and_b32 s4, s2, 7"); a("s_lshr_b32 s5, s2, 3")
        a("s_lshr_b32 s6, s4, 2"); a("s_lshl_b32 s6, s6, 3"); a("s_and_b32 s11, s5, 7"); a("s_add_u32 s6, s6, s11")
        a("s_and_b32 s7, s4, 3"); a("s_lshl_b32 s7, s7, 2"); a("s_lshr_b32 s12, s5, 3"); a("s_add_u32 s7, s7, s12")
        a("s_lshl_b32 s8, s12, 1"); a("s_add_u32 s8, s8, s11"); a("s_and_b32 s8, s8, 7")
        if s.opt.get("g2map", 0):
            a("s_lshr_b32 s9, s4, 1"); a("s_lshl_b32 s9, s9, 3"); a("s_add_u32 s9, s9, s11")
            a("s_and_b32 s10, s4, 1"); a("s_lshl_b32 s10, s10, 2"); a("s_add_u32 s10, s10, s12")
        else:
            a("s_lshl_b32 s9, s4, 2"); a("s_and_b32 s13, s5, 3"); a("s_add_u32 s9, s9, s13"); a("s_lshr_b32 s10, s5, 2")
        if s.opt.get("cmap", 0):
            a("s_mul_i32 s14, s5, 5"); a("s_add_u32 s14, s14, s4"); a("s_cmp_lt_u32 s4, 5"); a("s_cselect_b32 s14, s14, 255")
        else: a("s_mov_b32 s14, s2")
        if s.opt.get("stamps"): a("v_mov_b32 v11, 0")
        a("v_lshlrev_b32 v12, 4, v1")
        a("s_waitcnt lgkmcnt(0)")
        s.srd(44, 42, 0x10000000)
        s.stamp(0)
        a("s_cmp_lt_u32 s3, 4"); a("s_cbranch_scc1 L_X")
        a("s_cmp_ge_u32 s3, 6"); a("s_cbranch_scc1 L_C")

    def loader(s):
        a = s.a; s.vm_reset()
        s.label("L_L")
        a(f"s_setprio {s.opt.get('lprio', 3)}")
        a("s_sub_u32 s74, s3, 4")
        s.srd(48, 16, 2621440)
        a("s_cmp_eq_u32 s74, 0")
        a("s_cselect_b32 s52, s30, s32"); a("s_cselect_b32 s53, s31, s33"); a("s_and_b32 s53, s53, 0xffff")
        a("s_mov_b32 s54, 1966080"); a("s_mov_b32 s55, 0x20000")
        a("v_lshrrev_b32 v4, 2, v1"); a("v_mul_u32_u24 v2, 3072, v4")
        a("s_lshl_b32 s75, s74, 1"); a("v_and_b32 v5, 3, v1"); a("v_xor_b32 v6, s75, v5"); a("v_lshl_add_u32 v2, v6, 4, v2")
        a("s_mul_i32 s75, s7, 192"); a("v_add_u32 v2, s75, v2")
        a("v_mul_u32_u24 v3, 1280, v4")
        a("v_lshrrev_b32 v6, 4, v1"); a("s_lshl_b32 s75, s74, 2"); a("v_add_u32 v6, s75, v6")
        a("v_lshrrev_b32 v7, 1, v6"); a("v_xor_b32 v6, v6, v7"); a("v_and_b32 v6, 3, v6"); a("v_xor_b32 v6, v6, v5")
        a("v_lshl_add_u32 v3, v6, 4, v3")
        a("s_lshl_b32 s75, s6, 3"); a("s_add_u32 s75, s75, s74"); a(f"s_mul_i32 s75, s75, {16*1280}"); a("v_add_u32 v3, s75, v3")
        a("s_lshl_b32 s78, s74, 10")
        a(f"s_mul_i32 s79, s74, 6144"); a(f"s_add_u32 s79, s79, {L_WR}")
        groups = s.opt.get("groups", (1,) * 10)
        if s.opt.get("cyc", 1): a("s_mul_i32 s8, s8, 5"); a("s_lshr_b32 s8, s8, 2")
        def dsel(D):
            if s.opt.get("cyc", 1):
                a(f"s_add_u32 s80, s8, {D}"); a("s_cmp_ge_u32 s80, 10"); a("s_cselect_b32 s15, 10, 0"); a("s_sub_u32 s80, s80, s15")
                return
            b = 0
            for g in groups:
                if D < b + g: break
                b += g
            if g == 1: a(f"s_mov_b32 s80, {D}"); return
            assert g in (2, 4, 8)
            src = "s8" if g == 8 else ("s14" if g == 4 else "s15")
            a(f"s_add_u32 s80, {src}, {D - b}"); a(f"s_and_b32 s80, s80, {g - 1}")
            if b: a(f"s_add_u32 s80, s80, {b}")
        def issue_x(D):
            dsel(D); a("s_lshl_b32 s81, s80, 7")
            for gi in range(4):
                for h in range(2):
                    t = 2 * D + h
                    a(f"s_add_u32 m0, s78, {L_XR + (t & 3) * 8192 + gi * 2048}")
                    a(f"s_add_u32 s82, s81, {gi * 32 * 1280 + h * 64}")
                    s.vmem(("x", t), f"buffer_load_dwordx4 v3, s[48:51], s82 offen lds")
        def issue_w(t):
            dsel(t >> 1); a(f"s_mul_i32 s81, s80, {64*3072}")
            for rh in range(2):
                for pc in range(3):
                    a(f"s_add_u32 m0, s79, {(t & 3) * 12288 + pc * 2048 + rh * 1024}")
                    a(f"s_add_u32 s82, s81, {(32 * (t & 1) + 16 * rh) * 3072 + pc * 64}")
                    s.vmem(("w", t), f"buffer_load_dwordx4 v2, s[52:55], s82 offen lds")
        def publish(t):
            s.vm_wait({("x", t), ("w", t), ("x", t | 1)})
            s.stamp(40 + t, 2)
            a("s_barrier")
            s.stamp(16 + t, 2)
        issue_w(0); issue_x(0); issue_w(1)
        a("s_barrier")
        publish(0); publish(1)
        if s.opt.get("rtouch", 2):
            a("s_barrier")
            issue_x(1); issue_w(2)
        else:
            issue_x(1); issue_w(2)
            a("s_barrier")
        issue_w(3)
        hold = -5
        pend = []
        for n in range(1, 17):
            if n % 2 == 0 and n + 2 < 20: pend.append(lambda n=n: issue_x((n + 2) // 2))
            if n + 3 < 20: pend.append(lambda n=n: issue_w(n + 3))
            if n != hold:
                for f in pend: f()
                pend = []
            if n < 16: publish(n + 1)
        a("s_mov_b32 s83, s74")
        a("s_branch L_Yt")

    def row_loads(s, srd, nrows, vfirst, vrest, reg, tag, nt):
        a = s.a
        for i in range((nrows + 4) // 5):
            n = min(5, nrows - 5 * i)
            if i == 0 or n < 5: s.ex(12 * n)
            r = reg + 4 * i
            if i == 0: s.vmem(tag, f"buffer_load_dwordx4 v[{r}:{r+3}], v{vfirst}, s[{srd}:{srd+3}], 0 offen {nt}")
            else:
                a(f"s_mov_b32 s77, {6400*(i-1)}")
                s.vmem(tag, f"buffer_load_dwordx4 v[{r}:{r+3}], v{vrest}, s[{srd}:{srd+3}], s77 offen {nt}")
        a("s_mov_b64 exec, -1")
    def dma_rows(s, srd, nrows, vfirst, vrest, ldsbase_s, ldsoff, tag, nt):
        a = s.a
        for i in range((nrows + 4) // 5):
            a(f"s_add_u32 m0, s{ldsbase_s}, {ldsoff + 960*i}")
            n = min(5, nrows - 5 * i)
            if i == 0 or n < 5: s.ex(12 * n)
            if i == 0: s.vmem(tag, f"buffer_load_dwordx4 v{vfirst}, s[{srd}:{srd+3}], 0 offen {nt} lds")
            else:
                a(f"s_mov_b32 s77, {6400*(i-1)}")
                s.vmem(tag, f"buffer_load_dwordx4 v{vrest}, s[{srd}:{srd+3}], s77 offen {nt} lds")
        a("s_mov_b64 exec, -1")
    def img_write(s, sbase, off, n, reg):
        a = s.a
        a(f"v_add_u32 v13, s{sbase}, v12"); s.ex(60)
        for i in range(n): a(f"ds_write_b128 v13, v[{reg+4*i}:{reg+4*i+3}] offset:{off + 960*i}")
        a("s_mov_b64 exec, -1")
    def h_copies(s, sbase, reg, half=None):
        a = s.a
        a(f"v_add_u32 v13, s{sbase}, v12")
        for i in (range(4) if half is None else range(2 * half, 2 * half + 2)):
            r = reg + 4 * i
            if i == 0: a("v_mov_b32 v234, 0")
            else:
                a(f"v_readlane_b32 s74, v{r-1}, 63"); a("s_nop 1"); a("v_mov_b32 v234, s74")
            a("s_nop 1")
            a(f"v_mov_b32_dpp v234, v{r+3} wave_shr:1 row_mask:0xf bank_mask:0xf")
            a(f"ds_write_b128 v13, v[{r}:{r+3}] offset:{CV_B + 64 + i*1024}")
            a(f"v_alignbit_b32 v236, v{r}, v234, 16")
            a(f"v_alignbit_b32 v237, v{r+1}, v{r}, 16")
            a(f"v_alignbit_b32 v238, v{r+2}, v{r+1}, 16")
            a(f"v_alignbit_b32 v239, v{r+3}, v{r+2}, 16")
            a(f"ds_write_b128 v13, v[236:239] offset:{CV_A + 64 + i*1024}")
        if half == 0: return
        a("v_lshrrev_b32 v234, 2, v1"); a("v_and_b32 v235, 1, v234"); a("v_mul_u32_u24 v235, 4160, v235")
        a("v_lshrrev_b32 v234, 1, v234"); a(f"v_mul_u32_u24 v234, {CV_B}, v234"); a("v_add_u32 v235, v235, v234")
        a("v_and_b32 v234, 3, v1"); a("v_lshl_add_u32 v235, v234, 4, v235"); a(f"v_add_u32 v235, s{sbase}, v235")
        for r in range(236, 240): a(f"v_mov_b32 v{r}, 0")
        s.ex(16)
        a("ds_write_b128 v235, v[236:239]")
        a("s_mov_b64 exec, -1")
    def u_addr(s, sbase):
        a = s.a
        def swz(dst, off):
            a(f"v_add_u32 v{dst}, {off}, v12"); a(f"v_lshrrev_b32 v41, 3, v{dst}"); a("v_and_b32 v41, 32, v41"); a(f"v_xor_b32 v{dst}, v{dst}, v41")
            a(f"v_add_u32 v{dst}, s{sbase}, v{dst}"); a(f"v_subrev_u32 v{dst}, 64, v{dst}")
        swz(14, 68); swz(15, 80); swz(40, 72)
        a(f"v_add_u32 v13, s{sbase}, v12")
        for r in range(32, 36): a(f"v_mov_b32 v{r}, 0")
        s.ex(34); a("ds_write_b128 v13, v[32:35] offset:4096")
        s.ex(33); a(f"ds_write_b128 v13, v[32:35] offset:{CV_U1 + 4096 - 8}")
        a("s_mov_b64 exec, 1"); a("ds_write_b128 v13, v[32:35]")
        a("s_mov_b64 exec, -1")
    def u_stage(s, reg, nwait0):
        a = s.a
        for i in range(4):
            a(f"s_waitcnt vmcnt({nwait0 + 3 - i})")
            r = reg + 4 * i
            a(f"ds_write_b64 v40, v[{r}:{r+1}] offset:{CV_U1 + i*1024}")
            a(f"ds_write_b64 v15, v[{r+2}:{r+3}] offset:{CV_U1 + i*1024}")
            a(f"ds_write_b64 v14, v[{r}:{r+1}] offset:{i*1024}") if False else None
            a(f"ds_write_b32 v14, v{r} offset:{i*1024}")
            a(f"ds_write_b64 v14, v[{r+1}:{r+2}] offset:{i*1024 + 4}") if False else None
            a(f"ds_write_b32 v14, v{r+1} offset:{i*1024 + 4}")
            a(f"ds_write_b32 v14, v{r+2} offset:{i*1024 + 8}")
            a(f"ds_write_b32 v15, v{r+3} offset:{i*1024}")

    def chore(s):
        a = s.a; s.vm_reset(); nt = s.nt
        s.label("L_C")
        a(f"s_setprio {s.opt.get('cprio', 2)}")
        a("s_sub_u32 s78, s3, 6")
        a(f"s_mul_i32 s79, s78, {CV_SZ}"); a(f"s_add_u32 s79, s79, {L_CV}")
        a(f"s_add_u32 s84, s79, {2*CV_SZ}")
        a("s_mul_i32 s93, s78, 4800"); a(f"s_add_u32 s93, s93, {L_WDS}")
        s.srd(64, 40, 256)
        l = s.newlab("L_noep")
        a("s_cmp_lg_u32 s2, 0"); a(f"s_cbranch_scc1 {l}"); a("s_cmp_lg_u32 s78, 0"); a(f"s_cbranch_scc1 {l}")
        a("s_memrealtime s[74:75]"); a("s_waitcnt lgkmcnt(0)"); a("s_or_b32 s75, s75, 0x40000000")
        a("v_mov_b32 v2, s74"); a("v_mov_b32 v3, s75"); a("v_mov_b32 v4, 0")
        a("s_mov_b64 exec, 1"); a("buffer_store_dwordx2 v[2:3], v4, s[64:67], 0 offen sc1"); a("s_mov_b64 exec, -1")
        s.label(l)
        s.srd(48, 18, 2621440); s.srd(52, 20, 2621440); s.srd(56, 22, 5120); s.srd(60, 24, 2621440)
        s.srd(68, 16, 2621440); s.srd(88, 34, 1966080)
        a("s_and_b32 s85, s10, 1"); a("s_lshl_b32 s85, s85, 5")
        a("s_mul_i32 s80, s10, 160"); a("s_sub_u32 s80, s80, s85")
        a("s_lshl_b32 s81, s9, 6"); a("s_lshl_b32 s74, s78, 5"); a("s_add_u32 s81, s81, s74")
        a("v_mul_u32_u24 v4, 5462, v1"); a("v_lshrrev_b32 v4, 16, v4")
        a("v_mul_u32_u24 v5, 12, v4"); a("v_sub_u32 v5, v1, v5")
        a("v_mul_u32_u24 v6, 1280, v4"); a("v_lshl_add_u32 v6, v5, 4, v6"); a("v_add_u32 v6, s80, v6")
        a("s_mul_i32 s74, s9, 48"); a("s_mul_i32 s75, s78, 24"); a("s_add_u32 s74, s74, s75"); a("s_mul_i32 s74, s74, 1280")
        a("v_add_u32 v16, s74, v6"); a("v_add_u32 v17, 6400, v16")
        a("s_mul_i32 s74, s81, 1280")
        a("v_add_u32 v20, s74, v6"); a("v_add_u32 v21, 6400, v20")
        a(f"v_subrev_u32 v18, {3*1280}, v20"); a("v_add_u32 v19, 6400, v18")
        a("v_mov_b32 v23, 0"); a("v_mov_b32 v37, 1")
        if s.opt.get("ticket", 0):
            lt = s.newlab("L_tk")
            a("s_cmp_eq_u32 s78, 0"); a(f"s_cbranch_scc1 {lt}")
            a("s_mov_b64 exec, 1"); a("buffer_atomic_add v37, v23, s[64:67], 0 offen offset:64 sc0"); a("s_mov_b64 exec, -1")
            s.label(lt)
        elif s.opt.get("cmap", 0):
            a("s_mul_i32 s74, s5, 5"); a("s_add_u32 s74, s74, s4"); a("s_cmp_lt_u32 s4, 5"); a("s_cselect_b32 s74, s74, 255"); a("v_mov_b32 v37, s74")
        else: a("v_mov_b32 v37, s2")
        a("s_barrier")
        s.dma_rows(48, 35, 18, 19, 84, SC_K, "k", nt)
        s.dma_rows(52, 32, 20, 21, 84, SC_V, "k", nt)
        a("s_mul_i32 s75, s10, 640"); a(f"s_add_u32 m0, s84, {SC_SHK}"); s.ex(40)
        s.vmem("k", "buffer_load_dwordx4 v12, s[56:59], s75 offen lds")
        a("s_mov_b64 exec, -1")
        s.vmem("ep", "buffer_load_dwordx2 v[38:39], v23, s[64:67], 0 offen sc1")
        s.stamp(40, 2); a("s_barrier")
        if s.opt.get("rtouch", 2):
            a("s_mov_b32 s76, 0x986431"); a("s_bitcmp1_b32 s11, 0"); a("s_cselect_b32 s76, 0x975420, s76")
            a("v_lshrrev_b32 v240, 4, v1"); a("v_lshlrev_b32 v240, 2, v240"); a("v_lshrrev_b32_e64 v241, v240, s76"); a("v_and_b32 v241, 15, v241")
            a("s_lshr_b32 s76, s76, 16"); a("v_lshrrev_b32_e64 v242, v240, s76"); a("v_and_b32 v242, 15, v242")
            a("v_and_b32 v243, 15, v1"); a("v_mul_u32_u24 v243, 1280, v243")
            a("v_lshl_add_u32 v241, v241, 7, v243"); a("v_lshl_add_u32 v242, v242, 7, v243")
            a("s_lshl_b32 s76, s6, 3"); a("s_lshl_b32 s77, s12, 1"); a("s_add_u32 s76, s76, s77"); a("s_add_u32 s76, s76, s78"); a(f"s_mul_i32 s98, s76, {16*1280}")
            a("v_bfe_u32 v243, v1, 4, 1"); a(f"v_mul_u32_u24 v243, {5*64*3072}, v243"); a("v_bfe_u32 v244, v1, 1, 3"); a("v_mul_u32_u24 v244, 3072, v244"); a("v_add_u32 v243, v243, v244")
            a("v_and_b32 v244, 1, v1"); a("v_lshl_add_u32 v243, v244, 7, v243")
            a("s_mul_i32 s76, s7, 192"); a("s_and_b32 s76, s76, 0xffffff80"); a(f"s_mul_i32 s77, s11, {8*3072}"); a("s_add_u32 s76, s76, s77"); a(f"s_add_u32 s99, s76, {4*64*3072}")
            a("s_cmp_eq_u32 s78, 0")
            a("s_cselect_b32 s48, s30, s32"); a("s_cselect_b32 s49, s31, s33"); a("s_and_b32 s49, s49, 0xffff"); a("s_mov_b32 s50, 1966080"); a("s_mov_b32 s51, 0x20000")
        s.stamp(41, 2); a("s_barrier")
        if s.opt.get("rtouch", 2):
            a("s_mov_b32 exec_hi, 0")
            s.vmem("t", "buffer_load_dword v250, v243, s[48:51], s99 offen")
            if s.opt.get("rtouch", 2) == 1:
                s.vmem("t", "buffer_load_dword v251, v242, s[68:71], s98 offen")
                a("s_mov_b64 exec, -1")
                s.vmem("t", "buffer_load_dword v252, v241, s[68:71], s98 offen")
            a("s_mov_b64 exec, -1")
        s.dma_rows(88, 24, 16, 17, 93, 0, "wd", nt)
        a("s_lshr_b32 s74, s85, 4"); a("v_subrev_u32 v7, s74, v5")
        a("v_cmp_gt_u32 s[86:87], 10, v7"); a("v_cmp_gt_u32 vcc, 60, v1"); a("s_and_b64 s[86:87], s[86:87], vcc")
        a("v_mul_u32_u24 v22, 160, v4"); a("v_lshl_add_u32 v22, v7, 4, v22")
        a(f"s_mul_i32 s76, s78, 5120"); a(f"s_add_u32 s76, s76, {L_QT}"); a("v_add_u32 v22, s76, v22")
        a("s_lshl_b32 s75, s9, 6"); a("s_lshl_b32 s76, s10, 3"); a("s_add_u32 s75, s75, s76"); a("s_lshl_b32 s76, s78, 2"); a("s_add_u32 s82, s75, s76")
        a("v_lshrrev_b32 v14, 4, v1"); a("v_mul_u32_u24 v14, 1280, v14"); a("v_and_b32 v15, 15, v1"); a("v_lshlrev_b32 v15, 4, v15"); a("v_add_u32 v14, v14, v15")
        a("v_and_b32 v240, 15, v1"); a("v_lshrrev_b32 v241, 4, v1")
        a("v_lshrrev_b32 v242, 2, v240"); a("v_mul_u32_u24 v242, 192, v242"); a("v_and_b32 v243, 3, v240"); a("v_lshl_add_u32 v242, v243, 3, v242")
        a(f"v_add_u32 v242, s93, v242"); a("v_add_u32 v242, s85, v242")
        a("s_mul_i32 s74, s9, 6"); a("s_mul_i32 s75, s78, 3"); a("s_add_u32 s74, s74, s75")
        for p in range(4):
            a(f"v_add_u32 v243, {4*p}, v241"); a("v_mul_u32_u24 v244, 52, v243"); a("v_lshrrev_b32 v244, 8, v244")
            a("v_mul_u32_u24 v245, 5, v244"); a("v_sub_u32 v245, v243, v245")
            a(f"v_mul_u32_u24 v{24+p}, 1536, v244"); a(f"v_lshl_add_u32 v{24+p}, v245, 5, v{24+p}"); a(f"v_add_u32 v{24+p}, v{24+p}, v242")
            a("v_add_u32 v244, s74, v244"); a("v_lshrrev_b32 v247, 2, v244"); a(f"v_mul_u32_u24 v{28+p}, 5120, v247")
            a("v_and_b32 v244, 3, v244"); a(f"v_lshl_add_u32 v{28+p}, v244, 8, v{28+p}"); a(f"v_lshl_add_u32 v{28+p}, v245, 10, v{28+p}")
            a(f"v_lshl_add_u32 v{28+p}, v240, 4, v{28+p}")
        a("v_lshrrev_b32 v6, 3, v1"); a("v_and_b32 v7, 7, v1"); a("s_mul_i32 s74, s78, 40"); a("v_add_u32 v6, s74, v6")
        for i in range(5):
            a(f"v_add_u32 v8, {8*i}, v6"); a("v_mul_u32_u24 v9, 3277, v8"); a("v_lshrrev_b32 v9, 16, v9")
            a("v_mul_u32_u24 v10, 20, v9"); a("v_sub_u32 v8, v8, v10")
            a("v_lshl_add_u32 v9, v8, 2, v9"); a("v_xor_b32 v8, v8, v7"); a("v_and_b32 v8, 7, v8"); a("v_lshlrev_b32 v8, 4, v8")
            a(f"v_mul_u32_u24 v9, {TS}, v9"); a(f"v_add_u32 v{32+i}, v9, v8")
        a("v_mov_b32 v23, 0")
        sched = {t: [] for t in range(21)}
        dl = s.opt.get("dl", 3)
        def rowl(srd, nrows, vfirst, vrest, reg, tag, ntf):
            out = []
            for i in range((nrows + 4) // 5):
                def f(i=i):
                    n = min(5, nrows - 5 * i); r = reg + 4 * i
                    s.ex(12 * n)
                    if i == 0: s.vmem(tag, f"buffer_load_dwordx4 v[{r}:{r+3}], v{vfirst}, s[{srd}:{srd+3}], 0 offen {ntf}")
                    else:
                        a(f"s_mov_b32 s77, {6400*(i-1)}")
                        s.vmem(tag, f"buffer_load_dwordx4 v[{r}:{r+3}], v{vrest}, s[{srd}:{srd+3}], s77 offen {ntf}")
                    a("s_mov_b64 exec, -1")
                out.append(f)
            return out
        Lk = rowl(48, 35, 18, 19, 40, "k", nt); Lv = rowl(52, 32, 20, 21, 68, "v", nt); Lw = rowl(88, 24, 16, 17, 96, "wd", nt)
        Lq = rowl(68, 32, 20, 21, 196, "q", "")
        def lshk():
            a("s_mul_i32 s75, s10, 640"); s.ex(40)
            s.vmem("v", "buffer_load_dwordx4 v[116:119], v12, s[56:59], s75 offen")
            a("s_mov_b64 exec, -1")
        def lgx(i):
            a("s_mul_i32 s75, s82, 1280")
            s.vmem("gx", f"buffer_load_dwordx4 v[{124+4*i}:{127+4*i}], v14, s[68:71], s75 offen offset:{i*256}")
        def lgw():
            s.srd(56, 36, 1280)
            for i in range(5):
                s.vmem("gx", f"buffer_load_dwordx4 v[{144+4*i}:{147+4*i}], v15, s[56:59], 0 offen offset:{i*256}")
        def lh(i):
            a("s_lshl_b32 s74, s14, 2"); a(f"s_add_u32 s74, s74, {2*(i//4)}"); a("s_add_u32 s74, s74, s78"); a("s_lshl_b32 s74, s74, 12")
            s.vmem("h", f"buffer_load_dwordx4 v[{164+4*i}:{167+4*i}], v12, s[60:63], s74 offen offset:{(i&3)*1024} {nt}")
        def two(f, g): return lambda: (f(), g())
        cold = Lk + [two(Lv[0], lshk)] + Lv[1:] + Lw
        def w1(): s.vm_wait({"k"}); s.stamp(2); s.img_write(84, SC_K, 7, 40)
        def w2():
            s.vm_wait({"v"}); s.img_write(84, SC_V, 7, 68)
            s.ex(40); a(f"ds_write_b128 v13, v[116:119] offset:{SC_SHK}"); a("s_mov_b64 exec, -1")
        def w3(): s.vm_wait({"wd"}); s.img_write(93, 0, 5, 96); a("s_waitcnt lgkmcnt(0)")
        def wd():
            for p in range(4):
                a(f"ds_read_b64_tr_b16 v[{96+4*p}:{97+4*p}], v{24+p}")
                a(f"ds_read_b64_tr_b16 v[{98+4*p}:{99+4*p}], v{24+p} offset:768")
            a(f"s_mul_i32 s74, s10, {48*5120}"); a(f"s_add_u32 s74, s74, {WS_WB}")
            a("s_waitcnt lgkmcnt(0)")
            for p in range(4):
                if p == 3: s.ex(48)
                s.vmem("st", f"buffer_store_dwordx4 v[{96+4*p}:{99+4*p}], v{28+p}, s[44:47], s74 offen sc1")
            a("s_mov_b64 exec, -1")
        def epoch():
            s.vm_wait({"ep"})
            l0 = s.newlab("L_ep"); l1_ = s.newlab("L_epd")
            a(f"s_mov_b32 s94, {SPIN_MAX}")
            s.label(l0)
            a("v_readfirstlane_b32 s72, v38"); a("v_readfirstlane_b32 s73, v39"); a("s_nop 1")
            a("s_cmp_lg_u32 s73, 0"); a(f"s_cbranch_scc1 {l1_}")
            a("buffer_load_dwordx2 v[38:39], v23, s[64:67], 0 offen sc1")
            a("s_waitcnt vmcnt(0)")
            a("s_sub_u32 s94, s94, 1"); a(f"s_cbranch_scc0 {l0}")
            s.label(l1_)
            a(f"v_mov_b32 v242, {L_EPOCH}"); a("ds_write_b64 v242, v[38:39]")
            lt2 = s.newlab("L_tk")
            a("s_cmp_eq_u32 s78, 0"); a(f"s_cbranch_scc1 {lt2}")
            a("s_mov_b64 exec, 1"); a("ds_write_b32 v242, v37 offset:16"); a("s_mov_b64 exec, -1")
            s.label(lt2)
        def gate():
            s.vm_wait({"gx"})
            a("v_mov_b32 v240, 0"); a("v_mov_b32 v241, 0")
            for i in range(20): a(f"v_dot2_f32_bf16 v{240 + (i & 1)}, v{124+i}, v{144+i}, v{240 + (i & 1)}")
        def gate2():
            a("s_nop 2")
            a("v_add_f32 v240, v240, v241"); a("s_nop 1")
            for ctl in ("quad_perm:[1,0,3,2]", "quad_perm:[2,3,0,1]", "row_half_mirror", "row_mirror"):
                a(f"v_add_f32_dpp v240, v240, v240 {ctl} row_mask:0xf bank_mask:0xf"); a("s_nop 1")
            a("v_cvt_pk_bf16_f32 v240, v240, v240"); a("v_and_b32 v240, 0xffff0000, v240")
            a("v_mul_f32 v240, 0xbfb8aa3b, v240"); a("v_exp_f32 v240, v240"); a("s_nop 0"); a("v_add_f32 v240, 1.0, v240")
            a("v_rcp_f32 v240, v240"); a("s_nop 0")
            a("v_cvt_pk_bf16_f32 v240, v240, v240"); a("v_and_b32 v240, 0xffff0000, v240")
            a("s_lshl_b32 s74, s82, 2"); a(f"s_add_u32 s74, s74, {WS_G}")
            a("v_lshrrev_b32 v241, 4, v1"); a("v_lshlrev_b32 v241, 2, v241")
            a("s_mov_b32 exec_lo, 0x00010001"); a("s_mov_b32 exec_hi, 0x00010001")
            s.vmem("st", "buffer_store_dword v240, v241, s[44:47], s74 offen sc1")
            a("s_mov_b64 exec, -1")
        def qc():
            a("s_mov_b64 exec, s[86:87]")
            for i in range(7):
                if i == 6: a("s_and_b32 exec_lo, exec_lo, 0xffffff"); a("s_mov_b32 exec_hi, 0")
                a(f"ds_write_b128 v22, v[{196+4*i}:{199+4*i}] offset:{800*i}")
            a("s_mov_b64 exec, -1")
        def ktst_rd():
            a("s_mul_i32 s74, s78, 5120"); a(f"s_add_u32 s74, s74, {L_T}"); a("v_add_u32 v13, s74, v12")
            for i in range(5): a(f"ds_read_b128 v[{40+4*i}:{43+4*i}], v13 offset:{i*1024}")
        def ktst_st():
            a(f"s_mul_i32 s74, s10, {80*TS}"); a("s_lshl_b32 s75, s9, 7"); a("s_sub_u32 s74, s74, s75")
            a(f"s_add_u32 s74, s74, {WS_KT + 3968}")
            for i in range(5):
                s.vmem("st", f"buffer_store_dwordx4 v[{40+4*i}:{43+4*i}], v{32+i}, s[44:47], s74 offen sc1")
        def hc(base, reg, half):
            s.vm_wait({"h"})
            l = s.newlab("L_nh"); a(f"s_cmp_ge_u32 s14, {NCONV}"); a(f"s_cbranch_scc1 {l}")
            s.h_copies(base, reg, half); s.label(l)
        def flagsA():
            s.vm_wait({"st"})
            a("s_lshl_b32 s74, s10, 9"); a("s_lshl_b32 s75, s9, 4"); a("s_add_u32 s74, s74, s75"); a("s_lshl_b32 s76, s78, 3"); a("s_add_u32 s74, s74, s76")
            a(f"s_add_u32 s74, s74, {WS_FA}")
            s.write_flag(244, 74)
            s.stamp(5)
        def flagsB():
            lb = s.newlab("L_nb")
            a("s_cmp_lt_u32 s83, 2"); a(f"s_cbranch_scc1 {lb}")
            a("s_waitcnt vmcnt(0)")
            a("s_lshl_b32 s76, s78, 3")
            a("s_lshl_b32 s74, s9, 7"); a("s_lshl_b32 s75, s10, 4"); a("s_add_u32 s74, s74, s75"); a("s_add_u32 s74, s74, s76"); a(f"s_add_u32 s74, s74, {WS_FB}")
            s.write_flag(8, 74)
            s.label(lb)
        KVT = s.kvt
        he = s.opt.get("hearly", 0)
        if he == 1:
            for i in range(8): lh(i)
        s.vm_wait({"k"}); s.stamp(2)
        a("s_barrier")
        if he == 2:
            for i in range(8): lh(i)
        if he:
            for j, (b, r, hf) in enumerate(((79, 164, 0), (79, 164, 1), (84, 180, 0), (84, 180, 1))):
                sched[8 + j].append(lambda b=b, r=r, hf=hf: hc(b, r, hf))
        epoch()
        ts = s.opt.get("ts", 3)
        sched[ts].append(lambda: (ktst_rd(), a("s_waitcnt lgkmcnt(0)"), ktst_st()))
        sched[ts + 1].append(lambda: (s.vm_wait({"wd"}), wd(), s.stamp(3)))
        tf = s.opt.get("tf", 7); sched[tf].append(flagsA)
        tg = s.opt.get("tg", 16)
        sched[tg - 4] += [lambda i=i: lgx(i) for i in range(5)] + [lgw]
        sched[tg - 1].append(gate); sched[tg].append(gate2)
        s.flagsB = flagsB
        tp = s.opt.get("tp", 13)
        def fa_ld():
            a(f"v_mov_b32 v2, {L_SDONE}"); a("ds_read_b32 v2, v2"); a("s_waitcnt lgkmcnt(0)"); a("v_readfirstlane_b32 s14, v2"); a("s_nop 1")
            a("s_mul_i32 s74, s14, 3277"); a("s_lshr_b32 s74, s74, 16"); a("s_min_u32 s74, s74, 7")
            a("s_cmp_eq_u32 s78, 0"); a("s_cselect_b32 s74, s74, s10"); a("s_lshl_b32 s74, s74, 9"); a(f"s_add_u32 s74, s74, {WS_FA}")
            a("v_lshlrev_b32 v2, 3, v1")
            s.vmem("fa", "buffer_load_dwordx2 v[4:5], v2, s[44:47], s74 offen sc1")
        def fa_ck():
            s.vm_wait({"fa"})
            a("v_cmp_ne_u64 vcc, s[72:73], v[4:5]"); a("s_nop 1")
            lf = s.newlab("L_nf")
            a(f"s_cbranch_vccnz {lf}")
            a("s_lshl_b32 s74, s78, 2"); a(f"s_add_u32 s74, s74, {L_QDONE}"); s.lds_set(8, "s74", 1)
            s.label(lf)
        sched[4].append(lambda: a("s_waitcnt lgkmcnt(0)"))
        sched[tp].append(fa_ld); sched[tp + 2].insert(0, fa_ck); sched[tp + 3].append(lambda: a("s_waitcnt lgkmcnt(0)"))
        tq = s.opt.get("tq", 14)
        sched[tq] += Lq
        for t in range(2, 17):
            s.stamp(40 + t, 2)
            a("s_barrier")
            if not s.opt.get("noc"):
                for f in sched[t]: f()
        assert all(not sched[t] for t in range(17, 21))
        s.qc = qc
        a("s_add_u32 s83, s78, 2")

    def ywave(s):
        a = s.a; s.vm_reset()
        s.label("L_Yt")
        a(f"s_mul_i32 s84, s83, {CV_SZ}"); a(f"s_add_u32 s84, s84, {L_CV}"); a(f"s_add_u32 s93, s84, {H_SZ}")
        s.srd(60, 24, 2621440)
        a(f"v_mov_b32 v16, {L_EPOCH}"); a("ds_read_b32 v20, v16 offset:16"); a("ds_read_b128 v[16:19], v16")
        a("v_lshlrev_b32 v2, 3, v1")
        a("s_waitcnt lgkmcnt(0)")
        a("v_readfirstlane_b32 s14, v20")
        a("v_readfirstlane_b32 s72, v16"); a("v_readfirstlane_b32 s73, v17"); a("v_readfirstlane_b32 s99, v18")
        a("s_mul_i32 s98, s14, 3277"); a("s_lshr_b32 s98, s98, 16"); a("s_lshl_b32 s98, s98, 9"); a(f"s_add_u32 s98, s98, {WS_FA}")
        a("s_lshl_b32 s85, s14, 2"); a("s_add_u32 s85, s85, s83"); a("s_lshl_b32 s74, s85, 12")
        a(f"s_mul_i32 s100, s85, {TS}"); a(f"s_add_u32 s100, s100, {WS_KT}")
        a("s_waitcnt vmcnt(20)"); s.stamp(57, 2); a("s_barrier"); s.stamp(33, 2)
        a(f"s_cmp_lt_u32 s14, {NCONV}"); a("s_cselect_b32 s99, s99, 0")
        a("s_cmp_lg_u32 s99, 0"); a("s_cselect_b32 s101, s100, 0x7ff00000")
        a("s_cmp_lg_u32 s99, 0"); a("s_cselect_b32 s75, 0x7ff00000, s98")
        a(f"s_cmp_lt_u32 s14, {NCONV}"); a("s_cselect_b32 s75, s75, 0x7ff00000")
        a("buffer_load_dwordx2 v[4:5], v2, s[44:47], s75 offen sc1")
        nh = 0 if s.opt.get("hearly", 0) else 4
        for i in range(nh):
            a(f"buffer_load_dwordx4 v[{164+4*i}:{167+4*i}], v12, s[60:63], s74 offen offset:{i*1024} {s.nt}")
        for i in range(4):
            a(f"buffer_load_dwordx4 v[{48+4*i}:{51+4*i}], v12, s[44:47], s101 offen offset:{i*1024} sc1")
        lq = s.newlab("L_nq")
        a(f"s_waitcnt vmcnt({11 + nh})")
        a("s_cmp_lt_u32 s83, 2"); a(f"s_cbranch_scc1 {lq}")
        a(f"s_waitcnt vmcnt({5 + nh})")
        s.qc()
        s.label(lq)
        s.stamp(58, 2); a("s_barrier"); s.stamp(34, 2)
        s.u_addr(93)
        a(f"s_waitcnt vmcnt({5 + nh})"); a("s_waitcnt lgkmcnt(0)")
        s.stamp(59, 2); a("s_barrier"); s.stamp(35, 2)
        s.stamp(1)
        if s.opt.get("g1only"): a("s_branch L_fin2")
        if s.opt.get("noconv"): a("s_branch L_apart")
        lcv = s.newlab("L_cvgo")
        a(f"s_cmp_lt_u32 s14, {NCONV}"); a(f"s_cbranch_scc1 {lcv}")
        s.flagsB()
        a("s_branch L_apart")
        s.label(lcv)
        a("s_setprio 1")
        lk2 = s.newlab("L_hk")
        a("s_cmp_lg_u32 s99, 0"); a(f"s_cbranch_scc1 {lk2}")
        lk3 = s.newlab("L_hk")
        a(f"s_waitcnt vmcnt({4 + nh})")
        a("v_cmp_ne_u64 vcc, s[72:73], v[4:5]"); a("s_nop 1"); a(f"s_cbranch_vccz {lk3}")
        s.poll(4, 2, "s98")
        s.label(lk3)
        for i in range(4):
            a(f"buffer_load_dwordx4 v[{48+4*i}:{51+4*i}], v12, s[44:47], s100 offen offset:{i*1024} sc1")
        s.label(lk2)
        s.stamp(6)
        if nh:
            a("s_waitcnt vmcnt(4)")
            s.h_copies(84, 164)
        s.u_stage(48, 0)
        s.flagsB()
        s.stamp(7)
        a("v_add_u32 v13, s93, v12")
        a("v_and_b32 v2, 15, v1"); a("v_lshrrev_b32 v3, 4, v1"); a("v_and_b32 v4, 1, v2"); a("v_lshrrev_b32 v5, 1, v2")
        a(f"v_mul_u32_u24 v6, {CV_B}, v4"); a("v_lshl_add_u32 v6, v3, 4, v6"); a("v_lshl_add_u32 v6, v5, 3, v6"); a("v_add_u32 v6, s84, v6")
        a("v_lshlrev_b32 v7, 4, v3"); a("v_lshlrev_b32 v8, 6, v5"); a("v_sub_u32 v7, v7, v8"); a("v_add_u32 v7, 512, v7")
        a(f"v_mul_u32_u24 v9, {CV_U1}, v4"); a("v_add_u32 v9, s93, v9"); a("v_subrev_u32 v9, 64, v9")
        def baddr():
            a("v_lshrrev_b32 v10, 3, v7"); a("v_and_b32 v10, 32, v10"); a("v_xor_b32 v10, v10, v7"); a("v_add_u32 v10, v10, v9"); a("v_add_u32 v7, 64, v7")
        SA = (96, 160); SB = (128, 192)
        def reads(st, par):
            R = []
            for c in range(8):
                for hh in range(2):
                    R.append(f"ds_read_b64 v[{SA[st]+4*c+2*hh}:{SA[st]+4*c+2*hh+1}], v6 offset:{512*c + 8*hh + 64*par}")
                for hh in range(2):
                    R.append(f"ds_read_b64 v[{SB[st]+4*c+2*hh}:{SB[st]+4*c+2*hh+1}], v10 offset:{512*(7-c) + 8*hh}")
            return R
        def mfmas(st, full=True):
            M = []
            for aa in range(8):
                for c in (range(aa + 1) if full else [aa]):
                    b = aa - c; o = 224 + 4 * aa
                    M.append(f"v_mfma_f32_16x16x32_bf16 v[{o}:{o+3}], v[{SA[st]+4*c}:{SA[st]+4*c+3}], v[{SB[st]+4*b}:{SB[st]+4*b+3}], v[{o}:{o+3}]")
            return M
        def inter(M, R):
            a("s_waitcnt lgkmcnt(12)")
            for mi, m in enumerate(M):
                if mi == 15: a("s_waitcnt lgkmcnt(15)")
                a(m)
                if mi < len(R): a(R[mi])
        baddr()
        a("s_waitcnt lgkmcnt(0)")
        for r in reads(0, 0): a(r)
        for r in range(224, 256): a(f"v_mov_b32 v{r}, 0")
        a("s_mov_b32 s86, 0")
        s.label("L_cv")
        baddr()
        inter(mfmas(0), reads(1, 1))
        a("v_add_u32 v6, 128, v6"); baddr()
        inter(mfmas(1), reads(0, 0))
        a("s_add_u32 s86, s86, 1"); a("s_cmp_lt_u32 s86, 4"); a("s_cbranch_scc1 L_cv")
        a("s_waitcnt lgkmcnt(0)")
        for m in mfmas(0, False): a(m)
        a("v_lshlrev_b32 v8, 4, v3"); a("v_lshl_add_u32 v8, v4, 2, v8"); a("v_lshl_add_u32 v8, v5, 6, v8")
        a(f"v_sub_u32 v8, {CV_U0 + 2*(2046 - 4) - 512}, v8"); a("v_add_u32 v8, s93, v8")
        a("s_nop 4")
        for t in range(8):
            o = 224 + 4 * t
            a(f"v_cvt_pk_bf16_f32 v{16+2*t}, v{o+3}, v{o+2}")
            a(f"v_cvt_pk_bf16_f32 v{17+2*t}, v{o+1}, v{o}")
        for t in range(8):
            off = 128 if t % 2 == 0 else 0
            a(f"ds_write2_b32 v8, v{16+2*t}, v{17+2*t} offset0:{off} offset1:{off+2}")
            if t % 2 == 1 and t < 7: a("v_subrev_u32 v8, 1024, v8")
        a("s_waitcnt lgkmcnt(0)")
        for i in range(4): a(f"ds_read_b128 v[{32+4*i}:{35+4*i}], v13 offset:{CV_U0 + i*1024}")
        a(f"s_mul_i32 s74, s85, {TS}"); a(f"s_add_u32 s74, s74, {WS_YT}")
        for i in range(4):
            a(f"s_waitcnt lgkmcnt({3-i})")
            a(f"buffer_store_dwordx4 v[{32+4*i}:{35+4*i}], v12, s[44:47], s74 offen offset:{i*1024} sc1")
        s.stamp(8)
        a("s_waitcnt vmcnt(0)")
        a("s_lshl_b32 s74, s85, 3"); a(f"s_add_u32 s74, s74, {WS_FY}")
        s.write_flag(48, 74)
        a("s_setprio 0")
        s.label("L_apart")
        a("s_setprio 0")
        if s.opt.get("xh", 1): s.lds_wait(L_XH, 1, 1, 148, slp=2)
        s.stamp(9)
        a("v_min_u32 v2, 15, v1"); a("v_lshlrev_b32 v2, 3, v2")
        a("s_lshl_b32 s74, s9, 7"); a(f"s_add_u32 s74, s74, {WS_FB}")
        s.poll(4, 2, "s74")
        a("v_sub_u32 v3, 63, v1"); a("v_lshlrev_b32 v2, 2, v3")
        a("s_lshl_b32 s74, s9, 8"); a(f"s_add_u32 s74, s74, {WS_G}")
        a("buffer_load_dword v15, v2, s[44:47], s74 offen sc1")
        a("s_mul_i32 s87, s10, 80"); a("s_mul_i32 s74, s83, 20"); a("s_add_u32 s87, s87, s74")
        a(f"s_mul_i32 s88, s87, {TS}"); a("s_lshl_b32 s74, s9, 7"); a("s_sub_u32 s88, s88, s74"); a("s_add_u32 s88, s88, 3968")
        a("v_lshrrev_b32 v5, 3, v1"); a(f"v_mul_u32_u24 v5, {TS}, v5"); a("v_and_b32 v6, 7, v1"); a("v_lshl_add_u32 v5, v6, 4, v5")
        def tile_loads(base, reg):
            for i in range(3):
                a(f"s_add_u32 s74, s88, {base + i*8*TS}")
                if i == 2: a("s_mov_b32 exec_hi, 0")
                a(f"buffer_load_dwordx4 v[{reg+4*i}:{reg+4*i+3}], v5, s[44:47], s74 offen sc1")
                if i == 2: a("s_mov_b64 exec, -1")
        tile_loads(WS_KT, 16)
        a("s_lshl_b32 s74, s87, 1"); a("s_add_u32 s26, s26, s74"); a("s_addc_u32 s27, s27, 0")
        a("s_load_dwordx8 s[48:55], s[26:27], 0"); a("s_load_dwordx2 s[56:57], s[26:27], 32")
        a("v_add_u32 v13, s84, v12")
        a("v_mul_u32_u24 v7, 160, v3"); a("s_mul_i32 s74, s83, 40"); a(f"s_add_u32 s74, s74, {L_QT}"); a("v_add_u32 v7, s74, v7")
        for gq in range(5): a(f"ds_read_b64 v[{64+2*gq}:{65+2*gq}], v7 offset:{8*gq}")
        a("s_waitcnt vmcnt(0)")
        for i in range(3):
            if i == 2: a("s_mov_b32 exec_hi, 0")
            a(f"ds_write_b128 v13, v[{16+4*i}:{19+4*i}] offset:{i*1024}")
            if i == 2: a("s_mov_b64 exec, -1")
        a("v_and_b32 v8, 15, v1"); a("v_lshrrev_b32 v9, 2, v8"); a("v_lshlrev_b32 v9, 7, v9"); a("v_and_b32 v8, 3, v8"); a("v_lshl_add_u32 v9, v8, 3, v9")
        a("v_lshrrev_b32 v8, 4, v1"); a("v_lshl_add_u32 v9, v8, 5, v9"); a("v_add_u32 v9, s84, v9")
        a(f"v_add_u32 v2, {L_GF}, v2"); a("ds_write_b32 v2, v15")
        a("s_waitcnt lgkmcnt(0)")
        for gq in range(5): a(f"ds_read_b64_tr_b16 v[{74+2*gq}:{75+2*gq}], v9 offset:{512*gq}")
        for gq in range(5):
            for e in range(2):
                r = 96 + 4 * gq + 2 * e
                a(f"v_lshlrev_b32 v{r}, 16, v{64+2*gq+e}"); a(f"v_and_b32 v{r+1}, 0xffff0000, v{64+2*gq+e}")
                a(f"v_mul_f32 v{r}, v{r}, v15"); a(f"v_mul_f32 v{r+1}, v{r+1}, v15")
        a("s_waitcnt lgkmcnt(0)")
        for gq in range(5):
            for e in range(2):
                sd = 48 + 2 * gq + e; r = 120 + 4 * gq + 2 * e
                a(f"s_lshl_b32 s58, s{sd}, 16"); a(f"s_and_b32 s59, s{sd}, 0xffff0000")
                a(f"v_lshlrev_b32 v{r}, 16, v{74+2*gq+e}"); a(f"v_and_b32 v{r+1}, 0xffff0000, v{74+2*gq+e}")
                a(f"v_mul_f32 v{r}, s58, v{r}"); a(f"v_mul_f32 v{r+1}, s59, v{r+1}")
        s.lds_wait(L_XG2, 1, 1, 148, slp=2)
        a("v_min_u32 v2, 19, v1"); a("v_lshlrev_b32 v2, 3, v2")
        a("s_lshl_b32 s74, s87, 3"); a(f"s_add_u32 s74, s74, {WS_FY}")
        if not s.opt.get("noconv"): s.poll(146, 2, "s74", slp=s.opt.get("yslp", 12))
        s.stamp(10)
        tile_loads(WS_YT, 16)
        for i in range(3):
            a(f"s_waitcnt vmcnt({2-i})")
            if i == 2: a("s_mov_b32 exec_hi, 0")
            a(f"ds_write_b128 v13, v[{16+4*i}:{19+4*i}] offset:{i*1024}")
            if i == 2: a("s_mov_b64 exec, -1")
        a("s_waitcnt lgkmcnt(0)")
        for gq in range(5): a(f"ds_read_b64_tr_b16 v[{74+2*gq}:{75+2*gq}], v9 offset:{512*gq}")
        for gq in range(5):
            a("s_waitcnt lgkmcnt(4)")
            for e in range(2):
                a(f"v_lshlrev_b32 v144, 16, v{74+2*gq+e}"); a(f"v_and_b32 v145, 0xffff0000, v{74+2*gq+e}")
                a(f"v_add_f32 v144, v144, v{120+4*gq+2*e}"); a(f"v_add_f32 v145, v145, v{121+4*gq+2*e}")
                a(f"v_mul_f32 v144, v144, v{96+4*gq+2*e}"); a(f"v_mul_f32 v145, v145, v{97+4*gq+2*e}")
                a(f"v_cvt_pk_bf16_f32 v{64+2*gq+e}, v144, v145")
            a(f"ds_write_b64 v7, v[{64+2*gq}:{65+2*gq}] offset:{8*gq}")
        s.stamp(11)
        a("s_branch L_final")

    def xwave(s):
        a = s.a; s.vm_reset()
        s.label("L_X")
        a("s_setprio 2")
        a("v_mov_b32 v16, 0"); a("v_mov_b32 v17, 0"); a("v_mov_b32 v18, 0"); a("v_mov_b32 v19, 0")
        a(f"v_add_u32 v20, {L_MISC}, v12")
        a("s_mov_b64 exec, 15"); a("ds_write_b128 v20, v[16:19]"); a("s_mov_b64 exec, -1")
        a("s_lshr_b32 s74, s3, 1"); a("s_and_b32 s75, s3, 1")
        a("v_and_b32 v20, 31, v1"); a("v_lshrrev_b32 v13, 2, v20"); a("v_lshrrev_b32 v14, 1, v13"); a("v_xor_b32 v13, v13, v14"); a("v_and_b32 v13, 3, v13")
        a("v_lshrrev_b32 v14, 5, v1"); a("v_xor_b32 v15, v14, v13"); a("v_xor_b32 v16, 2, v15")
        a("v_lshlrev_b32 v17, 6, v20"); a("s_lshl_b32 s76, s74, 12"); a("v_add_u32 v17, s76, v17")
        a("v_lshl_add_u32 v5, v15, 4, v17"); a("v_lshl_add_u32 v6, v16, 4, v17")
        a("v_bfe_u32 v15, v1, 4, 1"); a("v_bfe_u32 v16, v1, 2, 2"); a("v_lshl_add_u32 v16, v14, 3, v16"); a("v_lshlrev_b32 v16, 6, v16")
        a("v_mul_u32_u24 v17, 6144, v15"); a("v_add_u32 v16, v16, v17")
        a("v_and_b32 v17, 1, v1"); a("v_lshl_add_u32 v16, v17, 4, v16"); a("v_bfe_u32 v17, v1, 1, 1"); a("v_lshl_add_u32 v16, v17, 3, v16")
        a(f"v_add_u32 v16, {L_WR}, v16")
        a("s_mul_i32 s76, s75, 3")
        for T in range(3):
            a(f"s_add_u32 s77, s76, {T}"); a("s_and_b32 s78, s77, 1"); a("s_lshr_b32 s77, s77, 1"); a("s_lshl_b32 s77, s77, 11")
            a("v_xor_b32 v17, s78, v15"); a(f"v_lshl_add_u32 v{2+T}, v17, 5, v16"); a(f"v_add_u32 v{2+T}, s77, v{2+T}")
        a("v_mov_b32 v7, v12"); a("v_add_u32 v8, 4096, v7")
        a("v_bfe_u32 v9, v1, 4, 1"); a("v_lshlrev_b32 v9, 10, v9"); a("v_lshl_add_u32 v9, v14, 8, v9"); a("v_and_b32 v17, 15, v1"); a("v_lshl_add_u32 v9, v17, 4, v9")
        for r in range(160, 256): a(f"v_mov_b32 v{r}, 0")
        touch = s.opt.get("touch", 0)
        if touch:
            lw = s.newlab("L_tw"); le = s.newlab("L_te")
            a("s_cmp_ge_u32 s3, 2"); a(f"s_cbranch_scc1 {lw}")
            s.srd(48, 16, 2621440)
            a("s_lshr_b32 s76, s4, 2"); a("s_lshl_b32 s76, s76, 6"); a("s_lshl_b32 s77, s5, 1"); a("s_add_u32 s76, s76, s77"); a("s_add_u32 s76, s76, s3")
            a(f"s_mul_i32 s98, s76, {16*1280}")
            a("v_and_b32 v92, 15, v1"); a("v_mul_u32_u24 v92, 1280, v92"); a("v_bfe_u32 v93, v1, 4, 1"); a("v_lshl_add_u32 v92, v93, 7, v92")
            a("s_mov_b32 s99, 256"); a("s_mov_b32 s100, -1")
            a(f"s_branch {le}")
            s.label(lw)
            a("s_cmp_eq_u32 s3, 2")
            a("s_cselect_b32 s48, s30, s32"); a("s_cselect_b32 s49, s31, s33"); a("s_and_b32 s49, s49, 0xffff")
            a("s_mov_b32 s50, 1966080"); a("s_mov_b32 s51, 0x20000")
            a("v_mul_u32_u24 v93, 5462, v1"); a("v_lshrrev_b32 v93, 16, v93"); a("v_mul_u32_u24 v94, 12, v93"); a("v_sub_u32 v94, v1, v94")
            a("v_cmp_lt_u32 vcc, 5, v94"); a(f"v_mul_u32_u24 v92, {64*3072}, v93"); a(f"v_mov_b32 v95, {3072 - 768}"); a("v_cndmask_b32 v95, 0, v95, vcc")
            a("v_lshl_add_u32 v92, v94, 7, v92"); a("v_add_u32 v92, v92, v95")
            a("s_and_b32 s76, s4, 3"); a("s_mul_i32 s76, s76, 768"); a(f"s_mul_i32 s77, s5, {2*3072}"); a("s_add_u32 s98, s76, s77")
            a(f"s_mov_b32 s99, {2*64*3072}"); a("s_mov_b32 s100, 0xffffff")
            s.label(le)
        def do_touch():
            a("s_mov_b32 exec_lo, s100"); a("s_mov_b32 exec_hi, 0")
            a("buffer_load_dword v93, v92, s[48:51], s98 offen")
            a("s_mov_b64 exec, -1"); a("s_add_u32 s98, s98, s99")
        tpre = s.opt.get("tpre", 2)
        if touch:
            for _ in range(tpre if touch == 2 else 5): do_touch()
        SB = (12, 52)
        def reads(st, slot):
            R = []
            for sub in range(2):
                W = []
                for T in range(3):
                    for hh in range(2):
                        r = SB[st] + 12 * sub + 4 * T + 2 * hh
                        W.append(f"ds_read_b64_tr_b16 v[{r}:{r+1}], v{2+T} offset:{slot*12288 + sub*1024 + hh*256}")
                X = [f"ds_read_b128 v[{SB[st]+24+8*sub+4*nt}:{SB[st]+24+8*sub+4*nt+3}], v{5+sub} offset:{slot*8192 + nt*2048}" for nt in range(2)]
                R += [X[0], W[0], W[1], X[1], W[2], W[3], W[4], W[5]]
            return R
        def mfmas(st):
            M = []
            for sub in range(2):
                for T in range(3):
                    for nt in range(2):
                        o = 160 + 16 * (2 * T + nt); w = SB[st] + 12 * sub + 4 * T; x = SB[st] + 24 + 8 * sub + 4 * nt
                        M.append(f"v_mfma_f32_32x32x16_bf16 v[{o}:{o+15}], v[{w}:{w+3}], v[{x}:{x+3}], v[{o}:{o+15}]")
            return M
        a("s_mov_b32 s86, 0")
        a("s_waitcnt lgkmcnt(0)")
        if s.opt.get("ctouch", 1):
            lct = s.newlab("L_ct")
            a("s_cmp_lg_u32 s3, 1"); a(f"s_cbranch_scc1 {lct}")
            a("s_getpc_b64 s[76:77]")
            s.label("L_pc")
            a(f"s_sub_u32 s76, s76, L_pc-{KN}"); a("s_subb_u32 s77, s77, 0")
            a("s_mul_i32 s78, s5, 7"); a("v_add_u32 v50, s78, v1"); a("v_lshlrev_b32 v50, 7, v50"); a(f"v_min_u32 v50, L_codeend-{KN}-4, v50")
            a("s_mov_b64 exec, 0x7f"); a("global_load_dword v51, v50, s[76:77]"); a("s_mov_b64 exec, -1")
            s.label(lct)
        a("s_barrier")
        s.kv_pre()
        a("s_waitcnt vmcnt(0)")
        a("s_barrier")
        for r in reads(0, 0): a(r)
        a("s_waitcnt lgkmcnt(0)")
        s.label("L_g1")
        for slot in range(4):
            M = mfmas(slot & 1); R = reads((slot + 1) & 1, (slot + 1) & 3)
            if s.opt.get("stamps", 0) == 2:
                a("s_memtime s[96:97]"); a(f"s_add_u32 m0, s86, {41 + slot}"); a("s_waitcnt lgkmcnt(0)"); a("v_writelane_b32 v11, s96, m0")
            a(M[0])
            if slot == 3:
                lnb = s.newlab("L_nb"); a("s_cmp_eq_u32 s86, 16"); a(f"s_cbranch_scc1 {lnb}"); a("s_barrier"); s.label(lnb)
            else: a("s_barrier")
            for i in range(5):
                for r in R[3 * i:3 * i + 3]: a(r)
                a(M[1 + i])
            a(R[15])
            if touch == 2 and slot == s.opt.get("tslot", 0):
                lt = s.newlab("L_nt")
                a(f"s_cmp_ge_u32 s86, {4 * (5 - tpre)}"); a(f"s_cbranch_scc1 {lt}"); do_touch(); s.label(lt)
            for m in M[6:]: a(m)
            a("s_waitcnt lgkmcnt(0)")
            if slot == 0:
                a("s_cmp_eq_u32 s86, 0"); a("s_cbranch_scc1 L_kv")
                s.label("L_kvret")
        a("s_add_u32 s86, s86, 4")
        a("s_cmp_lt_u32 s86, 20"); a("s_cbranch_scc1 L_g1")
        s.stamp(1)
        if s.opt.get("g1only"): a("s_branch L_fin2")
        if s.opt.get("xidle"): s.lds_set(2, L_XG2, 1); a("s_branch L_final")
        a(f"v_mov_b32 v116, {L_EPOCH}"); a("v_mov_b32 v117, 1"); a("s_mov_b64 exec, 1"); a(f"ds_add_u32 v116, v117 offset:{L_XCNT - L_EPOCH}"); a("s_mov_b64 exec, -1")
        a("ds_read_b128 v[116:119], v116"); a("s_waitcnt lgkmcnt(0)")
        a("v_readfirstlane_b32 s72, v116"); a("v_readfirstlane_b32 s73, v117"); a("v_readfirstlane_b32 s76, v119"); a("s_nop 1")
        lfa = s.newlab("L_faok")
        a("s_cmp_lg_u32 s76, 0"); a(f"s_cbranch_scc1 {lfa}")
        a("v_lshlrev_b32 v114, 3, v1")
        a("s_lshl_b32 s76, s10, 9"); a(f"s_add_u32 s76, s76, {WS_FA}")
        s.poll(112, 114, "s76")
        s.label(lfa)
        s.stamp(2)
        if s.opt.get("g2map", 0): a("s_mul_i32 s78, s11, 3"); a("s_lshr_b32 s78, s78, 1"); a("s_mul_i32 s79, s12, 3"); a("s_add_u32 s78, s78, s79")
        else: a("s_mul_i32 s78, s10, 3"); a("s_lshr_b32 s78, s78, 1"); a("s_mul_i32 s79, s13, 3"); a("s_add_u32 s78, s78, s79")
        a("s_cmp_ge_u32 s78, 12"); a("s_cselect_b32 s79, 12, 0"); a("s_sub_u32 s78, s78, s79")
        if s.opt.get("g2rot") == 0: a("s_mov_b32 s78, 0")
        a("s_mul_i32 s79, s3, 12")
        a(f"s_mul_i32 s80, s10, {48*5120}"); a(f"s_add_u32 s80, s80, {WS_WB}")
        a(f"s_mul_i32 s81, s9, {48*4096}"); a(f"s_add_u32 s81, s81, {WS_HB}")
        a("s_mul_i32 s92, s3, 20480")
        def kt_of(i, dst):
            a(f"s_add_u32 s{dst}, s78, {i}"); a(f"s_cmp_ge_u32 s{dst}, 12"); a(f"s_cselect_b32 s82, 12, 0"); a(f"s_sub_u32 s{dst}, s{dst}, s82")
            a(f"s_add_u32 s{dst}, s{dst}, s79")
        def wb_loads(i):
            kt_of(i, 83); a("s_mul_i32 s83, s83, 5120"); a("s_add_u32 s83, s83, s80")
            r = 12 + 20 * (i % 5)
            for dt in range(5):
                if dt < 4: s.vmem(("wb", i), f"buffer_load_dwordx4 v[{r+4*dt}:{r+4*dt+3}], v7, s[44:47], s83 offen offset:{dt*1024} sc1")
                else: s.vmem(("wb", i), f"buffer_load_dwordx4 v[{r+4*dt}:{r+4*dt+3}], v8, s[44:47], s83 offen sc1")
        def wb_dma(i):
            kt_of(i, 83); a("s_mul_i32 s83, s83, 5120"); a("s_add_u32 s83, s83, s80")
            a(f"s_add_u32 m0, s92, {(i - 5) * 5120}"); a("s_nop 0")
            for dt in range(4):
                s.vmem(("wd", i), f"buffer_load_dwordx4 v7, s[44:47], s83 offen offset:{dt*1024} sc1 lds")
            a(f"s_add_u32 m0, s92, {(i - 5) * 5120 + 4096}"); a("s_nop 0")
            s.vmem(("wd", i), f"buffer_load_dwordx4 v8, s[44:47], s83 offen sc1 lds")
        def wb_lds(i):
            r = 12 + 20 * (i % 5)
            for dt in range(5): a(f"ds_read_b128 v[{r+4*dt}:{r+4*dt+3}], v10 offset:{(i - 5) * 5120 + dt*1024}")
        def hb_loads(i):
            kt_of(i, 83); a("s_lshl_b32 s83, s83, 12"); a("s_add_u32 s83, s83, s81")
            r = 112 + 16 * (i % 4)
            for sb in range(4):
                s.vmem(("hb", i), f"buffer_load_dwordx4 v[{r+4*sb}:{r+4*sb+3}], v7, s[44:47], s83 offen offset:{sb*1024} {s.opt.get('hsc', 'sc1')}")
        wq = [(i, dt) for i in range(5) for dt in range(5)]
        def wb_some(n):
            for _ in range(n):
                if not wq: return
                i, dt = wq.pop(0)
                if dt == 0: kt_of(i, 98); a("s_mul_i32 s98, s98, 5120"); a("s_add_u32 s98, s98, s80")
                r = 12 + 20 * (i % 5)
                if dt < 4: s.vmem(("wb", i), f"buffer_load_dwordx4 v[{r+4*dt}:{r+4*dt+3}], v7, s[44:47], s98 offen offset:{dt*1024} sc1")
                else: s.vmem(("wb", i), f"buffer_load_dwordx4 v[{r+4*dt}:{r+4*dt+3}], v8, s[44:47], s98 offen sc1")
        wpt = s.opt.get("wpt", 1)
        wb_some(s.opt.get("npre", 0))
        a("s_mov_b32 s84, 0xbfb8aa3b"); a("s_mov_b32 s85, 0xbfb8aa3b")
        a("s_lshl_b32 s87, s6, 1"); a("s_add_u32 s87, s87, s74")
        a(f"s_mul_i32 s88, s87, {48*4096}")
        a("s_mul_i32 s89, s7, 6"); a("s_mul_i32 s90, s75, 3"); a("s_add_u32 s89, s89, s90")
        for T in range(3):
            a(f"s_add_u32 s90, s89, {T}"); a("s_and_b32 s91, s90, 1"); a("s_lshr_b32 s90, s90, 1")
            a("s_lshl_b32 s90, s90, 12"); a("s_lshl_b32 s91, s91, 9"); a("s_add_u32 s90, s90, s91"); a("s_add_u32 s90, s90, s88")
            for nt in range(2):
                ti = 2 * T + nt
                o = 160 + 16 * ti; p = 120 + 4 * ti
                if ti < s.opt.get("pkt", 0):
                    for e in range(4): a(f"v_pk_mul_f32 v[{o+2*e}:{o+2*e+1}], v[{o+2*e}:{o+2*e+1}], s[84:85]")
                    for e in range(8): a(f"v_exp_f32 v{o+e}, v{o+e}")
                    for e in range(4): a(f"v_pk_add_f32 v[{o+2*e}:{o+2*e+1}], v[{o+2*e}:{o+2*e+1}], 1.0 op_sel_hi:[1,0]")
                    for e in range(8): a(f"v_rcp_f32 v{o+e}, v{o+e}")
                    for e in range(4): a(f"v_pk_mul_f32 v[{o+2*e}:{o+2*e+1}], v[{o+2*e}:{o+2*e+1}], v[{o+8+2*e}:{o+9+2*e}]")
                else:
                    for e in range(8): a(f"v_mul_f32 v{o+e}, s84, v{o+e}")
                    for e in range(8): a(f"v_exp_f32 v{o+e}, v{o+e}")
                    for e in range(8): a(f"v_add_f32 v{o+e}, 1.0, v{o+e}")
                    for e in range(8): a(f"v_rcp_f32 v{o+e}, v{o+e}")
                    for e in range(8): a(f"v_mul_f32 v{o+e}, v{o+e}, v{o+8+e}")
                for e in range(4): a(f"v_cvt_pk_bf16_f32 v{p+e}, v{o+2*e}, v{o+2*e+1}")
                s.vmem("hst", f"buffer_store_dwordx4 v[{p}:{p+3}], v9, s[44:47], s90 offen offset:{nt*2048} sc1")
                if ti < 5: wb_some(wpt)
        a("s_setprio 0")
        s.stamp(3)
        wb_some(s.opt.get("wmid", 6))
        s.vm_wait({"hst"})
        a("s_lshl_b32 s90, s87, 8"); a("s_lshl_b32 s91, s7, 4"); a("s_add_u32 s90, s90, s91"); a("s_lshl_b32 s91, s75, 3"); a("s_add_u32 s90, s90, s91")
        a(f"s_add_u32 s90, s90, {WS_FH}")
        s.write_flag(144, 90)
        s.lds_set(2, L_XH, 1)
        s.stamp(4)
        wb_some(25)
        s.lds_wait(L_XCNT, 1, 4, 148)
        for i in range(5, 9): wb_dma(i)
        a("v_add_u32 v10, s92, v7")
        a("v_min_u32 v114, 7, v1"); a("v_lshlrev_b32 v114, 3, v114")
        a("s_lshl_b32 s90, s9, 8"); a("s_lshl_b32 s91, s3, 6"); a("s_add_u32 s90, s90, s91"); a(f"s_add_u32 s90, s90, {WS_FH}")
        s.poll(112, 114, "s90")
        s.stamp(5)
        h0 = s.opt.get("h0", 2)
        for i in range(h0): hb_loads(i)
        for i in range(12):
            if i == s.opt.get("xg2", 7): s.lds_set(2, L_XG2, 1)
            s.vm_wait({("hb", i), ("wb", i)})
            if i == 0:
                for k in range(h0, 4): hb_loads(k)
            s.stamp(16 + i, 3)
            if 5 <= i < 9: a("s_waitcnt lgkmcnt(0)")
            rw = 12 + 20 * (i % 5); rh = 112 + 16 * (i % 4)
            n = i + 4
            extra = {k: [] for k in range(20)}
            if n < 12:
                extra[0].append(lambda n=n: (kt_of(n, 83), a("s_mul_i32 s98, s83, 5120"), a("s_add_u32 s98, s98, s80"), a("s_lshl_b32 s83, s83, 12"), a("s_add_u32 s83, s83, s81")))
                for sb in range(4):
                    extra[5 * sb + 4].append(lambda n=n, sb=sb: s.vmem(("hb", n), f"buffer_load_dwordx4 v[{rh+4*sb}:{rh+4*sb+3}], v7, s[44:47], s83 offen offset:{sb*1024} sc1"))
                if n >= 5:
                    r = 12 + 20 * (n % 5)
                    for dt in range(5):
                        if n < 9: f = lambda n=n, dt=dt, r=r: a(f"ds_read_b128 v[{r+4*dt}:{r+4*dt+3}], v10 offset:{(n - 5) * 5120 + dt*1024}")
                        elif dt < 4: f = lambda n=n, dt=dt, r=r: s.vmem(("wb", n), f"buffer_load_dwordx4 v[{r+4*dt}:{r+4*dt+3}], v7, s[44:47], s98 offen offset:{dt*1024} sc1")
                        else: f = lambda n=n, dt=dt, r=r: s.vmem(("wb", n), f"buffer_load_dwordx4 v[{r+4*dt}:{r+4*dt+3}], v8, s[44:47], s98 offen sc1")
                        extra[4 * dt + 2].append(f)
            def pw(k):
                sb, dt = divmod(k, 5); o = 176 + 4 * (4 * dt + sb)
                a(f"ds_write_b128 v12, v[{o}:{o+3}] offset:{sb*5120 + dt*64}")
            if i == 11:
                extra[0].append(lambda: (a("v_and_b32 v12, 15, v1"), a("v_lshrrev_b32 v13, 4, v1"), a("v_bfe_u32 v14, v1, 1, 2"), a("v_xor_b32 v13, v13, v14")))
                extra[1].append(lambda: (a("v_mul_u32_u24 v12, 320, v12"), a("v_lshl_add_u32 v12, v13, 4, v12"), a("v_add_u32 v12, s92, v12")))
                for k in range(12): extra[k + 8].append(lambda k=k: pw(k))
            for sb in range(4):
                for dt in range(5):
                    o = 176 + 4 * (4 * dt + sb)
                    c = "0" if i == 0 else f"v[{o}:{o+3}]"
                    a(f"v_mfma_f32_16x16x32_bf16 v[{o}:{o+3}], v[{rw+4*dt}:{rw+4*dt+3}], v[{rh+4*sb}:{rh+4*sb+3}], {c}")
                    for f in extra[5 * sb + dt]: f()
        s.stamp(6)
        for k in range(12, 20):
            if k == 19: a("s_nop 0")
            pw(k)
        s.stamp(7)

    def final(s):
        a = s.a
        s.label("L_final")
        s.srd(48, 38, 2621440)
        a(f"s_mul_i32 s74, s9, {64*1280}"); a("s_mul_i32 s75, s10, 160"); a("s_add_u32 s74, s74, s75")
        def addr(n, b):
            a(f"v_mul_u32_u24 v13, 6554, v{n}"); a("v_lshrrev_b32 v13, 16, v13")
            a("v_mul_u32_u24 v14, 10, v13"); a(f"v_sub_u32 v14, v{n}, v14")
            a("v_bfe_u32 v15, v13, 1, 2"); a(f"v_lshlrev_b32 v{b}, 1, v14"); a(f"v_xor_b32 v{b}, v{b}, v15"); a(f"v_xor_b32 v{b+1}, 1, v{b}")
            a("v_mul_u32_u24 v15, 320, v13"); a(f"v_lshl_add_u32 v{b}, v{b}, 4, v15"); a(f"v_lshl_add_u32 v{b+1}, v{b+1}, 4, v15")
            a(f"v_lshlrev_b32 v{b+2}, 4, v{n}"); a(f"v_add_u32 v{b+2}, {L_QT}, v{b+2}")
            a(f"v_lshlrev_b32 v{b+3}, 2, v13"); a(f"v_add_u32 v{b+3}, {L_GF}, v{b+3}")
            a(f"v_mul_u32_u24 v{b+4}, 1120, v13"); a(f"v_lshl_add_u32 v{b+4}, v{n}, 4, v{b+4}")
        def rd(b, d):
            for w in range(4):
                a(f"ds_read_b128 v[{d+8*w}:{d+3+8*w}], v{b} offset:{w*20480}")
                a(f"ds_read_b128 v[{d+4+8*w}:{d+7+8*w}], v{b+1} offset:{w*20480}")
            a(f"ds_read_b128 v[{d+32}:{d+35}], v{b+2}"); a(f"ds_read_b32 v{d+36}, v{b+3}")
        def comp(b, d):
            for e in range(4):
                a(f"v_pk_add_f32 v[{d+2*e}:{d+1+2*e}], v[{d+2*e}:{d+1+2*e}], v[{d+8+2*e}:{d+9+2*e}]")
                a(f"v_pk_add_f32 v[{d+16+2*e}:{d+17+2*e}], v[{d+16+2*e}:{d+17+2*e}], v[{d+24+2*e}:{d+25+2*e}]")
            a(f"v_sub_f32 v{d+36}, 1.0, v{d+36}"); a(f"v_cvt_pk_bf16_f32 v{d+36}, v{d+36}, v{d+36}"); a(f"v_and_b32 v{d+36}, 0xffff0000, v{d+36}")
            for e in range(4):
                a(f"v_pk_add_f32 v[{d+2*e}:{d+1+2*e}], v[{d+2*e}:{d+1+2*e}], v[{d+16+2*e}:{d+17+2*e}]")
            for e in range(4):
                a(f"v_lshlrev_b32 v{d+8+2*e}, 16, v{d+32+e}"); a(f"v_and_b32 v{d+9+2*e}, 0xffff0000, v{d+32+e}")
                a(f"v_pk_fma_f32 v[{d+8+2*e}:{d+9+2*e}], v[{d+2*e}:{d+1+2*e}], v[{d+36}:{d+37}], v[{d+8+2*e}:{d+9+2*e}] op_sel_hi:[1,0,1]")
            for e in range(4): a(f"v_cvt_pk_bf16_f32 v{d+32+e}, v{d+8+2*e}, v{d+9+2*e}")
            a(f"buffer_store_dwordx4 v[{d+32}:{d+35}], v{b+4}, s[48:51], s74 offen {s.opt.get('ost', '')}")
        addr(0, 16)
        a("s_lshl_b32 s75, s3, 4"); a("s_add_u32 s75, s75, 512"); a("v_and_b32 v12, 15, v1"); a("v_add_u32 v12, s75, v12")
        addr(12, 24)
        a("s_waitcnt lgkmcnt(0)"); a("s_barrier")
        s.stamp(12)
        rd(16, 32)
        a("s_mov_b64 exec, 0xffff");
        rd(24, 72)
        a("s_mov_b64 exec, -1")
        a("s_waitcnt lgkmcnt(10)")
        comp(16, 32)
        a("s_waitcnt lgkmcnt(0)")
        a("s_mov_b64 exec, 0xffff")
        comp(24, 72)
        a("s_mov_b64 exec, -1")
        s.label("L_fin2")
        if s.opt.get("stamps"):
            s.stamp(13)
            a("s_waitcnt vmcnt(0)")
            s.stamp(14)
            a("s_memrealtime s[96:97]"); a("s_waitcnt lgkmcnt(0)"); a("v_writelane_b32 v11, s96, 15")
            a("s_lshl_b32 s74, s2, 3"); a("s_add_u32 s74, s74, s3"); a("s_lshl_b32 s74, s74, 8"); a(f"s_add_u32 s74, s74, {WS_STAMP}")
            a("v_lshlrev_b32 v12, 2, v1")
            a("buffer_store_dword v11, v12, s[44:47], s74 offen")
            if s.opt.get("dbgout"):
                ld = s.newlab("L_dbo")
                a("s_cmp_lg_u32 s2, 9"); a(f"s_cbranch_scc1 {ld}"); a("s_cmp_lg_u32 s3, 0"); a(f"s_cbranch_scc1 {ld}")
                s.srd(64, 40, 256)
                a("v_readlane_b32 s74, v11, 0"); a("s_nop 1"); a("v_subrev_u32 v11, s74, v11")
                a("v_add_u32 v12, 4, v12")
                a("s_mov_b64 exec, 0x7ffe"); a("buffer_store_dword v11, v12, s[64:67], 0 offen"); a("s_mov_b64 exec, -1")
                s.label(ld)
        s.label("L_end")
        a("s_endpgm")

    def kv_pre(s):
        a = s.a
        a("v_mul_u32_u24 v90, 3277, v1"); a("v_lshrrev_b32 v90, 16, v90"); a("v_mul_u32_u24 v91, 20, v90"); a("v_sub_u32 v91, v1, v91")
        a(f"s_mul_i32 s76, s74, {CV_SZ}"); a(f"s_add_u32 s76, s76, {L_CV + 2*CV_SZ}")
        a("v_lshlrev_b32 v95, 5, v91"); a("v_add_u32 v95, s76, v95")
        a(f"s_mul_i32 s77, s75, {16*192}"); a("s_add_u32 s76, s76, s77"); a("s_and_b32 s77, s10, 1"); a("s_lshl_b32 s77, s77, 5"); a("s_add_u32 s76, s76, s77")
        a(f"v_mul_u32_u24 v10, {6*192}, v90"); a("v_lshl_add_u32 v10, v91, 3, v10"); a("v_add_u32 v10, s76, v10")
        a("s_lshl_b32 s77, s3, 3"); a("v_mul_u32_u24 v85, 3, v90"); a("v_add_u32 v85, s77, v85"); a("v_and_b32 v86, 7, v91")
        for m in range(3):
            a(f"v_sub_u32 v87, {29+m}, v85"); a("v_lshrrev_b32 v88, 2, v87"); a("v_xor_b32 v88, v88, v86"); a("v_lshlrev_b32 v88, 4, v88")
            a("v_and_b32 v87, 3, v87"); a("v_lshl_add_u32 v88, v87, 2, v88"); a(f"v_lshl_add_u32 v{92+m}, v91, 7, v88")
            a(f"v_add_u32 v{92+m}, {L_T}, v{92+m}")
    def kv_main(s):
        a = s.a
        s.label("L_kv")
        a("s_barrier")
        s.stamp(8)
        a(f"ds_read_b128 v[42:45], v95 offset:{SC_SHK}"); a(f"ds_read_b128 v[46:49], v95 offset:{SC_SHK + 16}")
        for i in range(9): a(f"ds_read_b64 v[{12+2*i}:{13+2*i}], v10 offset:{SC_K + 192*i}")
        a("s_waitcnt lgkmcnt(9)")
        for i in range(6): a(f"ds_read_b64 v[{30+2*i}:{31+2*i}], v10 offset:{SC_V + 192*i}")
        for e in range(4):
            a(f"v_lshlrev_b32 v{96+e}, 16, v{42+2*e}"); a(f"v_and_b32 v{100+e}, 0xffff0000, v{42+2*e}")
            a(f"v_lshlrev_b32 v{104+e}, 16, v{43+2*e}"); a(f"v_and_b32 v{108+e}, 0xffff0000, v{43+2*e}")
        a("s_waitcnt lgkmcnt(0)")
        s.ex(60)
        for d in range(2):
            for i in range(9):
                a(f"v_lshlrev_b32 v{112+2*i}, 16, v{12+2*i+d}"); a(f"v_and_b32 v{113+2*i}, 0xffff0000, v{12+2*i+d}")
            for i in range(6):
                a(f"v_lshlrev_b32 v{130+2*i}, 16, v{30+2*i+d}"); a(f"v_and_b32 v{131+2*i}, 0xffff0000, v{30+2*i+d}")
            for r in range(6):
                a(f"v_pk_mul_f32 v[{142+2*r}:{143+2*r}], v[{112+2*r}:{113+2*r}], v[{108+2*d}:{109+2*d}]")
            for j in (2, 1, 0):
                for r in range(6):
                    k = 112 + 2 * (r + 3 - j); w = 96 + 4 * j + 2 * d
                    a(f"v_pk_fma_f32 v[{142+2*r}:{143+2*r}], v[{k}:{k+1}], v[{w}:{w+1}], v[{142+2*r}:{143+2*r}]")
            for r in range(6):
                a(f"v_pk_mul_f32 v[{142+2*r}:{143+2*r}], v[{142+2*r}:{143+2*r}], v[{130+2*r}:{131+2*r}]")
            for e in range(2):
                for m in range(3):
                    hi = 4 - 2 * m
                    a(f"v_cvt_pk_bf16_f32 v{154+3*e+m}, v{142+2*(hi+1)+e}, v{142+2*hi+e}")
            for m in (1, 2, 0):
                if m == 0: a("s_mov_b32 exec_hi, 0xff")
                for e in range(2):
                    a(f"ds_write_b32 v{92+m}, v{154+3*e+m} offset:{(2*d+e)*2560}")
            a("s_mov_b32 exec_hi, 0xfffffff")
        a("s_mov_b64 exec, -1")
        s.stamp(9)
        a("s_branch L_kvret")
        s.label("L_codeend")

    def build(s):
        s.kvt = s.opt.get("kvt", 6)
        s.nt = "nt" if s.opt.get("nt", 1) else ""
        hdr = open("gated_mix__ssm_conv_h3__glu_gated_glu__prompt.s.ref").read().split("; Override launch")[0]
        out = hdr + f"; @launch grid=(256,1,1) block=(512,1,1) lds={LDS_TOTAL}\n"
        out += '.amdgcn_target "amdgcn-amd-amdhsa--gfx950"\n.text\n' + f".globl {KN}\n.p2align 8\n.type {KN},@function\n{KN}:\n"
        s.prologue(); s.loader(); s.chore(); s.ywave(); s.xwave(); s.final(); s.kv_main()
        out += "\n".join(s.L) + "\n"
        out += f""".section .rodata,"a"
.p2align 6
.amdhsa_kernel {KN}
  .amdhsa_next_free_vgpr 256
  .amdhsa_next_free_sgpr 102
  .amdhsa_accum_offset 256
  .amdhsa_group_segment_fixed_size 0
  .amdhsa_kernarg_size 112
  .amdhsa_user_sgpr_count 2
  .amdhsa_user_sgpr_kernarg_segment_ptr 1
  .amdhsa_system_sgpr_workgroup_id_x 1
.end_amdhsa_kernel
"""
        return out

if __name__ == "__main__":
    opt = {}
    outp = sys.argv[1]
    for x in sys.argv[2:]:
        k, v = x.split("=")
        if "," in v: opt[k] = tuple(int(z) for z in v.split(","))
        else:
            try: opt[k] = int(v)
            except ValueError: opt[k] = v
    open(outp, "w").write(Gen(opt).build())
```

```python
import sys
KN = "gated_mix__ssm_conv_h3__glu_gated_glu__prompt_kernel"

WS_HB = 0x000000; WS_WB = 0x610000; HBS = 48*4096 + 128; WBS = 48*5120 + 128; WS_KT = 0x800000; WS_YT = 0xB00000
WS_G = 0xE00000; WS_FA = 0xE10000; WS_FB = 0xE12000; WS_FH = 0xE14000; WS_FY = 0xE16000
WS_STAMP = 0xF00000
TS = 4224
L_XR = 0; L_WR = 32768; L_CV = 81920; CV_SZ = 17728; H_SZ = 8448; L_QT = 152832; L_MISC = 163072; LDS_TOTAL = 163840
CV_A = 0; CV_B = 4224; CV_U0 = 0; CV_U1 = 4616
L_FULL = L_MISC; L_FREE = L_MISC + 16; L_EPOCH = L_MISC + 32; L_QDONE = L_MISC + 40; L_SDONE = L_MISC + 48; L_XG2 = L_MISC + 56; L_XH = L_MISC + 60; L_XCNT = L_MISC + 52; L_GF = L_MISC + 256
SC_K = 0; SC_V = 6720; SC_SHK = 13440; L_T = L_CV; L_WDS = L_CV + CV_SZ
SPIN_MAX = 30000
NCONV = 160

class Gen:
    def __init__(s, opt):
        s.L = []; s.opt = opt; s.vm = []; s.lab = 0; s.vstamp = 11
    def a(s, x): s.L.append("    " + x)
    def label(s, x): s.L.append(x + ":")
    def newlab(s, p="L"):
        s.lab += 1; return f"{p}_{s.lab}"
    def vm_reset(s): s.vm = []
    def vmem(s, tag, ins): s.a(ins); s.vm.append(tag)
    def vm_wait(s, tags):
        idx = -1
        for i, t in enumerate(s.vm):
            if t in tags: idx = i
        if idx < 0: return
        n = len(s.vm) - 1 - idx
        assert n <= 63
        s.a(f"s_waitcnt vmcnt({n})")
        s.vm = s.vm[idx + 1:]
    def vm_wait_all(s):
        s.a("s_waitcnt vmcnt(0)"); s.vm = []
    def ex(s, n):
        if n >= 64: s.a("s_mov_b64 exec, -1")
        elif n > 32: s.a("s_mov_b32 exec_lo, -1"); s.a(f"s_mov_b32 exec_hi, {hex((1 << (n - 32)) - 1)}")
        elif n == 32: s.a("s_mov_b32 exec_hi, 0")
        else: s.a(f"s_mov_b32 exec_lo, {hex((1 << n) - 1)}"); s.a("s_mov_b32 exec_hi, 0")
    def srd(s, d, p, nbytes):
        s.a(f"s_mov_b32 s{d}, s{p}"); s.a(f"s_and_b32 s{d+1}, s{p+1}, 0xffff")
        s.a(f"s_mov_b32 s{d+2}, {nbytes}"); s.a(f"s_mov_b32 s{d+3}, 0x20000")
    def stamp(s, idx, lvl=1):
        if s.opt.get("stamps", 0) >= 1 and (lvl == 1 or s.opt.get("stamps", 0) == lvl):
            s.a("s_memtime s[96:97]"); s.a("s_waitcnt lgkmcnt(0)")
            s.a(f"v_writelane_b32 v{s.vstamp}, s96, {idx}")
    def poll(s, vflag, voff, soff, scnt=94, slp=None):
        l0 = s.newlab("L_poll"); l1 = s.newlab("L_pdone")
        s.a(f"s_mov_b32 s{scnt}, {SPIN_MAX}")
        s.label(l0)
        s.a(f"buffer_load_dwordx2 v[{vflag}:{vflag+1}], v{voff}, s[44:47], {soff} offen sc1")
        s.a("s_waitcnt vmcnt(0)")
        s.a(f"v_cmp_ne_u64 vcc, s[72:73], v[{vflag}:{vflag+1}]")
        s.a("s_nop 1")
        s.a(f"s_cbranch_vccz {l1}")
        slp = s.opt.get("slp", 4) if slp is None else slp
        if slp: s.a(f"s_sleep {slp}")
        s.a(f"s_sub_u32 s{scnt}, s{scnt}, 1")
        s.a(f"s_cbranch_scc0 {l0}")
        s.label(l1)
        s.vm = []
    def lds_wait(s, addr, nw, need, vt, scache=None, scnt=94, slp=0):
        a = s.a
        sc = scache if scache is not None else 95
        l0 = s.newlab("L_lw"); l1 = s.newlab("L_lwd")
        if scache is not None:
            a(f"s_cmp_ge_u32 s{sc}, {need}"); a(f"s_cbranch_scc1 {l1}")
        a(f"s_mov_b32 s{scnt}, {SPIN_MAX * 8}")
        a(f"v_mov_b32 v{vt+4}, {addr}")
        s.label(l0)
        if nw == 1: a(f"ds_read_b32 v{vt}, v{vt+4}")
        elif nw == 2: a(f"ds_read_b64 v[{vt}:{vt+1}], v{vt+4}")
        else: a(f"ds_read_b128 v[{vt}:{vt+3}], v{vt+4}")
        a("s_waitcnt lgkmcnt(0)")
        if nw == 2: a(f"v_min_u32 v{vt}, v{vt}, v{vt+1}")
        if nw == 4: a(f"v_min_u32 v{vt}, v{vt}, v{vt+1}"); a(f"v_min3_u32 v{vt}, v{vt}, v{vt+2}, v{vt+3}")
        a("s_nop 0")
        a(f"v_readfirstlane_b32 s{sc}, v{vt}")
        a("s_nop 1")
        a(f"s_cmp_ge_u32 s{sc}, {need}"); a(f"s_cbranch_scc1 {l1}")
        if slp: a(f"s_sleep {slp}")
        a(f"s_sub_u32 s{scnt}, s{scnt}, 1"); a(f"s_cbranch_scc0 {l0}")
        s.label(l1)
    def read_epoch(s, vt):
        a = s.a; l0 = s.newlab("L_re"); l1 = s.newlab("L_red")
        a(f"s_mov_b32 s94, {SPIN_MAX * 8}"); a(f"v_mov_b32 v{vt+2}, {L_EPOCH}")
        s.label(l0)
        a(f"ds_read_b64 v[{vt}:{vt+1}], v{vt+2}")
        a("s_waitcnt lgkmcnt(0)")
        a(f"v_readfirstlane_b32 s72, v{vt}"); a(f"v_readfirstlane_b32 s73, v{vt+1}"); a("s_nop 1")
        a("s_cmp_lg_u32 s73, 0"); a(f"s_cbranch_scc1 {l1}")
        a("s_sub_u32 s94, s94, 1"); a(f"s_cbranch_scc0 {l0}")
        s.label(l1)
    def write_flag(s, vt, sreg):
        s.a(f"v_mov_b32 v{vt}, s72"); s.a(f"v_mov_b32 v{vt+1}, s73"); s.a(f"v_mov_b32 v{vt+2}, 0")
        s.a("s_mov_b64 exec, 1")
        s.vmem("flag", f"buffer_store_dwordx2 v[{vt}:{vt+1}], v{vt+2}, s[44:47], s{sreg} offen sc1")
        s.a("s_mov_b64 exec, -1")
    def lds_set(s, vt, addr_sreg_or_const, val):
        s.a(f"v_mov_b32 v{vt}, {addr_sreg_or_const}"); s.a(f"v_mov_b32 v{vt+1}, {val}"); s.a(f"ds_write_b32 v{vt}, v{vt+1}")

    def prologue(s):
        a = s.a
        a("s_cmp_ge_u32 s2, 256"); a("s_cbranch_scc1 L_end")
        a("s_load_dwordx16 s[16:31], s[0:1], 0")
        a("s_load_dwordx8 s[32:39], s[0:1], 64")
        a("s_load_dwordx4 s[40:43], s[0:1], 96")
        a("v_lshrrev_b32 v2, 6, v0")
        a("v_and_b32 v1, 63, v0")
        a("v_readfirstlane_b32 s3, v2")
        a("s_and_b32 s4, s2, 7"); a("s_lshr_b32 s5, s2, 3")
        a("s_lshr_b32 s6, s4, 2"); a("s_lshl_b32 s6, s6, 3"); a("s_and_b32 s11, s5, 7"); a("s_add_u32 s6, s6, s11")
        a("s_and_b32 s7, s4, 3"); a("s_lshl_b32 s7, s7, 2"); a("s_lshr_b32 s12, s5, 3"); a("s_add_u32 s7, s7, s12")
        a("s_lshl_b32 s8, s12, 1"); a("s_add_u32 s8, s8, s11"); a("s_and_b32 s8, s8, 7")
        if s.opt.get("g2map", 0):
            a("s_lshr_b32 s9, s4, 1"); a("s_lshl_b32 s9, s9, 3"); a("s_add_u32 s9, s9, s11")
            a("s_and_b32 s10, s4, 1"); a("s_lshl_b32 s10, s10, 2"); a("s_add_u32 s10, s10, s12")
        else:
            a("s_lshl_b32 s9, s4, 2"); a("s_and_b32 s13, s5, 3"); a("s_add_u32 s9, s9, s13"); a("s_lshr_b32 s10, s5, 2")
        if s.opt.get("cmap", 0):
            a("s_mul_i32 s14, s5, 5"); a("s_add_u32 s14, s14, s4"); a("s_cmp_lt_u32 s4, 5"); a("s_cselect_b32 s14, s14, 255")
        else: a("s_mov_b32 s14, s2")
        if s.opt.get("stamps"): a("v_mov_b32 v11, 0")
        a("v_lshlrev_b32 v12, 4, v1")
        a("s_waitcnt lgkmcnt(0)")
        s.srd(44, 42, 0x10000000)
        s.stamp(0)
        if s.opt.get("stamps"):
            a("s_memrealtime s[96:97]"); a("s_waitcnt lgkmcnt(0)"); a("v_writelane_b32 v11, s96, 62")
        a("s_cmp_lt_u32 s3, 4"); a("s_cbranch_scc1 L_X")
        a("s_cmp_ge_u32 s3, 6"); a("s_cbranch_scc1 L_C")

    def loader(s):
        a = s.a; s.vm_reset()
        s.label("L_L")
        a(f"s_setprio {s.opt.get('lprio', 3)}")
        a("s_sub_u32 s74, s3, 4")
        s.srd(48, 16, 2621440)
        a("s_cmp_eq_u32 s74, 0")
        a("s_cselect_b32 s52, s30, s32"); a("s_cselect_b32 s53, s31, s33"); a("s_and_b32 s53, s53, 0xffff")
        a("s_mov_b32 s54, 1966080"); a("s_mov_b32 s55, 0x20000")
        a("v_lshrrev_b32 v4, 2, v1"); a("v_mul_u32_u24 v2, 3072, v4")
        a("s_lshl_b32 s75, s74, 1"); a("v_and_b32 v5, 3, v1"); a("v_xor_b32 v6, s75, v5"); a("v_lshl_add_u32 v2, v6, 4, v2")
        a("s_mul_i32 s75, s7, 192"); a("v_add_u32 v2, s75, v2")
        a("v_mul_u32_u24 v3, 1280, v4")
        a("v_lshrrev_b32 v6, 4, v1"); a("s_lshl_b32 s75, s74, 2"); a("v_add_u32 v6, s75, v6")
        a("v_lshrrev_b32 v7, 1, v6"); a("v_xor_b32 v6, v6, v7"); a("v_and_b32 v6, 3, v6"); a("v_xor_b32 v6, v6, v5")
        a("v_lshl_add_u32 v3, v6, 4, v3")
        a("s_lshl_b32 s75, s6, 3"); a("s_add_u32 s75, s75, s74"); a(f"s_mul_i32 s75, s75, {16*1280}"); a("v_add_u32 v3, s75, v3")
        a("s_lshl_b32 s78, s74, 10")
        a(f"s_mul_i32 s79, s74, 6144"); a(f"s_add_u32 s79, s79, {L_WR}")
        groups = s.opt.get("groups", (1,) * 10)
        if s.opt.get("cyc", 1): a("s_mul_i32 s8, s8, 5"); a("s_lshr_b32 s8, s8, 2")
        def dsel(D):
            if s.opt.get("cyc", 1):
                a(f"s_add_u32 s80, s8, {D}"); a("s_cmp_ge_u32 s80, 10"); a("s_cselect_b32 s15, 10, 0"); a("s_sub_u32 s80, s80, s15")
                return
            b = 0
            for g in groups:
                if D < b + g: break
                b += g
            if g == 1: a(f"s_mov_b32 s80, {D}"); return
            assert g in (2, 4, 8)
            src = "s8" if g == 8 else ("s14" if g == 4 else "s15")
            a(f"s_add_u32 s80, {src}, {D - b}"); a(f"s_and_b32 s80, s80, {g - 1}")
            if b: a(f"s_add_u32 s80, s80, {b}")
        def issue_x(D):
            dsel(D); a("s_lshl_b32 s81, s80, 7")
            for gi in range(4):
                for h in range(2):
                    t = 2 * D + h
                    a(f"s_add_u32 m0, s78, {L_XR + (t & 3) * 8192 + gi * 2048}")
                    a(f"s_add_u32 s82, s81, {gi * 32 * 1280 + h * 64}")
                    s.vmem(("x", t), f"buffer_load_dwordx4 v3, s[48:51], s82 offen lds")
        def issue_w(t):
            dsel(t >> 1); a(f"s_mul_i32 s81, s80, {64*3072}")
            for rh in range(2):
                for pc in range(3):
                    a(f"s_add_u32 m0, s79, {(t & 3) * 12288 + pc * 2048 + rh * 1024}")
                    a(f"s_add_u32 s82, s81, {(32 * (t & 1) + 16 * rh) * 3072 + pc * 64}")
                    s.vmem(("w", t), f"buffer_load_dwordx4 v2, s[52:55], s82 offen lds")
        def publish(t):
            s.vm_wait({("x", t), ("w", t), ("x", t | 1)})
            s.stamp(40 + t, 2)
            a("s_barrier")
            s.stamp(16 + t, 2)
        issue_w(0); issue_x(0); issue_w(1)
        a("s_barrier")
        publish(0); publish(1)
        if s.opt.get("rtouch", 2):
            a("s_barrier")
            issue_x(1); issue_w(2)
        else:
            issue_x(1); issue_w(2)
            a("s_barrier")
        issue_w(3)
        hold = -5
        pend = []
        for n in range(1, 17):
            if n % 2 == 0 and n + 2 < 20: pend.append(lambda n=n: issue_x((n + 2) // 2))
            if n + 3 < 20: pend.append(lambda n=n: issue_w(n + 3))
            if n != hold:
                for f in pend: f()
                pend = []
            if n < 16: publish(n + 1)
        a("s_mov_b32 s83, s74")
        a("s_branch L_Yt")

    def row_loads(s, srd, nrows, vfirst, vrest, reg, tag, nt):
        a = s.a
        for i in range((nrows + 4) // 5):
            n = min(5, nrows - 5 * i)
            if i == 0 or n < 5: s.ex(12 * n)
            r = reg + 4 * i
            if i == 0: s.vmem(tag, f"buffer_load_dwordx4 v[{r}:{r+3}], v{vfirst}, s[{srd}:{srd+3}], 0 offen {nt}")
            else:
                a(f"s_mov_b32 s77, {6400*(i-1)}")
                s.vmem(tag, f"buffer_load_dwordx4 v[{r}:{r+3}], v{vrest}, s[{srd}:{srd+3}], s77 offen {nt}")
        a("s_mov_b64 exec, -1")
    def dma_rows(s, srd, nrows, vfirst, vrest, ldsbase_s, ldsoff, tag, nt):
        a = s.a
        for i in range((nrows + 4) // 5):
            a(f"s_add_u32 m0, s{ldsbase_s}, {ldsoff + 960*i}")
            n = min(5, nrows - 5 * i)
            if i == 0 or n < 5: s.ex(12 * n)
            if i == 0: s.vmem(tag, f"buffer_load_dwordx4 v{vfirst}, s[{srd}:{srd+3}], 0 offen {nt} lds")
            else:
                a(f"s_mov_b32 s77, {6400*(i-1)}")
                s.vmem(tag, f"buffer_load_dwordx4 v{vrest}, s[{srd}:{srd+3}], s77 offen {nt} lds")
        a("s_mov_b64 exec, -1")
    def img_write(s, sbase, off, n, reg):
        a = s.a
        a(f"v_add_u32 v13, s{sbase}, v12"); s.ex(60)
        for i in range(n): a(f"ds_write_b128 v13, v[{reg+4*i}:{reg+4*i+3}] offset:{off + 960*i}")
        a("s_mov_b64 exec, -1")
    def h_copies(s, sbase, reg, half=None):
        a = s.a
        a(f"v_add_u32 v13, s{sbase}, v12")
        for i in (range(4) if half is None else range(2 * half, 2 * half + 2)):
            r = reg + 4 * i
            if i == 0: a("v_mov_b32 v234, 0")
            else:
                a(f"v_readlane_b32 s74, v{r-1}, 63"); a("s_nop 1"); a("v_mov_b32 v234, s74")
            a("s_nop 1")
            a(f"v_mov_b32_dpp v234, v{r+3} wave_shr:1 row_mask:0xf bank_mask:0xf")
            a(f"ds_write_b128 v13, v[{r}:{r+3}] offset:{CV_B + 64 + i*1024}")
            a(f"v_alignbit_b32 v236, v{r}, v234, 16")
            a(f"v_alignbit_b32 v237, v{r+1}, v{r}, 16")
            a(f"v_alignbit_b32 v238, v{r+2}, v{r+1}, 16")
            a(f"v_alignbit_b32 v239, v{r+3}, v{r+2}, 16")
            a(f"ds_write_b128 v13, v[236:239] offset:{CV_A + 64 + i*1024}")
        if half == 0: return
        a("v_lshrrev_b32 v234, 2, v1"); a("v_and_b32 v235, 1, v234"); a("v_mul_u32_u24 v235, 4160, v235")
        a("v_lshrrev_b32 v234, 1, v234"); a(f"v_mul_u32_u24 v234, {CV_B}, v234"); a("v_add_u32 v235, v235, v234")
        a("v_and_b32 v234, 3, v1"); a("v_lshl_add_u32 v235, v234, 4, v235"); a(f"v_add_u32 v235, s{sbase}, v235")
        for r in range(236, 240): a(f"v_mov_b32 v{r}, 0")
        s.ex(16)
        a("ds_write_b128 v235, v[236:239]")
        a("s_mov_b64 exec, -1")
    def u_addr(s, sbase):
        a = s.a
        def swz(dst, off):
            a(f"v_add_u32 v{dst}, {off}, v12"); a(f"v_lshrrev_b32 v41, 3, v{dst}"); a("v_and_b32 v41, 32, v41"); a(f"v_xor_b32 v{dst}, v{dst}, v41")
            a(f"v_add_u32 v{dst}, s{sbase}, v{dst}"); a(f"v_subrev_u32 v{dst}, 64, v{dst}")
        swz(14, 68); swz(15, 80); swz(40, 72)
        a(f"v_add_u32 v13, s{sbase}, v12")
        for r in range(32, 36): a(f"v_mov_b32 v{r}, 0")
        s.ex(34); a("ds_write_b128 v13, v[32:35] offset:4096")
        s.ex(33); a(f"ds_write_b128 v13, v[32:35] offset:{CV_U1 + 4096 - 8}")
        a("s_mov_b64 exec, 1"); a("ds_write_b128 v13, v[32:35]")
        a("s_mov_b64 exec, -1")
    def u_stage(s, reg, nwait0):
        a = s.a
        for i in range(4):
            a(f"s_waitcnt vmcnt({nwait0 + 3 - i})")
            r = reg + 4 * i
            a(f"ds_write_b64 v40, v[{r}:{r+1}] offset:{CV_U1 + i*1024}")
            a(f"ds_write_b64 v15, v[{r+2}:{r+3}] offset:{CV_U1 + i*1024}")
            a(f"ds_write_b64 v14, v[{r}:{r+1}] offset:{i*1024}") if False else None
            a(f"ds_write_b32 v14, v{r} offset:{i*1024}")
            a(f"ds_write_b64 v14, v[{r+1}:{r+2}] offset:{i*1024 + 4}") if False else None
            a(f"ds_write_b32 v14, v{r+1} offset:{i*1024 + 4}")
            a(f"ds_write_b32 v14, v{r+2} offset:{i*1024 + 8}")
            a(f"ds_write_b32 v15, v{r+3} offset:{i*1024}")

    def chore(s):
        a = s.a; s.vm_reset(); nt = s.nt
        s.label("L_C")
        a(f"s_setprio {s.opt.get('cprio', 2)}")
        a("s_sub_u32 s78, s3, 6")
        a(f"s_mul_i32 s79, s78, {CV_SZ}"); a(f"s_add_u32 s79, s79, {L_CV}")
        a(f"s_add_u32 s84, s79, {2*CV_SZ}")
        a("s_mul_i32 s93, s78, 4800"); a(f"s_add_u32 s93, s93, {L_WDS}")
        s.srd(64, 40, 256)
        l = s.newlab("L_noep")
        a("s_cmp_lg_u32 s2, 0"); a(f"s_cbranch_scc1 {l}"); a("s_cmp_lg_u32 s78, 0"); a(f"s_cbranch_scc1 {l}")
        a("s_memrealtime s[74:75]"); a("s_waitcnt lgkmcnt(0)"); a("s_or_b32 s75, s75, 0x40000000")
        a("v_mov_b32 v2, s74"); a("v_mov_b32 v3, s75"); a("v_mov_b32 v4, 0")
        a("s_mov_b64 exec, 1"); a("buffer_store_dwordx2 v[2:3], v4, s[64:67], 0 offen sc1"); a("s_mov_b64 exec, -1")
        s.label(l)
        s.srd(48, 18, 2621440); s.srd(52, 20, 2621440); s.srd(56, 22, 5120); s.srd(60, 24, 2621440)
        s.srd(68, 16, 2621440); s.srd(88, 34, 1966080)
        a("s_and_b32 s85, s10, 1"); a("s_lshl_b32 s85, s85, 5")
        a("s_mul_i32 s80, s10, 160"); a("s_sub_u32 s80, s80, s85")
        a("s_lshl_b32 s81, s9, 6"); a("s_lshl_b32 s74, s78, 5"); a("s_add_u32 s81, s81, s74")
        a("v_mul_u32_u24 v4, 5462, v1"); a("v_lshrrev_b32 v4, 16, v4")
        a("v_mul_u32_u24 v5, 12, v4"); a("v_sub_u32 v5, v1, v5")
        a("v_mul_u32_u24 v6, 1280, v4"); a("v_lshl_add_u32 v6, v5, 4, v6"); a("v_add_u32 v6, s80, v6")
        a("s_mul_i32 s74, s9, 48"); a("s_mul_i32 s75, s78, 24"); a("s_add_u32 s74, s74, s75"); a("s_mul_i32 s74, s74, 1280")
        a("v_add_u32 v16, s74, v6"); a("v_add_u32 v17, 6400, v16")
        a("s_mul_i32 s74, s81, 1280")
        a("v_add_u32 v20, s74, v6"); a("v_add_u32 v21, 6400, v20")
        a(f"v_subrev_u32 v18, {3*1280}, v20"); a("v_add_u32 v19, 6400, v18")
        a("v_mov_b32 v23, 0"); a("v_mov_b32 v37, 1")
        if s.opt.get("ticket", 0):
            lt = s.newlab("L_tk")
            a("s_cmp_eq_u32 s78, 0"); a(f"s_cbranch_scc1 {lt}")
            a("s_mov_b64 exec, 1"); a("buffer_atomic_add v37, v23, s[64:67], 0 offen offset:64 sc0"); a("s_mov_b64 exec, -1")
            s.label(lt)
        elif s.opt.get("cmap", 0):
            a("s_mul_i32 s74, s5, 5"); a("s_add_u32 s74, s74, s4"); a("s_cmp_lt_u32 s4, 5"); a("s_cselect_b32 s74, s74, 255"); a("v_mov_b32 v37, s74")
        else: a("v_mov_b32 v37, s2")
        a("s_barrier")
        s.dma_rows(48, 35, 18, 19, 84, SC_K, "k", nt)
        s.dma_rows(52, 32, 20, 21, 84, SC_V, "k", nt)
        a("s_mul_i32 s75, s10, 640"); a(f"s_add_u32 m0, s84, {SC_SHK}"); s.ex(40)
        s.vmem("k", "buffer_load_dwordx4 v12, s[56:59], s75 offen lds")
        a("s_mov_b64 exec, -1")
        s.vmem("ep", "buffer_load_dwordx2 v[38:39], v23, s[64:67], 0 offen sc1")
        s.stamp(40, 2); a("s_barrier")
        if s.opt.get("rtouch", 2):
            a("s_mov_b32 s76, 0x986431"); a("s_bitcmp1_b32 s11, 0"); a("s_cselect_b32 s76, 0x975420, s76")
            a("v_lshrrev_b32 v240, 4, v1"); a("v_lshlrev_b32 v240, 2, v240"); a("v_lshrrev_b32_e64 v241, v240, s76"); a("v_and_b32 v241, 15, v241")
            a("s_lshr_b32 s76, s76, 16"); a("v_lshrrev_b32_e64 v242, v240, s76"); a("v_and_b32 v242, 15, v242")
            a("v_and_b32 v243, 15, v1"); a("v_mul_u32_u24 v243, 1280, v243")
            a("v_lshl_add_u32 v241, v241, 7, v243"); a("v_lshl_add_u32 v242, v242, 7, v243")
            a("s_lshl_b32 s76, s6, 3"); a("s_lshl_b32 s77, s12, 1"); a("s_add_u32 s76, s76, s77"); a("s_add_u32 s76, s76, s78"); a(f"s_mul_i32 s98, s76, {16*1280}")
            a("v_bfe_u32 v243, v1, 4, 1"); a(f"v_mul_u32_u24 v243, {5*64*3072}, v243"); a("v_bfe_u32 v244, v1, 1, 3"); a("v_mul_u32_u24 v244, 3072, v244"); a("v_add_u32 v243, v243, v244")
            a("v_and_b32 v244, 1, v1"); a("v_lshl_add_u32 v243, v244, 7, v243")
            a("s_mul_i32 s76, s7, 192"); a("s_and_b32 s76, s76, 0xffffff80"); a(f"s_mul_i32 s77, s11, {8*3072}"); a("s_add_u32 s76, s76, s77"); a(f"s_add_u32 s99, s76, {4*64*3072}")
            a("s_cmp_eq_u32 s78, 0")
            a("s_cselect_b32 s48, s30, s32"); a("s_cselect_b32 s49, s31, s33"); a("s_and_b32 s49, s49, 0xffff"); a("s_mov_b32 s50, 1966080"); a("s_mov_b32 s51, 0x20000")
        s.stamp(41, 2); a("s_barrier")
        if s.opt.get("rtouch", 2):
            a("s_mov_b32 exec_hi, 0")
            s.vmem("t", "buffer_load_dword v250, v243, s[48:51], s99 offen")
            if s.opt.get("rtouch", 2) == 1:
                s.vmem("t", "buffer_load_dword v251, v242, s[68:71], s98 offen")
                a("s_mov_b64 exec, -1")
                s.vmem("t", "buffer_load_dword v252, v241, s[68:71], s98 offen")
            a("s_mov_b64 exec, -1")
        s.dma_rows(88, 24, 16, 17, 93, 0, "wd", nt)
        if s.opt.get("tlb", 0):
            def tlbt():
                l1 = s.newlab("L_t1"); l2 = s.newlab("L_t2")
                a("s_cmp_eq_u32 s78, 1"); a(f"s_cbranch_scc1 {l1}")
                a(f"s_mov_b32 s76, {HBS}"); a("v_mul_lo_u32 v253, v1, s76"); a(f"s_mov_b32 s76, {WS_HB + HBS - 128}")
                s.ex(32); a("buffer_load_dword v254, v253, s[44:47], s76 offen")
                a(f"s_mov_b32 s76, {WBS}"); a("v_mul_lo_u32 v253, v1, s76"); a(f"s_mov_b32 s76, {WS_WB + WBS - 128}")
                s.ex(8); a("buffer_load_dword v254, v253, s[44:47], s76 offen")
                a(f"s_mov_b32 s76, {64*TS}"); a("s_mov_b64 exec, -1"); a("v_mul_lo_u32 v253, v1, s76"); a(f"s_mov_b32 s76, {WS_KT + 4096}")
                s.ex(10); a("buffer_load_dword v254, v253, s[44:47], s76 offen")
                a(f"s_branch {l2}")
                s.label(l1)
                a(f"s_mov_b32 s76, {64*TS}"); a("v_mul_lo_u32 v253, v1, s76"); a(f"s_mov_b32 s76, {WS_YT + 4096}")
                s.ex(10); a("buffer_load_dword v254, v253, s[44:47], s76 offen")
                a("v_lshlrev_b32 v253, 18, v1")
                a("buffer_load_dword v254, v253, s[60:63], 0 offen")
                a("s_mov_b32 s48, s38"); a("s_and_b32 s49, s39, 0xffff"); a("s_mov_b32 s50, 2621440"); a("s_mov_b32 s51, 0x20000")
                a("buffer_load_dword v254, v253, s[48:51], 0 offen")
                s.label(l2)
                a("s_mov_b64 exec, -1")
                for _ in range(3): s.vm.append("t")
            tlbt()
        if s.opt.get("htouch", 0):
            a("s_lshl_b32 s76, s2, 1"); a("s_add_u32 s76, s76, s78"); a("s_mul_i32 s76, s76, 5120"); a("v_lshlrev_b32 v253, 7, v1")
            s.ex(40); s.vmem("t", "buffer_load_dword v254, v253, s[60:63], s76 offen"); a("s_mov_b64 exec, -1")
        a("s_lshr_b32 s74, s85, 4"); a("v_subrev_u32 v7, s74, v5")
        a("v_cmp_gt_u32 s[86:87], 10, v7"); a("v_cmp_gt_u32 vcc, 60, v1"); a("s_and_b64 s[86:87], s[86:87], vcc")
        a("v_mul_u32_u24 v22, 160, v4"); a("v_lshl_add_u32 v22, v7, 4, v22")
        a(f"s_mul_i32 s76, s78, 5120"); a(f"s_add_u32 s76, s76, {L_QT}"); a("v_add_u32 v22, s76, v22")
        a("s_lshl_b32 s75, s9, 6"); a("s_lshl_b32 s76, s10, 3"); a("s_add_u32 s75, s75, s76"); a("s_lshl_b32 s76, s78, 2"); a("s_add_u32 s82, s75, s76")
        a("v_lshrrev_b32 v14, 4, v1"); a("v_mul_u32_u24 v14, 1280, v14"); a("v_and_b32 v15, 15, v1"); a("v_lshlrev_b32 v15, 4, v15"); a("v_add_u32 v14, v14, v15")
        a("v_and_b32 v240, 15, v1"); a("v_lshrrev_b32 v241, 4, v1")
        a("v_lshrrev_b32 v242, 2, v240"); a("v_mul_u32_u24 v242, 192, v242"); a("v_and_b32 v243, 3, v240"); a("v_lshl_add_u32 v242, v243, 3, v242")
        a(f"v_add_u32 v242, s93, v242"); a("v_add_u32 v242, s85, v242")
        a("s_mul_i32 s74, s9, 6"); a("s_mul_i32 s75, s78, 3"); a("s_add_u32 s74, s74, s75")
        for p in range(4):
            a(f"v_add_u32 v243, {4*p}, v241"); a("v_mul_u32_u24 v244, 52, v243"); a("v_lshrrev_b32 v244, 8, v244")
            a("v_mul_u32_u24 v245, 5, v244"); a("v_sub_u32 v245, v243, v245")
            a(f"v_mul_u32_u24 v{24+p}, 1536, v244"); a(f"v_lshl_add_u32 v{24+p}, v245, 5, v{24+p}"); a(f"v_add_u32 v{24+p}, v{24+p}, v242")
            a("v_add_u32 v244, s74, v244"); a("v_lshrrev_b32 v247, 2, v244"); a(f"v_mul_u32_u24 v{28+p}, 5120, v247")
            a("v_and_b32 v244, 3, v244"); a(f"v_lshl_add_u32 v{28+p}, v244, 8, v{28+p}"); a(f"v_lshl_add_u32 v{28+p}, v245, 10, v{28+p}")
            a(f"v_lshl_add_u32 v{28+p}, v240, 4, v{28+p}")
        a("v_lshrrev_b32 v6, 3, v1"); a("v_and_b32 v7, 7, v1"); a("s_mul_i32 s74, s78, 40"); a("v_add_u32 v6, s74, v6")
        for i in range(5):
            a(f"v_add_u32 v8, {8*i}, v6"); a("v_mul_u32_u24 v9, 3277, v8"); a("v_lshrrev_b32 v9, 16, v9")
            a("v_mul_u32_u24 v10, 20, v9"); a("v_sub_u32 v8, v8, v10")
            a("v_lshl_add_u32 v9, v8, 2, v9"); a("v_xor_b32 v8, v8, v7"); a("v_and_b32 v8, 7, v8"); a("v_lshlrev_b32 v8, 4, v8")
            a(f"v_mul_u32_u24 v9, {TS}, v9"); a(f"v_add_u32 v{32+i}, v9, v8")
        a("v_mov_b32 v23, 0")
        sched = {t: [] for t in range(21)}
        dl = s.opt.get("dl", 3)
        def rowl(srd, nrows, vfirst, vrest, reg, tag, ntf):
            out = []
            for i in range((nrows + 4) // 5):
                def f(i=i):
                    n = min(5, nrows - 5 * i); r = reg + 4 * i
                    s.ex(12 * n)
                    if i == 0: s.vmem(tag, f"buffer_load_dwordx4 v[{r}:{r+3}], v{vfirst}, s[{srd}:{srd+3}], 0 offen {ntf}")
                    else:
                        a(f"s_mov_b32 s77, {6400*(i-1)}")
                        s.vmem(tag, f"buffer_load_dwordx4 v[{r}:{r+3}], v{vrest}, s[{srd}:{srd+3}], s77 offen {ntf}")
                    a("s_mov_b64 exec, -1")
                out.append(f)
            return out
        Lk = rowl(48, 35, 18, 19, 40, "k", nt); Lv = rowl(52, 32, 20, 21, 68, "v", nt); Lw = rowl(88, 24, 16, 17, 96, "wd", nt)
        Lq = rowl(68, 32, 20, 21, 196, "q", "")
        def lshk():
            a("s_mul_i32 s75, s10, 640"); s.ex(40)
            s.vmem("v", "buffer_load_dwordx4 v[116:119], v12, s[56:59], s75 offen")
            a("s_mov_b64 exec, -1")
        def lgx(i):
            a("s_mul_i32 s75, s82, 1280")
            s.vmem("gx", f"buffer_load_dwordx4 v[{124+4*i}:{127+4*i}], v14, s[68:71], s75 offen offset:{i*256}")
        def lgw():
            s.srd(56, 36, 1280)
            for i in range(5):
                s.vmem("gx", f"buffer_load_dwordx4 v[{144+4*i}:{147+4*i}], v15, s[56:59], 0 offen offset:{i*256}")
        def lh(i):
            a("s_lshl_b32 s74, s14, 2"); a(f"s_add_u32 s74, s74, {2*(i//4)}"); a("s_add_u32 s74, s74, s78"); a("s_lshl_b32 s74, s74, 12")
            s.vmem("h", f"buffer_load_dwordx4 v[{164+4*i}:{167+4*i}], v12, s[60:63], s74 offen offset:{(i&3)*1024} {nt}")
        def two(f, g): return lambda: (f(), g())
        cold = Lk + [two(Lv[0], lshk)] + Lv[1:] + Lw
        def w1(): s.vm_wait({"k"}); s.stamp(2); s.img_write(84, SC_K, 7, 40)
        def w2():
            s.vm_wait({"v"}); s.img_write(84, SC_V, 7, 68)
            s.ex(40); a(f"ds_write_b128 v13, v[116:119] offset:{SC_SHK}"); a("s_mov_b64 exec, -1")
        def w3(): s.vm_wait({"wd"}); s.img_write(93, 0, 5, 96); a("s_waitcnt lgkmcnt(0)")
        def wd():
            for p in range(4):
                a(f"ds_read_b64_tr_b16 v[{96+4*p}:{97+4*p}], v{24+p}")
                a(f"ds_read_b64_tr_b16 v[{98+4*p}:{99+4*p}], v{24+p} offset:768")
            a(f"s_mul_i32 s74, s10, {WBS}"); a(f"s_add_u32 s74, s74, {WS_WB}")
            a("s_waitcnt lgkmcnt(0)")
            for p in range(4):
                if p == 3: s.ex(48)
                s.vmem("st", f"buffer_store_dwordx4 v[{96+4*p}:{99+4*p}], v{28+p}, s[44:47], s74 offen sc1")
            a("s_mov_b64 exec, -1")
        def epoch():
            s.vm_wait({"ep"})
            l0 = s.newlab("L_ep"); l1_ = s.newlab("L_epd")
            a(f"s_mov_b32 s94, {SPIN_MAX}")
            s.label(l0)
            a("v_readfirstlane_b32 s72, v38"); a("v_readfirstlane_b32 s73, v39"); a("s_nop 1")
            a("s_cmp_lg_u32 s73, 0"); a(f"s_cbranch_scc1 {l1_}")
            a("buffer_load_dwordx2 v[38:39], v23, s[64:67], 0 offen sc1")
            a("s_waitcnt vmcnt(0)")
            a("s_sub_u32 s94, s94, 1"); a(f"s_cbranch_scc0 {l0}")
            s.label(l1_)
            a(f"v_mov_b32 v242, {L_EPOCH}"); a("ds_write_b64 v242, v[38:39]")
            lt2 = s.newlab("L_tk")
            a("s_cmp_eq_u32 s78, 0"); a(f"s_cbranch_scc1 {lt2}")
            a("s_mov_b64 exec, 1"); a("ds_write_b32 v242, v37 offset:16"); a("s_mov_b64 exec, -1")
            s.label(lt2)
        def gate():
            s.vm_wait({"gx"})
            a("v_mov_b32 v240, 0"); a("v_mov_b32 v241, 0")
            for i in range(20): a(f"v_dot2_f32_bf16 v{240 + (i & 1)}, v{124+i}, v{144+i}, v{240 + (i & 1)}")
        def gate2():
            a("s_nop 2")
            a("v_add_f32 v240, v240, v241"); a("s_nop 1")
            for ctl in ("quad_perm:[1,0,3,2]", "quad_perm:[2,3,0,1]", "row_half_mirror", "row_mirror"):
                a(f"v_add_f32_dpp v240, v240, v240 {ctl} row_mask:0xf bank_mask:0xf"); a("s_nop 1")
            a("v_cvt_pk_bf16_f32 v240, v240, v240"); a("v_and_b32 v240, 0xffff0000, v240")
            a("v_mul_f32 v240, 0xbfb8aa3b, v240"); a("v_exp_f32 v240, v240"); a("s_nop 0"); a("v_add_f32 v240, 1.0, v240")
            a("v_rcp_f32 v240, v240"); a("s_nop 0")
            a("v_cvt_pk_bf16_f32 v240, v240, v240"); a("v_and_b32 v240, 0xffff0000, v240")
            a("s_lshl_b32 s74, s82, 2"); a(f"s_add_u32 s74, s74, {WS_G}")
            a("v_lshrrev_b32 v241, 4, v1"); a("v_lshlrev_b32 v241, 2, v241")
            a("s_mov_b32 exec_lo, 0x00010001"); a("s_mov_b32 exec_hi, 0x00010001")
            s.vmem("st", "buffer_store_dword v240, v241, s[44:47], s74 offen sc1")
            a("s_mov_b64 exec, -1")
        def qc():
            a("s_mov_b64 exec, s[86:87]")
            for i in range(7):
                if i == 6: a("s_and_b32 exec_lo, exec_lo, 0xffffff"); a("s_mov_b32 exec_hi, 0")
                a(f"ds_write_b128 v22, v[{196+4*i}:{199+4*i}] offset:{800*i}")
            a("s_mov_b64 exec, -1")
        def ktst_rd():
            a("s_mul_i32 s74, s78, 5120"); a(f"s_add_u32 s74, s74, {L_T}"); a("v_add_u32 v13, s74, v12")
            for i in range(5): a(f"ds_read_b128 v[{40+4*i}:{43+4*i}], v13 offset:{i*1024}")
        def ktst_st():
            a(f"s_mul_i32 s74, s10, {80*TS}"); a("s_lshl_b32 s75, s9, 7"); a("s_sub_u32 s74, s74, s75")
            a(f"s_add_u32 s74, s74, {WS_KT + 3968}")
            for i in range(5):
                s.vmem("st", f"buffer_store_dwordx4 v[{40+4*i}:{43+4*i}], v{32+i}, s[44:47], s74 offen sc1")
        def hc(base, reg, half):
            s.vm_wait({"h"})
            l = s.newlab("L_nh"); a(f"s_cmp_ge_u32 s14, {NCONV}"); a(f"s_cbranch_scc1 {l}")
            s.h_copies(base, reg, half); s.label(l)
        def flagsA():
            s.vm_wait({"st"})
            a("s_lshl_b32 s74, s10, 9"); a("s_lshl_b32 s75, s9, 4"); a("s_add_u32 s74, s74, s75"); a("s_lshl_b32 s76, s78, 3"); a("s_add_u32 s74, s74, s76")
            a(f"s_add_u32 s74, s74, {WS_FA}")
            s.write_flag(244, 74)
            s.stamp(5)
        def flagsB():
            lb = s.newlab("L_nb")
            a("s_cmp_lt_u32 s83, 2"); a(f"s_cbranch_scc1 {lb}")
            a("s_waitcnt vmcnt(0)")
            a("s_lshl_b32 s76, s78, 3")
            a("s_lshl_b32 s74, s9, 7"); a("s_lshl_b32 s75, s10, 4"); a("s_add_u32 s74, s74, s75"); a("s_add_u32 s74, s74, s76"); a(f"s_add_u32 s74, s74, {WS_FB}")
            s.write_flag(8, 74)
            s.label(lb)
        KVT = s.kvt
        he = s.opt.get("hearly", 0)
        if he == 1:
            for i in range(8): lh(i)
        s.vm_wait({"k"}); s.stamp(2)
        a("s_barrier")
        if he == 2:
            for i in range(8): lh(i)
        if he:
            for j, (b, r, hf) in enumerate(((79, 164, 0), (79, 164, 1), (84, 180, 0), (84, 180, 1))):
                sched[8 + j].append(lambda b=b, r=r, hf=hf: hc(b, r, hf))
        epoch()
        ts = s.opt.get("ts", 3)
        sched[ts].append(lambda: (ktst_rd(), a("s_waitcnt lgkmcnt(0)"), ktst_st()))
        sched[ts + 1].append(lambda: (s.vm_wait({"wd"}), wd(), s.stamp(3)))
        tf = s.opt.get("tf", 7); sched[tf].append(flagsA)
        tg = s.opt.get("tg", 16)
        sched[tg - 4] += [lambda i=i: lgx(i) for i in range(5)] + [lgw]
        sched[tg - 1].append(gate); sched[tg].append(gate2)
        s.flagsB = flagsB
        tp = s.opt.get("tp", 13)
        def fa_ld():
            a(f"v_mov_b32 v2, {L_SDONE}"); a("ds_read_b32 v2, v2"); a("s_waitcnt lgkmcnt(0)"); a("v_readfirstlane_b32 s14, v2"); a("s_nop 1")
            a("s_mul_i32 s74, s14, 3277"); a("s_lshr_b32 s74, s74, 16"); a("s_min_u32 s74, s74, 7")
            a("s_cmp_eq_u32 s78, 0"); a("s_cselect_b32 s74, s74, s10"); a("s_lshl_b32 s74, s74, 9"); a(f"s_add_u32 s74, s74, {WS_FA}")
            a("v_lshlrev_b32 v2, 3, v1")
            s.vmem("fa", "buffer_load_dwordx2 v[4:5], v2, s[44:47], s74 offen sc1")
        def fa_ck():
            s.vm_wait({"fa"})
            a("v_cmp_ne_u64 vcc, s[72:73], v[4:5]"); a("s_nop 1")
            lf = s.newlab("L_nf")
            a(f"s_cbranch_vccnz {lf}")
            a("s_lshl_b32 s74, s78, 2"); a(f"s_add_u32 s74, s74, {L_QDONE}"); s.lds_set(8, "s74", 1)
            s.label(lf)
        sched[4].append(lambda: a("s_waitcnt lgkmcnt(0)"))
        sched[tp].append(fa_ld); sched[tp + 2].insert(0, fa_ck); sched[tp + 3].append(lambda: a("s_waitcnt lgkmcnt(0)"))
        tq = s.opt.get("tq", 14)
        sched[tq] += Lq
        for t in range(2, 17):
            s.stamp(40 + t, 2)
            a("s_barrier")
            if not s.opt.get("noc"):
                for f in sched[t]: f()
        assert all(not sched[t] for t in range(17, 21))
        s.qc = qc
        a("s_add_u32 s83, s78, 2")

    def ywave(s):
        a = s.a; s.vm_reset()
        s.label("L_Yt")
        a(f"s_mul_i32 s84, s83, {CV_SZ}"); a(f"s_add_u32 s84, s84, {L_CV}"); a(f"s_add_u32 s93, s84, {H_SZ}")
        s.srd(60, 24, 2621440)
        a(f"v_mov_b32 v16, {L_EPOCH}"); a("ds_read_b32 v20, v16 offset:16"); a("ds_read_b128 v[16:19], v16")
        a("v_lshlrev_b32 v2, 3, v1")
        a("s_waitcnt lgkmcnt(0)")
        a("v_readfirstlane_b32 s14, v20")
        a("v_readfirstlane_b32 s72, v16"); a("v_readfirstlane_b32 s73, v17"); a("v_readfirstlane_b32 s99, v18")
        a("s_mul_i32 s98, s14, 3277"); a("s_lshr_b32 s98, s98, 16"); a("s_lshl_b32 s98, s98, 9"); a(f"s_add_u32 s98, s98, {WS_FA}")
        a("s_lshl_b32 s85, s14, 2"); a("s_add_u32 s85, s85, s83"); a("s_lshl_b32 s74, s85, 12")
        a(f"s_mul_i32 s100, s85, {TS}"); a(f"s_add_u32 s100, s100, {WS_KT}")
        a("s_waitcnt vmcnt(20)"); s.stamp(57, 2); a("s_barrier"); s.stamp(33, 2)
        a(f"s_cmp_lt_u32 s14, {NCONV}"); a("s_cselect_b32 s99, s99, 0")
        a("s_cmp_lg_u32 s99, 0"); a("s_cselect_b32 s101, s100, 0x7ff00000")
        a("s_cmp_lg_u32 s99, 0"); a("s_cselect_b32 s75, 0x7ff00000, s98")
        a(f"s_cmp_lt_u32 s14, {NCONV}"); a("s_cselect_b32 s75, s75, 0x7ff00000")
        a("buffer_load_dwordx2 v[4:5], v2, s[44:47], s75 offen sc1")
        nh = 0 if s.opt.get("hearly", 0) else 4
        for i in range(nh):
            a(f"buffer_load_dwordx4 v[{164+4*i}:{167+4*i}], v12, s[60:63], s74 offen offset:{i*1024} {'' if s.opt.get('htouch', 0) else s.nt}")
        for i in range(4):
            a(f"buffer_load_dwordx4 v[{48+4*i}:{51+4*i}], v12, s[44:47], s101 offen offset:{i*1024} sc1")
        lq = s.newlab("L_nq")
        a(f"s_waitcnt vmcnt({11 + nh})")
        a("s_cmp_lt_u32 s83, 2"); a(f"s_cbranch_scc1 {lq}")
        a(f"s_waitcnt vmcnt({5 + nh})")
        s.qc()
        s.label(lq)
        s.stamp(58, 2); a("s_barrier"); s.stamp(34, 2)
        s.u_addr(93)
        a(f"s_waitcnt vmcnt({5 + nh})"); a("s_waitcnt lgkmcnt(0)")
        s.stamp(59, 2); a("s_barrier"); s.stamp(35, 2)
        s.stamp(1)
        if s.opt.get("g1only"): a("s_branch L_fin2")
        if s.opt.get("noconv"): a("s_branch L_apart")
        lcv = s.newlab("L_cvgo")
        a(f"s_cmp_lt_u32 s14, {NCONV}"); a(f"s_cbranch_scc1 {lcv}")
        s.flagsB()
        a("s_branch L_apart")
        s.label(lcv)
        a("s_setprio 1")
        lk2 = s.newlab("L_hk")
        a("s_cmp_lg_u32 s99, 0"); a(f"s_cbranch_scc1 {lk2}")
        lk3 = s.newlab("L_hk")
        a(f"s_waitcnt vmcnt({4 + nh})")
        a("v_cmp_ne_u64 vcc, s[72:73], v[4:5]"); a("s_nop 1"); a(f"s_cbranch_vccz {lk3}")
        s.poll(4, 2, "s98")
        s.label(lk3)
        for i in range(4):
            a(f"buffer_load_dwordx4 v[{48+4*i}:{51+4*i}], v12, s[44:47], s100 offen offset:{i*1024} sc1")
        s.label(lk2)
        s.stamp(6)
        if nh:
            a("s_waitcnt vmcnt(4)")
            s.h_copies(84, 164)
        s.u_stage(48, 0)
        s.flagsB()
        s.stamp(7)
        a("v_add_u32 v13, s93, v12")
        a("v_and_b32 v2, 15, v1"); a("v_lshrrev_b32 v3, 4, v1"); a("v_and_b32 v4, 1, v2"); a("v_lshrrev_b32 v5, 1, v2")
        a(f"v_mul_u32_u24 v6, {CV_B}, v4"); a("v_lshl_add_u32 v6, v3, 4, v6"); a("v_lshl_add_u32 v6, v5, 3, v6"); a("v_add_u32 v6, s84, v6")
        a("v_lshlrev_b32 v7, 4, v3"); a("v_lshlrev_b32 v8, 6, v5"); a("v_sub_u32 v7, v7, v8"); a("v_add_u32 v7, 512, v7")
        a(f"v_mul_u32_u24 v9, {CV_U1}, v4"); a("v_add_u32 v9, s93, v9"); a("v_subrev_u32 v9, 64, v9")
        def baddr():
            a("v_lshrrev_b32 v10, 3, v7"); a("v_and_b32 v10, 32, v10"); a("v_xor_b32 v10, v10, v7"); a("v_add_u32 v10, v10, v9"); a("v_add_u32 v7, 64, v7")
        SA = (96, 160); SB = (128, 192)
        def reads(st, par):
            R = []
            for c in range(8):
                for hh in range(2):
                    R.append(f"ds_read_b64 v[{SA[st]+4*c+2*hh}:{SA[st]+4*c+2*hh+1}], v6 offset:{512*c + 8*hh + 64*par}")
                for hh in range(2):
                    R.append(f"ds_read_b64 v[{SB[st]+4*c+2*hh}:{SB[st]+4*c+2*hh+1}], v10 offset:{512*(7-c) + 8*hh}")
            return R
        def mfmas(st, full=True):
            M = []
            for aa in range(8):
                for c in (range(aa + 1) if full else [aa]):
                    b = aa - c; o = 224 + 4 * aa
                    M.append(f"v_mfma_f32_16x16x32_bf16 v[{o}:{o+3}], v[{SA[st]+4*c}:{SA[st]+4*c+3}], v[{SB[st]+4*b}:{SB[st]+4*b+3}], v[{o}:{o+3}]")
            return M
        def inter(M, R):
            a("s_waitcnt lgkmcnt(12)")
            for mi, m in enumerate(M):
                if mi == 15: a("s_waitcnt lgkmcnt(15)")
                a(m)
                if mi < len(R): a(R[mi])
        baddr()
        a("s_waitcnt lgkmcnt(0)")
        for r in reads(0, 0): a(r)
        for r in range(224, 256): a(f"v_mov_b32 v{r}, 0")
        a("s_mov_b32 s86, 0")
        s.label("L_cv")
        baddr()
        inter(mfmas(0), reads(1, 1))
        a("v_add_u32 v6, 128, v6"); baddr()
        inter(mfmas(1), reads(0, 0))
        a("s_add_u32 s86, s86, 1"); a("s_cmp_lt_u32 s86, 4"); a("s_cbranch_scc1 L_cv")
        a("s_waitcnt lgkmcnt(0)")
        for m in mfmas(0, False): a(m)
        a("v_lshlrev_b32 v8, 4, v3"); a("v_lshl_add_u32 v8, v4, 2, v8"); a("v_lshl_add_u32 v8, v5, 6, v8")
        a(f"v_sub_u32 v8, {CV_U0 + 2*(2046 - 4) - 512}, v8"); a("v_add_u32 v8, s93, v8")
        a("s_nop 4")
        for t in range(8):
            o = 224 + 4 * t
            a(f"v_cvt_pk_bf16_f32 v{16+2*t}, v{o+3}, v{o+2}")
            a(f"v_cvt_pk_bf16_f32 v{17+2*t}, v{o+1}, v{o}")
        for t in range(8):
            off = 128 if t % 2 == 0 else 0
            a(f"ds_write2_b32 v8, v{16+2*t}, v{17+2*t} offset0:{off} offset1:{off+2}")
            if t % 2 == 1 and t < 7: a("v_subrev_u32 v8, 1024, v8")
        a("s_waitcnt lgkmcnt(0)")
        for i in range(4): a(f"ds_read_b128 v[{32+4*i}:{35+4*i}], v13 offset:{CV_U0 + i*1024}")
        a(f"s_mul_i32 s74, s85, {TS}"); a(f"s_add_u32 s74, s74, {WS_YT}")
        for i in range(4):
            a(f"s_waitcnt lgkmcnt({3-i})")
            a(f"buffer_store_dwordx4 v[{32+4*i}:{35+4*i}], v12, s[44:47], s74 offen offset:{i*1024} sc1")
        s.stamp(8)
        a("s_waitcnt vmcnt(0)")
        a("s_lshl_b32 s74, s85, 3"); a(f"s_add_u32 s74, s74, {WS_FY}")
        s.write_flag(48, 74)
        a("s_setprio 0")
        s.label("L_apart")
        a("s_setprio 0")
        if s.opt.get("xh", 1): s.lds_wait(L_XH, 1, 1, 148, slp=2)
        s.stamp(9)
        a("v_min_u32 v2, 15, v1"); a("v_lshlrev_b32 v2, 3, v2")
        a("s_lshl_b32 s74, s9, 7"); a(f"s_add_u32 s74, s74, {WS_FB}")
        s.poll(4, 2, "s74")
        a("v_sub_u32 v3, 63, v1"); a("v_lshlrev_b32 v2, 2, v3")
        a("s_lshl_b32 s74, s9, 8"); a(f"s_add_u32 s74, s74, {WS_G}")
        a("buffer_load_dword v15, v2, s[44:47], s74 offen sc1")
        a("s_mul_i32 s87, s10, 80"); a("s_mul_i32 s74, s83, 20"); a("s_add_u32 s87, s87, s74")
        a(f"s_mul_i32 s88, s87, {TS}"); a("s_lshl_b32 s74, s9, 7"); a("s_sub_u32 s88, s88, s74"); a("s_add_u32 s88, s88, 3968")
        a("v_lshrrev_b32 v5, 3, v1"); a(f"v_mul_u32_u24 v5, {TS}, v5"); a("v_and_b32 v6, 7, v1"); a("v_lshl_add_u32 v5, v6, 4, v5")
        def tile_loads(base, reg):
            for i in range(3):
                a(f"s_add_u32 s74, s88, {base + i*8*TS}")
                if i == 2: a("s_mov_b32 exec_hi, 0")
                a(f"buffer_load_dwordx4 v[{reg+4*i}:{reg+4*i+3}], v5, s[44:47], s74 offen sc1")
                if i == 2: a("s_mov_b64 exec, -1")
        tile_loads(WS_KT, 16)
        a("s_lshl_b32 s74, s87, 1"); a("s_add_u32 s26, s26, s74"); a("s_addc_u32 s27, s27, 0")
        a("s_load_dwordx8 s[48:55], s[26:27], 0"); a("s_load_dwordx2 s[56:57], s[26:27], 32")
        a("v_add_u32 v13, s84, v12")
        a("v_mul_u32_u24 v7, 160, v3"); a("s_mul_i32 s74, s83, 40"); a(f"s_add_u32 s74, s74, {L_QT}"); a("v_add_u32 v7, s74, v7")
        for gq in range(5): a(f"ds_read_b64 v[{64+2*gq}:{65+2*gq}], v7 offset:{8*gq}")
        a("s_waitcnt vmcnt(0)")
        for i in range(3):
            if i == 2: a("s_mov_b32 exec_hi, 0")
            a(f"ds_write_b128 v13, v[{16+4*i}:{19+4*i}] offset:{i*1024}")
            if i == 2: a("s_mov_b64 exec, -1")
        a("v_and_b32 v8, 15, v1"); a("v_lshrrev_b32 v9, 2, v8"); a("v_lshlrev_b32 v9, 7, v9"); a("v_and_b32 v8, 3, v8"); a("v_lshl_add_u32 v9, v8, 3, v9")
        a("v_lshrrev_b32 v8, 4, v1"); a("v_lshl_add_u32 v9, v8, 5, v9"); a("v_add_u32 v9, s84, v9")
        a(f"v_add_u32 v2, {L_GF}, v2"); a("ds_write_b32 v2, v15")
        a("s_waitcnt lgkmcnt(0)")
        for gq in range(5): a(f"ds_read_b64_tr_b16 v[{74+2*gq}:{75+2*gq}], v9 offset:{512*gq}")
        for gq in range(5):
            for e in range(2):
                r = 96 + 4 * gq + 2 * e
                a(f"v_lshlrev_b32 v{r}, 16, v{64+2*gq+e}"); a(f"v_and_b32 v{r+1}, 0xffff0000, v{64+2*gq+e}")
                a(f"v_mul_f32 v{r}, v{r}, v15"); a(f"v_mul_f32 v{r+1}, v{r+1}, v15")
        a("s_waitcnt lgkmcnt(0)")
        for gq in range(5):
            for e in range(2):
                sd = 48 + 2 * gq + e; r = 120 + 4 * gq + 2 * e
                a(f"s_lshl_b32 s58, s{sd}, 16"); a(f"s_and_b32 s59, s{sd}, 0xffff0000")
                a(f"v_lshlrev_b32 v{r}, 16, v{74+2*gq+e}"); a(f"v_and_b32 v{r+1}, 0xffff0000, v{74+2*gq+e}")
                a(f"v_mul_f32 v{r}, s58, v{r}"); a(f"v_mul_f32 v{r+1}, s59, v{r+1}")
        s.lds_wait(L_XG2, 1, 1, 148, slp=2)
        a("v_min_u32 v2, 19, v1"); a("v_lshlrev_b32 v2, 3, v2")
        a("s_lshl_b32 s74, s87, 3"); a(f"s_add_u32 s74, s74, {WS_FY}")
        if not s.opt.get("noconv"): s.poll(146, 2, "s74", slp=s.opt.get("yslp", 12))
        s.stamp(10)
        tile_loads(WS_YT, 16)
        for i in range(3):
            a(f"s_waitcnt vmcnt({2-i})")
            if i == 2: a("s_mov_b32 exec_hi, 0")
            a(f"ds_write_b128 v13, v[{16+4*i}:{19+4*i}] offset:{i*1024}")
            if i == 2: a("s_mov_b64 exec, -1")
        a("s_waitcnt lgkmcnt(0)")
        for gq in range(5): a(f"ds_read_b64_tr_b16 v[{74+2*gq}:{75+2*gq}], v9 offset:{512*gq}")
        for gq in range(5):
            a("s_waitcnt lgkmcnt(4)")
            for e in range(2):
                a(f"v_lshlrev_b32 v144, 16, v{74+2*gq+e}"); a(f"v_and_b32 v145, 0xffff0000, v{74+2*gq+e}")
                a(f"v_add_f32 v144, v144, v{120+4*gq+2*e}"); a(f"v_add_f32 v145, v145, v{121+4*gq+2*e}")
                a(f"v_mul_f32 v144, v144, v{96+4*gq+2*e}"); a(f"v_mul_f32 v145, v145, v{97+4*gq+2*e}")
                a(f"v_cvt_pk_bf16_f32 v{64+2*gq+e}, v144, v145")
            a(f"ds_write_b64 v7, v[{64+2*gq}:{65+2*gq}] offset:{8*gq}")
        s.stamp(11)
        a("s_branch L_final")

    def xwave(s):
        a = s.a; s.vm_reset()
        s.label("L_X")
        a("s_setprio 2")
        a("v_mov_b32 v16, 0"); a("v_mov_b32 v17, 0"); a("v_mov_b32 v18, 0"); a("v_mov_b32 v19, 0")
        a(f"v_add_u32 v20, {L_MISC}, v12")
        a("s_mov_b64 exec, 15"); a("ds_write_b128 v20, v[16:19]"); a("s_mov_b64 exec, -1")
        a("s_lshr_b32 s74, s3, 1"); a("s_and_b32 s75, s3, 1")
        a("v_and_b32 v20, 31, v1"); a("v_lshrrev_b32 v13, 2, v20"); a("v_lshrrev_b32 v14, 1, v13"); a("v_xor_b32 v13, v13, v14"); a("v_and_b32 v13, 3, v13")
        a("v_lshrrev_b32 v14, 5, v1"); a("v_xor_b32 v15, v14, v13"); a("v_xor_b32 v16, 2, v15")
        a("v_lshlrev_b32 v17, 6, v20"); a("s_lshl_b32 s76, s74, 12"); a("v_add_u32 v17, s76, v17")
        a("v_lshl_add_u32 v5, v15, 4, v17"); a("v_lshl_add_u32 v6, v16, 4, v17")
        a("v_bfe_u32 v15, v1, 4, 1"); a("v_bfe_u32 v16, v1, 2, 2"); a("v_lshl_add_u32 v16, v14, 3, v16"); a("v_lshlrev_b32 v16, 6, v16")
        a("v_mul_u32_u24 v17, 6144, v15"); a("v_add_u32 v16, v16, v17")
        a("v_and_b32 v17, 1, v1"); a("v_lshl_add_u32 v16, v17, 4, v16"); a("v_bfe_u32 v17, v1, 1, 1"); a("v_lshl_add_u32 v16, v17, 3, v16")
        a(f"v_add_u32 v16, {L_WR}, v16")
        a("s_mul_i32 s76, s75, 3")
        for T in range(3):
            a(f"s_add_u32 s77, s76, {T}"); a("s_and_b32 s78, s77, 1"); a("s_lshr_b32 s77, s77, 1"); a("s_lshl_b32 s77, s77, 11")
            a("v_xor_b32 v17, s78, v15"); a(f"v_lshl_add_u32 v{2+T}, v17, 5, v16"); a(f"v_add_u32 v{2+T}, s77, v{2+T}")
        a("v_mov_b32 v7, v12"); a("v_add_u32 v8, 4096, v7")
        a("v_bfe_u32 v9, v1, 4, 1"); a("v_lshlrev_b32 v9, 10, v9"); a("v_lshl_add_u32 v9, v14, 8, v9"); a("v_and_b32 v17, 15, v1"); a("v_lshl_add_u32 v9, v17, 4, v9")
        for r in range(160, 256): a(f"v_mov_b32 v{r}, 0")
        touch = s.opt.get("touch", 0)
        if touch:
            lw = s.newlab("L_tw"); le = s.newlab("L_te")
            a("s_cmp_ge_u32 s3, 2"); a(f"s_cbranch_scc1 {lw}")
            s.srd(48, 16, 2621440)
            a("s_lshr_b32 s76, s4, 2"); a("s_lshl_b32 s76, s76, 6"); a("s_lshl_b32 s77, s5, 1"); a("s_add_u32 s76, s76, s77"); a("s_add_u32 s76, s76, s3")
            a(f"s_mul_i32 s98, s76, {16*1280}")
            a("v_and_b32 v92, 15, v1"); a("v_mul_u32_u24 v92, 1280, v92"); a("v_bfe_u32 v93, v1, 4, 1"); a("v_lshl_add_u32 v92, v93, 7, v92")
            a("s_mov_b32 s99, 256"); a("s_mov_b32 s100, -1")
            a(f"s_branch {le}")
            s.label(lw)
            a("s_cmp_eq_u32 s3, 2")
            a("s_cselect_b32 s48, s30, s32"); a("s_cselect_b32 s49, s31, s33"); a("s_and_b32 s49, s49, 0xffff")
            a("s_mov_b32 s50, 1966080"); a("s_mov_b32 s51, 0x20000")
            a("v_mul_u32_u24 v93, 5462, v1"); a("v_lshrrev_b32 v93, 16, v93"); a("v_mul_u32_u24 v94, 12, v93"); a("v_sub_u32 v94, v1, v94")
            a("v_cmp_lt_u32 vcc, 5, v94"); a(f"v_mul_u32_u24 v92, {64*3072}, v93"); a(f"v_mov_b32 v95, {3072 - 768}"); a("v_cndmask_b32 v95, 0, v95, vcc")
            a("v_lshl_add_u32 v92, v94, 7, v92"); a("v_add_u32 v92, v92, v95")
            a("s_and_b32 s76, s4, 3"); a("s_mul_i32 s76, s76, 768"); a(f"s_mul_i32 s77, s5, {2*3072}"); a("s_add_u32 s98, s76, s77")
            a(f"s_mov_b32 s99, {2*64*3072}"); a("s_mov_b32 s100, 0xffffff")
            s.label(le)
        def do_touch():
            a("s_mov_b32 exec_lo, s100"); a("s_mov_b32 exec_hi, 0")
            a("buffer_load_dword v93, v92, s[48:51], s98 offen")
            a("s_mov_b64 exec, -1"); a("s_add_u32 s98, s98, s99")
        tpre = s.opt.get("tpre", 2)
        if touch:
            for _ in range(tpre if touch == 2 else 5): do_touch()
        SB = (12, 52)
        def reads(st, slot):
            R = []
            for sub in range(2):
                W = []
                for T in range(3):
                    for hh in range(2):
                        r = SB[st] + 12 * sub + 4 * T + 2 * hh
                        W.append(f"ds_read_b64_tr_b16 v[{r}:{r+1}], v{2+T} offset:{slot*12288 + sub*1024 + hh*256}")
                X = [f"ds_read_b128 v[{SB[st]+24+8*sub+4*nt}:{SB[st]+24+8*sub+4*nt+3}], v{5+sub} offset:{slot*8192 + nt*2048}" for nt in range(2)]
                R += [X[0], W[0], W[1], X[1], W[2], W[3], W[4], W[5]]
            return R
        def mfmas(st):
            M = []
            for sub in range(2):
                for T in range(3):
                    for nt in range(2):
                        o = 160 + 16 * (2 * T + nt); w = SB[st] + 12 * sub + 4 * T; x = SB[st] + 24 + 8 * sub + 4 * nt
                        M.append(f"v_mfma_f32_32x32x16_bf16 v[{o}:{o+15}], v[{w}:{w+3}], v[{x}:{x+3}], v[{o}:{o+15}]")
            return M
        a("s_mov_b32 s86, 0")
        a("s_waitcnt lgkmcnt(0)")
        if s.opt.get("ctouch", 1):
            lct = s.newlab("L_ct")
            a("s_cmp_lg_u32 s3, 1"); a(f"s_cbranch_scc1 {lct}")
            a("s_getpc_b64 s[76:77]")
            s.label("L_pc")
            a(f"s_sub_u32 s76, s76, L_pc-{KN}"); a("s_subb_u32 s77, s77, 0")
            a("s_mul_i32 s78, s5, 7"); a("v_add_u32 v50, s78, v1"); a("v_lshlrev_b32 v50, 7, v50"); a(f"v_min_u32 v50, L_codeend-{KN}-4, v50")
            a("s_mov_b64 exec, 0x7f"); a("global_load_dword v51, v50, s[76:77]"); a("s_mov_b64 exec, -1")
            s.label(lct)
        a("s_barrier")
        s.kv_pre()
        a("s_waitcnt vmcnt(0)")
        a("s_barrier")
        for r in reads(0, 0): a(r)
        a("s_waitcnt lgkmcnt(0)")
        s.label("L_g1")
        for slot in range(4):
            M = mfmas(slot & 1); R = reads((slot + 1) & 1, (slot + 1) & 3)
            if s.opt.get("stamps", 0) == 2:
                a("s_memtime s[96:97]"); a(f"s_add_u32 m0, s86, {41 + slot}"); a("s_waitcnt lgkmcnt(0)"); a("v_writelane_b32 v11, s96, m0")
            a(M[0])
            if slot == 3:
                lnb = s.newlab("L_nb"); a("s_cmp_eq_u32 s86, 16"); a(f"s_cbranch_scc1 {lnb}"); a("s_barrier"); s.label(lnb)
            else: a("s_barrier")
            for i in range(5):
                for r in R[3 * i:3 * i + 3]: a(r)
                a(M[1 + i])
            a(R[15])
            if touch == 2 and slot == s.opt.get("tslot", 0):
                lt = s.newlab("L_nt")
                a(f"s_cmp_ge_u32 s86, {4 * (5 - tpre)}"); a(f"s_cbranch_scc1 {lt}"); do_touch(); s.label(lt)
            for m in M[6:]: a(m)
            a("s_waitcnt lgkmcnt(0)")
            if slot == 0:
                a("s_cmp_eq_u32 s86, 0"); a("s_cbranch_scc1 L_kv")
                s.label("L_kvret")
        a("s_add_u32 s86, s86, 4")
        a("s_cmp_lt_u32 s86, 20"); a("s_cbranch_scc1 L_g1")
        s.stamp(1)
        if s.opt.get("g1only"): a("s_branch L_fin2")
        if s.opt.get("xidle"): s.lds_set(2, L_XG2, 1); a("s_branch L_final")
        a(f"v_mov_b32 v116, {L_EPOCH}"); a("v_mov_b32 v117, 1"); a("s_mov_b64 exec, 1"); a(f"ds_add_u32 v116, v117 offset:{L_XCNT - L_EPOCH}"); a("s_mov_b64 exec, -1")
        a("ds_read_b128 v[116:119], v116"); a("s_waitcnt lgkmcnt(0)")
        a("v_readfirstlane_b32 s72, v116"); a("v_readfirstlane_b32 s73, v117"); a("v_readfirstlane_b32 s76, v119"); a("s_nop 1")
        lfa = s.newlab("L_faok")
        a("s_cmp_lg_u32 s76, 0"); a(f"s_cbranch_scc1 {lfa}")
        a("v_lshlrev_b32 v114, 3, v1")
        a("s_lshl_b32 s76, s10, 9"); a(f"s_add_u32 s76, s76, {WS_FA}")
        s.poll(112, 114, "s76")
        s.label(lfa)
        s.stamp(2)
        if s.opt.get("g2map", 0): a("s_mul_i32 s78, s11, 3"); a("s_lshr_b32 s78, s78, 1"); a("s_mul_i32 s79, s12, 3"); a("s_add_u32 s78, s78, s79")
        else: a("s_mul_i32 s78, s10, 3"); a("s_lshr_b32 s78, s78, 1"); a("s_mul_i32 s79, s13, 3"); a("s_add_u32 s78, s78, s79")
        a("s_cmp_ge_u32 s78, 12"); a("s_cselect_b32 s79, 12, 0"); a("s_sub_u32 s78, s78, s79")
        if s.opt.get("g2rot") == 0: a("s_mov_b32 s78, 0")
        a("s_mul_i32 s79, s3, 12")
        a(f"s_mul_i32 s80, s10, {WBS}"); a(f"s_add_u32 s80, s80, {WS_WB}")
        a(f"s_mul_i32 s81, s9, {HBS}"); a(f"s_add_u32 s81, s81, {WS_HB}")
        a("s_mul_i32 s92, s3, 20480")
        def kt_of(i, dst):
            a(f"s_add_u32 s{dst}, s78, {i}"); a(f"s_cmp_ge_u32 s{dst}, 12"); a(f"s_cselect_b32 s82, 12, 0"); a(f"s_sub_u32 s{dst}, s{dst}, s82")
            a(f"s_add_u32 s{dst}, s{dst}, s79")
        def wb_loads(i):
            kt_of(i, 83); a("s_mul_i32 s83, s83, 5120"); a("s_add_u32 s83, s83, s80")
            r = 12 + 20 * (i % 5)
            for dt in range(5):
                if dt < 4: s.vmem(("wb", i), f"buffer_load_dwordx4 v[{r+4*dt}:{r+4*dt+3}], v7, s[44:47], s83 offen offset:{dt*1024} sc1")
                else: s.vmem(("wb", i), f"buffer_load_dwordx4 v[{r+4*dt}:{r+4*dt+3}], v8, s[44:47], s83 offen sc1")
        def wb_dma(i):
            kt_of(i, 83); a("s_mul_i32 s83, s83, 5120"); a("s_add_u32 s83, s83, s80")
            a(f"s_add_u32 m0, s92, {(i - 5) * 5120}"); a("s_nop 0")
            for dt in range(4):
                s.vmem(("wd", i), f"buffer_load_dwordx4 v7, s[44:47], s83 offen offset:{dt*1024} sc1 lds")
            a(f"s_add_u32 m0, s92, {(i - 5) * 5120 + 4096}"); a("s_nop 0")
            s.vmem(("wd", i), f"buffer_load_dwordx4 v8, s[44:47], s83 offen sc1 lds")
        def wb_lds(i):
            r = 12 + 20 * (i % 5)
            for dt in range(5): a(f"ds_read_b128 v[{r+4*dt}:{r+4*dt+3}], v10 offset:{(i - 5) * 5120 + dt*1024}")
        def hb_loads(i):
            kt_of(i, 83); a("s_lshl_b32 s83, s83, 12"); a("s_add_u32 s83, s83, s81")
            r = 112 + 16 * (i % 4)
            for sb in range(4):
                s.vmem(("hb", i), f"buffer_load_dwordx4 v[{r+4*sb}:{r+4*sb+3}], v7, s[44:47], s83 offen offset:{sb*1024} {s.opt.get('hsc', 'sc1')}")
        wq = [(i, dt) for i in range(5) for dt in range(5)]
        def wb_some(n):
            for _ in range(n):
                if not wq: return
                i, dt = wq.pop(0)
                if dt == 0: kt_of(i, 98); a("s_mul_i32 s98, s98, 5120"); a("s_add_u32 s98, s98, s80")
                r = 12 + 20 * (i % 5)
                if dt < 4: s.vmem(("wb", i), f"buffer_load_dwordx4 v[{r+4*dt}:{r+4*dt+3}], v7, s[44:47], s98 offen offset:{dt*1024} sc1")
                else: s.vmem(("wb", i), f"buffer_load_dwordx4 v[{r+4*dt}:{r+4*dt+3}], v8, s[44:47], s98 offen sc1")
        wpt = s.opt.get("wpt", 1)
        wb_some(s.opt.get("npre", 0))
        a("s_mov_b32 s84, 0xbfb8aa3b"); a("s_mov_b32 s85, 0xbfb8aa3b")
        a("s_lshl_b32 s87, s6, 1"); a("s_add_u32 s87, s87, s74")
        a(f"s_mul_i32 s88, s87, {HBS}")
        a("s_mul_i32 s89, s7, 6"); a("s_mul_i32 s90, s75, 3"); a("s_add_u32 s89, s89, s90")
        for T in range(3):
            a(f"s_add_u32 s90, s89, {T}"); a("s_and_b32 s91, s90, 1"); a("s_lshr_b32 s90, s90, 1")
            a("s_lshl_b32 s90, s90, 12"); a("s_lshl_b32 s91, s91, 9"); a("s_add_u32 s90, s90, s91"); a("s_add_u32 s90, s90, s88")
            for nt in range(2):
                ti = 2 * T + nt
                o = 160 + 16 * ti; p = 120 + 4 * ti
                if ti < s.opt.get("pkt", 0):
                    for e in range(4): a(f"v_pk_mul_f32 v[{o+2*e}:{o+2*e+1}], v[{o+2*e}:{o+2*e+1}], s[84:85]")
                    for e in range(8): a(f"v_exp_f32 v{o+e}, v{o+e}")
                    for e in range(4): a(f"v_pk_add_f32 v[{o+2*e}:{o+2*e+1}], v[{o+2*e}:{o+2*e+1}], 1.0 op_sel_hi:[1,0]")
                    for e in range(8): a(f"v_rcp_f32 v{o+e}, v{o+e}")
                    for e in range(4): a(f"v_pk_mul_f32 v[{o+2*e}:{o+2*e+1}], v[{o+2*e}:{o+2*e+1}], v[{o+8+2*e}:{o+9+2*e}]")
                else:
                    for e in range(8): a(f"v_mul_f32 v{o+e}, s84, v{o+e}")
                    for e in range(8): a(f"v_exp_f32 v{o+e}, v{o+e}")
                    for e in range(8): a(f"v_add_f32 v{o+e}, 1.0, v{o+e}")
                    for e in range(8): a(f"v_rcp_f32 v{o+e}, v{o+e}")
                    for e in range(8): a(f"v_mul_f32 v{o+e}, v{o+e}, v{o+8+e}")
                for e in range(4): a(f"v_cvt_pk_bf16_f32 v{p+e}, v{o+2*e}, v{o+2*e+1}")
                s.vmem("hst", f"buffer_store_dwordx4 v[{p}:{p+3}], v9, s[44:47], s90 offen offset:{nt*2048} sc1")
                if ti < 5: wb_some(wpt)
        a("s_setprio 0")
        s.stamp(3)
        wb_some(s.opt.get("wmid", 6))
        s.vm_wait({"hst"})
        a("s_lshl_b32 s90, s87, 8"); a("s_lshl_b32 s91, s7, 4"); a("s_add_u32 s90, s90, s91"); a("s_lshl_b32 s91, s75, 3"); a("s_add_u32 s90, s90, s91")
        a(f"s_add_u32 s90, s90, {WS_FH}")
        s.write_flag(144, 90)
        s.lds_set(2, L_XH, 1)
        s.stamp(4)
        wb_some(25)
        s.lds_wait(L_XCNT, 1, 4, 148)
        for i in range(5, 9): wb_dma(i)
        a("v_add_u32 v10, s92, v7")
        a("v_min_u32 v114, 7, v1"); a("v_lshlrev_b32 v114, 3, v114")
        a("s_lshl_b32 s90, s9, 8"); a("s_lshl_b32 s91, s3, 6"); a("s_add_u32 s90, s90, s91"); a(f"s_add_u32 s90, s90, {WS_FH}")
        s.poll(112, 114, "s90")
        s.stamp(5)
        h0 = s.opt.get("h0", 2)
        for i in range(h0): hb_loads(i)
        for i in range(12):
            if i == s.opt.get("xg2", 7): s.lds_set(2, L_XG2, 1)
            s.vm_wait({("hb", i), ("wb", i)})
            if i == 0:
                for k in range(h0, 4): hb_loads(k)
            s.stamp(16 + i, 3)
            if 5 <= i < 9: a("s_waitcnt lgkmcnt(0)")
            rw = 12 + 20 * (i % 5); rh = 112 + 16 * (i % 4)
            n = i + 4
            extra = {k: [] for k in range(20)}
            if n < 12:
                extra[0].append(lambda n=n: (kt_of(n, 83), a("s_mul_i32 s98, s83, 5120"), a("s_add_u32 s98, s98, s80"), a("s_lshl_b32 s83, s83, 12"), a("s_add_u32 s83, s83, s81")))
                for sb in range(4):
                    extra[5 * sb + 4].append(lambda n=n, sb=sb: s.vmem(("hb", n), f"buffer_load_dwordx4 v[{rh+4*sb}:{rh+4*sb+3}], v7, s[44:47], s83 offen offset:{sb*1024} sc1"))
                if n >= 5:
                    r = 12 + 20 * (n % 5)
                    for dt in range(5):
                        if n < 9: f = lambda n=n, dt=dt, r=r: a(f"ds_read_b128 v[{r+4*dt}:{r+4*dt+3}], v10 offset:{(n - 5) * 5120 + dt*1024}")
                        elif dt < 4: f = lambda n=n, dt=dt, r=r: s.vmem(("wb", n), f"buffer_load_dwordx4 v[{r+4*dt}:{r+4*dt+3}], v7, s[44:47], s98 offen offset:{dt*1024} sc1")
                        else: f = lambda n=n, dt=dt, r=r: s.vmem(("wb", n), f"buffer_load_dwordx4 v[{r+4*dt}:{r+4*dt+3}], v8, s[44:47], s98 offen sc1")
                        extra[4 * dt + 2].append(f)
            def pw(k):
                sb, dt = divmod(k, 5); o = 176 + 4 * (4 * dt + sb)
                a(f"ds_write_b128 v12, v[{o}:{o+3}] offset:{sb*5120 + dt*64}")
            if i == 11:
                extra[0].append(lambda: (a("v_and_b32 v12, 15, v1"), a("v_lshrrev_b32 v13, 4, v1"), a("v_bfe_u32 v14, v1, 1, 2"), a("v_xor_b32 v13, v13, v14")))
                extra[1].append(lambda: (a("v_mul_u32_u24 v12, 320, v12"), a("v_lshl_add_u32 v12, v13, 4, v12"), a("v_add_u32 v12, s92, v12")))
                for k in range(12): extra[k + 8].append(lambda k=k: pw(k))
            for sb in range(4):
                for dt in range(5):
                    o = 176 + 4 * (4 * dt + sb)
                    c = "0" if i == 0 else f"v[{o}:{o+3}]"
                    a(f"v_mfma_f32_16x16x32_bf16 v[{o}:{o+3}], v[{rw+4*dt}:{rw+4*dt+3}], v[{rh+4*sb}:{rh+4*sb+3}], {c}")
                    for f in extra[5 * sb + dt]: f()
        s.stamp(6)
        for k in range(12, 20):
            if k == 19: a("s_nop 0")
            pw(k)
        s.stamp(7)

    def final(s):
        a = s.a
        s.label("L_final")
        s.srd(48, 38, 2621440)
        a(f"s_mul_i32 s74, s9, {64*1280}"); a("s_mul_i32 s75, s10, 160"); a("s_add_u32 s74, s74, s75")
        def addr(n, b):
            a(f"v_mul_u32_u24 v13, 6554, v{n}"); a("v_lshrrev_b32 v13, 16, v13")
            a("v_mul_u32_u24 v14, 10, v13"); a(f"v_sub_u32 v14, v{n}, v14")
            a("v_bfe_u32 v15, v13, 1, 2"); a(f"v_lshlrev_b32 v{b}, 1, v14"); a(f"v_xor_b32 v{b}, v{b}, v15"); a(f"v_xor_b32 v{b+1}, 1, v{b}")
            a("v_mul_u32_u24 v15, 320, v13"); a(f"v_lshl_add_u32 v{b}, v{b}, 4, v15"); a(f"v_lshl_add_u32 v{b+1}, v{b+1}, 4, v15")
            a(f"v_lshlrev_b32 v{b+2}, 4, v{n}"); a(f"v_add_u32 v{b+2}, {L_QT}, v{b+2}")
            a(f"v_lshlrev_b32 v{b+3}, 2, v13"); a(f"v_add_u32 v{b+3}, {L_GF}, v{b+3}")
            a(f"v_mul_u32_u24 v{b+4}, 1120, v13"); a(f"v_lshl_add_u32 v{b+4}, v{n}, 4, v{b+4}")
        def rd(b, d):
            for w in range(4):
                a(f"ds_read_b128 v[{d+8*w}:{d+3+8*w}], v{b} offset:{w*20480}")
                a(f"ds_read_b128 v[{d+4+8*w}:{d+7+8*w}], v{b+1} offset:{w*20480}")
            a(f"ds_read_b128 v[{d+32}:{d+35}], v{b+2}"); a(f"ds_read_b32 v{d+36}, v{b+3}")
        def comp(b, d):
            for e in range(4):
                a(f"v_pk_add_f32 v[{d+2*e}:{d+1+2*e}], v[{d+2*e}:{d+1+2*e}], v[{d+8+2*e}:{d+9+2*e}]")
                a(f"v_pk_add_f32 v[{d+16+2*e}:{d+17+2*e}], v[{d+16+2*e}:{d+17+2*e}], v[{d+24+2*e}:{d+25+2*e}]")
            a(f"v_sub_f32 v{d+36}, 1.0, v{d+36}"); a(f"v_cvt_pk_bf16_f32 v{d+36}, v{d+36}, v{d+36}"); a(f"v_and_b32 v{d+36}, 0xffff0000, v{d+36}")
            for e in range(4):
                a(f"v_pk_add_f32 v[{d+2*e}:{d+1+2*e}], v[{d+2*e}:{d+1+2*e}], v[{d+16+2*e}:{d+17+2*e}]")
            for e in range(4):
                a(f"v_lshlrev_b32 v{d+8+2*e}, 16, v{d+32+e}"); a(f"v_and_b32 v{d+9+2*e}, 0xffff0000, v{d+32+e}")
                a(f"v_pk_fma_f32 v[{d+8+2*e}:{d+9+2*e}], v[{d+2*e}:{d+1+2*e}], v[{d+36}:{d+37}], v[{d+8+2*e}:{d+9+2*e}] op_sel_hi:[1,0,1]")
            for e in range(4): a(f"v_cvt_pk_bf16_f32 v{d+32+e}, v{d+8+2*e}, v{d+9+2*e}")
            a(f"buffer_store_dwordx4 v[{d+32}:{d+35}], v{b+4}, s[48:51], s74 offen {s.opt.get('ost', '')}")
        addr(0, 16)
        a("s_lshl_b32 s75, s3, 4"); a("s_add_u32 s75, s75, 512"); a("v_and_b32 v12, 15, v1"); a("v_add_u32 v12, s75, v12")
        addr(12, 24)
        a("s_waitcnt lgkmcnt(0)"); a("s_barrier")
        s.stamp(12)
        rd(16, 32)
        a("s_mov_b64 exec, 0xffff");
        rd(24, 72)
        a("s_mov_b64 exec, -1")
        a("s_waitcnt lgkmcnt(10)")
        comp(16, 32)
        a("s_waitcnt lgkmcnt(0)")
        a("s_mov_b64 exec, 0xffff")
        comp(24, 72)
        a("s_mov_b64 exec, -1")
        s.label("L_fin2")
        if s.opt.get("stamps"):
            s.stamp(13)
            a("s_waitcnt vmcnt(0)")
            s.stamp(14)
            a("s_memrealtime s[96:97]"); a("s_waitcnt lgkmcnt(0)"); a("v_writelane_b32 v11, s96, 15")
            a("s_lshl_b32 s74, s2, 3"); a("s_add_u32 s74, s74, s3"); a("s_lshl_b32 s74, s74, 8"); a(f"s_add_u32 s74, s74, {WS_STAMP}")
            a("v_lshlrev_b32 v12, 2, v1")
            a("buffer_store_dword v11, v12, s[44:47], s74 offen")
            if s.opt.get("dbgout"):
                ld = s.newlab("L_dbo")
                a("s_cmp_lg_u32 s2, 9"); a(f"s_cbranch_scc1 {ld}"); a("s_cmp_lg_u32 s3, 0"); a(f"s_cbranch_scc1 {ld}")
                s.srd(64, 40, 256)
                a("v_readlane_b32 s74, v11, 0"); a("s_nop 1"); a("v_subrev_u32 v11, s74, v11")
                a("v_add_u32 v12, 4, v12")
                a("s_mov_b64 exec, 0x7ffe"); a("buffer_store_dword v11, v12, s[64:67], 0 offen"); a("s_mov_b64 exec, -1")
                s.label(ld)
        s.label("L_end")
        a("s_endpgm")

    def kv_pre(s):
        a = s.a
        a("v_mul_u32_u24 v90, 3277, v1"); a("v_lshrrev_b32 v90, 16, v90"); a("v_mul_u32_u24 v91, 20, v90"); a("v_sub_u32 v91, v1, v91")
        a(f"s_mul_i32 s76, s74, {CV_SZ}"); a(f"s_add_u32 s76, s76, {L_CV + 2*CV_SZ}")
        a("v_lshlrev_b32 v95, 5, v91"); a("v_add_u32 v95, s76, v95")
        a(f"s_mul_i32 s77, s75, {16*192}"); a("s_add_u32 s76, s76, s77"); a("s_and_b32 s77, s10, 1"); a("s_lshl_b32 s77, s77, 5"); a("s_add_u32 s76, s76, s77")
        a(f"v_mul_u32_u24 v10, {6*192}, v90"); a("v_lshl_add_u32 v10, v91, 3, v10"); a("v_add_u32 v10, s76, v10")
        a("s_lshl_b32 s77, s3, 3"); a("v_mul_u32_u24 v85, 3, v90"); a("v_add_u32 v85, s77, v85"); a("v_and_b32 v86, 7, v91")
        for m in range(3):
            a(f"v_sub_u32 v87, {29+m}, v85"); a("v_lshrrev_b32 v88, 2, v87"); a("v_xor_b32 v88, v88, v86"); a("v_lshlrev_b32 v88, 4, v88")
            a("v_and_b32 v87, 3, v87"); a("v_lshl_add_u32 v88, v87, 2, v88"); a(f"v_lshl_add_u32 v{92+m}, v91, 7, v88")
            a(f"v_add_u32 v{92+m}, {L_T}, v{92+m}")
    def kv_main(s):
        a = s.a
        s.label("L_kv")
        a("s_barrier")
        s.stamp(8)
        a(f"ds_read_b128 v[42:45], v95 offset:{SC_SHK}"); a(f"ds_read_b128 v[46:49], v95 offset:{SC_SHK + 16}")
        for i in range(9): a(f"ds_read_b64 v[{12+2*i}:{13+2*i}], v10 offset:{SC_K + 192*i}")
        a("s_waitcnt lgkmcnt(9)")
        for i in range(6): a(f"ds_read_b64 v[{30+2*i}:{31+2*i}], v10 offset:{SC_V + 192*i}")
        for e in range(4):
            a(f"v_lshlrev_b32 v{96+e}, 16, v{42+2*e}"); a(f"v_and_b32 v{100+e}, 0xffff0000, v{42+2*e}")
            a(f"v_lshlrev_b32 v{104+e}, 16, v{43+2*e}"); a(f"v_and_b32 v{108+e}, 0xffff0000, v{43+2*e}")
        a("s_waitcnt lgkmcnt(0)")
        s.ex(60)
        for d in range(2):
            for i in range(9):
                a(f"v_lshlrev_b32 v{112+2*i}, 16, v{12+2*i+d}"); a(f"v_and_b32 v{113+2*i}, 0xffff0000, v{12+2*i+d}")
            for i in range(6):
                a(f"v_lshlrev_b32 v{130+2*i}, 16, v{30+2*i+d}"); a(f"v_and_b32 v{131+2*i}, 0xffff0000, v{30+2*i+d}")
            for r in range(6):
                a(f"v_pk_mul_f32 v[{142+2*r}:{143+2*r}], v[{112+2*r}:{113+2*r}], v[{108+2*d}:{109+2*d}]")
            for j in (2, 1, 0):
                for r in range(6):
                    k = 112 + 2 * (r + 3 - j); w = 96 + 4 * j + 2 * d
                    a(f"v_pk_fma_f32 v[{142+2*r}:{143+2*r}], v[{k}:{k+1}], v[{w}:{w+1}], v[{142+2*r}:{143+2*r}]")
            for r in range(6):
                a(f"v_pk_mul_f32 v[{142+2*r}:{143+2*r}], v[{142+2*r}:{143+2*r}], v[{130+2*r}:{131+2*r}]")
            for e in range(2):
                for m in range(3):
                    hi = 4 - 2 * m
                    a(f"v_cvt_pk_bf16_f32 v{154+3*e+m}, v{142+2*(hi+1)+e}, v{142+2*hi+e}")
            for m in (1, 2, 0):
                if m == 0: a("s_mov_b32 exec_hi, 0xff")
                for e in range(2):
                    a(f"ds_write_b32 v{92+m}, v{154+3*e+m} offset:{(2*d+e)*2560}")
            a("s_mov_b32 exec_hi, 0xfffffff")
        a("s_mov_b64 exec, -1")
        s.stamp(9)
        a("s_branch L_kvret")
        s.label("L_codeend")

    def build(s):
        s.kvt = s.opt.get("kvt", 6)
        s.nt = "nt" if s.opt.get("nt", 1) else ""
        hdr = open("gated_mix__ssm_conv_h3__glu_gated_glu__prompt.s.ref").read().split("; Override launch")[0]
        out = hdr + f"; @launch grid=(256,1,1) block=(512,1,1) lds={LDS_TOTAL}\n"
        out += '.amdgcn_target "amdgcn-amd-amdhsa--gfx950"\n.text\n' + f".globl {KN}\n.p2align 8\n.type {KN},@function\n{KN}:\n"
        s.prologue(); s.loader(); s.chore(); s.ywave(); s.xwave(); s.final(); s.kv_main()
        out += "\n".join(s.L) + "\n"
        out += f""".section .rodata,"a"
.p2align 6
.amdhsa_kernel {KN}
  .amdhsa_next_free_vgpr 256
  .amdhsa_next_free_sgpr 102
  .amdhsa_accum_offset 256
  .amdhsa_group_segment_fixed_size 0
  .amdhsa_kernarg_size 112
  .amdhsa_user_sgpr_count 2
  .amdhsa_user_sgpr_kernarg_segment_ptr 1
  .amdhsa_system_sgpr_workgroup_id_x 1
.end_amdhsa_kernel
"""
        return out

if __name__ == "__main__":
    opt = {}
    outp = sys.argv[1]
    for x in sys.argv[2:]:
        k, v = x.split("=")
        if "," in v: opt[k] = tuple(int(z) for z in v.split(","))
        else:
            try: opt[k] = int(v)
            except ValueError: opt[k] = v
    open(outp, "w").write(Gen(opt).build())
```

```python
import sys
KN = "gated_mix__ssm_conv_h3__glu_gated_glu__prompt_kernel"

WS_HB = 0x000000; WS_WB = 0x610000; HBS = 48*4096 + 128; WBS = 48*5120 + 128; WS_KT = 0x800000; WS_YT = 0xB00000
WS_G = 0xE00000; WS_FA = 0xE10000; WS_FB = 0xE12000; WS_FH = 0xE14000; WS_FY = 0xE16000
WS_STAMP = 0xF00000
TS = 4224
L_XR = 0; L_WR = 32768; L_CV = 81920; CV_SZ = 17728; H_SZ = 8448; L_QT = 152832; L_MISC = 163072; LDS_TOTAL = 163840
CV_A = 0; CV_B = 4224; CV_U0 = 0; CV_U1 = 4616
L_FULL = L_MISC; L_FREE = L_MISC + 16; L_EPOCH = L_MISC + 32; L_QDONE = L_MISC + 40; L_SDONE = L_MISC + 48; L_XG2 = L_MISC + 56; L_XH = L_MISC + 60; L_XCNT = L_MISC + 52; L_GF = L_MISC + 256
SC_K = 0; SC_V = 6720; SC_SHK = 13440; L_T = L_CV; L_WDS = L_CV + CV_SZ
SPIN_MAX = 30000
NCONV = 160

class Gen:
    def __init__(s, opt):
        s.L = []; s.opt = opt; s.vm = []; s.lab = 0; s.vstamp = 11
    def a(s, x): s.L.append("    " + x)
    def label(s, x): s.L.append(x + ":")
    def newlab(s, p="L"):
        s.lab += 1; return f"{p}_{s.lab}"
    def vm_reset(s): s.vm = []
    def vmem(s, tag, ins): s.a(ins); s.vm.append(tag)
    def vm_wait(s, tags):
        idx = -1
        for i, t in enumerate(s.vm):
            if t in tags: idx = i
        if idx < 0: return
        n = len(s.vm) - 1 - idx
        assert n <= 63
        s.a(f"s_waitcnt vmcnt({n})")
        s.vm = s.vm[idx + 1:]
    def vm_wait_all(s):
        s.a("s_waitcnt vmcnt(0)"); s.vm = []
    def ex(s, n):
        if n >= 64: s.a("s_mov_b64 exec, -1")
        elif n > 32: s.a("s_mov_b32 exec_lo, -1"); s.a(f"s_mov_b32 exec_hi, {hex((1 << (n - 32)) - 1)}")
        elif n == 32: s.a("s_mov_b32 exec_hi, 0")
        else: s.a(f"s_mov_b32 exec_lo, {hex((1 << n) - 1)}"); s.a("s_mov_b32 exec_hi, 0")
    def srd(s, d, p, nbytes):
        s.a(f"s_mov_b32 s{d}, s{p}"); s.a(f"s_and_b32 s{d+1}, s{p+1}, 0xffff")
        s.a(f"s_mov_b32 s{d+2}, {nbytes}"); s.a(f"s_mov_b32 s{d+3}, 0x20000")
    def stamp(s, idx, lvl=1):
        if s.opt.get("stamps", 0) >= 1 and (lvl == 1 or s.opt.get("stamps", 0) == lvl):
            s.a("s_memtime s[96:97]"); s.a("s_waitcnt lgkmcnt(0)")
            s.a(f"v_writelane_b32 v{s.vstamp}, s96, {idx}")
            if s.opt.get("rt") and lvl == 1 and idx < 15:
                s.a("s_memrealtime s[96:97]"); s.a("s_waitcnt lgkmcnt(0)"); s.a(f"v_writelane_b32 v{s.vstamp}, s96, {idx + 40}")
    def poll(s, vflag, voff, soff, scnt=94, slp=None):
        l0 = s.newlab("L_poll"); l1 = s.newlab("L_pdone")
        s.a(f"s_mov_b32 s{scnt}, {SPIN_MAX}")
        s.label(l0)
        s.a(f"buffer_load_dwordx2 v[{vflag}:{vflag+1}], v{voff}, s[44:47], {soff} offen sc1")
        s.a("s_waitcnt vmcnt(0)")
        s.a(f"v_cmp_ne_u64 vcc, s[72:73], v[{vflag}:{vflag+1}]")
        s.a("s_nop 1")
        s.a(f"s_cbranch_vccz {l1}")
        slp = s.opt.get("slp", 4) if slp is None else slp
        if slp: s.a(f"s_sleep {slp}")
        s.a(f"s_sub_u32 s{scnt}, s{scnt}, 1")
        s.a(f"s_cbranch_scc0 {l0}")
        s.label(l1)
        s.vm = []
    def lds_wait(s, addr, nw, need, vt, scache=None, scnt=94, slp=0):
        a = s.a
        sc = scache if scache is not None else 95
        l0 = s.newlab("L_lw"); l1 = s.newlab("L_lwd")
        if scache is not None:
            a(f"s_cmp_ge_u32 s{sc}, {need}"); a(f"s_cbranch_scc1 {l1}")
        a(f"s_mov_b32 s{scnt}, {SPIN_MAX * 8}")
        a(f"v_mov_b32 v{vt+4}, {addr}")
        s.label(l0)
        if nw == 1: a(f"ds_read_b32 v{vt}, v{vt+4}")
        elif nw == 2: a(f"ds_read_b64 v[{vt}:{vt+1}], v{vt+4}")
        else: a(f"ds_read_b128 v[{vt}:{vt+3}], v{vt+4}")
        a("s_waitcnt lgkmcnt(0)")
        if nw == 2: a(f"v_min_u32 v{vt}, v{vt}, v{vt+1}")
        if nw == 4: a(f"v_min_u32 v{vt}, v{vt}, v{vt+1}"); a(f"v_min3_u32 v{vt}, v{vt}, v{vt+2}, v{vt+3}")
        a("s_nop 0")
        a(f"v_readfirstlane_b32 s{sc}, v{vt}")
        a("s_nop 1")
        a(f"s_cmp_ge_u32 s{sc}, {need}"); a(f"s_cbranch_scc1 {l1}")
        if slp: a(f"s_sleep {slp}")
        a(f"s_sub_u32 s{scnt}, s{scnt}, 1"); a(f"s_cbranch_scc0 {l0}")
        s.label(l1)
    def read_epoch(s, vt):
        a = s.a; l0 = s.newlab("L_re"); l1 = s.newlab("L_red")
        a(f"s_mov_b32 s94, {SPIN_MAX * 8}"); a(f"v_mov_b32 v{vt+2}, {L_EPOCH}")
        s.label(l0)
        a(f"ds_read_b64 v[{vt}:{vt+1}], v{vt+2}")
        a("s_waitcnt lgkmcnt(0)")
        a(f"v_readfirstlane_b32 s72, v{vt}"); a(f"v_readfirstlane_b32 s73, v{vt+1}"); a("s_nop 1")
        a("s_cmp_lg_u32 s73, 0"); a(f"s_cbranch_scc1 {l1}")
        a("s_sub_u32 s94, s94, 1"); a(f"s_cbranch_scc0 {l0}")
        s.label(l1)
    def write_flag(s, vt, sreg):
        s.a(f"v_mov_b32 v{vt}, s72"); s.a(f"v_mov_b32 v{vt+1}, s73"); s.a(f"v_mov_b32 v{vt+2}, 0")
        s.a("s_mov_b64 exec, 1")
        s.vmem("flag", f"buffer_store_dwordx2 v[{vt}:{vt+1}], v{vt+2}, s[44:47], s{sreg} offen sc1")
        s.a("s_mov_b64 exec, -1")
    def lds_set(s, vt, addr_sreg_or_const, val):
        s.a(f"v_mov_b32 v{vt}, {addr_sreg_or_const}"); s.a(f"v_mov_b32 v{vt+1}, {val}"); s.a(f"ds_write_b32 v{vt}, v{vt+1}")

    def prologue(s):
        a = s.a
        a("s_cmp_ge_u32 s2, 256"); a("s_cbranch_scc1 L_end")
        a("s_load_dwordx16 s[16:31], s[0:1], 0")
        a("s_load_dwordx8 s[32:39], s[0:1], 64")
        a("s_load_dwordx4 s[40:43], s[0:1], 96")
        a("v_lshrrev_b32 v2, 6, v0")
        a("v_and_b32 v1, 63, v0")
        a("v_readfirstlane_b32 s3, v2")
        a("s_and_b32 s4, s2, 7"); a("s_lshr_b32 s5, s2, 3")
        a("s_lshr_b32 s6, s4, 2"); a("s_lshl_b32 s6, s6, 3"); a("s_and_b32 s11, s5, 7"); a("s_add_u32 s6, s6, s11")
        a("s_and_b32 s7, s4, 3"); a("s_lshl_b32 s7, s7, 2"); a("s_lshr_b32 s12, s5, 3"); a("s_add_u32 s7, s7, s12")
        a("s_lshl_b32 s8, s12, 1"); a("s_add_u32 s8, s8, s11"); a("s_and_b32 s8, s8, 7")
        if s.opt.get("g2map", 0):
            a("s_lshr_b32 s9, s4, 1"); a("s_lshl_b32 s9, s9, 3"); a("s_add_u32 s9, s9, s11")
            a("s_and_b32 s10, s4, 1"); a("s_lshl_b32 s10, s10, 2"); a("s_add_u32 s10, s10, s12")
        else:
            a("s_lshl_b32 s9, s4, 2"); a("s_and_b32 s13, s5, 3"); a("s_add_u32 s9, s9, s13"); a("s_lshr_b32 s10, s5, 2")
        if s.opt.get("cmap", 0):
            a("s_mul_i32 s14, s5, 5"); a("s_add_u32 s14, s14, s4"); a("s_cmp_lt_u32 s4, 5"); a("s_cselect_b32 s14, s14, 255")
        else: a("s_mov_b32 s14, s2")
        if s.opt.get("stamps"): a("v_mov_b32 v11, 0")
        a("v_lshlrev_b32 v12, 4, v1")
        a("s_waitcnt lgkmcnt(0)")
        s.srd(44, 42, 0x10000000)
        s.stamp(0)
        if s.opt.get("stamps"):
            a("s_memrealtime s[96:97]"); a("s_waitcnt lgkmcnt(0)"); a("v_writelane_b32 v11, s96, 62")
        a("s_cmp_lt_u32 s3, 4"); a("s_cbranch_scc1 L_X")
        a("s_cmp_ge_u32 s3, 6"); a("s_cbranch_scc1 L_C")

    def loader(s):
        a = s.a; s.vm_reset()
        s.label("L_L")
        a(f"s_setprio {s.opt.get('lprio', 3)}")
        a("s_sub_u32 s74, s3, 4")
        s.srd(48, 16, 2621440)
        a("s_cmp_eq_u32 s74, 0")
        a("s_cselect_b32 s52, s30, s32"); a("s_cselect_b32 s53, s31, s33"); a("s_and_b32 s53, s53, 0xffff")
        a("s_mov_b32 s54, 1966080"); a("s_mov_b32 s55, 0x20000")
        a("v_lshrrev_b32 v4, 2, v1"); a("v_mul_u32_u24 v2, 3072, v4")
        a("v_and_b32 v5, 3, v1")
        if s.m16: a("v_lshrrev_b32 v6, 5, v1"); a("v_lshlrev_b32 v6, 1, v6"); a("v_xor_b32 v6, v6, v5")
        else: a("s_lshl_b32 s75, s74, 1"); a("v_xor_b32 v6, s75, v5")
        a("v_lshl_add_u32 v2, v6, 4, v2")
        a("s_mul_i32 s75, s7, 192"); a("v_add_u32 v2, s75, v2")
        a("v_mul_u32_u24 v3, 1280, v4")
        if s.m16:
            a("v_lshrrev_b32 v7, 5, v1"); a("v_bfe_u32 v6, v1, 4, 1"); a("v_xor_b32 v6, v6, v7"); a("v_lshl_add_u32 v6, v6, 1, v7"); a("v_xor_b32 v6, v6, v5")
        else:
            a("v_lshrrev_b32 v6, 4, v1"); a("s_lshl_b32 s75, s74, 2"); a("v_add_u32 v6, s75, v6")
            a("v_lshrrev_b32 v7, 1, v6"); a("v_xor_b32 v6, v6, v7"); a("v_and_b32 v6, 3, v6"); a("v_xor_b32 v6, v6, v5")
        a("v_lshl_add_u32 v3, v6, 4, v3")
        a("s_lshl_b32 s75, s6, 3"); a("s_add_u32 s75, s75, s74"); a(f"s_mul_i32 s75, s75, {16*1280}"); a("v_add_u32 v3, s75, v3")
        a("s_lshl_b32 s78, s74, 10")
        a(f"s_mul_i32 s79, s74, 6144"); a(f"s_add_u32 s79, s79, {L_WR}")
        groups = s.opt.get("groups", (1,) * 10)
        if s.opt.get("cyc", 1): a("s_mul_i32 s8, s8, 5"); a("s_lshr_b32 s8, s8, 2")
        def dsel(D):
            if s.opt.get("cyc", 1):
                a(f"s_add_u32 s80, s8, {D}"); a("s_cmp_ge_u32 s80, 10"); a("s_cselect_b32 s15, 10, 0"); a("s_sub_u32 s80, s80, s15")
                return
            b = 0
            for g in groups:
                if D < b + g: break
                b += g
            if g == 1: a(f"s_mov_b32 s80, {D}"); return
            assert g in (2, 4, 8)
            src = "s8" if g == 8 else ("s14" if g == 4 else "s15")
            a(f"s_add_u32 s80, {src}, {D - b}"); a(f"s_and_b32 s80, s80, {g - 1}")
            if b: a(f"s_add_u32 s80, s80, {b}")
        def issue_x(D):
            dsel(D); a("s_lshl_b32 s81, s80, 7")
            for gi in range(4):
                for h in range(2):
                    t = 2 * D + h
                    a(f"s_add_u32 m0, s78, {L_XR + (t & 3) * 8192 + gi * 2048}")
                    a(f"s_add_u32 s82, s81, {gi * 32 * 1280 + h * 64}")
                    s.vmem(("x", t), f"buffer_load_dwordx4 v3, s[48:51], s82 offen lds")
        def issue_w(t):
            dsel(t >> 1); a(f"s_mul_i32 s81, s80, {64*3072}")
            for rh in range(2):
                for pc in range(3):
                    a(f"s_add_u32 m0, s79, {(t & 3) * 12288 + pc * 2048 + rh * 1024}")
                    a(f"s_add_u32 s82, s81, {(32 * (t & 1) + 16 * rh) * 3072 + pc * 64}")
                    s.vmem(("w", t), f"buffer_load_dwordx4 v2, s[52:55], s82 offen lds")
        def publish(t):
            s.vm_wait({("x", t), ("w", t), ("x", t | 1)})
            s.stamp(40 + t, 2)
            a("s_barrier")
            s.stamp(16 + t, 2)
        issue_w(0); issue_x(0); issue_w(1)
        a("s_barrier")
        publish(0); publish(1)
        if s.opt.get("rtouch", 2):
            a("s_barrier")
            issue_x(1); issue_w(2)
        else:
            issue_x(1); issue_w(2)
            a("s_barrier")
        issue_w(3)
        hold = -5
        pend = []
        for n in range(1, 17):
            if n % 2 == 0 and n + 2 < 20: pend.append(lambda n=n: issue_x((n + 2) // 2))
            if n + 3 < 20: pend.append(lambda n=n: issue_w(n + 3))
            if n != hold:
                for f in pend: f()
                pend = []
            if n < 16: publish(n + 1)
        a("s_mov_b32 s83, s74")
        a("s_branch L_Yt")

    def row_loads(s, srd, nrows, vfirst, vrest, reg, tag, nt):
        a = s.a
        for i in range((nrows + 4) // 5):
            n = min(5, nrows - 5 * i)
            if i == 0 or n < 5: s.ex(12 * n)
            r = reg + 4 * i
            if i == 0: s.vmem(tag, f"buffer_load_dwordx4 v[{r}:{r+3}], v{vfirst}, s[{srd}:{srd+3}], 0 offen {nt}")
            else:
                a(f"s_mov_b32 s77, {6400*(i-1)}")
                s.vmem(tag, f"buffer_load_dwordx4 v[{r}:{r+3}], v{vrest}, s[{srd}:{srd+3}], s77 offen {nt}")
        a("s_mov_b64 exec, -1")
    def dma_rows(s, srd, nrows, vfirst, vrest, ldsbase_s, ldsoff, tag, nt):
        a = s.a
        for i in range((nrows + 4) // 5):
            a(f"s_add_u32 m0, s{ldsbase_s}, {ldsoff + 960*i}")
            n = min(5, nrows - 5 * i)
            if i == 0 or n < 5: s.ex(12 * n)
            if i == 0: s.vmem(tag, f"buffer_load_dwordx4 v{vfirst}, s[{srd}:{srd+3}], 0 offen {nt} lds")
            else:
                a(f"s_mov_b32 s77, {6400*(i-1)}")
                s.vmem(tag, f"buffer_load_dwordx4 v{vrest}, s[{srd}:{srd+3}], s77 offen {nt} lds")
        a("s_mov_b64 exec, -1")
    def img_write(s, sbase, off, n, reg):
        a = s.a
        a(f"v_add_u32 v13, s{sbase}, v12"); s.ex(60)
        for i in range(n): a(f"ds_write_b128 v13, v[{reg+4*i}:{reg+4*i+3}] offset:{off + 960*i}")
        a("s_mov_b64 exec, -1")
    def h_copies(s, sbase, reg, half=None):
        a = s.a
        a(f"v_add_u32 v13, s{sbase}, v12")
        for i in (range(4) if half is None else range(2 * half, 2 * half + 2)):
            r = reg + 4 * i
            if i == 0: a("v_mov_b32 v234, 0")
            else:
                a(f"v_readlane_b32 s74, v{r-1}, 63"); a("s_nop 1"); a("v_mov_b32 v234, s74")
            a("s_nop 1")
            a(f"v_mov_b32_dpp v234, v{r+3} wave_shr:1 row_mask:0xf bank_mask:0xf")
            a(f"ds_write_b128 v13, v[{r}:{r+3}] offset:{CV_B + 64 + i*1024}")
            a(f"v_alignbit_b32 v236, v{r}, v234, 16")
            a(f"v_alignbit_b32 v237, v{r+1}, v{r}, 16")
            a(f"v_alignbit_b32 v238, v{r+2}, v{r+1}, 16")
            a(f"v_alignbit_b32 v239, v{r+3}, v{r+2}, 16")
            a(f"ds_write_b128 v13, v[236:239] offset:{CV_A + 64 + i*1024}")
        if half == 0: return
        a("v_lshrrev_b32 v234, 2, v1"); a("v_and_b32 v235, 1, v234"); a("v_mul_u32_u24 v235, 4160, v235")
        a("v_lshrrev_b32 v234, 1, v234"); a(f"v_mul_u32_u24 v234, {CV_B}, v234"); a("v_add_u32 v235, v235, v234")
        a("v_and_b32 v234, 3, v1"); a("v_lshl_add_u32 v235, v234, 4, v235"); a(f"v_add_u32 v235, s{sbase}, v235")
        for r in range(236, 240): a(f"v_mov_b32 v{r}, 0")
        s.ex(16)
        a("ds_write_b128 v235, v[236:239]")
        a("s_mov_b64 exec, -1")
    def u_addr(s, sbase):
        a = s.a
        def swz(dst, off):
            a(f"v_add_u32 v{dst}, {off}, v12"); a(f"v_lshrrev_b32 v41, 3, v{dst}"); a("v_and_b32 v41, 32, v41"); a(f"v_xor_b32 v{dst}, v{dst}, v41")
            a(f"v_add_u32 v{dst}, s{sbase}, v{dst}"); a(f"v_subrev_u32 v{dst}, 64, v{dst}")
        swz(14, 68); swz(15, 80); swz(40, 72)
        a(f"v_add_u32 v13, s{sbase}, v12")
        for r in range(32, 36): a(f"v_mov_b32 v{r}, 0")
        s.ex(34); a("ds_write_b128 v13, v[32:35] offset:4096")
        s.ex(33); a(f"ds_write_b128 v13, v[32:35] offset:{CV_U1 + 4096 - 8}")
        a("s_mov_b64 exec, 1"); a("ds_write_b128 v13, v[32:35]")
        a("s_mov_b64 exec, -1")
    def u_stage(s, reg, nwait0):
        a = s.a
        for i in range(4):
            a(f"s_waitcnt vmcnt({nwait0 + 3 - i})")
            r = reg + 4 * i
            a(f"ds_write_b64 v40, v[{r}:{r+1}] offset:{CV_U1 + i*1024}")
            a(f"ds_write_b64 v15, v[{r+2}:{r+3}] offset:{CV_U1 + i*1024}")
            a(f"ds_write_b64 v14, v[{r}:{r+1}] offset:{i*1024}") if False else None
            a(f"ds_write_b32 v14, v{r} offset:{i*1024}")
            a(f"ds_write_b64 v14, v[{r+1}:{r+2}] offset:{i*1024 + 4}") if False else None
            a(f"ds_write_b32 v14, v{r+1} offset:{i*1024 + 4}")
            a(f"ds_write_b32 v14, v{r+2} offset:{i*1024 + 8}")
            a(f"ds_write_b32 v15, v{r+3} offset:{i*1024}")

    def chore(s):
        a = s.a; s.vm_reset(); nt = s.nt
        s.label("L_C")
        a(f"s_setprio {s.opt.get('cprio', 2)}")
        a("s_sub_u32 s78, s3, 6")
        a(f"s_mul_i32 s79, s78, {CV_SZ}"); a(f"s_add_u32 s79, s79, {L_CV}")
        a(f"s_add_u32 s84, s79, {2*CV_SZ}")
        a("s_mul_i32 s93, s78, 4800"); a(f"s_add_u32 s93, s93, {L_WDS}")
        s.srd(64, 40, 256)
        l = s.newlab("L_noep")
        a("s_cmp_lg_u32 s2, 0"); a(f"s_cbranch_scc1 {l}"); a("s_cmp_lg_u32 s78, 0"); a(f"s_cbranch_scc1 {l}")
        a("s_memrealtime s[74:75]"); a("s_waitcnt lgkmcnt(0)"); a("s_or_b32 s75, s75, 0x40000000")
        a("v_mov_b32 v2, s74"); a("v_mov_b32 v3, s75"); a("v_mov_b32 v4, 0")
        a("s_mov_b64 exec, 1"); a("buffer_store_dwordx2 v[2:3], v4, s[64:67], 0 offen sc1"); a("s_mov_b64 exec, -1")
        s.label(l)
        s.srd(48, 18, 2621440); s.srd(52, 20, 2621440); s.srd(56, 22, 5120); s.srd(60, 24, 2621440)
        s.srd(68, 16, 2621440); s.srd(88, 34, 1966080)
        a("s_and_b32 s85, s10, 1"); a("s_lshl_b32 s85, s85, 5")
        a("s_mul_i32 s80, s10, 160"); a("s_sub_u32 s80, s80, s85")
        a("s_lshl_b32 s81, s9, 6"); a("s_lshl_b32 s74, s78, 5"); a("s_add_u32 s81, s81, s74")
        a("v_mul_u32_u24 v4, 5462, v1"); a("v_lshrrev_b32 v4, 16, v4")
        a("v_mul_u32_u24 v5, 12, v4"); a("v_sub_u32 v5, v1, v5")
        a("v_mul_u32_u24 v6, 1280, v4"); a("v_lshl_add_u32 v6, v5, 4, v6"); a("v_add_u32 v6, s80, v6")
        a("s_mul_i32 s74, s9, 48"); a("s_mul_i32 s75, s78, 24"); a("s_add_u32 s74, s74, s75"); a("s_mul_i32 s74, s74, 1280")
        a("v_add_u32 v16, s74, v6"); a("v_add_u32 v17, 6400, v16")
        a("s_mul_i32 s74, s81, 1280")
        a("v_add_u32 v20, s74, v6"); a("v_add_u32 v21, 6400, v20")
        a(f"v_subrev_u32 v18, {3*1280}, v20"); a("v_add_u32 v19, 6400, v18")
        a("v_mov_b32 v23, 0"); a("v_mov_b32 v37, 1")
        if s.opt.get("ticket", 0):
            lt = s.newlab("L_tk")
            a("s_cmp_eq_u32 s78, 0"); a(f"s_cbranch_scc1 {lt}")
            a("s_mov_b64 exec, 1"); a("buffer_atomic_add v37, v23, s[64:67], 0 offen offset:64 sc0"); a("s_mov_b64 exec, -1")
            s.label(lt)
        elif s.opt.get("cmap", 0):
            a("s_mul_i32 s74, s5, 5"); a("s_add_u32 s74, s74, s4"); a("s_cmp_lt_u32 s4, 5"); a("s_cselect_b32 s74, s74, 255"); a("v_mov_b32 v37, s74")
        else: a("v_mov_b32 v37, s2")
        a("s_barrier")
        s.dma_rows(48, 35, 18, 19, 84, SC_K, "k", nt)
        s.dma_rows(52, 32, 20, 21, 84, SC_V, "k", nt)
        a("s_mul_i32 s75, s10, 640"); a(f"s_add_u32 m0, s84, {SC_SHK}"); s.ex(40)
        s.vmem("k", "buffer_load_dwordx4 v12, s[56:59], s75 offen lds")
        a("s_mov_b64 exec, -1")
        s.vmem("ep", "buffer_load_dwordx2 v[38:39], v23, s[64:67], 0 offen sc1")
        s.stamp(40, 2); a("s_barrier")
        if s.opt.get("rtouch", 2):
            a("s_mov_b32 s76, 0x986431"); a("s_bitcmp1_b32 s11, 0"); a("s_cselect_b32 s76, 0x975420, s76")
            a("v_lshrrev_b32 v240, 4, v1"); a("v_lshlrev_b32 v240, 2, v240"); a("v_lshrrev_b32_e64 v241, v240, s76"); a("v_and_b32 v241, 15, v241")
            a("s_lshr_b32 s76, s76, 16"); a("v_lshrrev_b32_e64 v242, v240, s76"); a("v_and_b32 v242, 15, v242")
            a("v_and_b32 v243, 15, v1"); a("v_mul_u32_u24 v243, 1280, v243")
            a("v_lshl_add_u32 v241, v241, 7, v243"); a("v_lshl_add_u32 v242, v242, 7, v243")
            a("s_lshl_b32 s76, s6, 3"); a("s_lshl_b32 s77, s12, 1"); a("s_add_u32 s76, s76, s77"); a("s_add_u32 s76, s76, s78"); a(f"s_mul_i32 s98, s76, {16*1280}")
            a("v_bfe_u32 v243, v1, 4, 1"); a(f"v_mul_u32_u24 v243, {5*64*3072}, v243"); a("v_bfe_u32 v244, v1, 1, 3"); a("v_mul_u32_u24 v244, 3072, v244"); a("v_add_u32 v243, v243, v244")
            a("v_and_b32 v244, 1, v1"); a("v_lshl_add_u32 v243, v244, 7, v243")
            a("s_mul_i32 s76, s7, 192"); a("s_and_b32 s76, s76, 0xffffff80"); a(f"s_mul_i32 s77, s11, {8*3072}"); a("s_add_u32 s76, s76, s77"); a(f"s_add_u32 s99, s76, {4*64*3072}")
            a("s_cmp_eq_u32 s78, 0")
            a("s_cselect_b32 s48, s30, s32"); a("s_cselect_b32 s49, s31, s33"); a("s_and_b32 s49, s49, 0xffff"); a("s_mov_b32 s50, 1966080"); a("s_mov_b32 s51, 0x20000")
        s.stamp(41, 2); a("s_barrier")
        if s.opt.get("rtouch", 2):
            a("s_mov_b32 exec_hi, 0")
            s.vmem("t", "buffer_load_dword v250, v243, s[48:51], s99 offen")
            if s.opt.get("rtouch", 2) == 1:
                s.vmem("t", "buffer_load_dword v251, v242, s[68:71], s98 offen")
                a("s_mov_b64 exec, -1")
                s.vmem("t", "buffer_load_dword v252, v241, s[68:71], s98 offen")
            a("s_mov_b64 exec, -1")
        s.dma_rows(88, 24, 16, 17, 93, 0, "wd", nt)
        if s.opt.get("tlb", 0):
            def tlbt():
                l1 = s.newlab("L_t1"); l2 = s.newlab("L_t2")
                a("s_cmp_eq_u32 s78, 1"); a(f"s_cbranch_scc1 {l1}")
                a(f"s_mov_b32 s76, {HBS}"); a("v_mul_lo_u32 v253, v1, s76"); a(f"s_mov_b32 s76, {WS_HB + HBS - 128}")
                s.ex(32); a("buffer_load_dword v254, v253, s[44:47], s76 offen")
                a(f"s_mov_b32 s76, {WBS}"); a("v_mul_lo_u32 v253, v1, s76"); a(f"s_mov_b32 s76, {WS_WB + WBS - 128}")
                s.ex(8); a("buffer_load_dword v254, v253, s[44:47], s76 offen")
                a(f"s_mov_b32 s76, {64*TS}"); a("s_mov_b64 exec, -1"); a("v_mul_lo_u32 v253, v1, s76"); a(f"s_mov_b32 s76, {WS_KT + 4096}")
                s.ex(10); a("buffer_load_dword v254, v253, s[44:47], s76 offen")
                a(f"s_branch {l2}")
                s.label(l1)
                a(f"s_mov_b32 s76, {64*TS}"); a("v_mul_lo_u32 v253, v1, s76"); a(f"s_mov_b32 s76, {WS_YT + 4096}")
                s.ex(10); a("buffer_load_dword v254, v253, s[44:47], s76 offen")
                a("v_lshlrev_b32 v253, 18, v1")
                a("buffer_load_dword v254, v253, s[60:63], 0 offen")
                a("s_mov_b32 s48, s38"); a("s_and_b32 s49, s39, 0xffff"); a("s_mov_b32 s50, 2621440"); a("s_mov_b32 s51, 0x20000")
                a("buffer_load_dword v254, v253, s[48:51], 0 offen")
                s.label(l2)
                a("s_mov_b64 exec, -1")
                for _ in range(3): s.vm.append("t")
            tlbt()
        if s.opt.get("htouch", 0):
            a("s_lshl_b32 s76, s2, 1"); a("s_add_u32 s76, s76, s78"); a("s_mul_i32 s76, s76, 5120"); a("v_lshlrev_b32 v253, 7, v1")
            s.ex(40); s.vmem("t", "buffer_load_dword v254, v253, s[60:63], s76 offen"); a("s_mov_b64 exec, -1")
        a("s_lshr_b32 s74, s85, 4"); a("v_subrev_u32 v7, s74, v5")
        a("v_cmp_gt_u32 s[86:87], 10, v7"); a("v_cmp_gt_u32 vcc, 60, v1"); a("s_and_b64 s[86:87], s[86:87], vcc")
        a("v_mul_u32_u24 v22, 160, v4"); a("v_lshl_add_u32 v22, v7, 4, v22")
        a(f"s_mul_i32 s76, s78, 5120"); a(f"s_add_u32 s76, s76, {L_QT}"); a("v_add_u32 v22, s76, v22")
        a("s_lshl_b32 s75, s9, 6"); a("s_lshl_b32 s76, s10, 3"); a("s_add_u32 s75, s75, s76"); a("s_lshl_b32 s76, s78, 2"); a("s_add_u32 s82, s75, s76")
        a("v_lshrrev_b32 v14, 4, v1"); a("v_mul_u32_u24 v14, 1280, v14"); a("v_and_b32 v15, 15, v1"); a("v_lshlrev_b32 v15, 4, v15"); a("v_add_u32 v14, v14, v15")
        a("v_and_b32 v240, 15, v1"); a("v_lshrrev_b32 v241, 4, v1")
        a("v_lshrrev_b32 v242, 2, v240"); a("v_mul_u32_u24 v242, 192, v242"); a("v_and_b32 v243, 3, v240"); a("v_lshl_add_u32 v242, v243, 3, v242")
        a(f"v_add_u32 v242, s93, v242"); a("v_add_u32 v242, s85, v242")
        a("s_mul_i32 s74, s9, 6"); a("s_mul_i32 s75, s78, 3"); a("s_add_u32 s74, s74, s75")
        for p in range(4):
            a(f"v_add_u32 v243, {4*p}, v241"); a("v_mul_u32_u24 v244, 52, v243"); a("v_lshrrev_b32 v244, 8, v244")
            a("v_mul_u32_u24 v245, 5, v244"); a("v_sub_u32 v245, v243, v245")
            a(f"v_mul_u32_u24 v{24+p}, 1536, v244"); a(f"v_lshl_add_u32 v{24+p}, v245, 5, v{24+p}"); a(f"v_add_u32 v{24+p}, v{24+p}, v242")
            a("v_add_u32 v244, s74, v244"); a("v_lshrrev_b32 v247, 2, v244"); a(f"v_mul_u32_u24 v{28+p}, 5120, v247")
            a("v_and_b32 v244, 3, v244"); a(f"v_lshl_add_u32 v{28+p}, v244, 8, v{28+p}"); a(f"v_lshl_add_u32 v{28+p}, v245, 10, v{28+p}")
            a(f"v_lshl_add_u32 v{28+p}, v240, 4, v{28+p}")
        a("v_lshrrev_b32 v6, 3, v1"); a("v_and_b32 v7, 7, v1"); a("s_mul_i32 s74, s78, 40"); a("v_add_u32 v6, s74, v6")
        for i in range(5):
            a(f"v_add_u32 v8, {8*i}, v6"); a("v_mul_u32_u24 v9, 3277, v8"); a("v_lshrrev_b32 v9, 16, v9")
            a("v_mul_u32_u24 v10, 20, v9"); a("v_sub_u32 v8, v8, v10")
            a("v_lshl_add_u32 v9, v8, 2, v9"); a("v_xor_b32 v8, v8, v7"); a("v_and_b32 v8, 7, v8"); a("v_lshlrev_b32 v8, 4, v8")
            a(f"v_mul_u32_u24 v9, {TS}, v9"); a(f"v_add_u32 v{32+i}, v9, v8")
        a("v_mov_b32 v23, 0")
        sched = {t: [] for t in range(21)}
        dl = s.opt.get("dl", 3)
        def rowl(srd, nrows, vfirst, vrest, reg, tag, ntf):
            out = []
            for i in range((nrows + 4) // 5):
                def f(i=i):
                    n = min(5, nrows - 5 * i); r = reg + 4 * i
                    s.ex(12 * n)
                    if i == 0: s.vmem(tag, f"buffer_load_dwordx4 v[{r}:{r+3}], v{vfirst}, s[{srd}:{srd+3}], 0 offen {ntf}")
                    else:
                        a(f"s_mov_b32 s77, {6400*(i-1)}")
                        s.vmem(tag, f"buffer_load_dwordx4 v[{r}:{r+3}], v{vrest}, s[{srd}:{srd+3}], s77 offen {ntf}")
                    a("s_mov_b64 exec, -1")
                out.append(f)
            return out
        Lk = rowl(48, 35, 18, 19, 40, "k", nt); Lv = rowl(52, 32, 20, 21, 68, "v", nt); Lw = rowl(88, 24, 16, 17, 96, "wd", nt)
        Lq = rowl(68, 32, 20, 21, 196, "q", "")
        def lshk():
            a("s_mul_i32 s75, s10, 640"); s.ex(40)
            s.vmem("v", "buffer_load_dwordx4 v[116:119], v12, s[56:59], s75 offen")
            a("s_mov_b64 exec, -1")
        def lgx(i):
            a("s_mul_i32 s75, s82, 1280")
            s.vmem("gx", f"buffer_load_dwordx4 v[{124+4*i}:{127+4*i}], v14, s[68:71], s75 offen offset:{i*256}")
        def lgw():
            s.srd(56, 36, 1280)
            for i in range(5):
                s.vmem("gx", f"buffer_load_dwordx4 v[{144+4*i}:{147+4*i}], v15, s[56:59], 0 offen offset:{i*256}")
        def lh(i):
            a("s_lshl_b32 s74, s14, 2"); a(f"s_add_u32 s74, s74, {2*(i//4)}"); a("s_add_u32 s74, s74, s78"); a("s_lshl_b32 s74, s74, 12")
            s.vmem("h", f"buffer_load_dwordx4 v[{164+4*i}:{167+4*i}], v12, s[60:63], s74 offen offset:{(i&3)*1024} {nt}")
        def two(f, g): return lambda: (f(), g())
        cold = Lk + [two(Lv[0], lshk)] + Lv[1:] + Lw
        def w1(): s.vm_wait({"k"}); s.stamp(2); s.img_write(84, SC_K, 7, 40)
        def w2():
            s.vm_wait({"v"}); s.img_write(84, SC_V, 7, 68)
            s.ex(40); a(f"ds_write_b128 v13, v[116:119] offset:{SC_SHK}"); a("s_mov_b64 exec, -1")
        def w3(): s.vm_wait({"wd"}); s.img_write(93, 0, 5, 96); a("s_waitcnt lgkmcnt(0)")
        def wd():
            for p in range(4):
                a(f"ds_read_b64_tr_b16 v[{96+4*p}:{97+4*p}], v{24+p}")
                a(f"ds_read_b64_tr_b16 v[{98+4*p}:{99+4*p}], v{24+p} offset:768")
            a(f"s_mul_i32 s74, s10, {WBS}"); a(f"s_add_u32 s74, s74, {WS_WB}")
            a("s_waitcnt lgkmcnt(0)")
            for p in range(4):
                if p == 3: s.ex(48)
                s.vmem("st", f"buffer_store_dwordx4 v[{96+4*p}:{99+4*p}], v{28+p}, s[44:47], s74 offen sc1")
            a("s_mov_b64 exec, -1")
        def epoch():
            s.vm_wait({"ep"})
            l0 = s.newlab("L_ep"); l1_ = s.newlab("L_epd")
            a(f"s_mov_b32 s94, {SPIN_MAX}")
            s.label(l0)
            a("v_readfirstlane_b32 s72, v38"); a("v_readfirstlane_b32 s73, v39"); a("s_nop 1")
            a("s_cmp_lg_u32 s73, 0"); a(f"s_cbranch_scc1 {l1_}")
            a("buffer_load_dwordx2 v[38:39], v23, s[64:67], 0 offen sc1")
            a("s_waitcnt vmcnt(0)")
            a("s_sub_u32 s94, s94, 1"); a(f"s_cbranch_scc0 {l0}")
            s.label(l1_)
            a(f"v_mov_b32 v242, {L_EPOCH}"); a("ds_write_b64 v242, v[38:39]")
            lt2 = s.newlab("L_tk")
            a("s_cmp_eq_u32 s78, 0"); a(f"s_cbranch_scc1 {lt2}")
            a("s_mov_b64 exec, 1"); a("ds_write_b32 v242, v37 offset:16"); a("s_mov_b64 exec, -1")
            s.label(lt2)
        def gate():
            s.vm_wait({"gx"})
            a("v_mov_b32 v240, 0"); a("v_mov_b32 v241, 0")
            for i in range(20): a(f"v_dot2_f32_bf16 v{240 + (i & 1)}, v{124+i}, v{144+i}, v{240 + (i & 1)}")
        def gate2():
            a("s_nop 2")
            a("v_add_f32 v240, v240, v241"); a("s_nop 1")
            for ctl in ("quad_perm:[1,0,3,2]", "quad_perm:[2,3,0,1]", "row_half_mirror", "row_mirror"):
                a(f"v_add_f32_dpp v240, v240, v240 {ctl} row_mask:0xf bank_mask:0xf"); a("s_nop 1")
            a("v_cvt_pk_bf16_f32 v240, v240, v240"); a("v_and_b32 v240, 0xffff0000, v240")
            a("v_mul_f32 v240, 0xbfb8aa3b, v240"); a("v_exp_f32 v240, v240"); a("s_nop 0"); a("v_add_f32 v240, 1.0, v240")
            a("v_rcp_f32 v240, v240"); a("s_nop 0")
            a("v_cvt_pk_bf16_f32 v240, v240, v240"); a("v_and_b32 v240, 0xffff0000, v240")
            a("s_lshl_b32 s74, s82, 2"); a(f"s_add_u32 s74, s74, {WS_G}")
            a("v_lshrrev_b32 v241, 4, v1"); a("v_lshlrev_b32 v241, 2, v241")
            a("s_mov_b32 exec_lo, 0x00010001"); a("s_mov_b32 exec_hi, 0x00010001")
            s.vmem("st", "buffer_store_dword v240, v241, s[44:47], s74 offen sc1")
            a("s_mov_b64 exec, -1")
        def qc():
            a("s_mov_b64 exec, s[86:87]")
            for i in range(7):
                if i == 6: a("s_and_b32 exec_lo, exec_lo, 0xffffff"); a("s_mov_b32 exec_hi, 0")
                a(f"ds_write_b128 v22, v[{196+4*i}:{199+4*i}] offset:{800*i}")
            a("s_mov_b64 exec, -1")
        def ktst_rd():
            a("s_mul_i32 s74, s78, 5120"); a(f"s_add_u32 s74, s74, {L_T}"); a("v_add_u32 v13, s74, v12")
            for i in range(5): a(f"ds_read_b128 v[{40+4*i}:{43+4*i}], v13 offset:{i*1024}")
        def ktst_st():
            a(f"s_mul_i32 s74, s10, {80*TS}"); a("s_lshl_b32 s75, s9, 7"); a("s_sub_u32 s74, s74, s75")
            a(f"s_add_u32 s74, s74, {WS_KT + 3968}")
            for i in range(5):
                s.vmem("st", f"buffer_store_dwordx4 v[{40+4*i}:{43+4*i}], v{32+i}, s[44:47], s74 offen sc1")
        def hc(base, reg, half):
            s.vm_wait({"h"})
            l = s.newlab("L_nh"); a(f"s_cmp_ge_u32 s14, {NCONV}"); a(f"s_cbranch_scc1 {l}")
            s.h_copies(base, reg, half); s.label(l)
        def flagsA():
            s.vm_wait({"st"})
            a("s_lshl_b32 s74, s10, 9"); a("s_lshl_b32 s75, s9, 4"); a("s_add_u32 s74, s74, s75"); a("s_lshl_b32 s76, s78, 3"); a("s_add_u32 s74, s74, s76")
            a(f"s_add_u32 s74, s74, {WS_FA}")
            s.write_flag(244, 74)
            s.stamp(5)
        def flagsB():
            lb = s.newlab("L_nb")
            a("s_cmp_lt_u32 s83, 2"); a(f"s_cbranch_scc1 {lb}")
            a("s_waitcnt vmcnt(0)")
            a("s_lshl_b32 s76, s78, 3")
            a("s_lshl_b32 s74, s9, 7"); a("s_lshl_b32 s75, s10, 4"); a("s_add_u32 s74, s74, s75"); a("s_add_u32 s74, s74, s76"); a(f"s_add_u32 s74, s74, {WS_FB}")
            s.write_flag(8, 74)
            s.label(lb)
        KVT = s.kvt
        he = s.opt.get("hearly", 0)
        if he == 1:
            for i in range(8): lh(i)
        s.vm_wait({"k"}); s.stamp(2)
        a("s_barrier")
        if he == 2:
            for i in range(8): lh(i)
        if he:
            for j, (b, r, hf) in enumerate(((79, 164, 0), (79, 164, 1), (84, 180, 0), (84, 180, 1))):
                sched[8 + j].append(lambda b=b, r=r, hf=hf: hc(b, r, hf))
        epoch()
        ts = s.opt.get("ts", 3)
        sched[ts].append(lambda: (ktst_rd(), a("s_waitcnt lgkmcnt(0)"), ktst_st()))
        sched[ts + 1].append(lambda: (s.vm_wait({"wd"}), wd(), s.stamp(3)))
        tf = s.opt.get("tf", 7); sched[tf].append(flagsA)
        tg = s.opt.get("tg", 16)
        sched[tg - 4] += [lambda i=i: lgx(i) for i in range(5)] + [lgw]
        sched[tg - 1].append(gate); sched[tg].append(gate2)
        s.flagsB = flagsB
        tp = s.opt.get("tp", 13)
        def fa_ld():
            a(f"v_mov_b32 v2, {L_SDONE}"); a("ds_read_b32 v2, v2"); a("s_waitcnt lgkmcnt(0)"); a("v_readfirstlane_b32 s14, v2"); a("s_nop 1")
            a("s_mul_i32 s74, s14, 3277"); a("s_lshr_b32 s74, s74, 16"); a("s_min_u32 s74, s74, 7")
            a("s_cmp_eq_u32 s78, 0"); a("s_cselect_b32 s74, s74, s10"); a("s_lshl_b32 s74, s74, 9"); a(f"s_add_u32 s74, s74, {WS_FA}")
            a("v_lshlrev_b32 v2, 3, v1")
            s.vmem("fa", "buffer_load_dwordx2 v[4:5], v2, s[44:47], s74 offen sc1")
        def fa_ck():
            s.vm_wait({"fa"})
            a("v_cmp_ne_u64 vcc, s[72:73], v[4:5]"); a("s_nop 1")
            lf = s.newlab("L_nf")
            a(f"s_cbranch_vccnz {lf}")
            a("s_lshl_b32 s74, s78, 2"); a(f"s_add_u32 s74, s74, {L_QDONE}"); s.lds_set(8, "s74", 1)
            s.label(lf)
        sched[4].append(lambda: a("s_waitcnt lgkmcnt(0)"))
        sched[tp].append(fa_ld); sched[tp + 2].insert(0, fa_ck); sched[tp + 3].append(lambda: a("s_waitcnt lgkmcnt(0)"))
        tq = s.opt.get("tq", 14)
        sched[tq] += Lq
        for t in range(2, 17):
            s.stamp(40 + t, 2)
            a("s_barrier")
            if not s.opt.get("noc"):
                for f in sched[t]: f()
        assert all(not sched[t] for t in range(17, 21))
        s.qc = qc
        a("s_add_u32 s83, s78, 2")

    def ywave(s):
        a = s.a; s.vm_reset()
        s.label("L_Yt")
        a(f"s_mul_i32 s84, s83, {CV_SZ}"); a(f"s_add_u32 s84, s84, {L_CV}"); a(f"s_add_u32 s93, s84, {H_SZ}")
        s.srd(60, 24, 2621440)
        a(f"v_mov_b32 v16, {L_EPOCH}"); a("ds_read_b32 v20, v16 offset:16"); a("ds_read_b128 v[16:19], v16")
        a("v_lshlrev_b32 v2, 3, v1")
        a("s_waitcnt lgkmcnt(0)")
        a("v_readfirstlane_b32 s14, v20")
        a("v_readfirstlane_b32 s72, v16"); a("v_readfirstlane_b32 s73, v17"); a("v_readfirstlane_b32 s99, v18")
        a("s_mul_i32 s98, s14, 3277"); a("s_lshr_b32 s98, s98, 16"); a("s_lshl_b32 s98, s98, 9"); a(f"s_add_u32 s98, s98, {WS_FA}")
        a("s_lshl_b32 s85, s14, 2"); a("s_add_u32 s85, s85, s83"); a("s_lshl_b32 s74, s85, 12")
        a(f"s_mul_i32 s100, s85, {TS}"); a(f"s_add_u32 s100, s100, {WS_KT}")
        a("s_waitcnt vmcnt(20)"); s.stamp(57, 2); a("s_barrier"); s.stamp(33, 2)
        a(f"s_cmp_lt_u32 s14, {NCONV}"); a("s_cselect_b32 s99, s99, 0")
        a("s_cmp_lg_u32 s99, 0"); a("s_cselect_b32 s101, s100, 0x7ff00000")
        a("s_cmp_lg_u32 s99, 0"); a("s_cselect_b32 s75, 0x7ff00000, s98")
        a(f"s_cmp_lt_u32 s14, {NCONV}"); a("s_cselect_b32 s75, s75, 0x7ff00000")
        a("buffer_load_dwordx2 v[4:5], v2, s[44:47], s75 offen sc1")
        nh = 0 if s.opt.get("hearly", 0) else 4
        for i in range(nh):
            a(f"buffer_load_dwordx4 v[{164+4*i}:{167+4*i}], v12, s[60:63], s74 offen offset:{i*1024} {'' if s.opt.get('htouch', 0) else s.nt}")
        for i in range(4):
            a(f"buffer_load_dwordx4 v[{48+4*i}:{51+4*i}], v12, s[44:47], s101 offen offset:{i*1024} sc1")
        lq = s.newlab("L_nq")
        a(f"s_waitcnt vmcnt({11 + nh})")
        a("s_cmp_lt_u32 s83, 2"); a(f"s_cbranch_scc1 {lq}")
        a(f"s_waitcnt vmcnt({5 + nh})")
        s.qc()
        s.label(lq)
        s.stamp(58, 2); a("s_barrier"); s.stamp(34, 2)
        s.u_addr(93)
        a(f"s_waitcnt vmcnt({5 + nh})"); a("s_waitcnt lgkmcnt(0)")
        s.stamp(59, 2); a("s_barrier"); s.stamp(35, 2)
        s.stamp(1)
        if s.opt.get("g1only"): a("s_branch L_fin2")
        if s.opt.get("noconv"): a("s_branch L_apart")
        lcv = s.newlab("L_cvgo")
        a(f"s_cmp_lt_u32 s14, {NCONV}"); a(f"s_cbranch_scc1 {lcv}")
        s.flagsB()
        a("s_branch L_apart")
        s.label(lcv)
        a("s_setprio 1")
        lk2 = s.newlab("L_hk")
        a("s_cmp_lg_u32 s99, 0"); a(f"s_cbranch_scc1 {lk2}")
        lk3 = s.newlab("L_hk")
        a(f"s_waitcnt vmcnt({4 + nh})")
        a("v_cmp_ne_u64 vcc, s[72:73], v[4:5]"); a("s_nop 1"); a(f"s_cbranch_vccz {lk3}")
        s.poll(4, 2, "s98")
        s.label(lk3)
        for i in range(4):
            a(f"buffer_load_dwordx4 v[{48+4*i}:{51+4*i}], v12, s[44:47], s100 offen offset:{i*1024} sc1")
        s.label(lk2)
        s.stamp(6)
        if nh:
            a("s_waitcnt vmcnt(4)")
            s.h_copies(84, 164)
        s.u_stage(48, 0)
        s.flagsB()
        s.stamp(7)
        a("v_add_u32 v13, s93, v12")
        a("v_and_b32 v2, 15, v1"); a("v_lshrrev_b32 v3, 4, v1"); a("v_and_b32 v4, 1, v2"); a("v_lshrrev_b32 v5, 1, v2")
        a(f"v_mul_u32_u24 v6, {CV_B}, v4"); a("v_lshl_add_u32 v6, v3, 4, v6"); a("v_lshl_add_u32 v6, v5, 3, v6"); a("v_add_u32 v6, s84, v6")
        a("v_lshlrev_b32 v7, 4, v3"); a("v_lshlrev_b32 v8, 6, v5"); a("v_sub_u32 v7, v7, v8"); a("v_add_u32 v7, 512, v7")
        a(f"v_mul_u32_u24 v9, {CV_U1}, v4"); a("v_add_u32 v9, s93, v9"); a("v_subrev_u32 v9, 64, v9")
        def baddr():
            a("v_lshrrev_b32 v10, 3, v7"); a("v_and_b32 v10, 32, v10"); a("v_xor_b32 v10, v10, v7"); a("v_add_u32 v10, v10, v9"); a("v_add_u32 v7, 64, v7")
        SA = (96, 160); SB = (128, 192)
        def reads(st, par):
            R = []
            for c in range(8):
                for hh in range(2):
                    R.append(f"ds_read_b64 v[{SA[st]+4*c+2*hh}:{SA[st]+4*c+2*hh+1}], v6 offset:{512*c + 8*hh + 64*par}")
                for hh in range(2):
                    R.append(f"ds_read_b64 v[{SB[st]+4*c+2*hh}:{SB[st]+4*c+2*hh+1}], v10 offset:{512*(7-c) + 8*hh}")
            return R
        def mfmas(st, full=True):
            M = []
            for aa in range(8):
                for c in (range(aa + 1) if full else [aa]):
                    b = aa - c; o = 224 + 4 * aa
                    M.append(f"v_mfma_f32_16x16x32_bf16 v[{o}:{o+3}], v[{SA[st]+4*c}:{SA[st]+4*c+3}], v[{SB[st]+4*b}:{SB[st]+4*b+3}], v[{o}:{o+3}]")
            return M
        def inter(M, R):
            a("s_waitcnt lgkmcnt(12)")
            for mi, m in enumerate(M):
                if mi == 15: a("s_waitcnt lgkmcnt(15)")
                a(m)
                if mi < len(R): a(R[mi])
        baddr()
        a("s_waitcnt lgkmcnt(0)")
        for r in reads(0, 0): a(r)
        for r in range(224, 256): a(f"v_mov_b32 v{r}, 0")
        a("s_mov_b32 s86, 0")
        s.label("L_cv")
        baddr()
        inter(mfmas(0), reads(1, 1))
        a("v_add_u32 v6, 128, v6"); baddr()
        inter(mfmas(1), reads(0, 0))
        a("s_add_u32 s86, s86, 1"); a("s_cmp_lt_u32 s86, 4"); a("s_cbranch_scc1 L_cv")
        a("s_waitcnt lgkmcnt(0)")
        for m in mfmas(0, False): a(m)
        a("v_lshlrev_b32 v8, 4, v3"); a("v_lshl_add_u32 v8, v4, 2, v8"); a("v_lshl_add_u32 v8, v5, 6, v8")
        a(f"v_sub_u32 v8, {CV_U0 + 2*(2046 - 4) - 512}, v8"); a("v_add_u32 v8, s93, v8")
        a("s_nop 4")
        for t in range(8):
            o = 224 + 4 * t
            a(f"v_cvt_pk_bf16_f32 v{16+2*t}, v{o+3}, v{o+2}")
            a(f"v_cvt_pk_bf16_f32 v{17+2*t}, v{o+1}, v{o}")
        for t in range(8):
            off = 128 if t % 2 == 0 else 0
            a(f"ds_write2_b32 v8, v{16+2*t}, v{17+2*t} offset0:{off} offset1:{off+2}")
            if t % 2 == 1 and t < 7: a("v_subrev_u32 v8, 1024, v8")
        a("s_waitcnt lgkmcnt(0)")
        for i in range(4): a(f"ds_read_b128 v[{32+4*i}:{35+4*i}], v13 offset:{CV_U0 + i*1024}")
        a(f"s_mul_i32 s74, s85, {TS}"); a(f"s_add_u32 s74, s74, {WS_YT}")
        for i in range(4):
            a(f"s_waitcnt lgkmcnt({3-i})")
            a(f"buffer_store_dwordx4 v[{32+4*i}:{35+4*i}], v12, s[44:47], s74 offen offset:{i*1024} sc1")
        s.stamp(8)
        a("s_waitcnt vmcnt(0)")
        a("s_lshl_b32 s74, s85, 3"); a(f"s_add_u32 s74, s74, {WS_FY}")
        s.write_flag(48, 74)
        a("s_setprio 0")
        s.label("L_apart")
        a("s_setprio 0")
        if s.opt.get("xh", 1): s.lds_wait(L_XH, 1, 1, 148, slp=2)
        s.stamp(9)
        a("v_min_u32 v2, 15, v1"); a("v_lshlrev_b32 v2, 3, v2")
        a("s_lshl_b32 s74, s9, 7"); a(f"s_add_u32 s74, s74, {WS_FB}")
        s.poll(4, 2, "s74")
        a("v_sub_u32 v3, 63, v1"); a("v_lshlrev_b32 v2, 2, v3")
        a("s_lshl_b32 s74, s9, 8"); a(f"s_add_u32 s74, s74, {WS_G}")
        a("buffer_load_dword v15, v2, s[44:47], s74 offen sc1")
        a("s_mul_i32 s87, s10, 80"); a("s_mul_i32 s74, s83, 20"); a("s_add_u32 s87, s87, s74")
        a(f"s_mul_i32 s88, s87, {TS}"); a("s_lshl_b32 s74, s9, 7"); a("s_sub_u32 s88, s88, s74"); a("s_add_u32 s88, s88, 3968")
        a("v_lshrrev_b32 v5, 3, v1"); a(f"v_mul_u32_u24 v5, {TS}, v5"); a("v_and_b32 v6, 7, v1"); a("v_lshl_add_u32 v5, v6, 4, v5")
        def tile_loads(base, reg):
            for i in range(3):
                a(f"s_add_u32 s74, s88, {base + i*8*TS}")
                if i == 2: a("s_mov_b32 exec_hi, 0")
                a(f"buffer_load_dwordx4 v[{reg+4*i}:{reg+4*i+3}], v5, s[44:47], s74 offen sc1")
                if i == 2: a("s_mov_b64 exec, -1")
        tile_loads(WS_KT, 16)
        a("s_lshl_b32 s74, s87, 1"); a("s_add_u32 s26, s26, s74"); a("s_addc_u32 s27, s27, 0")
        a("s_load_dwordx8 s[48:55], s[26:27], 0"); a("s_load_dwordx2 s[56:57], s[26:27], 32")
        a("v_add_u32 v13, s84, v12")
        a("v_mul_u32_u24 v7, 160, v3"); a("s_mul_i32 s74, s83, 40"); a(f"s_add_u32 s74, s74, {L_QT}"); a("v_add_u32 v7, s74, v7")
        for gq in range(5): a(f"ds_read_b64 v[{64+2*gq}:{65+2*gq}], v7 offset:{8*gq}")
        a("s_waitcnt vmcnt(0)")
        for i in range(3):
            if i == 2: a("s_mov_b32 exec_hi, 0")
            a(f"ds_write_b128 v13, v[{16+4*i}:{19+4*i}] offset:{i*1024}")
            if i == 2: a("s_mov_b64 exec, -1")
        a("v_and_b32 v8, 15, v1"); a("v_lshrrev_b32 v9, 2, v8"); a("v_lshlrev_b32 v9, 7, v9"); a("v_and_b32 v8, 3, v8"); a("v_lshl_add_u32 v9, v8, 3, v9")
        a("v_lshrrev_b32 v8, 4, v1"); a("v_lshl_add_u32 v9, v8, 5, v9"); a("v_add_u32 v9, s84, v9")
        a(f"v_add_u32 v2, {L_GF}, v2"); a("ds_write_b32 v2, v15")
        a("s_waitcnt lgkmcnt(0)")
        for gq in range(5): a(f"ds_read_b64_tr_b16 v[{74+2*gq}:{75+2*gq}], v9 offset:{512*gq}")
        for gq in range(5):
            for e in range(2):
                r = 96 + 4 * gq + 2 * e
                a(f"v_lshlrev_b32 v{r}, 16, v{64+2*gq+e}"); a(f"v_and_b32 v{r+1}, 0xffff0000, v{64+2*gq+e}")
                a(f"v_mul_f32 v{r}, v{r}, v15"); a(f"v_mul_f32 v{r+1}, v{r+1}, v15")
        a("s_waitcnt lgkmcnt(0)")
        for gq in range(5):
            for e in range(2):
                sd = 48 + 2 * gq + e; r = 120 + 4 * gq + 2 * e
                a(f"s_lshl_b32 s58, s{sd}, 16"); a(f"s_and_b32 s59, s{sd}, 0xffff0000")
                a(f"v_lshlrev_b32 v{r}, 16, v{74+2*gq+e}"); a(f"v_and_b32 v{r+1}, 0xffff0000, v{74+2*gq+e}")
                a(f"v_mul_f32 v{r}, s58, v{r}"); a(f"v_mul_f32 v{r+1}, s59, v{r+1}")
        s.lds_wait(L_XG2, 1, 1, 148, slp=2)
        a("v_min_u32 v2, 19, v1"); a("v_lshlrev_b32 v2, 3, v2")
        a("s_lshl_b32 s74, s87, 3"); a(f"s_add_u32 s74, s74, {WS_FY}")
        if not s.opt.get("noconv"): s.poll(146, 2, "s74", slp=s.opt.get("yslp", 12))
        s.stamp(10)
        tile_loads(WS_YT, 16)
        for i in range(3):
            a(f"s_waitcnt vmcnt({2-i})")
            if i == 2: a("s_mov_b32 exec_hi, 0")
            a(f"ds_write_b128 v13, v[{16+4*i}:{19+4*i}] offset:{i*1024}")
            if i == 2: a("s_mov_b64 exec, -1")
        a("s_waitcnt lgkmcnt(0)")
        for gq in range(5): a(f"ds_read_b64_tr_b16 v[{74+2*gq}:{75+2*gq}], v9 offset:{512*gq}")
        for gq in range(5):
            a("s_waitcnt lgkmcnt(4)")
            for e in range(2):
                a(f"v_lshlrev_b32 v144, 16, v{74+2*gq+e}"); a(f"v_and_b32 v145, 0xffff0000, v{74+2*gq+e}")
                a(f"v_add_f32 v144, v144, v{120+4*gq+2*e}"); a(f"v_add_f32 v145, v145, v{121+4*gq+2*e}")
                a(f"v_mul_f32 v144, v144, v{96+4*gq+2*e}"); a(f"v_mul_f32 v145, v145, v{97+4*gq+2*e}")
                a(f"v_cvt_pk_bf16_f32 v{64+2*gq+e}, v144, v145")
            a(f"ds_write_b64 v7, v[{64+2*gq}:{65+2*gq}] offset:{8*gq}")
        s.stamp(11)
        a("s_branch L_final")

    def xwave(s):
        a = s.a; s.vm_reset()
        s.label("L_X")
        a("s_setprio 2")
        a("v_mov_b32 v16, 0"); a("v_mov_b32 v17, 0"); a("v_mov_b32 v18, 0"); a("v_mov_b32 v19, 0")
        a(f"v_add_u32 v20, {L_MISC}, v12")
        a("s_mov_b64 exec, 15"); a("ds_write_b128 v20, v[16:19]"); a("s_mov_b64 exec, -1")
        a("s_lshr_b32 s74, s3, 1"); a("s_and_b32 s75, s3, 1")
        if s.m16:
            a("v_lshrrev_b32 v14, 5, v1")
            a("v_bfe_u32 v13, v1, 3, 1"); a("v_bfe_u32 v15, v1, 2, 1"); a("v_xor_b32 v15, v15, v13"); a("v_lshl_add_u32 v13, v15, 1, v13")
            a("v_lshrrev_b32 v16, 4, v1"); a("v_xor_b32 v13, v13, v16")
            a("v_and_b32 v17, 15, v1"); a("v_lshlrev_b32 v17, 6, v17"); a("s_lshl_b32 s76, s74, 12"); a("v_add_u32 v17, s76, v17"); a("v_lshl_add_u32 v5, v13, 4, v17")
            a("v_bfe_u32 v15, v1, 4, 1")
            a("v_bfe_u32 v17, v1, 2, 2"); a("v_lshl_add_u32 v16, v16, 3, v17"); a("v_lshlrev_b32 v16, 6, v16")
            a("v_and_b32 v17, 3, v1"); a("v_lshl_add_u32 v16, v17, 3, v16"); a(f"v_add_u32 v16, {L_WR}, v16")
        else:
            a("v_and_b32 v20, 31, v1"); a("v_lshrrev_b32 v13, 2, v20"); a("v_lshrrev_b32 v14, 1, v13"); a("v_xor_b32 v13, v13, v14"); a("v_and_b32 v13, 3, v13")
            a("v_lshrrev_b32 v14, 5, v1"); a("v_xor_b32 v15, v14, v13"); a("v_xor_b32 v16, 2, v15")
            a("v_lshlrev_b32 v17, 6, v20"); a("s_lshl_b32 s76, s74, 12"); a("v_add_u32 v17, s76, v17")
            a("v_lshl_add_u32 v5, v15, 4, v17"); a("v_lshl_add_u32 v6, v16, 4, v17")
            a("v_bfe_u32 v15, v1, 4, 1"); a("v_bfe_u32 v16, v1, 2, 2"); a("v_lshl_add_u32 v16, v14, 3, v16"); a("v_lshlrev_b32 v16, 6, v16")
            a("v_mul_u32_u24 v17, 6144, v15"); a("v_add_u32 v16, v16, v17")
            a("v_and_b32 v17, 1, v1"); a("v_lshl_add_u32 v16, v17, 4, v16"); a("v_bfe_u32 v17, v1, 1, 1"); a("v_lshl_add_u32 v16, v17, 3, v16")
            a(f"v_add_u32 v16, {L_WR}, v16")
        a("s_mul_i32 s76, s75, 3")
        for T in range(3):
            a(f"s_add_u32 s77, s76, {T}"); a("s_and_b32 s78, s77, 1"); a("s_lshr_b32 s77, s77, 1"); a("s_lshl_b32 s77, s77, 11")
            a("v_xor_b32 v17, s78, v15"); a(f"v_lshl_add_u32 v{2+T}, v17, 5, v16"); a(f"v_add_u32 v{2+T}, s77, v{2+T}")
        a("v_mov_b32 v7, v12"); a("v_add_u32 v8, 4096, v7")
        a("v_bfe_u32 v9, v1, 4, 1"); a("v_lshlrev_b32 v9, 10, v9"); a("v_lshl_add_u32 v9, v14, 8, v9"); a("v_and_b32 v17, 15, v1"); a("v_lshl_add_u32 v9, v17, 4, v9")
        for r in range(160, 256): a(f"v_mov_b32 v{r}, 0")
        touch = s.opt.get("touch", 0)
        if touch:
            lw = s.newlab("L_tw"); le = s.newlab("L_te")
            a("s_cmp_ge_u32 s3, 2"); a(f"s_cbranch_scc1 {lw}")
            s.srd(48, 16, 2621440)
            a("s_lshr_b32 s76, s4, 2"); a("s_lshl_b32 s76, s76, 6"); a("s_lshl_b32 s77, s5, 1"); a("s_add_u32 s76, s76, s77"); a("s_add_u32 s76, s76, s3")
            a(f"s_mul_i32 s98, s76, {16*1280}")
            a("v_and_b32 v92, 15, v1"); a("v_mul_u32_u24 v92, 1280, v92"); a("v_bfe_u32 v93, v1, 4, 1"); a("v_lshl_add_u32 v92, v93, 7, v92")
            a("s_mov_b32 s99, 256"); a("s_mov_b32 s100, -1")
            a(f"s_branch {le}")
            s.label(lw)
            a("s_cmp_eq_u32 s3, 2")
            a("s_cselect_b32 s48, s30, s32"); a("s_cselect_b32 s49, s31, s33"); a("s_and_b32 s49, s49, 0xffff")
            a("s_mov_b32 s50, 1966080"); a("s_mov_b32 s51, 0x20000")
            a("v_mul_u32_u24 v93, 5462, v1"); a("v_lshrrev_b32 v93, 16, v93"); a("v_mul_u32_u24 v94, 12, v93"); a("v_sub_u32 v94, v1, v94")
            a("v_cmp_lt_u32 vcc, 5, v94"); a(f"v_mul_u32_u24 v92, {64*3072}, v93"); a(f"v_mov_b32 v95, {3072 - 768}"); a("v_cndmask_b32 v95, 0, v95, vcc")
            a("v_lshl_add_u32 v92, v94, 7, v92"); a("v_add_u32 v92, v92, v95")
            a("s_and_b32 s76, s4, 3"); a("s_mul_i32 s76, s76, 768"); a(f"s_mul_i32 s77, s5, {2*3072}"); a("s_add_u32 s98, s76, s77")
            a(f"s_mov_b32 s99, {2*64*3072}"); a("s_mov_b32 s100, 0xffffff")
            s.label(le)
        def do_touch():
            a("s_mov_b32 exec_lo, s100"); a("s_mov_b32 exec_hi, 0")
            a("buffer_load_dword v93, v92, s[48:51], s98 offen")
            a("s_mov_b64 exec, -1"); a("s_add_u32 s98, s98, s99")
        tpre = s.opt.get("tpre", 2)
        if touch:
            for _ in range(tpre if touch == 2 else 5): do_touch()
        SB = (12, 52)
        def reads(st, slot):
            R = []
            if s.m16:
                W = [f"ds_read_b64_tr_b16 v[{SB[st]+8*T+4*u+2*hh}:{SB[st]+8*T+4*u+2*hh+1}], v{2+T} offset:{slot*12288 + u*6144 + hh*256}" for T in range(3) for u in range(2) for hh in range(2)]
                X = [f"ds_read_b128 v[{SB[st]+24+4*nt}:{SB[st]+24+4*nt+3}], v5 offset:{slot*8192 + nt*1024}" for nt in range(4)]
                return [X[0], W[0], W[1], X[1], X[2], X[3]] + W[2:]
            for sub in range(2):
                W = []
                for T in range(3):
                    for hh in range(2):
                        r = SB[st] + 12 * sub + 4 * T + 2 * hh
                        W.append(f"ds_read_b64_tr_b16 v[{r}:{r+1}], v{2+T} offset:{slot*12288 + sub*1024 + hh*256}")
                X = [f"ds_read_b128 v[{SB[st]+24+8*sub+4*nt}:{SB[st]+24+8*sub+4*nt+3}], v{5+sub} offset:{slot*8192 + nt*2048}" for nt in range(2)]
                R += [X[0], W[0], W[1], X[1], W[2], W[3], W[4], W[5]]
            return R
        def mfmas(st):
            M = []
            if s.m16:
                for T in range(3):
                    for u in range(2):
                        for nt in range(4):
                            o = 160 + 16 * (2 * T + nt // 2) + 8 * u + 4 * (nt & 1); w = SB[st] + 8 * T + 4 * u; x = SB[st] + 24 + 4 * nt
                            M.append(f"v_mfma_f32_16x16x32_bf16 v[{o}:{o+3}], v[{w}:{w+3}], v[{x}:{x+3}], v[{o}:{o+3}]")
                return M
            for sub in range(2):
                for T in range(3):
                    for nt in range(2):
                        o = 160 + 16 * (2 * T + nt); w = SB[st] + 12 * sub + 4 * T; x = SB[st] + 24 + 8 * sub + 4 * nt
                        M.append(f"v_mfma_f32_32x32x16_bf16 v[{o}:{o+15}], v[{w}:{w+3}], v[{x}:{x+3}], v[{o}:{o+15}]")
            return M
        a("s_mov_b32 s86, 0")
        a("s_waitcnt lgkmcnt(0)")
        if s.opt.get("ctouch", 1):
            lct = s.newlab("L_ct")
            a("s_cmp_lg_u32 s3, 1"); a(f"s_cbranch_scc1 {lct}")
            a("s_getpc_b64 s[76:77]")
            s.label("L_pc")
            a(f"s_sub_u32 s76, s76, L_pc-{KN}"); a("s_subb_u32 s77, s77, 0")
            a("s_mul_i32 s78, s5, 7"); a("v_add_u32 v50, s78, v1"); a("v_lshlrev_b32 v50, 7, v50"); a(f"v_min_u32 v50, L_codeend-{KN}-4, v50")
            a("s_mov_b64 exec, 0x7f"); a("global_load_dword v51, v50, s[76:77]"); a("s_mov_b64 exec, -1")
            s.label(lct)
        a("s_barrier")
        s.kv_pre()
        a("s_waitcnt vmcnt(0)")
        a("s_barrier")
        for r in reads(0, 0): a(r)
        a("s_waitcnt lgkmcnt(0)")
        s.label("L_g1")
        for slot in range(4):
            M = mfmas(slot & 1); R = reads((slot + 1) & 1, (slot + 1) & 3)
            if s.opt.get("stamps", 0) == 2:
                a("s_memtime s[96:97]"); a(f"s_add_u32 m0, s86, {41 + slot}"); a("s_waitcnt lgkmcnt(0)"); a("v_writelane_b32 v11, s96, m0")
            a(M[0])
            if s.m16: a(M[1])
            if slot == 3:
                lnb = s.newlab("L_nb"); a("s_cmp_eq_u32 s86, 16"); a(f"s_cbranch_scc1 {lnb}"); a("s_barrier"); s.label(lnb)
            else: a("s_barrier")
            if s.m16:
                rp = s.opt.get("rp", 1)
                ri = 0; mi = 2
                while ri < 16:
                    for _ in range(2 if (rp == 2 and mi % 2 == 0) else 1):
                        if ri < 16: a(R[ri]); ri += 1
                    a(M[mi]); mi += 1
                M = M[:6] + M[mi:]
            else:
                for i in range(5):
                    for r in R[3 * i:3 * i + 3]: a(r)
                    a(M[1 + i])
                a(R[15])
            if touch == 2 and slot == s.opt.get("tslot", 0):
                lt = s.newlab("L_nt")
                a(f"s_cmp_ge_u32 s86, {4 * (5 - tpre)}"); a(f"s_cbranch_scc1 {lt}"); do_touch(); s.label(lt)
            for m in M[6:]: a(m)
            a("s_waitcnt lgkmcnt(0)")
            if slot == 0:
                a("s_cmp_eq_u32 s86, 0"); a("s_cbranch_scc1 L_kv")
                s.label("L_kvret")
        a("s_add_u32 s86, s86, 4")
        a("s_cmp_lt_u32 s86, 20"); a("s_cbranch_scc1 L_g1")
        s.stamp(1)
        if s.opt.get("g1only"): a("s_branch L_fin2")
        if s.opt.get("xidle"): s.lds_set(2, L_XG2, 1); a("s_branch L_final")
        a(f"v_mov_b32 v116, {L_EPOCH}"); a("v_mov_b32 v117, 1"); a("s_mov_b64 exec, 1"); a(f"ds_add_u32 v116, v117 offset:{L_XCNT - L_EPOCH}"); a("s_mov_b64 exec, -1")
        a("ds_read_b128 v[116:119], v116"); a("s_waitcnt lgkmcnt(0)")
        a("v_readfirstlane_b32 s72, v116"); a("v_readfirstlane_b32 s73, v117"); a("v_readfirstlane_b32 s76, v119"); a("s_nop 1")
        lfa = s.newlab("L_faok")
        a("s_cmp_lg_u32 s76, 0"); a(f"s_cbranch_scc1 {lfa}")
        a("v_lshlrev_b32 v114, 3, v1")
        a("s_lshl_b32 s76, s10, 9"); a(f"s_add_u32 s76, s76, {WS_FA}")
        s.poll(112, 114, "s76")
        s.label(lfa)
        s.stamp(2)
        if s.opt.get("g2map", 0): a("s_mul_i32 s78, s11, 3"); a("s_lshr_b32 s78, s78, 1"); a("s_mul_i32 s79, s12, 3"); a("s_add_u32 s78, s78, s79")
        else: a("s_mul_i32 s78, s10, 3"); a("s_lshr_b32 s78, s78, 1"); a("s_mul_i32 s79, s13, 3"); a("s_add_u32 s78, s78, s79")
        a("s_cmp_ge_u32 s78, 12"); a("s_cselect_b32 s79, 12, 0"); a("s_sub_u32 s78, s78, s79")
        if s.opt.get("g2rot") == 0: a("s_mov_b32 s78, 0")
        a("s_mul_i32 s79, s3, 12")
        a(f"s_mul_i32 s80, s10, {WBS}"); a(f"s_add_u32 s80, s80, {WS_WB}")
        a(f"s_mul_i32 s81, s9, {HBS}"); a(f"s_add_u32 s81, s81, {WS_HB}")
        a("s_mul_i32 s92, s3, 20480")
        def kt_of(i, dst):
            a(f"s_add_u32 s{dst}, s78, {i}"); a(f"s_cmp_ge_u32 s{dst}, 12"); a(f"s_cselect_b32 s82, 12, 0"); a(f"s_sub_u32 s{dst}, s{dst}, s82")
            a(f"s_add_u32 s{dst}, s{dst}, s79")
        def wb_loads(i):
            kt_of(i, 83); a("s_mul_i32 s83, s83, 5120"); a("s_add_u32 s83, s83, s80")
            r = 12 + 20 * (i % 5)
            for dt in range(5):
                if dt < 4: s.vmem(("wb", i), f"buffer_load_dwordx4 v[{r+4*dt}:{r+4*dt+3}], v7, s[44:47], s83 offen offset:{dt*1024} sc1")
                else: s.vmem(("wb", i), f"buffer_load_dwordx4 v[{r+4*dt}:{r+4*dt+3}], v8, s[44:47], s83 offen sc1")
        def wb_dma(i):
            kt_of(i, 83); a("s_mul_i32 s83, s83, 5120"); a("s_add_u32 s83, s83, s80")
            a(f"s_add_u32 m0, s92, {(i - 5) * 5120}"); a("s_nop 0")
            for dt in range(4):
                s.vmem(("wd", i), f"buffer_load_dwordx4 v7, s[44:47], s83 offen offset:{dt*1024} sc1 lds")
            a(f"s_add_u32 m0, s92, {(i - 5) * 5120 + 4096}"); a("s_nop 0")
            s.vmem(("wd", i), f"buffer_load_dwordx4 v8, s[44:47], s83 offen sc1 lds")
        def wb_lds(i):
            r = 12 + 20 * (i % 5)
            for dt in range(5): a(f"ds_read_b128 v[{r+4*dt}:{r+4*dt+3}], v10 offset:{(i - 5) * 5120 + dt*1024}")
        def hb_loads(i):
            kt_of(i, 83); a("s_lshl_b32 s83, s83, 12"); a("s_add_u32 s83, s83, s81")
            r = 112 + 16 * (i % 4)
            for sb in range(4):
                s.vmem(("hb", i), f"buffer_load_dwordx4 v[{r+4*sb}:{r+4*sb+3}], v7, s[44:47], s83 offen offset:{sb*1024} {s.opt.get('hsc', 'sc1')}")
        wq = [(i, dt) for i in range(5) for dt in range(5)]
        def wb_some(n):
            for _ in range(n):
                if not wq: return
                i, dt = wq.pop(0)
                if dt == 0: kt_of(i, 98); a("s_mul_i32 s98, s98, 5120"); a("s_add_u32 s98, s98, s80")
                r = 12 + 20 * (i % 5)
                if dt < 4: s.vmem(("wb", i), f"buffer_load_dwordx4 v[{r+4*dt}:{r+4*dt+3}], v7, s[44:47], s98 offen offset:{dt*1024} sc1")
                else: s.vmem(("wb", i), f"buffer_load_dwordx4 v[{r+4*dt}:{r+4*dt+3}], v8, s[44:47], s98 offen sc1")
        wpt = s.opt.get("wpt", 1)
        wb_some(s.opt.get("npre", 0))
        a("s_mov_b32 s84, 0xbfb8aa3b"); a("s_mov_b32 s85, 0xbfb8aa3b")
        a("s_lshl_b32 s87, s6, 1"); a("s_add_u32 s87, s87, s74")
        a(f"s_mul_i32 s88, s87, {HBS}")
        a("s_mul_i32 s89, s7, 6"); a("s_mul_i32 s90, s75, 3"); a("s_add_u32 s89, s89, s90")
        for T in range(3):
            a(f"s_add_u32 s90, s89, {T}"); a("s_and_b32 s91, s90, 1"); a("s_lshr_b32 s90, s90, 1")
            a("s_lshl_b32 s90, s90, 12"); a("s_lshl_b32 s91, s91, 9"); a("s_add_u32 s90, s90, s91"); a("s_add_u32 s90, s90, s88")
            for nt in range(2):
                ti = 2 * T + nt
                o = 160 + 16 * ti; p = 120 + 4 * ti
                if ti < s.opt.get("pkt", 0):
                    for e in range(4): a(f"v_pk_mul_f32 v[{o+2*e}:{o+2*e+1}], v[{o+2*e}:{o+2*e+1}], s[84:85]")
                    for e in range(8): a(f"v_exp_f32 v{o+e}, v{o+e}")
                    for e in range(4): a(f"v_pk_add_f32 v[{o+2*e}:{o+2*e+1}], v[{o+2*e}:{o+2*e+1}], 1.0 op_sel_hi:[1,0]")
                    for e in range(8): a(f"v_rcp_f32 v{o+e}, v{o+e}")
                    for e in range(4): a(f"v_pk_mul_f32 v[{o+2*e}:{o+2*e+1}], v[{o+2*e}:{o+2*e+1}], v[{o+8+2*e}:{o+9+2*e}]")
                else:
                    for e in range(8): a(f"v_mul_f32 v{o+e}, s84, v{o+e}")
                    for e in range(8): a(f"v_exp_f32 v{o+e}, v{o+e}")
                    for e in range(8): a(f"v_add_f32 v{o+e}, 1.0, v{o+e}")
                    for e in range(8): a(f"v_rcp_f32 v{o+e}, v{o+e}")
                    for e in range(8): a(f"v_mul_f32 v{o+e}, v{o+e}, v{o+8+e}")
                for e in range(4): a(f"v_cvt_pk_bf16_f32 v{p+e}, v{o+2*e}, v{o+2*e+1}")
                if s.m16:
                    a("s_nop 1"); a(f"v_permlane16_swap_b32 v{p}, v{p+2}"); a(f"v_permlane16_swap_b32 v{p+1}, v{p+3}")
                s.vmem("hst", f"buffer_store_dwordx4 v[{p}:{p+3}], v9, s[44:47], s90 offen offset:{nt*2048} sc1")
                if ti < 5: wb_some(wpt)
        a("s_setprio 0")
        s.stamp(3)
        wb_some(s.opt.get("wmid", 6))
        s.vm_wait({"hst"})
        a("s_lshl_b32 s90, s87, 8"); a("s_lshl_b32 s91, s7, 4"); a("s_add_u32 s90, s90, s91"); a("s_lshl_b32 s91, s75, 3"); a("s_add_u32 s90, s90, s91")
        a(f"s_add_u32 s90, s90, {WS_FH}")
        s.write_flag(144, 90)
        s.lds_set(2, L_XH, 1)
        s.stamp(4)
        wb_some(25)
        s.lds_wait(L_XCNT, 1, 4, 148)
        for i in range(5, 9): wb_dma(i)
        a("v_add_u32 v10, s92, v7")
        a("v_min_u32 v114, 7, v1"); a("v_lshlrev_b32 v114, 3, v114")
        a("s_lshl_b32 s90, s9, 8"); a("s_lshl_b32 s91, s3, 6"); a("s_add_u32 s90, s90, s91"); a(f"s_add_u32 s90, s90, {WS_FH}")
        s.poll(112, 114, "s90")
        s.stamp(5)
        h0 = s.opt.get("h0", 2)
        for i in range(h0): hb_loads(i)
        for i in range(12):
            if i == s.opt.get("xg2", 7): s.lds_set(2, L_XG2, 1)
            s.vm_wait({("hb", i), ("wb", i)})
            if i == 0:
                for k in range(h0, 4): hb_loads(k)
            s.stamp(16 + i, 3)
            if 5 <= i < 9: a("s_waitcnt lgkmcnt(0)")
            rw = 12 + 20 * (i % 5); rh = 112 + 16 * (i % 4)
            n = i + 4
            extra = {k: [] for k in range(20)}
            if n < 12:
                extra[0].append(lambda n=n: (kt_of(n, 83), a("s_mul_i32 s98, s83, 5120"), a("s_add_u32 s98, s98, s80"), a("s_lshl_b32 s83, s83, 12"), a("s_add_u32 s83, s83, s81")))
                for sb in range(4):
                    extra[5 * sb + 4].append(lambda n=n, sb=sb: s.vmem(("hb", n), f"buffer_load_dwordx4 v[{rh+4*sb}:{rh+4*sb+3}], v7, s[44:47], s83 offen offset:{sb*1024} sc1"))
                if n >= 5:
                    r = 12 + 20 * (n % 5)
                    for dt in range(5):
                        if n < 9: f = lambda n=n, dt=dt, r=r: a(f"ds_read_b128 v[{r+4*dt}:{r+4*dt+3}], v10 offset:{(n - 5) * 5120 + dt*1024}")
                        elif dt < 4: f = lambda n=n, dt=dt, r=r: s.vmem(("wb", n), f"buffer_load_dwordx4 v[{r+4*dt}:{r+4*dt+3}], v7, s[44:47], s98 offen offset:{dt*1024} sc1")
                        else: f = lambda n=n, dt=dt, r=r: s.vmem(("wb", n), f"buffer_load_dwordx4 v[{r+4*dt}:{r+4*dt+3}], v8, s[44:47], s98 offen sc1")
                        extra[4 * dt + 2].append(f)
            def pw(k):
                sb, dt = divmod(k, 5); o = 176 + 4 * (4 * dt + sb)
                a(f"ds_write_b128 v12, v[{o}:{o+3}] offset:{sb*5120 + dt*64}")
            if i == 11:
                extra[0].append(lambda: (a("v_and_b32 v12, 15, v1"), a("v_lshrrev_b32 v13, 4, v1"), a("v_bfe_u32 v14, v1, 1, 2"), a("v_xor_b32 v13, v13, v14")))
                extra[1].append(lambda: (a("v_mul_u32_u24 v12, 320, v12"), a("v_lshl_add_u32 v12, v13, 4, v12"), a("v_add_u32 v12, s92, v12")))
                for k in range(12): extra[k + 8].append(lambda k=k: pw(k))
            for sb in range(4):
                for dt in range(5):
                    o = 176 + 4 * (4 * dt + sb)
                    c = "0" if i == 0 else f"v[{o}:{o+3}]"
                    a(f"v_mfma_f32_16x16x32_bf16 v[{o}:{o+3}], v[{rw+4*dt}:{rw+4*dt+3}], v[{rh+4*sb}:{rh+4*sb+3}], {c}")
                    for f in extra[5 * sb + dt]: f()
        s.stamp(6)
        for k in range(12, 20):
            if k == 19: a("s_nop 0")
            pw(k)
        s.stamp(7)

    def final(s):
        a = s.a
        s.label("L_final")
        s.srd(48, 38, 2621440)
        a(f"s_mul_i32 s74, s9, {64*1280}"); a("s_mul_i32 s75, s10, 160"); a("s_add_u32 s74, s74, s75")
        def addr(n, b):
            a(f"v_mul_u32_u24 v13, 6554, v{n}"); a("v_lshrrev_b32 v13, 16, v13")
            a("v_mul_u32_u24 v14, 10, v13"); a(f"v_sub_u32 v14, v{n}, v14")
            a("v_bfe_u32 v15, v13, 1, 2"); a(f"v_lshlrev_b32 v{b}, 1, v14"); a(f"v_xor_b32 v{b}, v{b}, v15"); a(f"v_xor_b32 v{b+1}, 1, v{b}")
            a("v_mul_u32_u24 v15, 320, v13"); a(f"v_lshl_add_u32 v{b}, v{b}, 4, v15"); a(f"v_lshl_add_u32 v{b+1}, v{b+1}, 4, v15")
            a(f"v_lshlrev_b32 v{b+2}, 4, v{n}"); a(f"v_add_u32 v{b+2}, {L_QT}, v{b+2}")
            a(f"v_lshlrev_b32 v{b+3}, 2, v13"); a(f"v_add_u32 v{b+3}, {L_GF}, v{b+3}")
            a(f"v_mul_u32_u24 v{b+4}, 1120, v13"); a(f"v_lshl_add_u32 v{b+4}, v{n}, 4, v{b+4}")
        def rd(b, d):
            for w in range(4):
                a(f"ds_read_b128 v[{d+8*w}:{d+3+8*w}], v{b} offset:{w*20480}")
                a(f"ds_read_b128 v[{d+4+8*w}:{d+7+8*w}], v{b+1} offset:{w*20480}")
            a(f"ds_read_b128 v[{d+32}:{d+35}], v{b+2}"); a(f"ds_read_b32 v{d+36}, v{b+3}")
        def comp(b, d):
            for e in range(4):
                a(f"v_pk_add_f32 v[{d+2*e}:{d+1+2*e}], v[{d+2*e}:{d+1+2*e}], v[{d+8+2*e}:{d+9+2*e}]")
                a(f"v_pk_add_f32 v[{d+16+2*e}:{d+17+2*e}], v[{d+16+2*e}:{d+17+2*e}], v[{d+24+2*e}:{d+25+2*e}]")
            a(f"v_sub_f32 v{d+36}, 1.0, v{d+36}"); a(f"v_cvt_pk_bf16_f32 v{d+36}, v{d+36}, v{d+36}"); a(f"v_and_b32 v{d+36}, 0xffff0000, v{d+36}")
            for e in range(4):
                a(f"v_pk_add_f32 v[{d+2*e}:{d+1+2*e}], v[{d+2*e}:{d+1+2*e}], v[{d+16+2*e}:{d+17+2*e}]")
            for e in range(4):
                a(f"v_lshlrev_b32 v{d+8+2*e}, 16, v{d+32+e}"); a(f"v_and_b32 v{d+9+2*e}, 0xffff0000, v{d+32+e}")
                a(f"v_pk_fma_f32 v[{d+8+2*e}:{d+9+2*e}], v[{d+2*e}:{d+1+2*e}], v[{d+36}:{d+37}], v[{d+8+2*e}:{d+9+2*e}] op_sel_hi:[1,0,1]")
            for e in range(4): a(f"v_cvt_pk_bf16_f32 v{d+32+e}, v{d+8+2*e}, v{d+9+2*e}")
            a(f"buffer_store_dwordx4 v[{d+32}:{d+35}], v{b+4}, s[48:51], s74 offen {s.opt.get('ost', '')}")
        addr(0, 16)
        a("s_lshl_b32 s75, s3, 4"); a("s_add_u32 s75, s75, 512"); a("v_and_b32 v12, 15, v1"); a("v_add_u32 v12, s75, v12")
        addr(12, 24)
        a("s_waitcnt lgkmcnt(0)"); a("s_barrier")
        s.stamp(12)
        rd(16, 32)
        a("s_mov_b64 exec, 0xffff");
        rd(24, 72)
        a("s_mov_b64 exec, -1")
        a("s_waitcnt lgkmcnt(10)")
        comp(16, 32)
        a("s_waitcnt lgkmcnt(0)")
        a("s_mov_b64 exec, 0xffff")
        comp(24, 72)
        a("s_mov_b64 exec, -1")
        s.label("L_fin2")
        if s.opt.get("stamps"):
            s.stamp(13)
            a("s_waitcnt vmcnt(0)")
            s.stamp(14)
            a("s_memrealtime s[96:97]"); a("s_waitcnt lgkmcnt(0)"); a("v_writelane_b32 v11, s96, 15")
            a("s_lshl_b32 s74, s2, 3"); a("s_add_u32 s74, s74, s3"); a("s_lshl_b32 s74, s74, 8"); a(f"s_add_u32 s74, s74, {WS_STAMP}")
            a("v_lshlrev_b32 v12, 2, v1")
            a("buffer_store_dword v11, v12, s[44:47], s74 offen")
            if s.opt.get("dbgout"):
                ld = s.newlab("L_dbo")
                a("s_cmp_lg_u32 s2, 9"); a(f"s_cbranch_scc1 {ld}"); a("s_cmp_lg_u32 s3, 0"); a(f"s_cbranch_scc1 {ld}")
                s.srd(64, 40, 256)
                a("v_readlane_b32 s74, v11, 0"); a("s_nop 1"); a("v_subrev_u32 v11, s74, v11")
                a("v_add_u32 v12, 4, v12")
                a("s_mov_b64 exec, 0x7ffe"); a("buffer_store_dword v11, v12, s[64:67], 0 offen"); a("s_mov_b64 exec, -1")
                s.label(ld)
        s.label("L_end")
        a("s_endpgm")

    def kv_pre(s):
        a = s.a
        a("v_mul_u32_u24 v90, 3277, v1"); a("v_lshrrev_b32 v90, 16, v90"); a("v_mul_u32_u24 v91, 20, v90"); a("v_sub_u32 v91, v1, v91")
        a(f"s_mul_i32 s76, s74, {CV_SZ}"); a(f"s_add_u32 s76, s76, {L_CV + 2*CV_SZ}")
        a("v_lshlrev_b32 v95, 5, v91"); a("v_add_u32 v95, s76, v95")
        a(f"s_mul_i32 s77, s75, {16*192}"); a("s_add_u32 s76, s76, s77"); a("s_and_b32 s77, s10, 1"); a("s_lshl_b32 s77, s77, 5"); a("s_add_u32 s76, s76, s77")
        a(f"v_mul_u32_u24 v10, {6*192}, v90"); a("v_lshl_add_u32 v10, v91, 3, v10"); a("v_add_u32 v10, s76, v10")
        a("s_lshl_b32 s77, s3, 3"); a("v_mul_u32_u24 v85, 3, v90"); a("v_add_u32 v85, s77, v85"); a("v_and_b32 v86, 7, v91")
        for m in range(3):
            a(f"v_sub_u32 v87, {29+m}, v85"); a("v_lshrrev_b32 v88, 2, v87"); a("v_xor_b32 v88, v88, v86"); a("v_lshlrev_b32 v88, 4, v88")
            a("v_and_b32 v87, 3, v87"); a("v_lshl_add_u32 v88, v87, 2, v88"); a(f"v_lshl_add_u32 v{92+m}, v91, 7, v88")
            a(f"v_add_u32 v{92+m}, {L_T}, v{92+m}")
    def kv_main(s):
        a = s.a
        s.label("L_kv")
        a("s_barrier")
        s.stamp(8)
        a(f"ds_read_b128 v[42:45], v95 offset:{SC_SHK}"); a(f"ds_read_b128 v[46:49], v95 offset:{SC_SHK + 16}")
        for i in range(9): a(f"ds_read_b64 v[{12+2*i}:{13+2*i}], v10 offset:{SC_K + 192*i}")
        a("s_waitcnt lgkmcnt(9)")
        for i in range(6): a(f"ds_read_b64 v[{30+2*i}:{31+2*i}], v10 offset:{SC_V + 192*i}")
        for e in range(4):
            a(f"v_lshlrev_b32 v{96+e}, 16, v{42+2*e}"); a(f"v_and_b32 v{100+e}, 0xffff0000, v{42+2*e}")
            a(f"v_lshlrev_b32 v{104+e}, 16, v{43+2*e}"); a(f"v_and_b32 v{108+e}, 0xffff0000, v{43+2*e}")
        a("s_waitcnt lgkmcnt(0)")
        s.ex(60)
        for d in range(2):
            for i in range(9):
                a(f"v_lshlrev_b32 v{112+2*i}, 16, v{12+2*i+d}"); a(f"v_and_b32 v{113+2*i}, 0xffff0000, v{12+2*i+d}")
            for i in range(6):
                a(f"v_lshlrev_b32 v{130+2*i}, 16, v{30+2*i+d}"); a(f"v_and_b32 v{131+2*i}, 0xffff0000, v{30+2*i+d}")
            for r in range(6):
                a(f"v_pk_mul_f32 v[{142+2*r}:{143+2*r}], v[{112+2*r}:{113+2*r}], v[{108+2*d}:{109+2*d}]")
            for j in (2, 1, 0):
                for r in range(6):
                    k = 112 + 2 * (r + 3 - j); w = 96 + 4 * j + 2 * d
                    a(f"v_pk_fma_f32 v[{142+2*r}:{143+2*r}], v[{k}:{k+1}], v[{w}:{w+1}], v[{142+2*r}:{143+2*r}]")
            for r in range(6):
                a(f"v_pk_mul_f32 v[{142+2*r}:{143+2*r}], v[{142+2*r}:{143+2*r}], v[{130+2*r}:{131+2*r}]")
            for e in range(2):
                for m in range(3):
                    hi = 4 - 2 * m
                    a(f"v_cvt_pk_bf16_f32 v{154+3*e+m}, v{142+2*(hi+1)+e}, v{142+2*hi+e}")
            for m in (1, 2, 0):
                if m == 0: a("s_mov_b32 exec_hi, 0xff")
                for e in range(2):
                    a(f"ds_write_b32 v{92+m}, v{154+3*e+m} offset:{(2*d+e)*2560}")
            a("s_mov_b32 exec_hi, 0xfffffff")
        a("s_mov_b64 exec, -1")
        s.stamp(9)
        a("s_branch L_kvret")
        s.label("L_codeend")

    def build(s):
        s.kvt = s.opt.get("kvt", 6); s.m16 = s.opt.get("m16", 1)
        s.nt = "nt" if s.opt.get("nt", 1) else ""
        hdr = open("gated_mix__ssm_conv_h3__glu_gated_glu__prompt.s.ref").read().split("; Override launch")[0]
        out = hdr + f"; @launch grid=(256,1,1) block=(512,1,1) lds={LDS_TOTAL}\n"
        out += '.amdgcn_target "amdgcn-amd-amdhsa--gfx950"\n.text\n' + f".globl {KN}\n.p2align 8\n.type {KN},@function\n{KN}:\n"
        s.prologue(); s.loader(); s.chore(); s.ywave(); s.xwave(); s.final(); s.kv_main()
        out += "\n".join(s.L) + "\n"
        out += f""".section .rodata,"a"
.p2align 6
.amdhsa_kernel {KN}
  .amdhsa_next_free_vgpr 256
  .amdhsa_next_free_sgpr 102
  .amdhsa_accum_offset 256
  .amdhsa_group_segment_fixed_size 0
  .amdhsa_kernarg_size 112
  .amdhsa_user_sgpr_count 2
  .amdhsa_user_sgpr_kernarg_segment_ptr 1
  .amdhsa_system_sgpr_workgroup_id_x 1
.end_amdhsa_kernel
"""
        return out

if __name__ == "__main__":
    opt = {}
    outp = sys.argv[1]
    for x in sys.argv[2:]:
        k, v = x.split("=")
        if "," in v: opt[k] = tuple(int(z) for z in v.split(","))
        else:
            try: opt[k] = int(v)
            except ValueError: opt[k] = v
    open(outp, "w").write(Gen(opt).build())
```

```python
import sys
KN = "gated_mix__ssm_conv_h3__glu_gated_glu__prompt_kernel"

WS_HB = 0x000000; WS_WB = 0x610000; HBS = 48*4096 + 128; WBS = 48*5120 + 128; WS_KT = 0x800000; WS_YT = 0xB00000
WS_G = 0xE00000; WS_FA = 0xE10000; WS_FB = 0xE12000; WS_FH = 0xE14000; WS_FY = 0xE16000
WS_STAMP = 0xF00000
TS = 4224
L_XR = 0; L_WR = 32768; L_CV = 81920; CV_SZ = 17728; H_SZ = 8448; L_QT = 152832; L_MISC = 163072; LDS_TOTAL = 163840
CV_A = 0; CV_B = 4224; CV_U0 = 0; CV_U1 = 4616
L_FULL = L_MISC; L_FREE = L_MISC + 16; L_EPOCH = L_MISC + 32; L_QDONE = L_MISC + 40; L_SDONE = L_MISC + 48; L_XG2 = L_MISC + 56; L_XH = L_MISC + 60; L_XCNT = L_MISC + 52; L_GF = L_MISC + 256
SC_K = 0; SC_V = 6720; SC_SHK = 13440; L_T = L_CV; L_WDS = L_CV + CV_SZ
SPIN_MAX = 30000
NCONV = 160

class Gen:
    def __init__(s, opt):
        s.L = []; s.opt = opt; s.vm = []; s.lab = 0; s.vstamp = 11
    def a(s, x): s.L.append("    " + x)
    def label(s, x): s.L.append(x + ":")
    def newlab(s, p="L"):
        s.lab += 1; return f"{p}_{s.lab}"
    def vm_reset(s): s.vm = []
    def vmem(s, tag, ins): s.a(ins); s.vm.append(tag)
    def vm_wait(s, tags):
        idx = -1
        for i, t in enumerate(s.vm):
            if t in tags: idx = i
        if idx < 0: return
        n = len(s.vm) - 1 - idx
        assert n <= 63
        s.a(f"s_waitcnt vmcnt({n})")
        s.vm = s.vm[idx + 1:]
    def vm_wait_all(s):
        s.a("s_waitcnt vmcnt(0)"); s.vm = []
    def ex(s, n):
        if n >= 64: s.a("s_mov_b64 exec, -1")
        elif n > 32: s.a("s_mov_b32 exec_lo, -1"); s.a(f"s_mov_b32 exec_hi, {hex((1 << (n - 32)) - 1)}")
        elif n == 32: s.a("s_mov_b32 exec_hi, 0")
        else: s.a(f"s_mov_b32 exec_lo, {hex((1 << n) - 1)}"); s.a("s_mov_b32 exec_hi, 0")
    def srd(s, d, p, nbytes):
        s.a(f"s_mov_b32 s{d}, s{p}"); s.a(f"s_and_b32 s{d+1}, s{p+1}, 0xffff")
        s.a(f"s_mov_b32 s{d+2}, {nbytes}"); s.a(f"s_mov_b32 s{d+3}, 0x20000")
    def stamp(s, idx, lvl=1):
        if s.opt.get("stamps", 0) >= 1 and (lvl == 1 or s.opt.get("stamps", 0) == lvl):
            s.a("s_memtime s[96:97]"); s.a("s_waitcnt lgkmcnt(0)")
            s.a(f"v_writelane_b32 v{s.vstamp}, s96, {idx}")
            if s.opt.get("rt") and lvl == 1 and idx < 15:
                s.a("s_memrealtime s[96:97]"); s.a("s_waitcnt lgkmcnt(0)"); s.a(f"v_writelane_b32 v{s.vstamp}, s96, {idx + 40}")
    def poll(s, vflag, voff, soff, scnt=94, slp=None):
        l0 = s.newlab("L_poll"); l1 = s.newlab("L_pdone")
        s.a(f"s_mov_b32 s{scnt}, {SPIN_MAX}")
        s.label(l0)
        s.a(f"buffer_load_dwordx2 v[{vflag}:{vflag+1}], v{voff}, s[44:47], {soff} offen sc1")
        s.a("s_waitcnt vmcnt(0)")
        s.a(f"v_cmp_ne_u64 vcc, s[72:73], v[{vflag}:{vflag+1}]")
        s.a("s_nop 1")
        s.a(f"s_cbranch_vccz {l1}")
        slp = s.opt.get("slp", 4) if slp is None else slp
        if slp: s.a(f"s_sleep {slp}")
        s.a(f"s_sub_u32 s{scnt}, s{scnt}, 1")
        s.a(f"s_cbranch_scc0 {l0}")
        s.label(l1)
        s.vm = []
    def lds_wait(s, addr, nw, need, vt, scache=None, scnt=94, slp=0):
        a = s.a
        sc = scache if scache is not None else 95
        l0 = s.newlab("L_lw"); l1 = s.newlab("L_lwd")
        if scache is not None:
            a(f"s_cmp_ge_u32 s{sc}, {need}"); a(f"s_cbranch_scc1 {l1}")
        a(f"s_mov_b32 s{scnt}, {SPIN_MAX * 8}")
        a(f"v_mov_b32 v{vt+4}, {addr}")
        s.label(l0)
        if nw == 1: a(f"ds_read_b32 v{vt}, v{vt+4}")
        elif nw == 2: a(f"ds_read_b64 v[{vt}:{vt+1}], v{vt+4}")
        else: a(f"ds_read_b128 v[{vt}:{vt+3}], v{vt+4}")
        a("s_waitcnt lgkmcnt(0)")
        if nw == 2: a(f"v_min_u32 v{vt}, v{vt}, v{vt+1}")
        if nw == 4: a(f"v_min_u32 v{vt}, v{vt}, v{vt+1}"); a(f"v_min3_u32 v{vt}, v{vt}, v{vt+2}, v{vt+3}")
        a("s_nop 0")
        a(f"v_readfirstlane_b32 s{sc}, v{vt}")
        a("s_nop 1")
        a(f"s_cmp_ge_u32 s{sc}, {need}"); a(f"s_cbranch_scc1 {l1}")
        if slp: a(f"s_sleep {slp}")
        a(f"s_sub_u32 s{scnt}, s{scnt}, 1"); a(f"s_cbranch_scc0 {l0}")
        s.label(l1)
    def read_epoch(s, vt):
        a = s.a; l0 = s.newlab("L_re"); l1 = s.newlab("L_red")
        a(f"s_mov_b32 s94, {SPIN_MAX * 8}"); a(f"v_mov_b32 v{vt+2}, {L_EPOCH}")
        s.label(l0)
        a(f"ds_read_b64 v[{vt}:{vt+1}], v{vt+2}")
        a("s_waitcnt lgkmcnt(0)")
        a(f"v_readfirstlane_b32 s72, v{vt}"); a(f"v_readfirstlane_b32 s73, v{vt+1}"); a("s_nop 1")
        a("s_cmp_lg_u32 s73, 0"); a(f"s_cbranch_scc1 {l1}")
        a("s_sub_u32 s94, s94, 1"); a(f"s_cbranch_scc0 {l0}")
        s.label(l1)
    def write_flag(s, vt, sreg):
        s.a(f"v_mov_b32 v{vt}, s72"); s.a(f"v_mov_b32 v{vt+1}, s73"); s.a(f"v_mov_b32 v{vt+2}, 0")
        s.a("s_mov_b64 exec, 1")
        s.vmem("flag", f"buffer_store_dwordx2 v[{vt}:{vt+1}], v{vt+2}, s[44:47], s{sreg} offen sc1")
        s.a("s_mov_b64 exec, -1")
    def h_own(s, syreg):
        a = s.a
        a("s_lshl_b32 s76, s14, 2"); a(f"s_add_u32 s76, s76, s{syreg}"); a("s_lshl_b32 s76, s76, 12")
        for i in range(4):
            s.vmem("h", f"buffer_load_dwordx4 v[{164+4*i}:{167+4*i}], v12, s[60:63], s76 offen offset:{i*1024} {s.nt}")
    def kwait(s):
        if not s.opt.get("stamps") and s.opt.get("early", 1):
            s.a("s_waitcnt lgkmcnt(0)")
            s.srd(44, 42, 0x10000000)
    def lds_set(s, vt, addr_sreg_or_const, val):
        s.a(f"v_mov_b32 v{vt}, {addr_sreg_or_const}"); s.a(f"v_mov_b32 v{vt+1}, {val}"); s.a(f"ds_write_b32 v{vt}, v{vt+1}")

    def prologue(s):
        a = s.a
        a("s_cmp_ge_u32 s2, 256"); a("s_cbranch_scc1 L_end")
        a("s_load_dwordx16 s[16:31], s[0:1], 0")
        a("s_load_dwordx8 s[32:39], s[0:1], 64")
        a("s_load_dwordx4 s[40:43], s[0:1], 96")
        a("v_lshrrev_b32 v2, 6, v0")
        a("v_and_b32 v1, 63, v0")
        a("v_readfirstlane_b32 s3, v2")
        a("s_and_b32 s4, s2, 7"); a("s_lshr_b32 s5, s2, 3")
        a("s_lshr_b32 s6, s4, 2"); a("s_lshl_b32 s6, s6, 3"); a("s_and_b32 s11, s5, 7"); a("s_add_u32 s6, s6, s11")
        a("s_and_b32 s7, s4, 3"); a("s_lshl_b32 s7, s7, 2"); a("s_lshr_b32 s12, s5, 3"); a("s_add_u32 s7, s7, s12")
        a("s_lshl_b32 s8, s12, 1"); a("s_add_u32 s8, s8, s11"); a("s_and_b32 s8, s8, 7")
        if s.opt.get("g2map", 0):
            a("s_lshr_b32 s9, s4, 1"); a("s_lshl_b32 s9, s9, 3"); a("s_add_u32 s9, s9, s11")
            a("s_and_b32 s10, s4, 1"); a("s_lshl_b32 s10, s10, 2"); a("s_add_u32 s10, s10, s12")
        else:
            a("s_lshl_b32 s9, s4, 2"); a("s_and_b32 s13, s5, 3"); a("s_add_u32 s9, s9, s13"); a("s_lshr_b32 s10, s5, 2")
        if s.opt.get("cmap", 0):
            a("s_mul_i32 s14, s5, 5"); a("s_add_u32 s14, s14, s4"); a("s_cmp_lt_u32 s4, 5"); a("s_cselect_b32 s14, s14, 255")
        else: a("s_mov_b32 s14, s2")
        if s.opt.get("stamps"): a("v_mov_b32 v11, 0")
        a("v_lshlrev_b32 v12, 4, v1")
        if s.opt.get("stamps") or not s.opt.get("early", 1):
            a("s_waitcnt lgkmcnt(0)")
            s.srd(44, 42, 0x10000000)
        s.stamp(0)
        if s.opt.get("stamps"):
            a("s_memrealtime s[96:97]"); a("s_waitcnt lgkmcnt(0)"); a("v_writelane_b32 v11, s96, 62")
        a("s_cmp_lt_u32 s3, 4"); a("s_cbranch_scc1 L_X")
        a("s_cmp_ge_u32 s3, 6"); a("s_cbranch_scc1 L_C")

    def loader(s):
        a = s.a; s.vm_reset()
        s.label("L_L")
        a(f"s_setprio {s.opt.get('lprio', 3)}")
        a("s_sub_u32 s74, s3, 4")
        a("v_lshrrev_b32 v4, 2, v1"); a("v_mul_u32_u24 v2, 3072, v4")
        a("v_and_b32 v5, 3, v1")
        if s.m16: a("v_lshrrev_b32 v6, 5, v1"); a("v_lshlrev_b32 v6, 1, v6"); a("v_xor_b32 v6, v6, v5")
        else: a("s_lshl_b32 s75, s74, 1"); a("v_xor_b32 v6, s75, v5")
        a("v_lshl_add_u32 v2, v6, 4, v2")
        a("s_mul_i32 s75, s7, 192"); a("v_add_u32 v2, s75, v2")
        a("v_mul_u32_u24 v3, 1280, v4")
        if s.m16:
            a("v_lshrrev_b32 v7, 5, v1"); a("v_bfe_u32 v6, v1, 4, 1"); a("v_xor_b32 v6, v6, v7"); a("v_lshl_add_u32 v6, v6, 1, v7"); a("v_xor_b32 v6, v6, v5")
        else:
            a("v_lshrrev_b32 v6, 4, v1"); a("s_lshl_b32 s75, s74, 2"); a("v_add_u32 v6, s75, v6")
            a("v_lshrrev_b32 v7, 1, v6"); a("v_xor_b32 v6, v6, v7"); a("v_and_b32 v6, 3, v6"); a("v_xor_b32 v6, v6, v5")
        a("v_lshl_add_u32 v3, v6, 4, v3")
        a("s_lshl_b32 s75, s6, 3"); a("s_add_u32 s75, s75, s74"); a(f"s_mul_i32 s75, s75, {16*1280}"); a("v_add_u32 v3, s75, v3")
        a("s_lshl_b32 s78, s74, 10")
        a(f"s_mul_i32 s79, s74, 6144"); a(f"s_add_u32 s79, s79, {L_WR}")
        s.kwait()
        s.srd(48, 16, 2621440)
        a("s_cmp_eq_u32 s74, 0")
        a("s_cselect_b32 s52, s30, s32"); a("s_cselect_b32 s53, s31, s33"); a("s_and_b32 s53, s53, 0xffff")
        a("s_mov_b32 s54, 1966080"); a("s_mov_b32 s55, 0x20000")
        groups = s.opt.get("groups", (1,) * 10)
        if s.opt.get("cyc", 1): a("s_mul_i32 s8, s8, 5"); a("s_lshr_b32 s8, s8, 2")
        def dsel(D):
            if s.opt.get("cyc", 1):
                a(f"s_add_u32 s80, s8, {D}"); a("s_cmp_ge_u32 s80, 10"); a("s_cselect_b32 s15, 10, 0"); a("s_sub_u32 s80, s80, s15")
                return
            b = 0
            for g in groups:
                if D < b + g: break
                b += g
            if g == 1: a(f"s_mov_b32 s80, {D}"); return
            assert g in (2, 4, 8)
            src = "s8" if g == 8 else ("s14" if g == 4 else "s15")
            a(f"s_add_u32 s80, {src}, {D - b}"); a(f"s_and_b32 s80, s80, {g - 1}")
            if b: a(f"s_add_u32 s80, s80, {b}")
        def issue_x(D):
            dsel(D); a("s_lshl_b32 s81, s80, 7")
            for gi in range(4):
                for h in range(2):
                    t = 2 * D + h
                    a(f"s_add_u32 m0, s78, {L_XR + (t & 3) * 8192 + gi * 2048}")
                    a(f"s_add_u32 s82, s81, {gi * 32 * 1280 + h * 64}")
                    s.vmem(("x", t), f"buffer_load_dwordx4 v3, s[48:51], s82 offen lds")
        def issue_w(t):
            dsel(t >> 1); a(f"s_mul_i32 s81, s80, {64*3072}")
            for rh in range(2):
                for pc in range(3):
                    a(f"s_add_u32 m0, s79, {(t & 3) * 12288 + pc * 2048 + rh * 1024}")
                    a(f"s_add_u32 s82, s81, {(32 * (t & 1) + 16 * rh) * 3072 + pc * 64}")
                    s.vmem(("w", t), f"buffer_load_dwordx4 v2, s[52:55], s82 offen lds")
        def publish(t):
            s.vm_wait({("x", t), ("w", t), ("x", t | 1)})
            s.stamp(40 + t, 2)
            a("s_barrier")
            s.stamp(16 + t, 2)
        issue_w(0); issue_x(0); issue_w(1)
        a("s_barrier")
        publish(0); publish(1)
        if s.opt.get("lx1", 0):
            issue_x(1)
            a("s_barrier")
            issue_w(2)
        elif s.opt.get("rtouch", 2):
            a("s_barrier")
            issue_x(1); issue_w(2)
        else:
            issue_x(1); issue_w(2)
            a("s_barrier")
        issue_w(3)
        hold = -5
        pend = []
        for n in range(1, 17):
            if n % 2 == 0 and n + 2 < 20: pend.append(lambda n=n: issue_x((n + 2) // 2))
            if n + 3 < 20: pend.append(lambda n=n: issue_w(n + 3))
            if n != hold:
                for f in pend: f()
                pend = []
            if n == s.opt.get("hmid", 0): s.srd(60, 24, 2621440); s.h_own(74)
            hp_ = s.opt.get("hp", 18)
            if s.opt.get("hmid", 0) and hp_ < 17 and n in (hp_, hp_ + 1):
                s.vm_wait({"h"})
                lh_ = s.newlab("L_nh"); a(f"s_cmp_ge_u32 s14, {NCONV}"); a(f"s_cbranch_scc1 {lh_}")
                a("s_mov_b32 s83, s74"); a(f"s_mul_i32 s84, s74, {CV_SZ}"); a(f"s_add_u32 s84, s84, {L_CV}")
                s.h_copies(84, 164, n - hp_); a("s_mov_b32 s74, s83"); s.label(lh_)
            if n < 16: publish(n + 1)
        a("s_mov_b32 s83, s74")
        a("s_branch L_Yt")

    def row_loads(s, srd, nrows, vfirst, vrest, reg, tag, nt):
        a = s.a
        for i in range((nrows + 4) // 5):
            n = min(5, nrows - 5 * i)
            if i == 0 or n < 5: s.ex(12 * n)
            r = reg + 4 * i
            if i == 0: s.vmem(tag, f"buffer_load_dwordx4 v[{r}:{r+3}], v{vfirst}, s[{srd}:{srd+3}], 0 offen {nt}")
            else:
                a(f"s_mov_b32 s77, {6400*(i-1)}")
                s.vmem(tag, f"buffer_load_dwordx4 v[{r}:{r+3}], v{vrest}, s[{srd}:{srd+3}], s77 offen {nt}")
        a("s_mov_b64 exec, -1")
    def dma_rows(s, srd, nrows, vfirst, vrest, ldsbase_s, ldsoff, tag, nt):
        a = s.a
        for i in range((nrows + 4) // 5):
            a(f"s_add_u32 m0, s{ldsbase_s}, {ldsoff + 960*i}")
            n = min(5, nrows - 5 * i)
            if i == 0 or n < 5: s.ex(12 * n)
            if i == 0: s.vmem(tag, f"buffer_load_dwordx4 v{vfirst}, s[{srd}:{srd+3}], 0 offen {nt} lds")
            else:
                a(f"s_mov_b32 s77, {6400*(i-1)}")
                s.vmem(tag, f"buffer_load_dwordx4 v{vrest}, s[{srd}:{srd+3}], s77 offen {nt} lds")
        a("s_mov_b64 exec, -1")
    def img_write(s, sbase, off, n, reg):
        a = s.a
        a(f"v_add_u32 v13, s{sbase}, v12"); s.ex(60)
        for i in range(n): a(f"ds_write_b128 v13, v[{reg+4*i}:{reg+4*i+3}] offset:{off + 960*i}")
        a("s_mov_b64 exec, -1")
    def h_copies(s, sbase, reg, half=None):
        a = s.a
        a(f"v_add_u32 v13, s{sbase}, v12")
        for i in (range(4) if half is None else range(2 * half, 2 * half + 2)):
            r = reg + 4 * i
            if i == 0: a("v_mov_b32 v234, 0")
            else:
                a(f"v_readlane_b32 s74, v{r-1}, 63"); a("s_nop 1"); a("v_mov_b32 v234, s74")
            a("s_nop 1")
            a(f"v_mov_b32_dpp v234, v{r+3} wave_shr:1 row_mask:0xf bank_mask:0xf")
            a(f"ds_write_b128 v13, v[{r}:{r+3}] offset:{CV_B + 64 + i*1024}")
            a(f"v_alignbit_b32 v236, v{r}, v234, 16")
            a(f"v_alignbit_b32 v237, v{r+1}, v{r}, 16")
            a(f"v_alignbit_b32 v238, v{r+2}, v{r+1}, 16")
            a(f"v_alignbit_b32 v239, v{r+3}, v{r+2}, 16")
            a(f"ds_write_b128 v13, v[236:239] offset:{CV_A + 64 + i*1024}")
        if half == 0: return
        a("v_lshrrev_b32 v234, 2, v1"); a("v_and_b32 v235, 1, v234"); a("v_mul_u32_u24 v235, 4160, v235")
        a("v_lshrrev_b32 v234, 1, v234"); a(f"v_mul_u32_u24 v234, {CV_B}, v234"); a("v_add_u32 v235, v235, v234")
        a("v_and_b32 v234, 3, v1"); a("v_lshl_add_u32 v235, v234, 4, v235"); a(f"v_add_u32 v235, s{sbase}, v235")
        for r in range(236, 240): a(f"v_mov_b32 v{r}, 0")
        s.ex(16)
        a("ds_write_b128 v235, v[236:239]")
        a("s_mov_b64 exec, -1")
    def u_addr(s, sbase):
        a = s.a
        def swz(dst, off):
            a(f"v_add_u32 v{dst}, {off}, v12"); a(f"v_lshrrev_b32 v41, 3, v{dst}"); a("v_and_b32 v41, 32, v41"); a(f"v_xor_b32 v{dst}, v{dst}, v41")
            a(f"v_add_u32 v{dst}, s{sbase}, v{dst}"); a(f"v_subrev_u32 v{dst}, 64, v{dst}")
        swz(14, 68); swz(15, 80); swz(40, 72)
        a(f"v_add_u32 v13, s{sbase}, v12")
        for r in range(32, 36): a(f"v_mov_b32 v{r}, 0")
        s.ex(34); a("ds_write_b128 v13, v[32:35] offset:4096")
        s.ex(33); a(f"ds_write_b128 v13, v[32:35] offset:{CV_U1 + 4096 - 8}")
        a("s_mov_b64 exec, 1"); a("ds_write_b128 v13, v[32:35]")
        a("s_mov_b64 exec, -1")
    def u_stage(s, reg, nwait0):
        a = s.a
        for i in range(4):
            a(f"s_waitcnt vmcnt({nwait0 + 3 - i})")
            r = reg + 4 * i
            a(f"ds_write_b64 v40, v[{r}:{r+1}] offset:{CV_U1 + i*1024}")
            a(f"ds_write_b64 v15, v[{r+2}:{r+3}] offset:{CV_U1 + i*1024}")
            a(f"ds_write_b64 v14, v[{r}:{r+1}] offset:{i*1024}") if False else None
            a(f"ds_write_b32 v14, v{r} offset:{i*1024}")
            a(f"ds_write_b64 v14, v[{r+1}:{r+2}] offset:{i*1024 + 4}") if False else None
            a(f"ds_write_b32 v14, v{r+1} offset:{i*1024 + 4}")
            a(f"ds_write_b32 v14, v{r+2} offset:{i*1024 + 8}")
            a(f"ds_write_b32 v15, v{r+3} offset:{i*1024}")

    def chore(s):
        a = s.a; s.vm_reset(); nt = s.nt
        s.label("L_C")
        a(f"s_setprio {s.opt.get('cprio', 2)}")
        a("s_sub_u32 s78, s3, 6")
        a(f"s_mul_i32 s79, s78, {CV_SZ}"); a(f"s_add_u32 s79, s79, {L_CV}")
        a(f"s_add_u32 s84, s79, {2*CV_SZ}")
        a("s_mul_i32 s93, s78, 4800"); a(f"s_add_u32 s93, s93, {L_WDS}")
        a("s_and_b32 s85, s10, 1"); a("s_lshl_b32 s85, s85, 5")
        a("s_mul_i32 s80, s10, 160"); a("s_sub_u32 s80, s80, s85")
        a("s_lshl_b32 s81, s9, 6"); a("s_lshl_b32 s74, s78, 5"); a("s_add_u32 s81, s81, s74")
        a("v_mul_u32_u24 v4, 5462, v1"); a("v_lshrrev_b32 v4, 16, v4")
        a("v_mul_u32_u24 v5, 12, v4"); a("v_sub_u32 v5, v1, v5")
        a("v_mul_u32_u24 v6, 1280, v4"); a("v_lshl_add_u32 v6, v5, 4, v6"); a("v_add_u32 v6, s80, v6")
        a("s_mul_i32 s74, s9, 48"); a("s_mul_i32 s75, s78, 24"); a("s_add_u32 s74, s74, s75"); a("s_mul_i32 s74, s74, 1280")
        a("v_add_u32 v16, s74, v6"); a("v_add_u32 v17, 6400, v16")
        a("s_mul_i32 s74, s81, 1280")
        a("v_add_u32 v20, s74, v6"); a("v_add_u32 v21, 6400, v20")
        a(f"v_subrev_u32 v18, {3*1280}, v20"); a("v_add_u32 v19, 6400, v18")
        s.kwait()
        s.srd(64, 40, 256)
        l = s.newlab("L_noep")
        a("s_cmp_lg_u32 s2, 0"); a(f"s_cbranch_scc1 {l}"); a("s_cmp_lg_u32 s78, 0"); a(f"s_cbranch_scc1 {l}")
        a("s_memrealtime s[74:75]"); a("s_waitcnt lgkmcnt(0)"); a("s_or_b32 s75, s75, 0x40000000")
        a("v_mov_b32 v8, s74"); a("v_mov_b32 v9, s75"); a("v_mov_b32 v10, 0")
        a("s_mov_b64 exec, 1"); a("buffer_store_dwordx2 v[8:9], v10, s[64:67], 0 offen sc1"); a("s_mov_b64 exec, -1")
        s.label(l)
        s.srd(48, 18, 2621440); s.srd(52, 20, 2621440); s.srd(56, 22, 5120); s.srd(60, 24, 2621440)
        s.srd(68, 16, 2621440); s.srd(88, 34, 1966080)
        a("v_mov_b32 v23, 0"); a("v_mov_b32 v37, 1")
        if s.opt.get("ticket", 0):
            lt = s.newlab("L_tk")
            a("s_cmp_eq_u32 s78, 0"); a(f"s_cbranch_scc1 {lt}")
            a("s_mov_b64 exec, 1"); a("buffer_atomic_add v37, v23, s[64:67], 0 offen offset:64 sc0"); a("s_mov_b64 exec, -1")
            s.label(lt)
        elif s.opt.get("cmap", 0):
            a("s_mul_i32 s74, s5, 5"); a("s_add_u32 s74, s74, s4"); a("s_cmp_lt_u32 s4, 5"); a("s_cselect_b32 s74, s74, 255"); a("v_mov_b32 v37, s74")
        else: a("v_mov_b32 v37, s2")
        a("s_barrier")
        s.dma_rows(48, 35, 18, 19, 84, SC_K, "k", nt)
        s.dma_rows(52, 32, 20, 21, 84, SC_V, "k", nt)
        a("s_mul_i32 s75, s10, 640"); a(f"s_add_u32 m0, s84, {SC_SHK}"); s.ex(40)
        s.vmem("k", "buffer_load_dwordx4 v12, s[56:59], s75 offen lds")
        a("s_mov_b64 exec, -1")
        s.vmem("ep", "buffer_load_dwordx2 v[38:39], v23, s[64:67], 0 offen sc1")
        s.stamp(40, 2); a("s_barrier")
        if s.opt.get("rtouch", 2):
            a("s_mov_b32 s76, 0x986431"); a("s_bitcmp1_b32 s11, 0"); a("s_cselect_b32 s76, 0x975420, s76")
            a("v_lshrrev_b32 v240, 4, v1"); a("v_lshlrev_b32 v240, 2, v240"); a("v_lshrrev_b32_e64 v241, v240, s76"); a("v_and_b32 v241, 15, v241")
            a("s_lshr_b32 s76, s76, 16"); a("v_lshrrev_b32_e64 v242, v240, s76"); a("v_and_b32 v242, 15, v242")
            a("v_and_b32 v243, 15, v1"); a("v_mul_u32_u24 v243, 1280, v243")
            a("v_lshl_add_u32 v241, v241, 7, v243"); a("v_lshl_add_u32 v242, v242, 7, v243")
            a("s_lshl_b32 s76, s6, 3"); a("s_lshl_b32 s77, s12, 1"); a("s_add_u32 s76, s76, s77"); a("s_add_u32 s76, s76, s78"); a(f"s_mul_i32 s98, s76, {16*1280}")
            a("v_bfe_u32 v243, v1, 4, 1"); a(f"v_mul_u32_u24 v243, {5*64*3072}, v243"); a("v_bfe_u32 v244, v1, 1, 3"); a("v_mul_u32_u24 v244, 3072, v244"); a("v_add_u32 v243, v243, v244")
            a("v_and_b32 v244, 1, v1"); a("v_lshl_add_u32 v243, v244, 7, v243")
            a("s_mul_i32 s76, s7, 192"); a("s_and_b32 s76, s76, 0xffffff80"); a(f"s_mul_i32 s77, s11, {8*3072}"); a("s_add_u32 s76, s76, s77"); a(f"s_add_u32 s99, s76, {4*64*3072}")
            a("s_cmp_eq_u32 s78, 0")
            a("s_cselect_b32 s48, s30, s32"); a("s_cselect_b32 s49, s31, s33"); a("s_and_b32 s49, s49, 0xffff"); a("s_mov_b32 s50, 1966080"); a("s_mov_b32 s51, 0x20000")
        s.stamp(41, 2); a("s_barrier")
        if s.opt.get("rtouch", 2):
            a("s_mov_b32 exec_hi, 0")
            s.vmem("t", "buffer_load_dword v250, v243, s[48:51], s99 offen")
            if s.opt.get("rtouch", 2) == 1:
                s.vmem("t", "buffer_load_dword v251, v242, s[68:71], s98 offen")
                a("s_mov_b64 exec, -1")
                s.vmem("t", "buffer_load_dword v252, v241, s[68:71], s98 offen")
            a("s_mov_b64 exec, -1")
        if not s.opt.get("wdlate", 0): s.dma_rows(88, 24, 16, 17, 93, 0, "wd", nt)
        if s.opt.get("tlb", 0):
            def tlbt():
                l1 = s.newlab("L_t1"); l2 = s.newlab("L_t2")
                a("s_cmp_eq_u32 s78, 1"); a(f"s_cbranch_scc1 {l1}")
                a(f"s_mov_b32 s76, {HBS}"); a("v_mul_lo_u32 v253, v1, s76"); a(f"s_mov_b32 s76, {WS_HB + HBS - 128}")
                s.ex(32); a("buffer_load_dword v254, v253, s[44:47], s76 offen")
                a(f"s_mov_b32 s76, {WBS}"); a("v_mul_lo_u32 v253, v1, s76"); a(f"s_mov_b32 s76, {WS_WB + WBS - 128}")
                s.ex(8); a("buffer_load_dword v254, v253, s[44:47], s76 offen")
                a(f"s_mov_b32 s76, {64*TS}"); a("s_mov_b64 exec, -1"); a("v_mul_lo_u32 v253, v1, s76"); a(f"s_mov_b32 s76, {WS_KT + 4096}")
                s.ex(10); a("buffer_load_dword v254, v253, s[44:47], s76 offen")
                a(f"s_branch {l2}")
                s.label(l1)
                a(f"s_mov_b32 s76, {64*TS}"); a("v_mul_lo_u32 v253, v1, s76"); a(f"s_mov_b32 s76, {WS_YT + 4096}")
                s.ex(10); a("buffer_load_dword v254, v253, s[44:47], s76 offen")
                a("v_lshlrev_b32 v253, 18, v1")
                a("buffer_load_dword v254, v253, s[60:63], 0 offen")
                a("s_mov_b32 s48, s38"); a("s_and_b32 s49, s39, 0xffff"); a("s_mov_b32 s50, 2621440"); a("s_mov_b32 s51, 0x20000")
                a("buffer_load_dword v254, v253, s[48:51], 0 offen")
                s.label(l2)
                a("s_mov_b64 exec, -1")
                for _ in range(3): s.vm.append("t")
            tlbt()
        if s.opt.get("htouch", 0):
            a("s_lshl_b32 s76, s2, 1"); a("s_add_u32 s76, s76, s78"); a("s_mul_i32 s76, s76, 5120"); a("v_lshlrev_b32 v253, 7, v1")
            s.ex(40); s.vmem("t", "buffer_load_dword v254, v253, s[60:63], s76 offen"); a("s_mov_b64 exec, -1")
        a("s_lshr_b32 s74, s85, 4"); a("v_subrev_u32 v7, s74, v5")
        a("v_cmp_gt_u32 s[86:87], 10, v7"); a("v_cmp_gt_u32 vcc, 60, v1"); a("s_and_b64 s[86:87], s[86:87], vcc")
        a("v_mul_u32_u24 v22, 160, v4"); a("v_lshl_add_u32 v22, v7, 4, v22")
        a(f"s_mul_i32 s76, s78, 5120"); a(f"s_add_u32 s76, s76, {L_QT}"); a("v_add_u32 v22, s76, v22")
        a("s_lshl_b32 s75, s9, 6"); a("s_lshl_b32 s76, s10, 3"); a("s_add_u32 s75, s75, s76"); a("s_lshl_b32 s76, s78, 2"); a("s_add_u32 s82, s75, s76")
        a("v_lshrrev_b32 v14, 4, v1"); a("v_mul_u32_u24 v14, 1280, v14"); a("v_and_b32 v15, 15, v1"); a("v_lshlrev_b32 v15, 4, v15"); a("v_add_u32 v14, v14, v15")
        a("v_and_b32 v240, 15, v1"); a("v_lshrrev_b32 v241, 4, v1")
        a("v_lshrrev_b32 v242, 2, v240"); a("v_mul_u32_u24 v242, 192, v242"); a("v_and_b32 v243, 3, v240"); a("v_lshl_add_u32 v242, v243, 3, v242")
        a(f"v_add_u32 v242, s93, v242"); a("v_add_u32 v242, s85, v242")
        a("s_mul_i32 s74, s9, 6"); a("s_mul_i32 s75, s78, 3"); a("s_add_u32 s74, s74, s75")
        for p in range(4):
            a(f"v_add_u32 v243, {4*p}, v241"); a("v_mul_u32_u24 v244, 52, v243"); a("v_lshrrev_b32 v244, 8, v244")
            a("v_mul_u32_u24 v245, 5, v244"); a("v_sub_u32 v245, v243, v245")
            a(f"v_mul_u32_u24 v{24+p}, 1536, v244"); a(f"v_lshl_add_u32 v{24+p}, v245, 5, v{24+p}"); a(f"v_add_u32 v{24+p}, v{24+p}, v242")
            a("v_add_u32 v244, s74, v244"); a("v_lshrrev_b32 v247, 2, v244"); a(f"v_mul_u32_u24 v{28+p}, 5120, v247")
            a("v_and_b32 v244, 3, v244"); a(f"v_lshl_add_u32 v{28+p}, v244, 8, v{28+p}"); a(f"v_lshl_add_u32 v{28+p}, v245, 10, v{28+p}")
            a(f"v_lshl_add_u32 v{28+p}, v240, 4, v{28+p}")
        a("v_lshrrev_b32 v6, 3, v1"); a("v_and_b32 v7, 7, v1"); a("s_mul_i32 s74, s78, 40"); a("v_add_u32 v6, s74, v6")
        for i in range(5):
            a(f"v_add_u32 v8, {8*i}, v6"); a("v_mul_u32_u24 v9, 3277, v8"); a("v_lshrrev_b32 v9, 16, v9")
            a("v_mul_u32_u24 v10, 20, v9"); a("v_sub_u32 v8, v8, v10")
            a("v_lshl_add_u32 v9, v8, 2, v9"); a("v_xor_b32 v8, v8, v7"); a("v_and_b32 v8, 7, v8"); a("v_lshlrev_b32 v8, 4, v8")
            a(f"v_mul_u32_u24 v9, {TS}, v9"); a(f"v_add_u32 v{32+i}, v9, v8")
        a("v_mov_b32 v23, 0")
        sched = {t: [] for t in range(21)}
        dl = s.opt.get("dl", 3)
        def rowl(srd, nrows, vfirst, vrest, reg, tag, ntf):
            out = []
            for i in range((nrows + 4) // 5):
                def f(i=i):
                    n = min(5, nrows - 5 * i); r = reg + 4 * i
                    s.ex(12 * n)
                    if i == 0: s.vmem(tag, f"buffer_load_dwordx4 v[{r}:{r+3}], v{vfirst}, s[{srd}:{srd+3}], 0 offen {ntf}")
                    else:
                        a(f"s_mov_b32 s77, {6400*(i-1)}")
                        s.vmem(tag, f"buffer_load_dwordx4 v[{r}:{r+3}], v{vrest}, s[{srd}:{srd+3}], s77 offen {ntf}")
                    a("s_mov_b64 exec, -1")
                out.append(f)
            return out
        Lk = rowl(48, 35, 18, 19, 40, "k", nt); Lv = rowl(52, 32, 20, 21, 68, "v", nt); Lw = rowl(88, 24, 16, 17, 96, "wd", nt)
        Lq = rowl(68, 32, 20, 21, 196, "q", "")
        def lshk():
            a("s_mul_i32 s75, s10, 640"); s.ex(40)
            s.vmem("v", "buffer_load_dwordx4 v[116:119], v12, s[56:59], s75 offen")
            a("s_mov_b64 exec, -1")
        def lgx(i):
            a("s_mul_i32 s75, s82, 1280")
            s.vmem("gx", f"buffer_load_dwordx4 v[{124+4*i}:{127+4*i}], v14, s[68:71], s75 offen offset:{i*256}")
        def lgw():
            s.srd(56, 36, 1280)
            for i in range(5):
                s.vmem("gx", f"buffer_load_dwordx4 v[{144+4*i}:{147+4*i}], v15, s[56:59], 0 offen offset:{i*256}")
        def lh(i):
            a("s_lshl_b32 s74, s14, 2"); a(f"s_add_u32 s74, s74, {2*(i//4)}"); a("s_add_u32 s74, s74, s78"); a("s_lshl_b32 s74, s74, 12")
            s.vmem("h", f"buffer_load_dwordx4 v[{164+4*i}:{167+4*i}], v12, s[60:63], s74 offen offset:{(i&3)*1024} {nt}")
        def two(f, g): return lambda: (f(), g())
        cold = Lk + [two(Lv[0], lshk)] + Lv[1:] + Lw
        def w1(): s.vm_wait({"k"}); s.stamp(2); s.img_write(84, SC_K, 7, 40)
        def w2():
            s.vm_wait({"v"}); s.img_write(84, SC_V, 7, 68)
            s.ex(40); a(f"ds_write_b128 v13, v[116:119] offset:{SC_SHK}"); a("s_mov_b64 exec, -1")
        def w3(): s.vm_wait({"wd"}); s.img_write(93, 0, 5, 96); a("s_waitcnt lgkmcnt(0)")
        def wd():
            for p in range(4):
                a(f"ds_read_b64_tr_b16 v[{96+4*p}:{97+4*p}], v{24+p}")
                a(f"ds_read_b64_tr_b16 v[{98+4*p}:{99+4*p}], v{24+p} offset:768")
            a(f"s_mul_i32 s74, s10, {WBS}"); a(f"s_add_u32 s74, s74, {WS_WB}")
            a("s_waitcnt lgkmcnt(0)")
            for p in range(4):
                if p == 3: s.ex(48)
                s.vmem("st", f"buffer_store_dwordx4 v[{96+4*p}:{99+4*p}], v{28+p}, s[44:47], s74 offen sc1")
            a("s_mov_b64 exec, -1")
        def epoch():
            s.vm_wait({"ep"})
            l0 = s.newlab("L_ep"); l1_ = s.newlab("L_epd")
            a(f"s_mov_b32 s94, {SPIN_MAX}")
            s.label(l0)
            a("v_readfirstlane_b32 s72, v38"); a("v_readfirstlane_b32 s73, v39"); a("s_nop 1")
            a("s_cmp_lg_u32 s73, 0"); a(f"s_cbranch_scc1 {l1_}")
            a("buffer_load_dwordx2 v[38:39], v23, s[64:67], 0 offen sc1")
            a("s_waitcnt vmcnt(0)")
            a("s_sub_u32 s94, s94, 1"); a(f"s_cbranch_scc0 {l0}")
            s.label(l1_)
            a(f"v_mov_b32 v242, {L_EPOCH}"); a("ds_write_b64 v242, v[38:39]")
            lt2 = s.newlab("L_tk")
            a("s_cmp_eq_u32 s78, 0"); a(f"s_cbranch_scc1 {lt2}")
            a("s_mov_b64 exec, 1"); a("ds_write_b32 v242, v37 offset:16"); a("s_mov_b64 exec, -1")
            s.label(lt2)
        def gate():
            s.vm_wait({"gx"})
            a("v_mov_b32 v240, 0"); a("v_mov_b32 v241, 0")
            for i in range(20): a(f"v_dot2_f32_bf16 v{240 + (i & 1)}, v{124+i}, v{144+i}, v{240 + (i & 1)}")
        def gate2():
            a("s_nop 2")
            a("v_add_f32 v240, v240, v241"); a("s_nop 1")
            for ctl in ("quad_perm:[1,0,3,2]", "quad_perm:[2,3,0,1]", "row_half_mirror", "row_mirror"):
                a(f"v_add_f32_dpp v240, v240, v240 {ctl} row_mask:0xf bank_mask:0xf"); a("s_nop 1")
            a("v_cvt_pk_bf16_f32 v240, v240, v240"); a("v_and_b32 v240, 0xffff0000, v240")
            a("v_mul_f32 v240, 0xbfb8aa3b, v240"); a("v_exp_f32 v240, v240"); a("s_nop 0"); a("v_add_f32 v240, 1.0, v240")
            a("v_rcp_f32 v240, v240"); a("s_nop 0")
            a("v_cvt_pk_bf16_f32 v240, v240, v240"); a("v_and_b32 v240, 0xffff0000, v240")
            a("s_lshl_b32 s74, s82, 2"); a(f"s_add_u32 s74, s74, {WS_G}")
            a("v_lshrrev_b32 v241, 4, v1"); a("v_lshlrev_b32 v241, 2, v241")
            a("s_mov_b32 exec_lo, 0x00010001"); a("s_mov_b32 exec_hi, 0x00010001")
            s.vmem("st", "buffer_store_dword v240, v241, s[44:47], s74 offen sc1")
            a("s_mov_b64 exec, -1")
        def qc():
            a("s_mov_b64 exec, s[86:87]")
            for i in range(7):
                if i == 6: a("s_and_b32 exec_lo, exec_lo, 0xffffff"); a("s_mov_b32 exec_hi, 0")
                a(f"ds_write_b128 v22, v[{196+4*i}:{199+4*i}] offset:{800*i}")
            a("s_mov_b64 exec, -1")
        def ktst_rd():
            a("s_mul_i32 s74, s78, 5120"); a(f"s_add_u32 s74, s74, {L_T}"); a("v_add_u32 v13, s74, v12")
            for i in range(5): a(f"ds_read_b128 v[{40+4*i}:{43+4*i}], v13 offset:{i*1024}")
        def ktst_st():
            a(f"s_mul_i32 s74, s10, {80*TS}"); a("s_lshl_b32 s75, s9, 7"); a("s_sub_u32 s74, s74, s75")
            a(f"s_add_u32 s74, s74, {WS_KT + 3968}")
            for i in range(5):
                s.vmem("st", f"buffer_store_dwordx4 v[{40+4*i}:{43+4*i}], v{32+i}, s[44:47], s74 offen sc1")
        def hc(base, reg, half):
            s.vm_wait({"h"})
            l = s.newlab("L_nh"); a(f"s_cmp_ge_u32 s14, {NCONV}"); a(f"s_cbranch_scc1 {l}")
            s.h_copies(base, reg, half); s.label(l)
        def flagsA():
            s.vm_wait({"st"})
            a("s_lshl_b32 s74, s10, 9"); a("s_lshl_b32 s75, s9, 4"); a("s_add_u32 s74, s74, s75"); a("s_lshl_b32 s76, s78, 3"); a("s_add_u32 s74, s74, s76")
            a(f"s_add_u32 s74, s74, {WS_FA}")
            s.write_flag(244, 74)
            s.stamp(5)
        def flagsB():
            lb = s.newlab("L_nb")
            a("s_cmp_lt_u32 s83, 2"); a(f"s_cbranch_scc1 {lb}")
            a("s_waitcnt vmcnt(0)")
            a("s_lshl_b32 s76, s78, 3")
            a("s_lshl_b32 s74, s9, 7"); a("s_lshl_b32 s75, s10, 4"); a("s_add_u32 s74, s74, s75"); a("s_add_u32 s74, s74, s76"); a(f"s_add_u32 s74, s74, {WS_FB}")
            s.write_flag(8, 74)
            s.label(lb)
        KVT = s.kvt
        ge = s.opt.get("gearly", 0)
        if ge == 1:
            for i in range(5): lgx(i)
            lgw()
        he = s.opt.get("hearly", 0)
        if he == 1:
            for i in range(8): lh(i)
        s.vm_wait({"k"}); s.stamp(2)
        a("s_barrier")
        if s.opt.get("wdlate", 0) == 1: s.dma_rows(88, 24, 16, 17, 93, 0, "wd", nt)
        if he == 2:
            for i in range(8): lh(i)
        if he:
            for j, (b, r, hf) in enumerate(((79, 164, 0), (79, 164, 1), (84, 180, 0), (84, 180, 1))):
                sched[8 + j].append(lambda b=b, r=r, hf=hf: hc(b, r, hf))
        epoch()
        ts = s.opt.get("ts", 3)
        sched[ts].append(lambda: (ktst_rd(), a("s_waitcnt lgkmcnt(0)"), ktst_st()))
        sched[ts + 1].append(lambda: (s.vm_wait({"wd"}), wd(), s.stamp(3)))
        tf = s.opt.get("tf", 7); sched[tf].append(flagsA)
        tg = s.opt.get("tg", 16)
        if ge:
            if ge == 2: sched[2] += [lambda i=i: lgx(i) for i in range(5)] + [lgw]
            sched[ts + (0 if ge == 2 else -1) + s.opt.get("gd", 0)].append(gate)
            sched[ts + 1 + s.opt.get("gd", 0)].insert(0, gate2)
            def fb_now():
                a("s_lshl_b32 s76, s78, 3")
                a("s_lshl_b32 s74, s9, 7"); a("s_lshl_b32 s75, s10, 4"); a("s_add_u32 s74, s74, s75"); a("s_add_u32 s74, s74, s76"); a(f"s_add_u32 s74, s74, {WS_FB}")
                s.write_flag(248, 74)
            sched[tf].append(fb_now)
            s.flagsB = lambda: None
        else:
            sched[tg - 4] += [lambda i=i: lgx(i) for i in range(5)] + [lgw]
            sched[tg - 1].append(gate); sched[tg].append(gate2)
            s.flagsB = flagsB
        tp = s.opt.get("tp", 13)
        def fa_ld():
            a(f"v_mov_b32 v2, {L_SDONE}"); a("ds_read_b32 v2, v2"); a("s_waitcnt lgkmcnt(0)"); a("v_readfirstlane_b32 s14, v2"); a("s_nop 1")
            a("s_mul_i32 s74, s14, 3277"); a("s_lshr_b32 s74, s74, 16"); a("s_min_u32 s74, s74, 7")
            a("s_cmp_eq_u32 s78, 0"); a("s_cselect_b32 s74, s74, s10"); a("s_lshl_b32 s74, s74, 9"); a(f"s_add_u32 s74, s74, {WS_FA}")
            a("v_lshlrev_b32 v2, 3, v1")
            s.vmem("fa", "buffer_load_dwordx2 v[4:5], v2, s[44:47], s74 offen sc1")
        def fa_ck():
            s.vm_wait({"fa"})
            a("v_cmp_ne_u64 vcc, s[72:73], v[4:5]"); a("s_nop 1")
            lf = s.newlab("L_nf")
            a(f"s_cbranch_vccnz {lf}")
            a("s_lshl_b32 s74, s78, 2"); a(f"s_add_u32 s74, s74, {L_QDONE}"); s.lds_set(8, "s74", 1)
            s.label(lf)
        if s.opt.get("hmid", 0): sched[s.opt.get("hmid")].append(lambda: (a("s_add_u32 s83, s78, 2"), s.h_own(83)))
        if s.opt.get("hmid", 0) and s.opt.get("hp", 18) < 17:
            for hf in range(2): sched[s.opt.get("hp") + hf].append(lambda hf=hf: hc(84, 164, hf))
        sched[4].append(lambda: a("s_waitcnt lgkmcnt(0)"))
        sched[tp].append(fa_ld); sched[tp + 2].insert(0, fa_ck); sched[tp + 3].append(lambda: a("s_waitcnt lgkmcnt(0)"))
        tq = s.opt.get("tq", 14)
        sched[tq] += Lq
        if s.opt.get("qearly", 0): sched[tq + 2].append(lambda: (s.vm_wait({"q"}), qc()))
        for t in range(2, 17):
            s.stamp(40 + t, 2)
            a("s_barrier")
            if not s.opt.get("noc"):
                for f in sched[t]: f()
        assert all(not sched[t] for t in range(17, 21))
        s.qc = qc
        a("s_add_u32 s83, s78, 2")

    def ywave(s):
        a = s.a; s.vm_reset()
        s.label("L_Yt")
        a(f"s_mul_i32 s84, s83, {CV_SZ}"); a(f"s_add_u32 s84, s84, {L_CV}"); a(f"s_add_u32 s93, s84, {H_SZ}")
        s.srd(60, 24, 2621440)
        a(f"v_mov_b32 v16, {L_EPOCH}"); a("ds_read_b32 v20, v16 offset:16"); a("ds_read_b128 v[16:19], v16")
        a("v_lshlrev_b32 v2, 3, v1")
        a("s_waitcnt lgkmcnt(0)")
        a("v_readfirstlane_b32 s14, v20")
        a("v_readfirstlane_b32 s72, v16"); a("v_readfirstlane_b32 s73, v17"); a("v_readfirstlane_b32 s99, v18")
        a("s_mul_i32 s98, s14, 3277"); a("s_lshr_b32 s98, s98, 16"); a("s_lshl_b32 s98, s98, 9"); a(f"s_add_u32 s98, s98, {WS_FA}")
        a("s_lshl_b32 s85, s14, 2"); a("s_add_u32 s85, s85, s83"); a("s_lshl_b32 s74, s85, 12")
        a(f"s_mul_i32 s100, s85, {TS}"); a(f"s_add_u32 s100, s100, {WS_KT}")
        a("s_waitcnt vmcnt(20)"); s.stamp(57, 2); a("s_barrier"); s.stamp(33, 2)
        a(f"s_cmp_lt_u32 s14, {NCONV}"); a("s_cselect_b32 s99, s99, 0")
        a("s_cmp_lg_u32 s99, 0"); a("s_cselect_b32 s101, s100, 0x7ff00000")
        a("s_cmp_lg_u32 s99, 0"); a("s_cselect_b32 s75, 0x7ff00000, s98")
        a(f"s_cmp_lt_u32 s14, {NCONV}"); a("s_cselect_b32 s75, s75, 0x7ff00000")
        a("buffer_load_dwordx2 v[4:5], v2, s[44:47], s75 offen sc1")
        nh = 0 if (s.opt.get("hearly", 0) or s.opt.get("hmid", 0)) else 4
        for i in range(nh):
            a(f"buffer_load_dwordx4 v[{164+4*i}:{167+4*i}], v12, s[60:63], s74 offen offset:{i*1024} {'' if s.opt.get('htouch', 0) else s.nt}")
        for i in range(4):
            a(f"buffer_load_dwordx4 v[{48+4*i}:{51+4*i}], v12, s[44:47], s101 offen offset:{i*1024} sc1")
        lq = s.newlab("L_nq")
        a(f"s_waitcnt vmcnt({11 + nh})")
        if not s.opt.get("qearly", 0):
            a("s_cmp_lt_u32 s83, 2"); a(f"s_cbranch_scc1 {lq}")
            a(f"s_waitcnt vmcnt({5 + nh})")
            s.qc()
            s.label(lq)
        hp = s.opt.get("hp", 18) if s.opt.get("hmid", 0) else 0
        def hcp():
            lh_ = s.newlab("L_nh"); a(f"s_cmp_ge_u32 s14, {NCONV}"); a(f"s_cbranch_scc1 {lh_}")
            s.h_copies(84, 164); s.label(lh_)
        s.stamp(58, 2); a("s_barrier"); s.stamp(34, 2)
        if hp == 18: hcp()
        s.u_addr(93)
        a(f"s_waitcnt vmcnt({5 + nh})"); a("s_waitcnt lgkmcnt(0)")
        s.stamp(59, 2); a("s_barrier"); s.stamp(35, 2)
        s.stamp(1)
        if s.opt.get("g1only"): a("s_branch L_fin2")
        if s.opt.get("noconv"): a("s_branch L_apart")
        lcv = s.newlab("L_cvgo")
        a(f"s_cmp_lt_u32 s14, {NCONV}"); a(f"s_cbranch_scc1 {lcv}")
        s.flagsB()
        a("s_branch L_apart")
        s.label(lcv)
        a(f"s_setprio {s.opt.get('sprio', 1)}")
        lk2 = s.newlab("L_hk")
        a("s_cmp_lg_u32 s99, 0"); a(f"s_cbranch_scc1 {lk2}")
        lk3 = s.newlab("L_hk")
        a(f"s_waitcnt vmcnt({4 + nh})")
        a("v_cmp_ne_u64 vcc, s[72:73], v[4:5]"); a("s_nop 1"); a(f"s_cbranch_vccz {lk3}")
        s.poll(4, 2, "s98")
        s.label(lk3)
        for i in range(4):
            a(f"buffer_load_dwordx4 v[{48+4*i}:{51+4*i}], v12, s[44:47], s100 offen offset:{i*1024} sc1")
        s.label(lk2)
        s.stamp(6)
        if hp == 19: s.h_copies(84, 164)
        if nh:
            a("s_waitcnt vmcnt(4)")
            s.h_copies(84, 164)
        s.u_stage(48, 0)
        s.flagsB()
        s.stamp(7)
        if s.opt.get("sprio", 1) != 1: a("s_setprio 1")
        a("v_add_u32 v13, s93, v12")
        a("v_and_b32 v2, 15, v1"); a("v_lshrrev_b32 v3, 4, v1"); a("v_and_b32 v4, 1, v2"); a("v_lshrrev_b32 v5, 1, v2")
        a(f"v_mul_u32_u24 v6, {CV_B}, v4"); a("v_lshl_add_u32 v6, v3, 4, v6"); a("v_lshl_add_u32 v6, v5, 3, v6"); a("v_add_u32 v6, s84, v6")
        a("v_lshlrev_b32 v7, 4, v3"); a("v_lshlrev_b32 v8, 6, v5"); a("v_sub_u32 v7, v7, v8"); a("v_add_u32 v7, 512, v7")
        a(f"v_mul_u32_u24 v9, {CV_U1}, v4"); a("v_add_u32 v9, s93, v9"); a("v_subrev_u32 v9, 64, v9")
        def baddr():
            a("v_lshrrev_b32 v10, 3, v7"); a("v_and_b32 v10, 32, v10"); a("v_xor_b32 v10, v10, v7"); a("v_add_u32 v10, v10, v9"); a("v_add_u32 v7, 64, v7")
        SA = (96, 160); SB = (128, 192)
        def reads(st, par):
            R = []
            for c in range(8):
                for hh in range(2):
                    R.append(f"ds_read_b64 v[{SA[st]+4*c+2*hh}:{SA[st]+4*c+2*hh+1}], v6 offset:{512*c + 8*hh + 64*par}")
                for hh in range(2):
                    R.append(f"ds_read_b64 v[{SB[st]+4*c+2*hh}:{SB[st]+4*c+2*hh+1}], v10 offset:{512*(7-c) + 8*hh}")
            return R
        def mfmas(st, full=True):
            M = []
            for aa in range(8):
                for c in (range(aa + 1) if full else [aa]):
                    b = aa - c; o = 224 + 4 * aa
                    M.append(f"v_mfma_f32_16x16x32_bf16 v[{o}:{o+3}], v[{SA[st]+4*c}:{SA[st]+4*c+3}], v[{SB[st]+4*b}:{SB[st]+4*b+3}], v[{o}:{o+3}]")
            return M
        def inter(M, R):
            a("s_waitcnt lgkmcnt(12)")
            for mi, m in enumerate(M):
                if mi == 15: a("s_waitcnt lgkmcnt(15)")
                a(m)
                if mi < len(R): a(R[mi])
        baddr()
        a("s_waitcnt lgkmcnt(0)")
        for r in reads(0, 0): a(r)
        for r in range(224, 256): a(f"v_mov_b32 v{r}, 0")
        a("s_mov_b32 s86, 0")
        s.label("L_cv")
        baddr()
        inter(mfmas(0), reads(1, 1))
        a("v_add_u32 v6, 128, v6"); baddr()
        inter(mfmas(1), reads(0, 0))
        a("s_add_u32 s86, s86, 1"); a("s_cmp_lt_u32 s86, 4"); a("s_cbranch_scc1 L_cv")
        a("s_waitcnt lgkmcnt(0)")
        for m in mfmas(0, False): a(m)
        a("v_lshlrev_b32 v8, 4, v3"); a("v_lshl_add_u32 v8, v4, 2, v8"); a("v_lshl_add_u32 v8, v5, 6, v8")
        a(f"v_sub_u32 v8, {CV_U0 + 2*(2046 - 4) - 512}, v8"); a("v_add_u32 v8, s93, v8")
        a("s_nop 4")
        for t in range(8):
            o = 224 + 4 * t
            a(f"v_cvt_pk_bf16_f32 v{16+2*t}, v{o+3}, v{o+2}")
            a(f"v_cvt_pk_bf16_f32 v{17+2*t}, v{o+1}, v{o}")
        for t in range(8):
            off = 128 if t % 2 == 0 else 0
            a(f"ds_write2_b32 v8, v{16+2*t}, v{17+2*t} offset0:{off} offset1:{off+2}")
            if t % 2 == 1 and t < 7: a("v_subrev_u32 v8, 1024, v8")
        a("s_waitcnt lgkmcnt(0)")
        for i in range(4): a(f"ds_read_b128 v[{32+4*i}:{35+4*i}], v13 offset:{CV_U0 + i*1024}")
        a(f"s_mul_i32 s74, s85, {TS}"); a(f"s_add_u32 s74, s74, {WS_YT}")
        for i in range(4):
            a(f"s_waitcnt lgkmcnt({3-i})")
            a(f"buffer_store_dwordx4 v[{32+4*i}:{35+4*i}], v12, s[44:47], s74 offen offset:{i*1024} sc1")
        s.stamp(8)
        a("s_waitcnt vmcnt(0)")
        a("s_lshl_b32 s74, s85, 3"); a(f"s_add_u32 s74, s74, {WS_FY}")
        s.write_flag(48, 74)
        a("s_setprio 0")
        s.label("L_apart")
        a("s_setprio 0")
        if s.opt.get("xh", 1): s.lds_wait(L_XH, 1, 1, 148, slp=2)
        s.stamp(9)
        a("v_min_u32 v2, 15, v1"); a("v_lshlrev_b32 v2, 3, v2")
        a("s_lshl_b32 s74, s9, 7"); a(f"s_add_u32 s74, s74, {WS_FB}")
        s.poll(4, 2, "s74")
        a("v_sub_u32 v3, 63, v1"); a("v_lshlrev_b32 v2, 2, v3")
        a("s_lshl_b32 s74, s9, 8"); a(f"s_add_u32 s74, s74, {WS_G}")
        a("buffer_load_dword v15, v2, s[44:47], s74 offen sc1")
        a("s_mul_i32 s87, s10, 80"); a("s_mul_i32 s74, s83, 20"); a("s_add_u32 s87, s87, s74")
        a(f"s_mul_i32 s88, s87, {TS}"); a("s_lshl_b32 s74, s9, 7"); a("s_sub_u32 s88, s88, s74"); a("s_add_u32 s88, s88, 3968")
        a("v_lshrrev_b32 v5, 3, v1"); a(f"v_mul_u32_u24 v5, {TS}, v5"); a("v_and_b32 v6, 7, v1"); a("v_lshl_add_u32 v5, v6, 4, v5")
        def tile_loads(base, reg):
            for i in range(3):
                a(f"s_add_u32 s74, s88, {base + i*8*TS}")
                if i == 2: a("s_mov_b32 exec_hi, 0")
                a(f"buffer_load_dwordx4 v[{reg+4*i}:{reg+4*i+3}], v5, s[44:47], s74 offen sc1")
                if i == 2: a("s_mov_b64 exec, -1")
        tile_loads(WS_KT, 16)
        a("s_lshl_b32 s74, s87, 1"); a("s_add_u32 s26, s26, s74"); a("s_addc_u32 s27, s27, 0")
        a("s_load_dwordx8 s[48:55], s[26:27], 0"); a("s_load_dwordx2 s[56:57], s[26:27], 32")
        a("v_add_u32 v13, s84, v12")
        a("v_mul_u32_u24 v7, 160, v3"); a("s_mul_i32 s74, s83, 40"); a(f"s_add_u32 s74, s74, {L_QT}"); a("v_add_u32 v7, s74, v7")
        for gq in range(5): a(f"ds_read_b64 v[{64+2*gq}:{65+2*gq}], v7 offset:{8*gq}")
        a("s_waitcnt vmcnt(0)")
        for i in range(3):
            if i == 2: a("s_mov_b32 exec_hi, 0")
            a(f"ds_write_b128 v13, v[{16+4*i}:{19+4*i}] offset:{i*1024}")
            if i == 2: a("s_mov_b64 exec, -1")
        a("v_and_b32 v8, 15, v1"); a("v_lshrrev_b32 v9, 2, v8"); a("v_lshlrev_b32 v9, 7, v9"); a("v_and_b32 v8, 3, v8"); a("v_lshl_add_u32 v9, v8, 3, v9")
        a("v_lshrrev_b32 v8, 4, v1"); a("v_lshl_add_u32 v9, v8, 5, v9"); a("v_add_u32 v9, s84, v9")
        a(f"v_add_u32 v2, {L_GF}, v2"); a("ds_write_b32 v2, v15")
        a("s_waitcnt lgkmcnt(0)")
        for gq in range(5): a(f"ds_read_b64_tr_b16 v[{74+2*gq}:{75+2*gq}], v9 offset:{512*gq}")
        for gq in range(5):
            for e in range(2):
                r = 96 + 4 * gq + 2 * e
                a(f"v_lshlrev_b32 v{r}, 16, v{64+2*gq+e}"); a(f"v_and_b32 v{r+1}, 0xffff0000, v{64+2*gq+e}")
                a(f"v_mul_f32 v{r}, v{r}, v15"); a(f"v_mul_f32 v{r+1}, v{r+1}, v15")
        a("s_waitcnt lgkmcnt(0)")
        for gq in range(5):
            for e in range(2):
                sd = 48 + 2 * gq + e; r = 120 + 4 * gq + 2 * e
                a(f"s_lshl_b32 s58, s{sd}, 16"); a(f"s_and_b32 s59, s{sd}, 0xffff0000")
                a(f"v_lshlrev_b32 v{r}, 16, v{74+2*gq+e}"); a(f"v_and_b32 v{r+1}, 0xffff0000, v{74+2*gq+e}")
                a(f"v_mul_f32 v{r}, s58, v{r}"); a(f"v_mul_f32 v{r+1}, s59, v{r+1}")
        s.lds_wait(L_XG2, 1, 1, 148, slp=2)
        a("v_min_u32 v2, 19, v1"); a("v_lshlrev_b32 v2, 3, v2")
        a("s_lshl_b32 s74, s87, 3"); a(f"s_add_u32 s74, s74, {WS_FY}")
        if not s.opt.get("noconv"): s.poll(146, 2, "s74", slp=s.opt.get("yslp", 12))
        s.stamp(10)
        tile_loads(WS_YT, 16)
        for i in range(3):
            a(f"s_waitcnt vmcnt({2-i})")
            if i == 2: a("s_mov_b32 exec_hi, 0")
            a(f"ds_write_b128 v13, v[{16+4*i}:{19+4*i}] offset:{i*1024}")
            if i == 2: a("s_mov_b64 exec, -1")
        a("s_waitcnt lgkmcnt(0)")
        for gq in range(5): a(f"ds_read_b64_tr_b16 v[{74+2*gq}:{75+2*gq}], v9 offset:{512*gq}")
        for gq in range(5):
            a("s_waitcnt lgkmcnt(4)")
            for e in range(2):
                a(f"v_lshlrev_b32 v144, 16, v{74+2*gq+e}"); a(f"v_and_b32 v145, 0xffff0000, v{74+2*gq+e}")
                a(f"v_add_f32 v144, v144, v{120+4*gq+2*e}"); a(f"v_add_f32 v145, v145, v{121+4*gq+2*e}")
                a(f"v_mul_f32 v144, v144, v{96+4*gq+2*e}"); a(f"v_mul_f32 v145, v145, v{97+4*gq+2*e}")
                a(f"v_cvt_pk_bf16_f32 v{64+2*gq+e}, v144, v145")
            a(f"ds_write_b64 v7, v[{64+2*gq}:{65+2*gq}] offset:{8*gq}")
        s.stamp(11)
        a("s_branch L_final")

    def xwave(s):
        a = s.a; s.vm_reset()
        s.label("L_X")
        a("s_setprio 2")
        a("v_mov_b32 v16, 0"); a("v_mov_b32 v17, 0"); a("v_mov_b32 v18, 0"); a("v_mov_b32 v19, 0")
        a(f"v_add_u32 v20, {L_MISC}, v12")
        a("s_mov_b64 exec, 15"); a("ds_write_b128 v20, v[16:19]"); a("s_mov_b64 exec, -1")
        a("s_lshr_b32 s74, s3, 1"); a("s_and_b32 s75, s3, 1")
        if s.m16:
            a("v_lshrrev_b32 v14, 5, v1")
            a("v_bfe_u32 v13, v1, 3, 1"); a("v_bfe_u32 v15, v1, 2, 1"); a("v_xor_b32 v15, v15, v13"); a("v_lshl_add_u32 v13, v15, 1, v13")
            a("v_lshrrev_b32 v16, 4, v1"); a("v_xor_b32 v13, v13, v16")
            a("v_and_b32 v17, 15, v1"); a("v_lshlrev_b32 v17, 6, v17"); a("s_lshl_b32 s76, s74, 12"); a("v_add_u32 v17, s76, v17"); a("v_lshl_add_u32 v5, v13, 4, v17")
            a("v_bfe_u32 v15, v1, 4, 1")
            a("v_bfe_u32 v17, v1, 2, 2"); a("v_lshl_add_u32 v16, v16, 3, v17"); a("v_lshlrev_b32 v16, 6, v16")
            a("v_and_b32 v17, 3, v1"); a("v_lshl_add_u32 v16, v17, 3, v16"); a(f"v_add_u32 v16, {L_WR}, v16")
        else:
            a("v_and_b32 v20, 31, v1"); a("v_lshrrev_b32 v13, 2, v20"); a("v_lshrrev_b32 v14, 1, v13"); a("v_xor_b32 v13, v13, v14"); a("v_and_b32 v13, 3, v13")
            a("v_lshrrev_b32 v14, 5, v1"); a("v_xor_b32 v15, v14, v13"); a("v_xor_b32 v16, 2, v15")
            a("v_lshlrev_b32 v17, 6, v20"); a("s_lshl_b32 s76, s74, 12"); a("v_add_u32 v17, s76, v17")
            a("v_lshl_add_u32 v5, v15, 4, v17"); a("v_lshl_add_u32 v6, v16, 4, v17")
            a("v_bfe_u32 v15, v1, 4, 1"); a("v_bfe_u32 v16, v1, 2, 2"); a("v_lshl_add_u32 v16, v14, 3, v16"); a("v_lshlrev_b32 v16, 6, v16")
            a("v_mul_u32_u24 v17, 6144, v15"); a("v_add_u32 v16, v16, v17")
            a("v_and_b32 v17, 1, v1"); a("v_lshl_add_u32 v16, v17, 4, v16"); a("v_bfe_u32 v17, v1, 1, 1"); a("v_lshl_add_u32 v16, v17, 3, v16")
            a(f"v_add_u32 v16, {L_WR}, v16")
        a("s_mul_i32 s76, s75, 3")
        for T in range(3):
            a(f"s_add_u32 s77, s76, {T}"); a("s_and_b32 s78, s77, 1"); a("s_lshr_b32 s77, s77, 1"); a("s_lshl_b32 s77, s77, 11")
            a("v_xor_b32 v17, s78, v15"); a(f"v_lshl_add_u32 v{2+T}, v17, 5, v16"); a(f"v_add_u32 v{2+T}, s77, v{2+T}")
        a("v_mov_b32 v7, v12"); a("v_add_u32 v8, 4096, v7")
        a("v_bfe_u32 v9, v1, 4, 1"); a("v_lshlrev_b32 v9, 10, v9"); a("v_lshl_add_u32 v9, v14, 8, v9"); a("v_and_b32 v17, 15, v1"); a("v_lshl_add_u32 v9, v17, 4, v9")
        for r in range(160, 256): a(f"v_mov_b32 v{r}, 0")
        touch = s.opt.get("touch", 0)
        if touch:
            lw = s.newlab("L_tw"); le = s.newlab("L_te")
            a("s_cmp_ge_u32 s3, 2"); a(f"s_cbranch_scc1 {lw}")
            s.srd(48, 16, 2621440)
            a("s_lshr_b32 s76, s4, 2"); a("s_lshl_b32 s76, s76, 6"); a("s_lshl_b32 s77, s5, 1"); a("s_add_u32 s76, s76, s77"); a("s_add_u32 s76, s76, s3")
            a(f"s_mul_i32 s98, s76, {16*1280}")
            a("v_and_b32 v92, 15, v1"); a("v_mul_u32_u24 v92, 1280, v92"); a("v_bfe_u32 v93, v1, 4, 1"); a("v_lshl_add_u32 v92, v93, 7, v92")
            a("s_mov_b32 s99, 256"); a("s_mov_b32 s100, -1")
            a(f"s_branch {le}")
            s.label(lw)
            a("s_cmp_eq_u32 s3, 2")
            a("s_cselect_b32 s48, s30, s32"); a("s_cselect_b32 s49, s31, s33"); a("s_and_b32 s49, s49, 0xffff")
            a("s_mov_b32 s50, 1966080"); a("s_mov_b32 s51, 0x20000")
            a("v_mul_u32_u24 v93, 5462, v1"); a("v_lshrrev_b32 v93, 16, v93"); a("v_mul_u32_u24 v94, 12, v93"); a("v_sub_u32 v94, v1, v94")
            a("v_cmp_lt_u32 vcc, 5, v94"); a(f"v_mul_u32_u24 v92, {64*3072}, v93"); a(f"v_mov_b32 v95, {3072 - 768}"); a("v_cndmask_b32 v95, 0, v95, vcc")
            a("v_lshl_add_u32 v92, v94, 7, v92"); a("v_add_u32 v92, v92, v95")
            a("s_and_b32 s76, s4, 3"); a("s_mul_i32 s76, s76, 768"); a(f"s_mul_i32 s77, s5, {2*3072}"); a("s_add_u32 s98, s76, s77")
            a(f"s_mov_b32 s99, {2*64*3072}"); a("s_mov_b32 s100, 0xffffff")
            s.label(le)
        def do_touch():
            a("s_mov_b32 exec_lo, s100"); a("s_mov_b32 exec_hi, 0")
            a("buffer_load_dword v93, v92, s[48:51], s98 offen")
            a("s_mov_b64 exec, -1"); a("s_add_u32 s98, s98, s99")
        tpre = s.opt.get("tpre", 2)
        if touch:
            for _ in range(tpre if touch == 2 else 5): do_touch()
        SB = (12, 52)
        def reads(st, slot):
            R = []
            if s.m16:
                W = [f"ds_read_b64_tr_b16 v[{SB[st]+8*T+4*u+2*hh}:{SB[st]+8*T+4*u+2*hh+1}], v{2+T} offset:{slot*12288 + u*6144 + hh*256}" for T in range(3) for u in range(2) for hh in range(2)]
                X = [f"ds_read_b128 v[{SB[st]+24+4*nt}:{SB[st]+24+4*nt+3}], v5 offset:{slot*8192 + nt*1024}" for nt in range(4)]
                return [X[0], W[0], W[1], X[1], X[2], X[3]] + W[2:]
            for sub in range(2):
                W = []
                for T in range(3):
                    for hh in range(2):
                        r = SB[st] + 12 * sub + 4 * T + 2 * hh
                        W.append(f"ds_read_b64_tr_b16 v[{r}:{r+1}], v{2+T} offset:{slot*12288 + sub*1024 + hh*256}")
                X = [f"ds_read_b128 v[{SB[st]+24+8*sub+4*nt}:{SB[st]+24+8*sub+4*nt+3}], v{5+sub} offset:{slot*8192 + nt*2048}" for nt in range(2)]
                R += [X[0], W[0], W[1], X[1], W[2], W[3], W[4], W[5]]
            return R
        def mfmas(st):
            M = []
            if s.m16:
                seq = [(T, u, nt) for T in range(3) for u in range(2) for nt in range(4)]
                mo = s.opt.get("mord", 0)
                if mo == 1: seq = [(T, u, nt) for nt in range(4) for T in range(3) for u in range(2)]
                if mo == 2: seq = [(T, u, nt if (2 * T + u) % 2 == 0 else 3 - nt) for T in range(3) for u in range(2) for nt in range(4)]
                for (T, u, nt) in seq:
                    if True:
                        if True:
                            o = 160 + 16 * (2 * T + nt // 2) + 8 * u + 4 * (nt & 1); w = SB[st] + 8 * T + 4 * u; x = SB[st] + 24 + 4 * nt
                            M.append(f"v_mfma_f32_16x16x32_bf16 v[{o}:{o+3}], v[{w}:{w+3}], v[{x}:{x+3}], v[{o}:{o+3}]")
                return M
            for sub in range(2):
                for T in range(3):
                    for nt in range(2):
                        o = 160 + 16 * (2 * T + nt); w = SB[st] + 12 * sub + 4 * T; x = SB[st] + 24 + 8 * sub + 4 * nt
                        M.append(f"v_mfma_f32_32x32x16_bf16 v[{o}:{o+15}], v[{w}:{w+3}], v[{x}:{x+3}], v[{o}:{o+15}]")
            return M
        a("s_mov_b32 s86, 0")
        a("s_waitcnt lgkmcnt(0)")
        s.kwait()
        if s.opt.get("ctouch", 1):
            lct = s.newlab("L_ct")
            a("s_cmp_lg_u32 s3, 1"); a(f"s_cbranch_scc1 {lct}")
            a("s_getpc_b64 s[76:77]")
            s.label("L_pc")
            a(f"s_sub_u32 s76, s76, L_pc-{KN}"); a("s_subb_u32 s77, s77, 0")
            a("s_mul_i32 s78, s5, 7"); a("v_add_u32 v50, s78, v1"); a("v_lshlrev_b32 v50, 7, v50"); a(f"v_min_u32 v50, L_codeend-{KN}-4, v50")
            a("s_mov_b64 exec, 0x7f"); a("global_load_dword v51, v50, s[76:77]"); a("s_mov_b64 exec, -1")
            s.label(lct)
        a("s_barrier")
        s.kv_pre()
        a("s_waitcnt vmcnt(0)")
        a("s_barrier")
        for r in reads(0, 0): a(r)
        a("s_waitcnt lgkmcnt(0)")
        s.label("L_g1")
        for slot in range(4):
            M = mfmas(slot & 1); R = reads((slot + 1) & 1, (slot + 1) & 3)
            if s.opt.get("stamps", 0) == 2:
                a("s_memtime s[96:97]"); a(f"s_add_u32 m0, s86, {41 + slot}"); a("s_waitcnt lgkmcnt(0)"); a("v_writelane_b32 v11, s96, m0")
            a(M[0])
            if s.m16: a(M[1])
            if slot == 3:
                lnb = s.newlab("L_nb"); a("s_cmp_eq_u32 s86, 16"); a(f"s_cbranch_scc1 {lnb}"); a("s_barrier"); s.label(lnb)
            else: a("s_barrier")
            if s.m16:
                rp = s.opt.get("rp", 1)
                ri = 0; mi = 2
                while ri < 16:
                    for _ in range(2 if (rp == 2 and mi % 2 == 0) else 1):
                        if ri < 16: a(R[ri]); ri += 1
                    a(M[mi]); mi += 1
                M = M[:6] + M[mi:]
            else:
                for i in range(5):
                    for r in R[3 * i:3 * i + 3]: a(r)
                    a(M[1 + i])
                a(R[15])
            if touch == 2 and slot == s.opt.get("tslot", 0):
                lt = s.newlab("L_nt")
                a(f"s_cmp_ge_u32 s86, {4 * (5 - tpre)}"); a(f"s_cbranch_scc1 {lt}"); do_touch(); s.label(lt)
            for m in M[6:]: a(m)
            a("s_waitcnt lgkmcnt(0)")
            if slot == 0:
                a("s_cmp_eq_u32 s86, 0"); a("s_cbranch_scc1 L_kv")
                s.label("L_kvret")
        a("s_add_u32 s86, s86, 4")
        a("s_cmp_lt_u32 s86, 20"); a("s_cbranch_scc1 L_g1")
        s.stamp(1)
        if s.opt.get("g1only"): a("s_branch L_fin2")
        if s.opt.get("xidle"): s.lds_set(2, L_XG2, 1); a("s_branch L_final")
        a(f"v_mov_b32 v116, {L_EPOCH}"); a("v_mov_b32 v117, 1"); a("s_mov_b64 exec, 1"); a(f"ds_add_u32 v116, v117 offset:{L_XCNT - L_EPOCH}"); a("s_mov_b64 exec, -1")
        a("ds_read_b128 v[116:119], v116"); a("s_waitcnt lgkmcnt(0)")
        a("v_readfirstlane_b32 s72, v116"); a("v_readfirstlane_b32 s73, v117"); a("v_readfirstlane_b32 s76, v119"); a("s_nop 1")
        lfa = s.newlab("L_faok")
        a("s_cmp_lg_u32 s76, 0"); a(f"s_cbranch_scc1 {lfa}")
        a("v_lshlrev_b32 v114, 3, v1")
        a("s_lshl_b32 s76, s10, 9"); a(f"s_add_u32 s76, s76, {WS_FA}")
        s.poll(112, 114, "s76")
        s.label(lfa)
        s.stamp(2)
        if s.opt.get("g2map", 0): a("s_mul_i32 s78, s11, 3"); a("s_lshr_b32 s78, s78, 1"); a("s_mul_i32 s79, s12, 3"); a("s_add_u32 s78, s78, s79")
        else: a("s_mul_i32 s78, s10, 3"); a("s_lshr_b32 s78, s78, 1"); a("s_mul_i32 s79, s13, 3"); a("s_add_u32 s78, s78, s79")
        a("s_cmp_ge_u32 s78, 12"); a("s_cselect_b32 s79, 12, 0"); a("s_sub_u32 s78, s78, s79")
        if s.opt.get("g2rot") == 0: a("s_mov_b32 s78, 0")
        a("s_mul_i32 s79, s3, 12")
        a(f"s_mul_i32 s80, s10, {WBS}"); a(f"s_add_u32 s80, s80, {WS_WB}")
        a(f"s_mul_i32 s81, s9, {HBS}"); a(f"s_add_u32 s81, s81, {WS_HB}")
        a("s_mul_i32 s92, s3, 20480")
        def kt_of(i, dst):
            a(f"s_add_u32 s{dst}, s78, {i}"); a(f"s_cmp_ge_u32 s{dst}, 12"); a(f"s_cselect_b32 s82, 12, 0"); a(f"s_sub_u32 s{dst}, s{dst}, s82")
            a(f"s_add_u32 s{dst}, s{dst}, s79")
        def wb_loads(i):
            kt_of(i, 83); a("s_mul_i32 s83, s83, 5120"); a("s_add_u32 s83, s83, s80")
            r = 12 + 20 * (i % 5)
            for dt in range(5):
                if dt < 4: s.vmem(("wb", i), f"buffer_load_dwordx4 v[{r+4*dt}:{r+4*dt+3}], v7, s[44:47], s83 offen offset:{dt*1024} sc1")
                else: s.vmem(("wb", i), f"buffer_load_dwordx4 v[{r+4*dt}:{r+4*dt+3}], v8, s[44:47], s83 offen sc1")
        def wb_dma(i):
            kt_of(i, 83); a("s_mul_i32 s83, s83, 5120"); a("s_add_u32 s83, s83, s80")
            a(f"s_add_u32 m0, s92, {(i - 5) * 5120}"); a("s_nop 0")
            for dt in range(4):
                s.vmem(("wd", i), f"buffer_load_dwordx4 v7, s[44:47], s83 offen offset:{dt*1024} sc1 lds")
            a(f"s_add_u32 m0, s92, {(i - 5) * 5120 + 4096}"); a("s_nop 0")
            s.vmem(("wd", i), f"buffer_load_dwordx4 v8, s[44:47], s83 offen sc1 lds")
        def wb_lds(i):
            r = 12 + 20 * (i % 5)
            for dt in range(5): a(f"ds_read_b128 v[{r+4*dt}:{r+4*dt+3}], v10 offset:{(i - 5) * 5120 + dt*1024}")
        def hb_loads(i):
            kt_of(i, 83); a("s_lshl_b32 s83, s83, 12"); a("s_add_u32 s83, s83, s81")
            r = 112 + 16 * (i % 4)
            for sb in range(4):
                s.vmem(("hb", i), f"buffer_load_dwordx4 v[{r+4*sb}:{r+4*sb+3}], v7, s[44:47], s83 offen offset:{sb*1024} {s.opt.get('hsc', 'sc1')}")
        wq = [(i, dt) for i in range(5) for dt in range(5)]
        def wb_some(n):
            for _ in range(n):
                if not wq: return
                i, dt = wq.pop(0)
                if dt == 0: kt_of(i, 98); a("s_mul_i32 s98, s98, 5120"); a("s_add_u32 s98, s98, s80")
                r = 12 + 20 * (i % 5)
                if dt < 4: s.vmem(("wb", i), f"buffer_load_dwordx4 v[{r+4*dt}:{r+4*dt+3}], v7, s[44:47], s98 offen offset:{dt*1024} sc1")
                else: s.vmem(("wb", i), f"buffer_load_dwordx4 v[{r+4*dt}:{r+4*dt+3}], v8, s[44:47], s98 offen sc1")
        wpt = s.opt.get("wpt", 1)
        wb_some(s.opt.get("npre", 0))
        a("s_mov_b32 s84, 0xbfb8aa3b"); a("s_mov_b32 s85, 0xbfb8aa3b")
        a("s_lshl_b32 s87, s6, 1"); a("s_add_u32 s87, s87, s74")
        a(f"s_mul_i32 s88, s87, {HBS}")
        a("s_mul_i32 s89, s7, 6"); a("s_mul_i32 s90, s75, 3"); a("s_add_u32 s89, s89, s90")
        for T in range(3):
            a(f"s_add_u32 s90, s89, {T}"); a("s_and_b32 s91, s90, 1"); a("s_lshr_b32 s90, s90, 1")
            a("s_lshl_b32 s90, s90, 12"); a("s_lshl_b32 s91, s91, 9"); a("s_add_u32 s90, s90, s91"); a("s_add_u32 s90, s90, s88")
            for nt in range(2):
                ti = 2 * T + nt
                o = 160 + 16 * ti; p = 120 + 4 * ti
                if ti < s.opt.get("pkt", 0):
                    for e in range(4): a(f"v_pk_mul_f32 v[{o+2*e}:{o+2*e+1}], v[{o+2*e}:{o+2*e+1}], s[84:85]")
                    for e in range(8): a(f"v_exp_f32 v{o+e}, v{o+e}")
                    for e in range(4): a(f"v_pk_add_f32 v[{o+2*e}:{o+2*e+1}], v[{o+2*e}:{o+2*e+1}], 1.0 op_sel_hi:[1,0]")
                    for e in range(8): a(f"v_rcp_f32 v{o+e}, v{o+e}")
                    for e in range(4): a(f"v_pk_mul_f32 v[{o+2*e}:{o+2*e+1}], v[{o+2*e}:{o+2*e+1}], v[{o+8+2*e}:{o+9+2*e}]")
                else:
                    for e in range(8): a(f"v_mul_f32 v{o+e}, s84, v{o+e}")
                    for e in range(8): a(f"v_exp_f32 v{o+e}, v{o+e}")
                    for e in range(8): a(f"v_add_f32 v{o+e}, 1.0, v{o+e}")
                    for e in range(8): a(f"v_rcp_f32 v{o+e}, v{o+e}")
                    for e in range(8): a(f"v_mul_f32 v{o+e}, v{o+e}, v{o+8+e}")
                for e in range(4): a(f"v_cvt_pk_bf16_f32 v{p+e}, v{o+2*e}, v{o+2*e+1}")
                if s.m16:
                    a("s_nop 1"); a(f"v_permlane16_swap_b32 v{p}, v{p+2}"); a(f"v_permlane16_swap_b32 v{p+1}, v{p+3}")
                s.vmem("hst", f"buffer_store_dwordx4 v[{p}:{p+3}], v9, s[44:47], s90 offen offset:{nt*2048} sc1")
                if ti < 5: wb_some(wpt)
        a("s_setprio 0")
        s.stamp(3)
        wb_some(s.opt.get("wmid", 6))
        s.vm_wait({"hst"})
        a("s_lshl_b32 s90, s87, 8"); a("s_lshl_b32 s91, s7, 4"); a("s_add_u32 s90, s90, s91"); a("s_lshl_b32 s91, s75, 3"); a("s_add_u32 s90, s90, s91")
        a(f"s_add_u32 s90, s90, {WS_FH}")
        s.write_flag(144, 90)
        s.lds_set(2, L_XH, 1)
        s.stamp(4)
        wb_some(25)
        s.lds_wait(L_XCNT, 1, 4, 148)
        for i in range(5, 9): wb_dma(i)
        a("v_add_u32 v10, s92, v7")
        a("v_min_u32 v114, 7, v1"); a("v_lshlrev_b32 v114, 3, v114")
        a("s_lshl_b32 s90, s9, 8"); a("s_lshl_b32 s91, s3, 6"); a("s_add_u32 s90, s90, s91"); a(f"s_add_u32 s90, s90, {WS_FH}")
        s.poll(112, 114, "s90")
        s.stamp(5)
        h0 = s.opt.get("h0", 2)
        for i in range(h0): hb_loads(i)
        for i in range(12):
            if i == s.opt.get("xg2", 7): s.lds_set(2, L_XG2, 1)
            s.vm_wait({("hb", i), ("wb", i)})
            if i == 0:
                for k in range(h0, 4): hb_loads(k)
            s.stamp(16 + i, 3)
            if 5 <= i < 9: a("s_waitcnt lgkmcnt(0)")
            rw = 12 + 20 * (i % 5); rh = 112 + 16 * (i % 4)
            n = i + 4
            extra = {k: [] for k in range(20)}
            if n < 12:
                extra[0].append(lambda n=n: (kt_of(n, 83), a("s_mul_i32 s98, s83, 5120"), a("s_add_u32 s98, s98, s80"), a("s_lshl_b32 s83, s83, 12"), a("s_add_u32 s83, s83, s81")))
                for sb in range(4):
                    extra[5 * sb + 4].append(lambda n=n, sb=sb: s.vmem(("hb", n), f"buffer_load_dwordx4 v[{rh+4*sb}:{rh+4*sb+3}], v7, s[44:47], s83 offen offset:{sb*1024} sc1"))
                if n >= 5:
                    r = 12 + 20 * (n % 5)
                    for dt in range(5):
                        if n < 9: f = lambda n=n, dt=dt, r=r: a(f"ds_read_b128 v[{r+4*dt}:{r+4*dt+3}], v10 offset:{(n - 5) * 5120 + dt*1024}")
                        elif dt < 4: f = lambda n=n, dt=dt, r=r: s.vmem(("wb", n), f"buffer_load_dwordx4 v[{r+4*dt}:{r+4*dt+3}], v7, s[44:47], s98 offen offset:{dt*1024} sc1")
                        else: f = lambda n=n, dt=dt, r=r: s.vmem(("wb", n), f"buffer_load_dwordx4 v[{r+4*dt}:{r+4*dt+3}], v8, s[44:47], s98 offen sc1")
                        extra[4 * dt + 2].append(f)
            def pw(k):
                sb, dt = divmod(k, 5); o = 176 + 4 * (4 * dt + sb)
                a(f"ds_write_b128 v12, v[{o}:{o+3}] offset:{sb*5120 + dt*64}")
            if i == 11:
                extra[0].append(lambda: (a("v_and_b32 v12, 15, v1"), a("v_lshrrev_b32 v13, 4, v1"), a("v_bfe_u32 v14, v1, 1, 2"), a("v_xor_b32 v13, v13, v14")))
                extra[1].append(lambda: (a("v_mul_u32_u24 v12, 320, v12"), a("v_lshl_add_u32 v12, v13, 4, v12"), a("v_add_u32 v12, s92, v12")))
                for k in range(12): extra[k + 8].append(lambda k=k: pw(k))
            for sb in range(4):
                for dt in range(5):
                    o = 176 + 4 * (4 * dt + sb)
                    c = "0" if i == 0 else f"v[{o}:{o+3}]"
                    a(f"v_mfma_f32_16x16x32_bf16 v[{o}:{o+3}], v[{rw+4*dt}:{rw+4*dt+3}], v[{rh+4*sb}:{rh+4*sb+3}], {c}")
                    for f in extra[5 * sb + dt]: f()
        s.stamp(6)
        for k in range(12, 20):
            if k == 19: a("s_nop 0")
            pw(k)
        s.stamp(7)

    def final(s):
        a = s.a
        s.label("L_final")
        s.srd(48, 38, 2621440)
        a(f"s_mul_i32 s74, s9, {64*1280}"); a("s_mul_i32 s75, s10, 160"); a("s_add_u32 s74, s74, s75")
        def addr(n, b):
            a(f"v_mul_u32_u24 v13, 6554, v{n}"); a("v_lshrrev_b32 v13, 16, v13")
            a("v_mul_u32_u24 v14, 10, v13"); a(f"v_sub_u32 v14, v{n}, v14")
            a("v_bfe_u32 v15, v13, 1, 2"); a(f"v_lshlrev_b32 v{b}, 1, v14"); a(f"v_xor_b32 v{b}, v{b}, v15"); a(f"v_xor_b32 v{b+1}, 1, v{b}")
            a("v_mul_u32_u24 v15, 320, v13"); a(f"v_lshl_add_u32 v{b}, v{b}, 4, v15"); a(f"v_lshl_add_u32 v{b+1}, v{b+1}, 4, v15")
            a(f"v_lshlrev_b32 v{b+2}, 4, v{n}"); a(f"v_add_u32 v{b+2}, {L_QT}, v{b+2}")
            a(f"v_lshlrev_b32 v{b+3}, 2, v13"); a(f"v_add_u32 v{b+3}, {L_GF}, v{b+3}")
            a(f"v_mul_u32_u24 v{b+4}, 1120, v13"); a(f"v_lshl_add_u32 v{b+4}, v{n}, 4, v{b+4}")
        def rd(b, d):
            for w in range(4):
                a(f"ds_read_b128 v[{d+8*w}:{d+3+8*w}], v{b} offset:{w*20480}")
                a(f"ds_read_b128 v[{d+4+8*w}:{d+7+8*w}], v{b+1} offset:{w*20480}")
            a(f"ds_read_b128 v[{d+32}:{d+35}], v{b+2}"); a(f"ds_read_b32 v{d+36}, v{b+3}")
        def comp(b, d):
            for e in range(4):
                a(f"v_pk_add_f32 v[{d+2*e}:{d+1+2*e}], v[{d+2*e}:{d+1+2*e}], v[{d+8+2*e}:{d+9+2*e}]")
                a(f"v_pk_add_f32 v[{d+16+2*e}:{d+17+2*e}], v[{d+16+2*e}:{d+17+2*e}], v[{d+24+2*e}:{d+25+2*e}]")
            a(f"v_sub_f32 v{d+36}, 1.0, v{d+36}"); a(f"v_cvt_pk_bf16_f32 v{d+36}, v{d+36}, v{d+36}"); a(f"v_and_b32 v{d+36}, 0xffff0000, v{d+36}")
            for e in range(4):
                a(f"v_pk_add_f32 v[{d+2*e}:{d+1+2*e}], v[{d+2*e}:{d+1+2*e}], v[{d+16+2*e}:{d+17+2*e}]")
            for e in range(4):
                a(f"v_lshlrev_b32 v{d+8+2*e}, 16, v{d+32+e}"); a(f"v_and_b32 v{d+9+2*e}, 0xffff0000, v{d+32+e}")
                a(f"v_pk_fma_f32 v[{d+8+2*e}:{d+9+2*e}], v[{d+2*e}:{d+1+2*e}], v[{d+36}:{d+37}], v[{d+8+2*e}:{d+9+2*e}] op_sel_hi:[1,0,1]")
            for e in range(4): a(f"v_cvt_pk_bf16_f32 v{d+32+e}, v{d+8+2*e}, v{d+9+2*e}")
            a(f"buffer_store_dwordx4 v[{d+32}:{d+35}], v{b+4}, s[48:51], s74 offen {s.opt.get('ost', '')}")
        addr(0, 16)
        a("s_lshl_b32 s75, s3, 4"); a("s_add_u32 s75, s75, 512"); a("v_and_b32 v12, 15, v1"); a("v_add_u32 v12, s75, v12")
        addr(12, 24)
        a("s_waitcnt lgkmcnt(0)"); a("s_barrier")
        s.stamp(12)
        rd(16, 32)
        a("s_mov_b64 exec, 0xffff");
        rd(24, 72)
        a("s_mov_b64 exec, -1")
        a("s_waitcnt lgkmcnt(10)")
        comp(16, 32)
        a("s_waitcnt lgkmcnt(0)")
        a("s_mov_b64 exec, 0xffff")
        comp(24, 72)
        a("s_mov_b64 exec, -1")
        s.label("L_fin2")
        if s.opt.get("stamps"):
            s.stamp(13)
            a("s_waitcnt vmcnt(0)")
            s.stamp(14)
            a("s_memrealtime s[96:97]"); a("s_waitcnt lgkmcnt(0)"); a("v_writelane_b32 v11, s96, 15")
            a("s_lshl_b32 s74, s2, 3"); a("s_add_u32 s74, s74, s3"); a("s_lshl_b32 s74, s74, 8"); a(f"s_add_u32 s74, s74, {WS_STAMP}")
            a("v_lshlrev_b32 v12, 2, v1")
            a("buffer_store_dword v11, v12, s[44:47], s74 offen")
            if s.opt.get("dbgout"):
                ld = s.newlab("L_dbo")
                a("s_cmp_lg_u32 s2, 9"); a(f"s_cbranch_scc1 {ld}"); a("s_cmp_lg_u32 s3, 0"); a(f"s_cbranch_scc1 {ld}")
                s.srd(64, 40, 256)
                a("v_readlane_b32 s74, v11, 0"); a("s_nop 1"); a("v_subrev_u32 v11, s74, v11")
                a("v_add_u32 v12, 4, v12")
                a("s_mov_b64 exec, 0x7ffe"); a("buffer_store_dword v11, v12, s[64:67], 0 offen"); a("s_mov_b64 exec, -1")
                s.label(ld)
        s.label("L_end")
        a("s_endpgm")

    def kv_pre(s):
        a = s.a
        a("v_mul_u32_u24 v90, 3277, v1"); a("v_lshrrev_b32 v90, 16, v90"); a("v_mul_u32_u24 v91, 20, v90"); a("v_sub_u32 v91, v1, v91")
        a(f"s_mul_i32 s76, s74, {CV_SZ}"); a(f"s_add_u32 s76, s76, {L_CV + 2*CV_SZ}")
        a("v_lshlrev_b32 v95, 5, v91"); a("v_add_u32 v95, s76, v95")
        a(f"s_mul_i32 s77, s75, {16*192}"); a("s_add_u32 s76, s76, s77"); a("s_and_b32 s77, s10, 1"); a("s_lshl_b32 s77, s77, 5"); a("s_add_u32 s76, s76, s77")
        a(f"v_mul_u32_u24 v10, {6*192}, v90"); a("v_lshl_add_u32 v10, v91, 3, v10"); a("v_add_u32 v10, s76, v10")
        a("s_lshl_b32 s77, s3, 3"); a("v_mul_u32_u24 v85, 3, v90"); a("v_add_u32 v85, s77, v85"); a("v_and_b32 v86, 7, v91")
        for m in range(3):
            a(f"v_sub_u32 v87, {29+m}, v85"); a("v_lshrrev_b32 v88, 2, v87"); a("v_xor_b32 v88, v88, v86"); a("v_lshlrev_b32 v88, 4, v88")
            a("v_and_b32 v87, 3, v87"); a("v_lshl_add_u32 v88, v87, 2, v88"); a(f"v_lshl_add_u32 v{92+m}, v91, 7, v88")
            a(f"v_add_u32 v{92+m}, {L_T}, v{92+m}")
    def kv_main(s):
        a = s.a
        s.label("L_kv")
        a("s_barrier")
        s.stamp(8)
        a(f"ds_read_b128 v[42:45], v95 offset:{SC_SHK}"); a(f"ds_read_b128 v[46:49], v95 offset:{SC_SHK + 16}")
        for i in range(9): a(f"ds_read_b64 v[{12+2*i}:{13+2*i}], v10 offset:{SC_K + 192*i}")
        a("s_waitcnt lgkmcnt(9)")
        for i in range(6): a(f"ds_read_b64 v[{30+2*i}:{31+2*i}], v10 offset:{SC_V + 192*i}")
        for e in range(4):
            a(f"v_lshlrev_b32 v{96+e}, 16, v{42+2*e}"); a(f"v_and_b32 v{100+e}, 0xffff0000, v{42+2*e}")
            a(f"v_lshlrev_b32 v{104+e}, 16, v{43+2*e}"); a(f"v_and_b32 v{108+e}, 0xffff0000, v{43+2*e}")
        a("s_waitcnt lgkmcnt(0)")
        s.ex(60)
        for d in range(2):
            for i in range(9):
                a(f"v_lshlrev_b32 v{112+2*i}, 16, v{12+2*i+d}"); a(f"v_and_b32 v{113+2*i}, 0xffff0000, v{12+2*i+d}")
            for i in range(6):
                a(f"v_lshlrev_b32 v{130+2*i}, 16, v{30+2*i+d}"); a(f"v_and_b32 v{131+2*i}, 0xffff0000, v{30+2*i+d}")
            for r in range(6):
                a(f"v_pk_mul_f32 v[{142+2*r}:{143+2*r}], v[{112+2*r}:{113+2*r}], v[{108+2*d}:{109+2*d}]")
            for j in (2, 1, 0):
                for r in range(6):
                    k = 112 + 2 * (r + 3 - j); w = 96 + 4 * j + 2 * d
                    a(f"v_pk_fma_f32 v[{142+2*r}:{143+2*r}], v[{k}:{k+1}], v[{w}:{w+1}], v[{142+2*r}:{143+2*r}]")
            for r in range(6):
                a(f"v_pk_mul_f32 v[{142+2*r}:{143+2*r}], v[{142+2*r}:{143+2*r}], v[{130+2*r}:{131+2*r}]")
            for e in range(2):
                for m in range(3):
                    hi = 4 - 2 * m
                    a(f"v_cvt_pk_bf16_f32 v{154+3*e+m}, v{142+2*(hi+1)+e}, v{142+2*hi+e}")
            for m in (1, 2, 0):
                if m == 0: a("s_mov_b32 exec_hi, 0xff")
                for e in range(2):
                    a(f"ds_write_b32 v{92+m}, v{154+3*e+m} offset:{(2*d+e)*2560}")
            a("s_mov_b32 exec_hi, 0xfffffff")
        a("s_mov_b64 exec, -1")
        s.stamp(9)
        a("s_branch L_kvret")
        s.label("L_codeend")

    def build(s):
        s.kvt = s.opt.get("kvt", 6); s.m16 = s.opt.get("m16", 1)
        s.nt = "nt" if s.opt.get("nt", 1) else ""
        hdr = open("gated_mix__ssm_conv_h3__glu_gated_glu__prompt.s.ref").read().split("; Override launch")[0]
        out = hdr + f"; @launch grid=(256,1,1) block=(512,1,1) lds={LDS_TOTAL}\n"
        out += '.amdgcn_target "amdgcn-amd-amdhsa--gfx950"\n.text\n' + f".globl {KN}\n.p2align 8\n.type {KN},@function\n{KN}:\n"
        s.prologue(); s.loader(); s.chore(); s.ywave(); s.xwave(); s.final(); s.kv_main()
        out += "\n".join(s.L) + "\n"
        out += f""".section .rodata,"a"
.p2align 6
.amdhsa_kernel {KN}
  .amdhsa_next_free_vgpr 256
  .amdhsa_next_free_sgpr 102
  .amdhsa_accum_offset 256
  .amdhsa_group_segment_fixed_size 0
  .amdhsa_kernarg_size 112
  .amdhsa_user_sgpr_count 2
  .amdhsa_user_sgpr_kernarg_segment_ptr 1
  .amdhsa_system_sgpr_workgroup_id_x 1
.end_amdhsa_kernel
"""
        return out

if __name__ == "__main__":
    opt = {}
    outp = sys.argv[1]
    for x in sys.argv[2:]:
        k, v = x.split("=")
        if "," in v: opt[k] = tuple(int(z) for z in v.split(","))
        else:
            try: opt[k] = int(v)
            except ValueError: opt[k] = v
    open(outp, "w").write(Gen(opt).build())
```

```python
import sys
KN = "gated_mix__ssm_conv_h3__glu_gated_glu__prompt_kernel"

WS_HB = 0x000000; WS_WB = 0x610000; HBS = 48*4096 + 128; WBS = 48*5120 + 128; WS_KT = 0x800000; WS_YT = 0xB00000
WS_G = 0xE00000; WS_FA = 0xE10000; WS_FB = 0xE12000; WS_FH = 0xE14000; WS_FY = 0xE16000
WS_STAMP = 0xF00000
TS = 4224
L_XR = 0; L_WR = 32768; L_CV = 81920; CV_SZ = 17728; H_SZ = 8448; L_QT = 152832; L_MISC = 163072; LDS_TOTAL = 163840
CV_A = 0; CV_B = 4224; CV_U0 = 0; CV_U1 = 4616
L_FULL = L_MISC; L_FREE = L_MISC + 16; L_EPOCH = L_MISC + 32; L_QDONE = L_MISC + 40; L_SDONE = L_MISC + 48; L_XG2 = L_MISC + 56; L_XH = L_MISC + 60; L_FBOK = L_MISC + 28; L_XCNT = L_MISC + 52; L_GF = L_MISC + 256
SC_K = 0; SC_V = 6720; SC_SHK = 13440; L_T = L_CV; L_WDS = L_CV + CV_SZ
SPIN_MAX = 30000
NCONV = 160

class Gen:
    def __init__(s, opt):
        s.L = []; s.opt = opt; s.vm = []; s.lab = 0; s.vstamp = 11
    def a(s, x): s.L.append("    " + x)
    def label(s, x): s.L.append(x + ":")
    def newlab(s, p="L"):
        s.lab += 1; return f"{p}_{s.lab}"
    def vm_reset(s): s.vm = []
    def vmem(s, tag, ins): s.a(ins); s.vm.append(tag)
    def vm_wait(s, tags):
        idx = -1
        for i, t in enumerate(s.vm):
            if t in tags: idx = i
        if idx < 0: return
        n = len(s.vm) - 1 - idx
        assert n <= 63
        s.a(f"s_waitcnt vmcnt({n})")
        s.vm = s.vm[idx + 1:]
    def vm_wait_all(s):
        s.a("s_waitcnt vmcnt(0)"); s.vm = []
    def ex(s, n):
        if n >= 64: s.a("s_mov_b64 exec, -1")
        elif n > 32: s.a("s_mov_b32 exec_lo, -1"); s.a(f"s_mov_b32 exec_hi, {hex((1 << (n - 32)) - 1)}")
        elif n == 32: s.a("s_mov_b32 exec_hi, 0")
        else: s.a(f"s_mov_b32 exec_lo, {hex((1 << n) - 1)}"); s.a("s_mov_b32 exec_hi, 0")
    def srd(s, d, p, nbytes):
        s.a(f"s_mov_b32 s{d}, s{p}"); s.a(f"s_and_b32 s{d+1}, s{p+1}, 0xffff")
        s.a(f"s_mov_b32 s{d+2}, {nbytes}"); s.a(f"s_mov_b32 s{d+3}, 0x20000")
    def stamp(s, idx, lvl=1):
        if s.opt.get("stamps", 0) >= 1 and (lvl == 1 or s.opt.get("stamps", 0) == lvl):
            s.a("s_memtime s[96:97]"); s.a("s_waitcnt lgkmcnt(0)")
            s.a(f"v_writelane_b32 v{s.vstamp}, s96, {idx}")
            if s.opt.get("rt") and lvl == 1 and idx < 15:
                s.a("s_memrealtime s[96:97]"); s.a("s_waitcnt lgkmcnt(0)"); s.a(f"v_writelane_b32 v{s.vstamp}, s96, {idx + 40}")
    def poll(s, vflag, voff, soff, scnt=94, slp=None):
        l0 = s.newlab("L_poll"); l1 = s.newlab("L_pdone")
        s.a(f"s_mov_b32 s{scnt}, {SPIN_MAX}")
        s.label(l0)
        s.a(f"buffer_load_dwordx2 v[{vflag}:{vflag+1}], v{voff}, s[44:47], {soff} offen sc1")
        s.a("s_waitcnt vmcnt(0)")
        s.a(f"v_cmp_ne_u64 vcc, s[72:73], v[{vflag}:{vflag+1}]")
        s.a("s_nop 1")
        s.a(f"s_cbranch_vccz {l1}")
        slp = s.opt.get("slp", 4) if slp is None else slp
        if slp: s.a(f"s_sleep {slp}")
        s.a(f"s_sub_u32 s{scnt}, s{scnt}, 1")
        s.a(f"s_cbranch_scc0 {l0}")
        s.label(l1)
        s.vm = []
    def lds_wait(s, addr, nw, need, vt, scache=None, scnt=94, slp=0):
        a = s.a
        sc = scache if scache is not None else 95
        l0 = s.newlab("L_lw"); l1 = s.newlab("L_lwd")
        if scache is not None:
            a(f"s_cmp_ge_u32 s{sc}, {need}"); a(f"s_cbranch_scc1 {l1}")
        a(f"s_mov_b32 s{scnt}, {SPIN_MAX * 8}")
        a(f"v_mov_b32 v{vt+4}, {addr}")
        s.label(l0)
        if nw == 1: a(f"ds_read_b32 v{vt}, v{vt+4}")
        elif nw == 2: a(f"ds_read_b64 v[{vt}:{vt+1}], v{vt+4}")
        else: a(f"ds_read_b128 v[{vt}:{vt+3}], v{vt+4}")
        a("s_waitcnt lgkmcnt(0)")
        if nw == 2: a(f"v_min_u32 v{vt}, v{vt}, v{vt+1}")
        if nw == 4: a(f"v_min_u32 v{vt}, v{vt}, v{vt+1}"); a(f"v_min3_u32 v{vt}, v{vt}, v{vt+2}, v{vt+3}")
        a("s_nop 0")
        a(f"v_readfirstlane_b32 s{sc}, v{vt}")
        a("s_nop 1")
        a(f"s_cmp_ge_u32 s{sc}, {need}"); a(f"s_cbranch_scc1 {l1}")
        if slp: a(f"s_sleep {slp}")
        a(f"s_sub_u32 s{scnt}, s{scnt}, 1"); a(f"s_cbranch_scc0 {l0}")
        s.label(l1)
    def read_epoch(s, vt):
        a = s.a; l0 = s.newlab("L_re"); l1 = s.newlab("L_red")
        a(f"s_mov_b32 s94, {SPIN_MAX * 8}"); a(f"v_mov_b32 v{vt+2}, {L_EPOCH}")
        s.label(l0)
        a(f"ds_read_b64 v[{vt}:{vt+1}], v{vt+2}")
        a("s_waitcnt lgkmcnt(0)")
        a(f"v_readfirstlane_b32 s72, v{vt}"); a(f"v_readfirstlane_b32 s73, v{vt+1}"); a("s_nop 1")
        a("s_cmp_lg_u32 s73, 0"); a(f"s_cbranch_scc1 {l1}")
        a("s_sub_u32 s94, s94, 1"); a(f"s_cbranch_scc0 {l0}")
        s.label(l1)
    def write_flag(s, vt, sreg):
        s.a(f"v_mov_b32 v{vt}, s72"); s.a(f"v_mov_b32 v{vt+1}, s73"); s.a(f"v_mov_b32 v{vt+2}, 0")
        s.a("s_mov_b64 exec, 1")
        s.vmem("flag", f"buffer_store_dwordx2 v[{vt}:{vt+1}], v{vt+2}, s[44:47], s{sreg} offen sc1")
        s.a("s_mov_b64 exec, -1")
    def h_own(s, syreg):
        a = s.a
        a("s_lshl_b32 s76, s14, 2"); a(f"s_add_u32 s76, s76, s{syreg}"); a("s_lshl_b32 s76, s76, 12")
        for i in range(4):
            s.vmem("h", f"buffer_load_dwordx4 v[{164+4*i}:{167+4*i}], v12, s[60:63], s76 offen offset:{i*1024} {s.nt}")
    def tile_loads(s, base, reg):
        a = s.a
        for i in range(3):
            a(f"s_add_u32 s74, s88, {base + i*8*TS}")
            if i == 2: a("s_mov_b32 exec_hi, 0")
            a(f"buffer_load_dwordx4 v[{reg+4*i}:{reg+4*i+3}], v77, s[44:47], s74 offen sc1")
            if i == 2: a("s_mov_b64 exec, -1")
    def ap_loads(s):
        a = s.a
        a("v_sub_u32 v78, 63, v1"); a("v_lshlrev_b32 v78, 2, v78")
        a("s_lshl_b32 s74, s9, 8"); a(f"s_add_u32 s74, s74, {WS_G}")
        a("buffer_load_dword v76, v78, s[44:47], s74 offen sc1")
        a("s_mul_i32 s87, s10, 80"); a("s_mul_i32 s74, s83, 20"); a("s_add_u32 s87, s87, s74")
        a(f"s_mul_i32 s88, s87, {TS}"); a("s_lshl_b32 s74, s9, 7"); a("s_sub_u32 s88, s88, s74"); a("s_add_u32 s88, s88, 3968")
        a("v_lshrrev_b32 v77, 3, v1"); a(f"v_mul_u32_u24 v77, {TS}, v77"); a("v_and_b32 v79, 7, v1"); a("v_lshl_add_u32 v77, v79, 4, v77")
        s.tile_loads(WS_KT, 64)
    def kwait(s):
        if not s.opt.get("stamps") and s.opt.get("early", 1):
            s.a("s_waitcnt lgkmcnt(0)")
            s.srd(44, 42, 0x10000000)
    def lds_set(s, vt, addr_sreg_or_const, val):
        s.a(f"v_mov_b32 v{vt}, {addr_sreg_or_const}"); s.a(f"v_mov_b32 v{vt+1}, {val}"); s.a(f"ds_write_b32 v{vt}, v{vt+1}")

    def prologue(s):
        a = s.a
        a("s_cmp_ge_u32 s2, 256"); a("s_cbranch_scc1 L_end")
        a("s_load_dwordx16 s[16:31], s[0:1], 0")
        a("s_load_dwordx8 s[32:39], s[0:1], 64")
        a("s_load_dwordx4 s[40:43], s[0:1], 96")
        a("v_lshrrev_b32 v2, 6, v0")
        a("v_and_b32 v1, 63, v0")
        a("v_readfirstlane_b32 s3, v2")
        a("s_and_b32 s4, s2, 7"); a("s_lshr_b32 s5, s2, 3")
        a("s_lshr_b32 s6, s4, 2"); a("s_lshl_b32 s6, s6, 3"); a("s_and_b32 s11, s5, 7"); a("s_add_u32 s6, s6, s11")
        a("s_and_b32 s7, s4, 3"); a("s_lshl_b32 s7, s7, 2"); a("s_lshr_b32 s12, s5, 3"); a("s_add_u32 s7, s7, s12")
        a("s_lshl_b32 s8, s12, 1"); a("s_add_u32 s8, s8, s11"); a("s_and_b32 s8, s8, 7")
        if s.opt.get("g2map", 1):
            a("s_lshr_b32 s9, s4, 1"); a("s_lshl_b32 s9, s9, 3"); a("s_add_u32 s9, s9, s11")
            a("s_and_b32 s10, s4, 1"); a("s_lshl_b32 s10, s10, 2"); a("s_add_u32 s10, s10, s12")
        else:
            a("s_lshl_b32 s9, s4, 2"); a("s_and_b32 s13, s5, 3"); a("s_add_u32 s9, s9, s13"); a("s_lshr_b32 s10, s5, 2")
        if s.opt.get("cmap", 0):
            a("s_mul_i32 s14, s5, 5"); a("s_add_u32 s14, s14, s4"); a("s_cmp_lt_u32 s4, 5"); a("s_cselect_b32 s14, s14, 255")
        else: a("s_mov_b32 s14, s2")
        if s.opt.get("stamps"): a("v_mov_b32 v11, 0")
        a("v_lshlrev_b32 v12, 4, v1")
        if s.opt.get("stamps") or not s.opt.get("early", 1):
            a("s_waitcnt lgkmcnt(0)")
            s.srd(44, 42, 0x10000000)
        s.stamp(0)
        if s.opt.get("stamps"):
            a("s_memrealtime s[96:97]"); a("s_waitcnt lgkmcnt(0)"); a("v_writelane_b32 v11, s96, 62")
        a("s_cmp_lt_u32 s3, 4"); a("s_cbranch_scc1 L_X")
        a("s_cmp_ge_u32 s3, 6"); a("s_cbranch_scc1 L_C")

    def loader(s):
        a = s.a; s.vm_reset()
        s.label("L_L")
        a(f"s_setprio {s.opt.get('lprio', 3)}")
        a("s_sub_u32 s74, s3, 4")
        a("v_lshrrev_b32 v4, 2, v1"); a("v_mul_u32_u24 v2, 3072, v4")
        a("v_and_b32 v5, 3, v1")
        if s.m16: a("v_lshrrev_b32 v6, 5, v1"); a("v_lshlrev_b32 v6, 1, v6"); a("v_xor_b32 v6, v6, v5")
        else: a("s_lshl_b32 s75, s74, 1"); a("v_xor_b32 v6, s75, v5")
        a("v_lshl_add_u32 v2, v6, 4, v2")
        a("s_mul_i32 s75, s7, 192"); a("v_add_u32 v2, s75, v2")
        a("v_mul_u32_u24 v3, 1280, v4")
        if s.m16:
            a("v_lshrrev_b32 v7, 5, v1"); a("v_bfe_u32 v6, v1, 4, 1"); a("v_xor_b32 v6, v6, v7"); a("v_lshl_add_u32 v6, v6, 1, v7"); a("v_xor_b32 v6, v6, v5")
        else:
            a("v_lshrrev_b32 v6, 4, v1"); a("s_lshl_b32 s75, s74, 2"); a("v_add_u32 v6, s75, v6")
            a("v_lshrrev_b32 v7, 1, v6"); a("v_xor_b32 v6, v6, v7"); a("v_and_b32 v6, 3, v6"); a("v_xor_b32 v6, v6, v5")
        a("v_lshl_add_u32 v3, v6, 4, v3")
        a("s_lshl_b32 s75, s6, 3"); a("s_add_u32 s75, s75, s74"); a(f"s_mul_i32 s75, s75, {16*1280}"); a("v_add_u32 v3, s75, v3")
        a("s_lshl_b32 s78, s74, 10")
        a(f"s_mul_i32 s79, s74, 6144"); a(f"s_add_u32 s79, s79, {L_WR}")
        s.kwait()
        s.srd(48, 16, 2621440)
        a("s_cmp_eq_u32 s74, 0")
        a("s_cselect_b32 s52, s30, s32"); a("s_cselect_b32 s53, s31, s33"); a("s_and_b32 s53, s53, 0xffff")
        a("s_mov_b32 s54, 1966080"); a("s_mov_b32 s55, 0x20000")
        groups = s.opt.get("groups", (1,) * 10)
        if s.opt.get("cyc", 1): a("s_mul_i32 s8, s8, 5"); a("s_lshr_b32 s8, s8, 2")
        def dsel(D):
            if s.opt.get("cyc", 1):
                a(f"s_add_u32 s80, s8, {D}"); a("s_cmp_ge_u32 s80, 10"); a("s_cselect_b32 s15, 10, 0"); a("s_sub_u32 s80, s80, s15")
                return
            b = 0
            for g in groups:
                if D < b + g: break
                b += g
            if g == 1: a(f"s_mov_b32 s80, {D}"); return
            assert g in (2, 4, 8)
            src = "s8" if g == 8 else ("s14" if g == 4 else "s15")
            a(f"s_add_u32 s80, {src}, {D - b}"); a(f"s_and_b32 s80, s80, {g - 1}")
            if b: a(f"s_add_u32 s80, s80, {b}")
        def issue_x(D):
            dsel(D); a("s_lshl_b32 s81, s80, 7")
            for gi in range(4):
                for h in range(2):
                    t = 2 * D + h
                    a(f"s_add_u32 m0, s78, {L_XR + (t & 3) * 8192 + gi * 2048}")
                    a(f"s_add_u32 s82, s81, {gi * 32 * 1280 + h * 64}")
                    s.vmem(("x", t), f"buffer_load_dwordx4 v3, s[48:51], s82 offen lds")
        def issue_w(t):
            dsel(t >> 1); a(f"s_mul_i32 s81, s80, {64*3072}")
            for rh in range(2):
                for pc in range(3):
                    a(f"s_add_u32 m0, s79, {(t & 3) * 12288 + pc * 2048 + rh * 1024}")
                    a(f"s_add_u32 s82, s81, {(32 * (t & 1) + 16 * rh) * 3072 + pc * 64}")
                    s.vmem(("w", t), f"buffer_load_dwordx4 v2, s[52:55], s82 offen lds")
        def publish(t):
            s.vm_wait({("x", t), ("w", t), ("x", t | 1)})
            s.stamp(40 + t, 2)
            a("s_barrier")
            s.stamp(16 + t, 2)
        issue_w(0); issue_x(0); issue_w(1)
        a("s_barrier")
        publish(0); publish(1)
        if s.opt.get("lx1", 0):
            issue_x(1)
            a("s_barrier")
            issue_w(2)
        elif s.opt.get("rtouch", 2):
            a("s_barrier")
            issue_x(1); issue_w(2)
        else:
            issue_x(1); issue_w(2)
            a("s_barrier")
        issue_w(3)
        hold = -5
        pend = []
        for n in range(1, 17):
            if n % 2 == 0 and n + 2 < 20: pend.append(lambda n=n: issue_x((n + 2) // 2))
            if n + 3 < 20: pend.append(lambda n=n: issue_w(n + 3))
            if n != hold:
                for f in pend: f()
                pend = []
            if n == s.opt.get("hmid", 7): s.srd(60, 24, 2621440); s.h_own(74)
            hp_ = s.opt.get("hp", 19)
            if s.opt.get("hmid", 7) and hp_ < 17 and n in (hp_, hp_ + 1):
                s.vm_wait({"h"})
                lh_ = s.newlab("L_nh"); a(f"s_cmp_ge_u32 s14, {NCONV}"); a(f"s_cbranch_scc1 {lh_}")
                a("s_mov_b32 s83, s74"); a(f"s_mul_i32 s84, s74, {CV_SZ}"); a(f"s_add_u32 s84, s84, {L_CV}")
                s.h_copies(84, 164, n - hp_); a("s_mov_b32 s74, s83"); s.label(lh_)
            if n < 16: publish(n + 1)
        a("s_mov_b32 s83, s74")
        a("s_branch L_Yt")

    def row_loads(s, srd, nrows, vfirst, vrest, reg, tag, nt):
        a = s.a
        for i in range((nrows + 4) // 5):
            n = min(5, nrows - 5 * i)
            if i == 0 or n < 5: s.ex(12 * n)
            r = reg + 4 * i
            if i == 0: s.vmem(tag, f"buffer_load_dwordx4 v[{r}:{r+3}], v{vfirst}, s[{srd}:{srd+3}], 0 offen {nt}")
            else:
                a(f"s_mov_b32 s77, {6400*(i-1)}")
                s.vmem(tag, f"buffer_load_dwordx4 v[{r}:{r+3}], v{vrest}, s[{srd}:{srd+3}], s77 offen {nt}")
        a("s_mov_b64 exec, -1")
    def dma_rows(s, srd, nrows, vfirst, vrest, ldsbase_s, ldsoff, tag, nt):
        a = s.a
        for i in range((nrows + 4) // 5):
            a(f"s_add_u32 m0, s{ldsbase_s}, {ldsoff + 960*i}")
            n = min(5, nrows - 5 * i)
            if i == 0 or n < 5: s.ex(12 * n)
            if i == 0: s.vmem(tag, f"buffer_load_dwordx4 v{vfirst}, s[{srd}:{srd+3}], 0 offen {nt} lds")
            else:
                a(f"s_mov_b32 s77, {6400*(i-1)}")
                s.vmem(tag, f"buffer_load_dwordx4 v{vrest}, s[{srd}:{srd+3}], s77 offen {nt} lds")
        a("s_mov_b64 exec, -1")
    def img_write(s, sbase, off, n, reg):
        a = s.a
        a(f"v_add_u32 v13, s{sbase}, v12"); s.ex(60)
        for i in range(n): a(f"ds_write_b128 v13, v[{reg+4*i}:{reg+4*i+3}] offset:{off + 960*i}")
        a("s_mov_b64 exec, -1")
    def h_copies(s, sbase, reg, half=None):
        a = s.a
        a(f"v_add_u32 v13, s{sbase}, v12")
        for i in (range(4) if half is None else range(2 * half, 2 * half + 2)):
            r = reg + 4 * i
            if i == 0: a("v_mov_b32 v234, 0")
            else:
                a(f"v_readlane_b32 s74, v{r-1}, 63"); a("s_nop 1"); a("v_mov_b32 v234, s74")
            a("s_nop 1")
            a(f"v_mov_b32_dpp v234, v{r+3} wave_shr:1 row_mask:0xf bank_mask:0xf")
            a(f"ds_write_b128 v13, v[{r}:{r+3}] offset:{CV_B + 64 + i*1024}")
            a(f"v_alignbit_b32 v236, v{r}, v234, 16")
            a(f"v_alignbit_b32 v237, v{r+1}, v{r}, 16")
            a(f"v_alignbit_b32 v238, v{r+2}, v{r+1}, 16")
            a(f"v_alignbit_b32 v239, v{r+3}, v{r+2}, 16")
            a(f"ds_write_b128 v13, v[236:239] offset:{CV_A + 64 + i*1024}")
        if half == 0: return
        a("v_lshrrev_b32 v234, 2, v1"); a("v_and_b32 v235, 1, v234"); a("v_mul_u32_u24 v235, 4160, v235")
        a("v_lshrrev_b32 v234, 1, v234"); a(f"v_mul_u32_u24 v234, {CV_B}, v234"); a("v_add_u32 v235, v235, v234")
        a("v_and_b32 v234, 3, v1"); a("v_lshl_add_u32 v235, v234, 4, v235"); a(f"v_add_u32 v235, s{sbase}, v235")
        for r in range(236, 240): a(f"v_mov_b32 v{r}, 0")
        s.ex(16)
        a("ds_write_b128 v235, v[236:239]")
        a("s_mov_b64 exec, -1")
    def u_addr(s, sbase):
        a = s.a
        def swz(dst, off):
            a(f"v_add_u32 v{dst}, {off}, v12"); a(f"v_lshrrev_b32 v41, 3, v{dst}"); a("v_and_b32 v41, 32, v41"); a(f"v_xor_b32 v{dst}, v{dst}, v41")
            a(f"v_add_u32 v{dst}, s{sbase}, v{dst}"); a(f"v_subrev_u32 v{dst}, 64, v{dst}")
        swz(14, 68); swz(15, 80); swz(40, 72)
        a(f"v_add_u32 v13, s{sbase}, v12")
        for r in range(32, 36): a(f"v_mov_b32 v{r}, 0")
        s.ex(34); a("ds_write_b128 v13, v[32:35] offset:4096")
        s.ex(33); a(f"ds_write_b128 v13, v[32:35] offset:{CV_U1 + 4096 - 8}")
        a("s_mov_b64 exec, 1"); a("ds_write_b128 v13, v[32:35]")
        a("s_mov_b64 exec, -1")
    def u_stage(s, reg, nwait0):
        a = s.a
        for i in range(4):
            a(f"s_waitcnt vmcnt({nwait0 + 3 - i})")
            r = reg + 4 * i
            a(f"ds_write_b64 v40, v[{r}:{r+1}] offset:{CV_U1 + i*1024}")
            a(f"ds_write_b64 v15, v[{r+2}:{r+3}] offset:{CV_U1 + i*1024}")
            a(f"ds_write_b64 v14, v[{r}:{r+1}] offset:{i*1024}") if False else None
            a(f"ds_write_b32 v14, v{r} offset:{i*1024}")
            a(f"ds_write_b64 v14, v[{r+1}:{r+2}] offset:{i*1024 + 4}") if False else None
            a(f"ds_write_b32 v14, v{r+1} offset:{i*1024 + 4}")
            a(f"ds_write_b32 v14, v{r+2} offset:{i*1024 + 8}")
            a(f"ds_write_b32 v15, v{r+3} offset:{i*1024}")

    def chore(s):
        a = s.a; s.vm_reset(); nt = s.nt
        s.label("L_C")
        a(f"s_setprio {s.opt.get('cprio', 2)}")
        a("s_sub_u32 s78, s3, 6")
        a(f"s_mul_i32 s79, s78, {CV_SZ}"); a(f"s_add_u32 s79, s79, {L_CV}")
        a(f"s_add_u32 s84, s79, {2*CV_SZ}")
        a("s_mul_i32 s93, s78, 4800"); a(f"s_add_u32 s93, s93, {L_WDS}")
        a("s_and_b32 s85, s10, 1"); a("s_lshl_b32 s85, s85, 5")
        a("s_mul_i32 s80, s10, 160"); a("s_sub_u32 s80, s80, s85")
        a("s_lshl_b32 s81, s9, 6"); a("s_lshl_b32 s74, s78, 5"); a("s_add_u32 s81, s81, s74")
        a("v_mul_u32_u24 v4, 5462, v1"); a("v_lshrrev_b32 v4, 16, v4")
        a("v_mul_u32_u24 v5, 12, v4"); a("v_sub_u32 v5, v1, v5")
        a("v_mul_u32_u24 v6, 1280, v4"); a("v_lshl_add_u32 v6, v5, 4, v6"); a("v_add_u32 v6, s80, v6")
        a("s_mul_i32 s74, s9, 48"); a("s_mul_i32 s75, s78, 24"); a("s_add_u32 s74, s74, s75"); a("s_mul_i32 s74, s74, 1280")
        a("v_add_u32 v16, s74, v6"); a("v_add_u32 v17, 6400, v16")
        a("s_mul_i32 s74, s81, 1280")
        a("v_add_u32 v20, s74, v6"); a("v_add_u32 v21, 6400, v20")
        a(f"v_subrev_u32 v18, {3*1280}, v20"); a("v_add_u32 v19, 6400, v18")
        s.kwait()
        s.srd(64, 40, 256)
        l = s.newlab("L_noep")
        a("s_cmp_lg_u32 s2, 0"); a(f"s_cbranch_scc1 {l}"); a("s_cmp_lg_u32 s78, 0"); a(f"s_cbranch_scc1 {l}")
        a("s_memrealtime s[74:75]"); a("s_waitcnt lgkmcnt(0)"); a("s_or_b32 s75, s75, 0x40000000")
        a("v_mov_b32 v8, s74"); a("v_mov_b32 v9, s75"); a("v_mov_b32 v10, 0")
        a("s_mov_b64 exec, 1"); a("buffer_store_dwordx2 v[8:9], v10, s[64:67], 0 offen sc1"); a("s_mov_b64 exec, -1")
        s.label(l)
        s.srd(48, 18, 2621440); s.srd(52, 20, 2621440); s.srd(56, 22, 5120); s.srd(60, 24, 2621440)
        s.srd(68, 16, 2621440); s.srd(88, 34, 1966080)
        a("v_mov_b32 v23, 0"); a("v_mov_b32 v37, 1")
        if s.opt.get("ticket", 0):
            lt = s.newlab("L_tk")
            a("s_cmp_eq_u32 s78, 0"); a(f"s_cbranch_scc1 {lt}")
            a("s_mov_b64 exec, 1"); a("buffer_atomic_add v37, v23, s[64:67], 0 offen offset:64 sc0"); a("s_mov_b64 exec, -1")
            s.label(lt)
        elif s.opt.get("cmap", 0):
            a("s_mul_i32 s74, s5, 5"); a("s_add_u32 s74, s74, s4"); a("s_cmp_lt_u32 s4, 5"); a("s_cselect_b32 s74, s74, 255"); a("v_mov_b32 v37, s74")
        else: a("v_mov_b32 v37, s2")
        a("s_barrier")
        s.dma_rows(48, 35, 18, 19, 84, SC_K, "k", nt)
        s.dma_rows(52, 32, 20, 21, 84, SC_V, "k", nt)
        a("s_mul_i32 s75, s10, 640"); a(f"s_add_u32 m0, s84, {SC_SHK}"); s.ex(40)
        s.vmem("k", "buffer_load_dwordx4 v12, s[56:59], s75 offen lds")
        a("s_mov_b64 exec, -1")
        s.vmem("ep", "buffer_load_dwordx2 v[38:39], v23, s[64:67], 0 offen sc1")
        s.stamp(40, 2); a("s_barrier")
        if s.opt.get("rtouch", 2):
            a("s_mov_b32 s76, 0x986431"); a("s_bitcmp1_b32 s11, 0"); a("s_cselect_b32 s76, 0x975420, s76")
            a("v_lshrrev_b32 v240, 4, v1"); a("v_lshlrev_b32 v240, 2, v240"); a("v_lshrrev_b32_e64 v241, v240, s76"); a("v_and_b32 v241, 15, v241")
            a("s_lshr_b32 s76, s76, 16"); a("v_lshrrev_b32_e64 v242, v240, s76"); a("v_and_b32 v242, 15, v242")
            a("v_and_b32 v243, 15, v1"); a("v_mul_u32_u24 v243, 1280, v243")
            a("v_lshl_add_u32 v241, v241, 7, v243"); a("v_lshl_add_u32 v242, v242, 7, v243")
            a("s_lshl_b32 s76, s6, 3"); a("s_lshl_b32 s77, s12, 1"); a("s_add_u32 s76, s76, s77"); a("s_add_u32 s76, s76, s78"); a(f"s_mul_i32 s98, s76, {16*1280}")
            a("v_bfe_u32 v243, v1, 4, 1"); a(f"v_mul_u32_u24 v243, {5*64*3072}, v243"); a("v_bfe_u32 v244, v1, 1, 3"); a("v_mul_u32_u24 v244, 3072, v244"); a("v_add_u32 v243, v243, v244")
            a("v_and_b32 v244, 1, v1"); a("v_lshl_add_u32 v243, v244, 7, v243")
            a("s_mul_i32 s76, s7, 192"); a("s_and_b32 s76, s76, 0xffffff80"); a(f"s_mul_i32 s77, s11, {8*3072}"); a("s_add_u32 s76, s76, s77"); a(f"s_add_u32 s99, s76, {4*64*3072}")
            a("s_cmp_eq_u32 s78, 0")
            a("s_cselect_b32 s48, s30, s32"); a("s_cselect_b32 s49, s31, s33"); a("s_and_b32 s49, s49, 0xffff"); a("s_mov_b32 s50, 1966080"); a("s_mov_b32 s51, 0x20000")
        s.stamp(41, 2); a("s_barrier")
        if s.opt.get("rtouch", 2):
            a("s_mov_b32 exec_hi, 0")
            s.vmem("t", "buffer_load_dword v250, v243, s[48:51], s99 offen")
            if s.opt.get("rtouch", 2) == 1:
                s.vmem("t", "buffer_load_dword v251, v242, s[68:71], s98 offen")
                a("s_mov_b64 exec, -1")
                s.vmem("t", "buffer_load_dword v252, v241, s[68:71], s98 offen")
            a("s_mov_b64 exec, -1")
        if not s.opt.get("wdlate", 0): s.dma_rows(88, 24, 16, 17, 93, 0, "wd", nt)
        if s.opt.get("tlb", 0):
            def tlbt():
                l1 = s.newlab("L_t1"); l2 = s.newlab("L_t2")
                a("s_cmp_eq_u32 s78, 1"); a(f"s_cbranch_scc1 {l1}")
                a(f"s_mov_b32 s76, {HBS}"); a("v_mul_lo_u32 v253, v1, s76"); a(f"s_mov_b32 s76, {WS_HB + HBS - 128}")
                s.ex(32); a("buffer_load_dword v254, v253, s[44:47], s76 offen")
                a(f"s_mov_b32 s76, {WBS}"); a("v_mul_lo_u32 v253, v1, s76"); a(f"s_mov_b32 s76, {WS_WB + WBS - 128}")
                s.ex(8); a("buffer_load_dword v254, v253, s[44:47], s76 offen")
                a(f"s_mov_b32 s76, {64*TS}"); a("s_mov_b64 exec, -1"); a("v_mul_lo_u32 v253, v1, s76"); a(f"s_mov_b32 s76, {WS_KT + 4096}")
                s.ex(10); a("buffer_load_dword v254, v253, s[44:47], s76 offen")
                a(f"s_branch {l2}")
                s.label(l1)
                a(f"s_mov_b32 s76, {64*TS}"); a("v_mul_lo_u32 v253, v1, s76"); a(f"s_mov_b32 s76, {WS_YT + 4096}")
                s.ex(10); a("buffer_load_dword v254, v253, s[44:47], s76 offen")
                a("v_lshlrev_b32 v253, 18, v1")
                a("buffer_load_dword v254, v253, s[60:63], 0 offen")
                a("s_mov_b32 s48, s38"); a("s_and_b32 s49, s39, 0xffff"); a("s_mov_b32 s50, 2621440"); a("s_mov_b32 s51, 0x20000")
                a("buffer_load_dword v254, v253, s[48:51], 0 offen")
                s.label(l2)
                a("s_mov_b64 exec, -1")
                for _ in range(3): s.vm.append("t")
            tlbt()
        if s.opt.get("htouch", 0):
            a("s_lshl_b32 s76, s2, 1"); a("s_add_u32 s76, s76, s78"); a("s_mul_i32 s76, s76, 5120"); a("v_lshlrev_b32 v253, 7, v1")
            s.ex(40); s.vmem("t", "buffer_load_dword v254, v253, s[60:63], s76 offen"); a("s_mov_b64 exec, -1")
        a("s_lshr_b32 s74, s85, 4"); a("v_subrev_u32 v7, s74, v5")
        a("v_cmp_gt_u32 s[86:87], 10, v7"); a("v_cmp_gt_u32 vcc, 60, v1"); a("s_and_b64 s[86:87], s[86:87], vcc")
        a("v_mul_u32_u24 v22, 160, v4"); a("v_lshl_add_u32 v22, v7, 4, v22")
        a(f"s_mul_i32 s76, s78, 5120"); a(f"s_add_u32 s76, s76, {L_QT}"); a("v_add_u32 v22, s76, v22")
        a("s_lshl_b32 s75, s9, 6"); a("s_lshl_b32 s76, s10, 3"); a("s_add_u32 s75, s75, s76"); a("s_lshl_b32 s76, s78, 2"); a("s_add_u32 s82, s75, s76")
        a("v_lshrrev_b32 v14, 4, v1"); a("v_mul_u32_u24 v14, 1280, v14"); a("v_and_b32 v15, 15, v1"); a("v_lshlrev_b32 v15, 4, v15"); a("v_add_u32 v14, v14, v15")
        a("v_and_b32 v240, 15, v1"); a("v_lshrrev_b32 v241, 4, v1")
        a("v_lshrrev_b32 v242, 2, v240"); a("v_mul_u32_u24 v242, 192, v242"); a("v_and_b32 v243, 3, v240"); a("v_lshl_add_u32 v242, v243, 3, v242")
        a(f"v_add_u32 v242, s93, v242"); a("v_add_u32 v242, s85, v242")
        a("s_mul_i32 s74, s9, 6"); a("s_mul_i32 s75, s78, 3"); a("s_add_u32 s74, s74, s75")
        for p in range(4):
            a(f"v_add_u32 v243, {4*p}, v241"); a("v_mul_u32_u24 v244, 52, v243"); a("v_lshrrev_b32 v244, 8, v244")
            a("v_mul_u32_u24 v245, 5, v244"); a("v_sub_u32 v245, v243, v245")
            a(f"v_mul_u32_u24 v{24+p}, 1536, v244"); a(f"v_lshl_add_u32 v{24+p}, v245, 5, v{24+p}"); a(f"v_add_u32 v{24+p}, v{24+p}, v242")
            a("v_add_u32 v244, s74, v244"); a("v_lshrrev_b32 v247, 2, v244"); a(f"v_mul_u32_u24 v{28+p}, 5120, v247")
            a("v_and_b32 v244, 3, v244"); a(f"v_lshl_add_u32 v{28+p}, v244, 8, v{28+p}"); a(f"v_lshl_add_u32 v{28+p}, v245, 10, v{28+p}")
            a(f"v_lshl_add_u32 v{28+p}, v240, 4, v{28+p}")
        a("v_lshrrev_b32 v6, 3, v1"); a("v_and_b32 v7, 7, v1"); a("s_mul_i32 s74, s78, 40"); a("v_add_u32 v6, s74, v6")
        for i in range(5):
            a(f"v_add_u32 v8, {8*i}, v6"); a("v_mul_u32_u24 v9, 3277, v8"); a("v_lshrrev_b32 v9, 16, v9")
            a("v_mul_u32_u24 v10, 20, v9"); a("v_sub_u32 v8, v8, v10")
            a("v_lshl_add_u32 v9, v8, 2, v9"); a("v_xor_b32 v8, v8, v7"); a("v_and_b32 v8, 7, v8"); a("v_lshlrev_b32 v8, 4, v8")
            a(f"v_mul_u32_u24 v9, {TS}, v9"); a(f"v_add_u32 v{32+i}, v9, v8")
        a("v_mov_b32 v23, 0")
        sched = {t: [] for t in range(21)}
        dl = s.opt.get("dl", 3)
        def rowl(srd, nrows, vfirst, vrest, reg, tag, ntf):
            out = []
            for i in range((nrows + 4) // 5):
                def f(i=i):
                    n = min(5, nrows - 5 * i); r = reg + 4 * i
                    s.ex(12 * n)
                    if i == 0: s.vmem(tag, f"buffer_load_dwordx4 v[{r}:{r+3}], v{vfirst}, s[{srd}:{srd+3}], 0 offen {ntf}")
                    else:
                        a(f"s_mov_b32 s77, {6400*(i-1)}")
                        s.vmem(tag, f"buffer_load_dwordx4 v[{r}:{r+3}], v{vrest}, s[{srd}:{srd+3}], s77 offen {ntf}")
                    a("s_mov_b64 exec, -1")
                out.append(f)
            return out
        Lk = rowl(48, 35, 18, 19, 40, "k", nt); Lv = rowl(52, 32, 20, 21, 68, "v", nt); Lw = rowl(88, 24, 16, 17, 96, "wd", nt)
        Lq = rowl(68, 32, 20, 21, 196, "q", "")
        def lshk():
            a("s_mul_i32 s75, s10, 640"); s.ex(40)
            s.vmem("v", "buffer_load_dwordx4 v[116:119], v12, s[56:59], s75 offen")
            a("s_mov_b64 exec, -1")
        def lgx(i):
            a("s_mul_i32 s75, s82, 1280")
            s.vmem("gx", f"buffer_load_dwordx4 v[{124+4*i}:{127+4*i}], v14, s[68:71], s75 offen offset:{i*256}")
        def lgw():
            s.srd(56, 36, 1280)
            for i in range(5):
                s.vmem("gx", f"buffer_load_dwordx4 v[{144+4*i}:{147+4*i}], v15, s[56:59], 0 offen offset:{i*256}")
        def lh(i):
            a("s_lshl_b32 s74, s14, 2"); a(f"s_add_u32 s74, s74, {2*(i//4)}"); a("s_add_u32 s74, s74, s78"); a("s_lshl_b32 s74, s74, 12")
            s.vmem("h", f"buffer_load_dwordx4 v[{164+4*i}:{167+4*i}], v12, s[60:63], s74 offen offset:{(i&3)*1024} {nt}")
        def two(f, g): return lambda: (f(), g())
        cold = Lk + [two(Lv[0], lshk)] + Lv[1:] + Lw
        def w1(): s.vm_wait({"k"}); s.stamp(2); s.img_write(84, SC_K, 7, 40)
        def w2():
            s.vm_wait({"v"}); s.img_write(84, SC_V, 7, 68)
            s.ex(40); a(f"ds_write_b128 v13, v[116:119] offset:{SC_SHK}"); a("s_mov_b64 exec, -1")
        def w3(): s.vm_wait({"wd"}); s.img_write(93, 0, 5, 96); a("s_waitcnt lgkmcnt(0)")
        def wd():
            for p in range(4):
                a(f"ds_read_b64_tr_b16 v[{96+4*p}:{97+4*p}], v{24+p}")
                a(f"ds_read_b64_tr_b16 v[{98+4*p}:{99+4*p}], v{24+p} offset:768")
            a(f"s_mul_i32 s74, s10, {WBS}"); a(f"s_add_u32 s74, s74, {WS_WB}")
            a("s_waitcnt lgkmcnt(0)")
            for p in range(4):
                if p == 3: s.ex(48)
                s.vmem("st", f"buffer_store_dwordx4 v[{96+4*p}:{99+4*p}], v{28+p}, s[44:47], s74 offen sc1")
            a("s_mov_b64 exec, -1")
        def epoch():
            s.vm_wait({"ep"})
            l0 = s.newlab("L_ep"); l1_ = s.newlab("L_epd")
            a(f"s_mov_b32 s94, {SPIN_MAX}")
            s.label(l0)
            a("v_readfirstlane_b32 s72, v38"); a("v_readfirstlane_b32 s73, v39"); a("s_nop 1")
            a("s_cmp_lg_u32 s73, 0"); a(f"s_cbranch_scc1 {l1_}")
            a("buffer_load_dwordx2 v[38:39], v23, s[64:67], 0 offen sc1")
            a("s_waitcnt vmcnt(0)")
            a("s_sub_u32 s94, s94, 1"); a(f"s_cbranch_scc0 {l0}")
            s.label(l1_)
            a(f"v_mov_b32 v242, {L_EPOCH}"); a("ds_write_b64 v242, v[38:39]")
            lt2 = s.newlab("L_tk")
            a("s_cmp_eq_u32 s78, 0"); a(f"s_cbranch_scc1 {lt2}")
            a("s_mov_b64 exec, 1"); a("ds_write_b32 v242, v37 offset:16"); a("s_mov_b64 exec, -1")
            s.label(lt2)
        def gate():
            s.vm_wait({"gx"})
            a("v_mov_b32 v240, 0"); a("v_mov_b32 v241, 0")
            for i in range(20): a(f"v_dot2_f32_bf16 v{240 + (i & 1)}, v{124+i}, v{144+i}, v{240 + (i & 1)}")
        def gate2():
            a("s_nop 2")
            a("v_add_f32 v240, v240, v241"); a("s_nop 1")
            for ctl in ("quad_perm:[1,0,3,2]", "quad_perm:[2,3,0,1]", "row_half_mirror", "row_mirror"):
                a(f"v_add_f32_dpp v240, v240, v240 {ctl} row_mask:0xf bank_mask:0xf"); a("s_nop 1")
            a("v_cvt_pk_bf16_f32 v240, v240, v240"); a("v_and_b32 v240, 0xffff0000, v240")
            a("v_mul_f32 v240, 0xbfb8aa3b, v240"); a("v_exp_f32 v240, v240"); a("s_nop 0"); a("v_add_f32 v240, 1.0, v240")
            a("v_rcp_f32 v240, v240"); a("s_nop 0")
            a("v_cvt_pk_bf16_f32 v240, v240, v240"); a("v_and_b32 v240, 0xffff0000, v240")
            a("s_lshl_b32 s74, s82, 2"); a(f"s_add_u32 s74, s74, {WS_G}")
            a("v_lshrrev_b32 v241, 4, v1"); a("v_lshlrev_b32 v241, 2, v241")
            a("s_mov_b32 exec_lo, 0x00010001"); a("s_mov_b32 exec_hi, 0x00010001")
            s.vmem("st", "buffer_store_dword v240, v241, s[44:47], s74 offen sc1")
            a("s_mov_b64 exec, -1")
        def qc():
            a("s_mov_b64 exec, s[86:87]")
            for i in range(7):
                if i == 6: a("s_and_b32 exec_lo, exec_lo, 0xffffff"); a("s_mov_b32 exec_hi, 0")
                a(f"ds_write_b128 v22, v[{196+4*i}:{199+4*i}] offset:{800*i}")
            a("s_mov_b64 exec, -1")
        def ktst_rd():
            a("s_mul_i32 s74, s78, 5120"); a(f"s_add_u32 s74, s74, {L_T}"); a("v_add_u32 v13, s74, v12")
            for i in range(5): a(f"ds_read_b128 v[{40+4*i}:{43+4*i}], v13 offset:{i*1024}")
        def ktst_st():
            a(f"s_mul_i32 s74, s10, {80*TS}"); a("s_lshl_b32 s75, s9, 7"); a("s_sub_u32 s74, s74, s75")
            a(f"s_add_u32 s74, s74, {WS_KT + 3968}")
            for i in range(5):
                s.vmem("st", f"buffer_store_dwordx4 v[{40+4*i}:{43+4*i}], v{32+i}, s[44:47], s74 offen sc1")
        def hc(base, reg, half):
            s.vm_wait({"h"})
            l = s.newlab("L_nh"); a(f"s_cmp_ge_u32 s14, {NCONV}"); a(f"s_cbranch_scc1 {l}")
            s.h_copies(base, reg, half); s.label(l)
        def flagsA():
            s.vm_wait({"st"})
            a("s_lshl_b32 s74, s10, 9"); a("s_lshl_b32 s75, s9, 4"); a("s_add_u32 s74, s74, s75"); a("s_lshl_b32 s76, s78, 3"); a("s_add_u32 s74, s74, s76")
            a(f"s_add_u32 s74, s74, {WS_FA}")
            s.write_flag(244, 74)
            s.stamp(5)
        def flagsB():
            lb = s.newlab("L_nb")
            a("s_cmp_lt_u32 s83, 2"); a(f"s_cbranch_scc1 {lb}")
            a("s_waitcnt vmcnt(0)")
            a("s_lshl_b32 s76, s78, 3")
            a("s_lshl_b32 s74, s9, 7"); a("s_lshl_b32 s75, s10, 4"); a("s_add_u32 s74, s74, s75"); a("s_add_u32 s74, s74, s76"); a(f"s_add_u32 s74, s74, {WS_FB}")
            s.write_flag(8, 74)
            s.label(lb)
        KVT = s.kvt
        ge = s.opt.get("gearly", 1)
        if ge == 1:
            for i in range(5): lgx(i)
            lgw()
        he = s.opt.get("hearly", 0)
        if he == 1:
            for i in range(8): lh(i)
        s.vm_wait({"k"}); s.stamp(2)
        a("s_barrier")
        if s.opt.get("wdlate", 0) == 1: s.dma_rows(88, 24, 16, 17, 93, 0, "wd", nt)
        if he == 2:
            for i in range(8): lh(i)
        if he:
            for j, (b, r, hf) in enumerate(((79, 164, 0), (79, 164, 1), (84, 180, 0), (84, 180, 1))):
                sched[8 + j].append(lambda b=b, r=r, hf=hf: hc(b, r, hf))
        epoch()
        ts = s.opt.get("ts", 3)
        sched[ts].append(lambda: (ktst_rd(), a("s_waitcnt lgkmcnt(0)"), ktst_st()))
        sched[ts + 1].append(lambda: (s.vm_wait({"wd"}), wd(), s.stamp(3)))
        tf = s.opt.get("tf", 7); sched[tf].append(flagsA)
        tg = s.opt.get("tg", 16)
        if ge:
            if ge == 2: sched[2] += [lambda i=i: lgx(i) for i in range(5)] + [lgw]
            sched[ts + (0 if ge == 2 else -1) + s.opt.get("gd", 0)].append(gate)
            sched[ts + 1 + s.opt.get("gd", 0)].insert(0, gate2)
            def fb_now():
                a("s_lshl_b32 s76, s78, 3")
                a("s_lshl_b32 s74, s9, 7"); a("s_lshl_b32 s75, s10, 4"); a("s_add_u32 s74, s74, s75"); a("s_add_u32 s74, s74, s76"); a(f"s_add_u32 s74, s74, {WS_FB}")
                s.write_flag(248, 74)
            sched[tf].append(fb_now)
            s.flagsB = lambda: None
        else:
            sched[tg - 4] += [lambda i=i: lgx(i) for i in range(5)] + [lgw]
            sched[tg - 1].append(gate); sched[tg].append(gate2)
            s.flagsB = flagsB
        tp = s.opt.get("tp", 13)
        def fa_ld():
            a(f"v_mov_b32 v2, {L_SDONE}"); a("ds_read_b32 v2, v2"); a("s_waitcnt lgkmcnt(0)"); a("v_readfirstlane_b32 s14, v2"); a("s_nop 1")
            a("s_mul_i32 s74, s14, 3277"); a("s_lshr_b32 s74, s74, 16"); a("s_min_u32 s74, s74, 7")
            a("s_cmp_eq_u32 s78, 0"); a("s_cselect_b32 s74, s74, s10"); a("s_lshl_b32 s74, s74, 9"); a(f"s_add_u32 s74, s74, {WS_FA}")
            a("v_lshlrev_b32 v2, 3, v1")
            s.vmem("fa", "buffer_load_dwordx2 v[4:5], v2, s[44:47], s74 offen sc1")
            if s.pre:
                a("v_min_u32 v3, 15, v1"); a("v_lshlrev_b32 v3, 3, v3"); a("s_lshl_b32 s74, s9, 7"); a(f"s_add_u32 s74, s74, {WS_FB}")
                s.vmem("fa", "buffer_load_dwordx2 v[6:7], v3, s[44:47], s74 offen sc1")
        def fa_ck():
            s.vm_wait({"fa"})
            if s.pre:
                a("v_cmp_ne_u64 vcc, s[72:73], v[6:7]"); a("s_nop 1")
                lf2 = s.newlab("L_nf")
                a(f"s_cbranch_vccnz {lf2}")
                s.lds_set(8, L_FBOK, 1)
                s.label(lf2)
            a("v_cmp_ne_u64 vcc, s[72:73], v[4:5]"); a("s_nop 1")
            lf = s.newlab("L_nf")
            a(f"s_cbranch_vccnz {lf}")
            a("s_lshl_b32 s74, s78, 2"); a(f"s_add_u32 s74, s74, {L_QDONE}"); s.lds_set(8, "s74", 1)
            s.label(lf)
        if s.opt.get("hmid", 7): sched[s.opt.get("hmid", 7)].append(lambda: (a("s_add_u32 s83, s78, 2"), s.h_own(83)))
        if s.opt.get("hmid", 7) and s.opt.get("hp", 19) < 17:
            for hf in range(2): sched[s.opt.get("hp") + hf].append(lambda hf=hf: hc(84, 164, hf))
        sched[4].append(lambda: a("s_waitcnt lgkmcnt(0)"))
        sched[tp].append(fa_ld); sched[tp + 2].insert(0, fa_ck); sched[tp + 3].append(lambda: a("s_waitcnt lgkmcnt(0)"))
        tq = s.opt.get("tq", 14)
        sched[tq] += Lq
        if s.opt.get("qearly", 0): sched[tq + 2].append(lambda: (s.vm_wait({"q"}), qc()))
        for t in range(2, 17):
            s.stamp(40 + t, 2)
            a("s_barrier")
            if not s.opt.get("noc"):
                for f in sched[t]: f()
        assert all(not sched[t] for t in range(17, 21))
        s.qc = qc
        a("s_add_u32 s83, s78, 2")

    def ywave(s):
        a = s.a; s.vm_reset()
        s.label("L_Yt")
        a(f"s_mul_i32 s84, s83, {CV_SZ}"); a(f"s_add_u32 s84, s84, {L_CV}"); a(f"s_add_u32 s93, s84, {H_SZ}")
        s.srd(60, 24, 2621440)
        a(f"v_mov_b32 v16, {L_EPOCH}"); a("ds_read_b32 v20, v16 offset:16"); a(f"v_mov_b32 v21, {L_FBOK}"); a("ds_read_b32 v21, v21"); a("ds_read_b128 v[16:19], v16")
        a("v_lshlrev_b32 v2, 3, v1")
        a("s_waitcnt lgkmcnt(0)")
        a("v_readfirstlane_b32 s14, v20"); a("v_readfirstlane_b32 s15, v21")
        a("v_readfirstlane_b32 s72, v16"); a("v_readfirstlane_b32 s73, v17"); a("v_readfirstlane_b32 s99, v18")
        a("s_mul_i32 s98, s14, 3277"); a("s_lshr_b32 s98, s98, 16"); a("s_lshl_b32 s98, s98, 9"); a(f"s_add_u32 s98, s98, {WS_FA}")
        a("s_lshl_b32 s85, s14, 2"); a("s_add_u32 s85, s85, s83"); a("s_lshl_b32 s74, s85, 12")
        a(f"s_mul_i32 s100, s85, {TS}"); a(f"s_add_u32 s100, s100, {WS_KT}")
        a("s_waitcnt vmcnt(20)"); s.stamp(57, 2); a("s_barrier"); s.stamp(33, 2)
        a(f"s_cmp_lt_u32 s14, {NCONV}"); a("s_cselect_b32 s99, s99, 0")
        a("s_cmp_lg_u32 s99, 0"); a("s_cselect_b32 s101, s100, 0x7ff00000")
        a("s_cmp_lg_u32 s99, 0"); a("s_cselect_b32 s75, 0x7ff00000, s98")
        a(f"s_cmp_lt_u32 s14, {NCONV}"); a("s_cselect_b32 s75, s75, 0x7ff00000")
        a("buffer_load_dwordx2 v[4:5], v2, s[44:47], s75 offen sc1")
        nh = 0 if (s.opt.get("hearly", 0) or s.opt.get("hmid", 7)) else 4
        for i in range(nh):
            a(f"buffer_load_dwordx4 v[{164+4*i}:{167+4*i}], v12, s[60:63], s74 offen offset:{i*1024} {'' if s.opt.get('htouch', 0) else s.nt}")
        for i in range(4):
            a(f"buffer_load_dwordx4 v[{48+4*i}:{51+4*i}], v12, s[44:47], s101 offen offset:{i*1024} sc1")
        lq = s.newlab("L_nq")
        a(f"s_waitcnt vmcnt({11 + nh})")
        if not s.opt.get("qearly", 0):
            a("s_cmp_lt_u32 s83, 2"); a(f"s_cbranch_scc1 {lq}")
            a(f"s_waitcnt vmcnt({5 + nh})")
            s.qc()
            s.label(lq)
        hp = s.opt.get("hp", 19) if s.opt.get("hmid", 7) else 0
        def hcp():
            lh_ = s.newlab("L_nh"); a(f"s_cmp_ge_u32 s14, {NCONV}"); a(f"s_cbranch_scc1 {lh_}")
            s.h_copies(84, 164); s.label(lh_)
        s.stamp(58, 2); a("s_barrier"); s.stamp(34, 2)
        if hp == 18: hcp()
        s.u_addr(93)
        a(f"s_waitcnt vmcnt({5 + nh})"); a("s_waitcnt lgkmcnt(0)")
        s.stamp(59, 2); a("s_barrier"); s.stamp(35, 2)
        s.stamp(1)
        if s.opt.get("g1only"): a("s_branch L_fin2")
        if s.opt.get("noconv"): a("s_branch L_apart")
        lcv = s.newlab("L_cvgo")
        a(f"s_cmp_lt_u32 s14, {NCONV}"); a(f"s_cbranch_scc1 {lcv}")
        s.flagsB()
        a("s_branch L_apart")
        s.label(lcv)
        a(f"s_setprio {s.opt.get('sprio', 1)}")
        lk2 = s.newlab("L_hk")
        a("s_cmp_lg_u32 s99, 0"); a(f"s_cbranch_scc1 {lk2}")
        lk3 = s.newlab("L_hk")
        a(f"s_waitcnt vmcnt({4 + nh})")
        a("v_cmp_ne_u64 vcc, s[72:73], v[4:5]"); a("s_nop 1"); a(f"s_cbranch_vccz {lk3}")
        s.poll(4, 2, "s98")
        s.label(lk3)
        for i in range(4):
            a(f"buffer_load_dwordx4 v[{48+4*i}:{51+4*i}], v12, s[44:47], s100 offen offset:{i*1024} sc1")
        s.label(lk2)
        s.stamp(6)
        if hp == 19: s.h_copies(84, 164)
        if nh:
            a("s_waitcnt vmcnt(4)")
            s.h_copies(84, 164)
        s.u_stage(48, 0)
        s.flagsB()
        if s.pre and not s.opt.get("pit", 0):
            lnp0 = s.newlab("L_np")
            a("s_cmp_lg_u32 s15, 1"); a(f"s_cbranch_scc1 {lnp0}")
            s.ap_loads(); a("s_mov_b32 s15, 2")
            s.label(lnp0)
        s.stamp(7)
        if s.opt.get("sprio", 1) != 1: a("s_setprio 1")
        a("v_add_u32 v13, s93, v12")
        a("v_and_b32 v2, 15, v1"); a("v_lshrrev_b32 v3, 4, v1"); a("v_and_b32 v4, 1, v2"); a("v_lshrrev_b32 v5, 1, v2")
        a(f"v_mul_u32_u24 v6, {CV_B}, v4"); a("v_lshl_add_u32 v6, v3, 4, v6"); a("v_lshl_add_u32 v6, v5, 3, v6"); a("v_add_u32 v6, s84, v6")
        a("v_lshlrev_b32 v7, 4, v3"); a("v_lshlrev_b32 v8, 6, v5"); a("v_sub_u32 v7, v7, v8"); a("v_add_u32 v7, 512, v7")
        a(f"v_mul_u32_u24 v9, {CV_U1}, v4"); a("v_add_u32 v9, s93, v9"); a("v_subrev_u32 v9, 64, v9")
        def baddr():
            a("v_lshrrev_b32 v10, 3, v7"); a("v_and_b32 v10, 32, v10"); a("v_xor_b32 v10, v10, v7"); a("v_add_u32 v10, v10, v9"); a("v_add_u32 v7, 64, v7")
        SA = (96, 160); SB = (128, 192)
        def reads(st, par):
            R = []
            for c in range(8):
                for hh in range(2):
                    R.append(f"ds_read_b64 v[{SA[st]+4*c+2*hh}:{SA[st]+4*c+2*hh+1}], v6 offset:{512*c + 8*hh + 64*par}")
                for hh in range(2):
                    R.append(f"ds_read_b64 v[{SB[st]+4*c+2*hh}:{SB[st]+4*c+2*hh+1}], v10 offset:{512*(7-c) + 8*hh}")
            return R
        def mfmas(st, full=True):
            M = []
            for aa in range(8):
                for c in (range(aa + 1) if full else [aa]):
                    b = aa - c; o = 224 + 4 * aa
                    M.append(f"v_mfma_f32_16x16x32_bf16 v[{o}:{o+3}], v[{SA[st]+4*c}:{SA[st]+4*c+3}], v[{SB[st]+4*b}:{SB[st]+4*b+3}], v[{o}:{o+3}]")
            return M
        def inter(M, R):
            a("s_waitcnt lgkmcnt(12)")
            for mi, m in enumerate(M):
                if mi == 15: a("s_waitcnt lgkmcnt(15)")
                a(m)
                if mi < len(R): a(R[mi])
        baddr()
        a("s_waitcnt lgkmcnt(0)")
        for r in reads(0, 0): a(r)
        for r in range(224, 256): a(f"v_mov_b32 v{r}, 0")
        a("s_mov_b32 s86, 0")
        s.label("L_cv")
        baddr()
        inter(mfmas(0), reads(1, 1))
        a("v_add_u32 v6, 128, v6"); baddr()
        inter(mfmas(1), reads(0, 0))
        a("s_add_u32 s86, s86, 1")
        if s.pre and s.opt.get("pit", 0):
            lnp0 = s.newlab("L_np")
            a(f"s_cmp_lg_u32 s86, {s.opt.get('pit', 0)}"); a(f"s_cbranch_scc1 {lnp0}")
            a("s_cmp_lg_u32 s15, 1"); a(f"s_cbranch_scc1 {lnp0}")
            s.ap_loads(); a("s_mov_b32 s15, 2")
            s.label(lnp0)
        a("s_cmp_lt_u32 s86, 4"); a("s_cbranch_scc1 L_cv")
        a("s_waitcnt lgkmcnt(0)")
        for m in mfmas(0, False): a(m)
        a("v_lshlrev_b32 v8, 4, v3"); a("v_lshl_add_u32 v8, v4, 2, v8"); a("v_lshl_add_u32 v8, v5, 6, v8")
        a(f"v_sub_u32 v8, {CV_U0 + 2*(2046 - 4) - 512}, v8"); a("v_add_u32 v8, s93, v8")
        a("s_nop 4")
        for t in range(8):
            o = 224 + 4 * t
            a(f"v_cvt_pk_bf16_f32 v{16+2*t}, v{o+3}, v{o+2}")
            a(f"v_cvt_pk_bf16_f32 v{17+2*t}, v{o+1}, v{o}")
        for t in range(8):
            off = 128 if t % 2 == 0 else 0
            a(f"ds_write2_b32 v8, v{16+2*t}, v{17+2*t} offset0:{off} offset1:{off+2}")
            if t % 2 == 1 and t < 7: a("v_subrev_u32 v8, 1024, v8")
        a("s_waitcnt lgkmcnt(0)")
        for i in range(4): a(f"ds_read_b128 v[{32+4*i}:{35+4*i}], v13 offset:{CV_U0 + i*1024}")
        a(f"s_mul_i32 s74, s85, {TS}"); a(f"s_add_u32 s74, s74, {WS_YT}")
        for i in range(4):
            a(f"s_waitcnt lgkmcnt({3-i})")
            a(f"buffer_store_dwordx4 v[{32+4*i}:{35+4*i}], v12, s[44:47], s74 offen offset:{i*1024} sc1")
        s.stamp(8)
        a("s_waitcnt vmcnt(0)")
        a("s_lshl_b32 s74, s85, 3"); a(f"s_add_u32 s74, s74, {WS_FY}")
        s.write_flag(48, 74)
        a("s_setprio 0")
        s.label("L_apart")
        a("s_setprio 0")
        if s.opt.get("xh", 1): s.lds_wait(L_XH, 1, 1, 148, slp=2)
        s.stamp(9)
        lpre = s.newlab("L_pre"); lnp = s.newlab("L_np")
        a("s_cmp_eq_u32 s15, 2"); a(f"s_cbranch_scc1 {lpre}")
        a("s_cmp_eq_u32 s15, 1"); a(f"s_cbranch_scc1 {lnp}")
        a("v_min_u32 v2, 15, v1"); a("v_lshlrev_b32 v2, 3, v2")
        a("s_lshl_b32 s74, s9, 7"); a(f"s_add_u32 s74, s74, {WS_FB}")
        s.poll(4, 2, "s74")
        s.label(lnp)
        s.ap_loads()
        a("s_waitcnt vmcnt(0)")
        s.label(lpre)
        a("v_sub_u32 v3, 63, v1")
        tile_loads = s.tile_loads
        a("s_lshl_b32 s74, s87, 1"); a("s_add_u32 s26, s26, s74"); a("s_addc_u32 s27, s27, 0")
        a("s_load_dwordx8 s[48:55], s[26:27], 0"); a("s_load_dwordx2 s[56:57], s[26:27], 32")
        a("v_add_u32 v13, s84, v12")
        a("v_mul_u32_u24 v7, 160, v3"); a("s_mul_i32 s74, s83, 40"); a(f"s_add_u32 s74, s74, {L_QT}"); a("v_add_u32 v7, s74, v7")
        for gq in range(5): a(f"ds_read_b64 v[{80+2*gq}:{81+2*gq}], v7 offset:{8*gq}")
        for i in range(3):
            if i == 2: a("s_mov_b32 exec_hi, 0")
            a(f"ds_write_b128 v13, v[{64+4*i}:{67+4*i}] offset:{i*1024}")
            if i == 2: a("s_mov_b64 exec, -1")
        a("v_and_b32 v8, 15, v1"); a("v_lshrrev_b32 v9, 2, v8"); a("v_lshlrev_b32 v9, 7, v9"); a("v_and_b32 v8, 3, v8"); a("v_lshl_add_u32 v9, v8, 3, v9")
        a("v_lshrrev_b32 v8, 4, v1"); a("v_lshl_add_u32 v9, v8, 5, v9"); a("v_add_u32 v9, s84, v9")
        a(f"v_add_u32 v2, {L_GF}, v78"); a("ds_write_b32 v2, v76")
        a("s_waitcnt lgkmcnt(0)")
        for gq in range(5): a(f"ds_read_b64_tr_b16 v[{150+2*gq}:{151+2*gq}], v9 offset:{512*gq}")
        for gq in range(5):
            for e in range(2):
                r = 96 + 4 * gq + 2 * e
                a(f"v_lshlrev_b32 v{r}, 16, v{80+2*gq+e}"); a(f"v_and_b32 v{r+1}, 0xffff0000, v{80+2*gq+e}")
                a(f"v_mul_f32 v{r}, v{r}, v76"); a(f"v_mul_f32 v{r+1}, v{r+1}, v76")
        a("s_waitcnt lgkmcnt(0)")
        for gq in range(5):
            for e in range(2):
                sd = 48 + 2 * gq + e; r = 120 + 4 * gq + 2 * e
                a(f"s_lshl_b32 s58, s{sd}, 16"); a(f"s_and_b32 s59, s{sd}, 0xffff0000")
                a(f"v_lshlrev_b32 v{r}, 16, v{150+2*gq+e}"); a(f"v_and_b32 v{r+1}, 0xffff0000, v{150+2*gq+e}")
                a(f"v_mul_f32 v{r}, s58, v{r}"); a(f"v_mul_f32 v{r+1}, s59, v{r+1}")
        s.lds_wait(L_XG2, 1, 1, 160, slp=2)
        a("v_min_u32 v2, 19, v1"); a("v_lshlrev_b32 v2, 3, v2")
        a("s_lshl_b32 s74, s87, 3"); a(f"s_add_u32 s74, s74, {WS_FY}")
        if not s.opt.get("noconv"): s.poll(146, 2, "s74", slp=s.opt.get("yslp", 12))
        s.stamp(10)
        if s.opt.get("aprio", 2): a(f"s_setprio {s.opt.get('aprio', 2)}")
        if s.opt.get("xga", -1) >= 0: s.lds_wait(L_XG2, 1, 2, 160, slp=1)
        tile_loads(WS_YT, 16)
        for i in range(3):
            a(f"s_waitcnt vmcnt({2-i})")
            if i == 2: a("s_mov_b32 exec_hi, 0")
            a(f"ds_write_b128 v13, v[{16+4*i}:{19+4*i}] offset:{i*1024}")
            if i == 2: a("s_mov_b64 exec, -1")
        a("s_waitcnt lgkmcnt(0)")
        for gq in range(5): a(f"ds_read_b64_tr_b16 v[{150+2*gq}:{151+2*gq}], v9 offset:{512*gq}")
        for gq in range(5):
            a("s_waitcnt lgkmcnt(4)")
            for e in range(2):
                a(f"v_lshlrev_b32 v144, 16, v{150+2*gq+e}"); a(f"v_and_b32 v145, 0xffff0000, v{150+2*gq+e}")
                a(f"v_add_f32 v144, v144, v{120+4*gq+2*e}"); a(f"v_add_f32 v145, v145, v{121+4*gq+2*e}")
                a(f"v_mul_f32 v144, v144, v{96+4*gq+2*e}"); a(f"v_mul_f32 v145, v145, v{97+4*gq+2*e}")
                a(f"v_cvt_pk_bf16_f32 v{80+2*gq+e}, v144, v145")
            a(f"ds_write_b64 v7, v[{80+2*gq}:{81+2*gq}] offset:{8*gq}")
        s.stamp(11)
        a("s_branch L_final")

    def xwave(s):
        a = s.a; s.vm_reset()
        s.label("L_X")
        a("s_setprio 2")
        a("v_mov_b32 v16, 0"); a("v_mov_b32 v17, 0"); a("v_mov_b32 v18, 0"); a("v_mov_b32 v19, 0")
        a(f"v_add_u32 v20, {L_MISC}, v12")
        a("s_mov_b64 exec, 15"); a("ds_write_b128 v20, v[16:19]"); a("s_mov_b64 exec, -1")
        a("s_lshr_b32 s74, s3, 1"); a("s_and_b32 s75, s3, 1")
        if s.m16:
            a("v_lshrrev_b32 v14, 5, v1")
            a("v_bfe_u32 v13, v1, 3, 1"); a("v_bfe_u32 v15, v1, 2, 1"); a("v_xor_b32 v15, v15, v13"); a("v_lshl_add_u32 v13, v15, 1, v13")
            a("v_lshrrev_b32 v16, 4, v1"); a("v_xor_b32 v13, v13, v16")
            a("v_and_b32 v17, 15, v1"); a("v_lshlrev_b32 v17, 6, v17"); a("s_lshl_b32 s76, s74, 12"); a("v_add_u32 v17, s76, v17"); a("v_lshl_add_u32 v5, v13, 4, v17")
            a("v_bfe_u32 v15, v1, 4, 1")
            a("v_bfe_u32 v17, v1, 2, 2"); a("v_lshl_add_u32 v16, v16, 3, v17"); a("v_lshlrev_b32 v16, 6, v16")
            a("v_and_b32 v17, 3, v1"); a("v_lshl_add_u32 v16, v17, 3, v16"); a(f"v_add_u32 v16, {L_WR}, v16")
        else:
            a("v_and_b32 v20, 31, v1"); a("v_lshrrev_b32 v13, 2, v20"); a("v_lshrrev_b32 v14, 1, v13"); a("v_xor_b32 v13, v13, v14"); a("v_and_b32 v13, 3, v13")
            a("v_lshrrev_b32 v14, 5, v1"); a("v_xor_b32 v15, v14, v13"); a("v_xor_b32 v16, 2, v15")
            a("v_lshlrev_b32 v17, 6, v20"); a("s_lshl_b32 s76, s74, 12"); a("v_add_u32 v17, s76, v17")
            a("v_lshl_add_u32 v5, v15, 4, v17"); a("v_lshl_add_u32 v6, v16, 4, v17")
            a("v_bfe_u32 v15, v1, 4, 1"); a("v_bfe_u32 v16, v1, 2, 2"); a("v_lshl_add_u32 v16, v14, 3, v16"); a("v_lshlrev_b32 v16, 6, v16")
            a("v_mul_u32_u24 v17, 6144, v15"); a("v_add_u32 v16, v16, v17")
            a("v_and_b32 v17, 1, v1"); a("v_lshl_add_u32 v16, v17, 4, v16"); a("v_bfe_u32 v17, v1, 1, 1"); a("v_lshl_add_u32 v16, v17, 3, v16")
            a(f"v_add_u32 v16, {L_WR}, v16")
        a("s_mul_i32 s76, s75, 3")
        for T in range(3):
            a(f"s_add_u32 s77, s76, {T}"); a("s_and_b32 s78, s77, 1"); a("s_lshr_b32 s77, s77, 1"); a("s_lshl_b32 s77, s77, 11")
            a("v_xor_b32 v17, s78, v15"); a(f"v_lshl_add_u32 v{2+T}, v17, 5, v16"); a(f"v_add_u32 v{2+T}, s77, v{2+T}")
        a("v_mov_b32 v7, v12"); a("v_add_u32 v8, 4096, v7")
        a("v_bfe_u32 v9, v1, 4, 1"); a("v_lshlrev_b32 v9, 10, v9"); a("v_lshl_add_u32 v9, v14, 8, v9"); a("v_and_b32 v17, 15, v1"); a("v_lshl_add_u32 v9, v17, 4, v9")
        for r in range(160, 256): a(f"v_mov_b32 v{r}, 0")
        touch = s.opt.get("touch", 0)
        if touch:
            lw = s.newlab("L_tw"); le = s.newlab("L_te")
            a("s_cmp_ge_u32 s3, 2"); a(f"s_cbranch_scc1 {lw}")
            s.srd(48, 16, 2621440)
            a("s_lshr_b32 s76, s4, 2"); a("s_lshl_b32 s76, s76, 6"); a("s_lshl_b32 s77, s5, 1"); a("s_add_u32 s76, s76, s77"); a("s_add_u32 s76, s76, s3")
            a(f"s_mul_i32 s98, s76, {16*1280}")
            a("v_and_b32 v92, 15, v1"); a("v_mul_u32_u24 v92, 1280, v92"); a("v_bfe_u32 v93, v1, 4, 1"); a("v_lshl_add_u32 v92, v93, 7, v92")
            a("s_mov_b32 s99, 256"); a("s_mov_b32 s100, -1")
            a(f"s_branch {le}")
            s.label(lw)
            a("s_cmp_eq_u32 s3, 2")
            a("s_cselect_b32 s48, s30, s32"); a("s_cselect_b32 s49, s31, s33"); a("s_and_b32 s49, s49, 0xffff")
            a("s_mov_b32 s50, 1966080"); a("s_mov_b32 s51, 0x20000")
            a("v_mul_u32_u24 v93, 5462, v1"); a("v_lshrrev_b32 v93, 16, v93"); a("v_mul_u32_u24 v94, 12, v93"); a("v_sub_u32 v94, v1, v94")
            a("v_cmp_lt_u32 vcc, 5, v94"); a(f"v_mul_u32_u24 v92, {64*3072}, v93"); a(f"v_mov_b32 v95, {3072 - 768}"); a("v_cndmask_b32 v95, 0, v95, vcc")
            a("v_lshl_add_u32 v92, v94, 7, v92"); a("v_add_u32 v92, v92, v95")
            a("s_and_b32 s76, s4, 3"); a("s_mul_i32 s76, s76, 768"); a(f"s_mul_i32 s77, s5, {2*3072}"); a("s_add_u32 s98, s76, s77")
            a(f"s_mov_b32 s99, {2*64*3072}"); a("s_mov_b32 s100, 0xffffff")
            s.label(le)
        def do_touch():
            a("s_mov_b32 exec_lo, s100"); a("s_mov_b32 exec_hi, 0")
            a("buffer_load_dword v93, v92, s[48:51], s98 offen")
            a("s_mov_b64 exec, -1"); a("s_add_u32 s98, s98, s99")
        tpre = s.opt.get("tpre", 2)
        if touch:
            for _ in range(tpre if touch == 2 else 5): do_touch()
        SB = (12, 52)
        def reads(st, slot):
            R = []
            if s.m16:
                W = [f"ds_read_b64_tr_b16 v[{SB[st]+8*T+4*u+2*hh}:{SB[st]+8*T+4*u+2*hh+1}], v{2+T} offset:{slot*12288 + u*6144 + hh*256}" for T in range(3) for u in range(2) for hh in range(2)]
                X = [f"ds_read_b128 v[{SB[st]+24+4*nt}:{SB[st]+24+4*nt+3}], v5 offset:{slot*8192 + nt*1024}" for nt in range(4)]
                return [X[0], W[0], W[1], X[1], X[2], X[3]] + W[2:]
            for sub in range(2):
                W = []
                for T in range(3):
                    for hh in range(2):
                        r = SB[st] + 12 * sub + 4 * T + 2 * hh
                        W.append(f"ds_read_b64_tr_b16 v[{r}:{r+1}], v{2+T} offset:{slot*12288 + sub*1024 + hh*256}")
                X = [f"ds_read_b128 v[{SB[st]+24+8*sub+4*nt}:{SB[st]+24+8*sub+4*nt+3}], v{5+sub} offset:{slot*8192 + nt*2048}" for nt in range(2)]
                R += [X[0], W[0], W[1], X[1], W[2], W[3], W[4], W[5]]
            return R
        def mfmas(st):
            M = []
            if s.m16:
                seq = [(T, u, nt) for T in range(3) for u in range(2) for nt in range(4)]
                mo = s.opt.get("mord", 0)
                if mo == 1: seq = [(T, u, nt) for nt in range(4) for T in range(3) for u in range(2)]
                if mo == 2: seq = [(T, u, nt if (2 * T + u) % 2 == 0 else 3 - nt) for T in range(3) for u in range(2) for nt in range(4)]
                for (T, u, nt) in seq:
                    if True:
                        if True:
                            o = 160 + 16 * (2 * T + nt // 2) + 8 * u + 4 * (nt & 1); w = SB[st] + 8 * T + 4 * u; x = SB[st] + 24 + 4 * nt
                            M.append(f"v_mfma_f32_16x16x32_bf16 v[{o}:{o+3}], v[{w}:{w+3}], v[{x}:{x+3}], v[{o}:{o+3}]")
                return M
            for sub in range(2):
                for T in range(3):
                    for nt in range(2):
                        o = 160 + 16 * (2 * T + nt); w = SB[st] + 12 * sub + 4 * T; x = SB[st] + 24 + 8 * sub + 4 * nt
                        M.append(f"v_mfma_f32_32x32x16_bf16 v[{o}:{o+15}], v[{w}:{w+3}], v[{x}:{x+3}], v[{o}:{o+15}]")
            return M
        a("s_mov_b32 s86, 0")
        a("s_waitcnt lgkmcnt(0)")
        s.kwait()
        if s.opt.get("ctouch", 1):
            lct = s.newlab("L_ct")
            a("s_cmp_lg_u32 s3, 1"); a(f"s_cbranch_scc1 {lct}")
            a("s_getpc_b64 s[76:77]")
            s.label("L_pc")
            a(f"s_sub_u32 s76, s76, L_pc-{KN}"); a("s_subb_u32 s77, s77, 0")
            a("s_mul_i32 s78, s5, 7"); a("v_add_u32 v50, s78, v1"); a("v_lshlrev_b32 v50, 7, v50"); a(f"v_min_u32 v50, L_codeend-{KN}-4, v50")
            a("s_mov_b64 exec, 0x7f"); a("global_load_dword v51, v50, s[76:77]"); a("s_mov_b64 exec, -1")
            s.label(lct)
        a("s_barrier")
        s.kv_pre()
        a("s_waitcnt vmcnt(0)")
        a("s_barrier")
        for r in reads(0, 0): a(r)
        a("s_waitcnt lgkmcnt(0)")
        s.label("L_g1")
        for slot in range(4):
            M = mfmas(slot & 1); R = reads((slot + 1) & 1, (slot + 1) & 3)
            if s.opt.get("stamps", 0) == 2:
                a("s_memtime s[96:97]"); a(f"s_add_u32 m0, s86, {41 + slot}"); a("s_waitcnt lgkmcnt(0)"); a("v_writelane_b32 v11, s96, m0")
            a(M[0])
            if s.m16: a(M[1])
            if slot == 3:
                lnb = s.newlab("L_nb"); a("s_cmp_eq_u32 s86, 16"); a(f"s_cbranch_scc1 {lnb}"); a("s_barrier"); s.label(lnb)
            else: a("s_barrier")
            if s.m16:
                rp = s.opt.get("rp", 1)
                ri = 0; mi = 2
                while ri < 16:
                    for _ in range(2 if (rp == 2 and mi % 2 == 0) else 1):
                        if ri < 16: a(R[ri]); ri += 1
                    a(M[mi]); mi += 1
                M = M[:6] + M[mi:]
            else:
                for i in range(5):
                    for r in R[3 * i:3 * i + 3]: a(r)
                    a(M[1 + i])
                a(R[15])
            if touch == 2 and slot == s.opt.get("tslot", 0):
                lt = s.newlab("L_nt")
                a(f"s_cmp_ge_u32 s86, {4 * (5 - tpre)}"); a(f"s_cbranch_scc1 {lt}"); do_touch(); s.label(lt)
            for m in M[6:]: a(m)
            a("s_waitcnt lgkmcnt(0)")
            if slot == 0:
                a("s_cmp_eq_u32 s86, 0"); a("s_cbranch_scc1 L_kv")
                s.label("L_kvret")
        a("s_add_u32 s86, s86, 4")
        a("s_cmp_lt_u32 s86, 20"); a("s_cbranch_scc1 L_g1")
        s.stamp(1)
        if s.opt.get("g1only"): a("s_branch L_fin2")
        if s.opt.get("xidle"): s.lds_set(2, L_XG2, 1); a("s_branch L_final")
        a(f"v_mov_b32 v116, {L_EPOCH}"); a("v_mov_b32 v117, 1"); a("s_mov_b64 exec, 1"); a(f"ds_add_u32 v116, v117 offset:{L_XCNT - L_EPOCH}"); a("s_mov_b64 exec, -1")
        a("ds_read_b128 v[116:119], v116"); a("s_waitcnt lgkmcnt(0)")
        a("v_readfirstlane_b32 s72, v116"); a("v_readfirstlane_b32 s73, v117"); a("v_readfirstlane_b32 s76, v119"); a("s_nop 1")
        lfa = s.newlab("L_faok")
        a("s_cmp_lg_u32 s76, 0"); a(f"s_cbranch_scc1 {lfa}")
        a("v_lshlrev_b32 v114, 3, v1")
        a("s_lshl_b32 s76, s10, 9"); a(f"s_add_u32 s76, s76, {WS_FA}")
        s.poll(112, 114, "s76")
        s.label(lfa)
        s.stamp(2)
        if s.opt.get("g2map", 1): a("s_mul_i32 s78, s11, 3"); a("s_lshr_b32 s78, s78, 1"); a("s_mul_i32 s79, s12, 3"); a("s_add_u32 s78, s78, s79")
        else: a("s_mul_i32 s78, s10, 3"); a("s_lshr_b32 s78, s78, 1"); a("s_mul_i32 s79, s13, 3"); a("s_add_u32 s78, s78, s79")
        a("s_cmp_ge_u32 s78, 12"); a("s_cselect_b32 s79, 12, 0"); a("s_sub_u32 s78, s78, s79")
        if s.opt.get("g2rot") == 0: a("s_mov_b32 s78, 0")
        a("s_mul_i32 s79, s3, 12")
        a(f"s_mul_i32 s80, s10, {WBS}"); a(f"s_add_u32 s80, s80, {WS_WB}")
        a(f"s_mul_i32 s81, s9, {HBS}"); a(f"s_add_u32 s81, s81, {WS_HB}")
        a("s_mul_i32 s92, s3, 20480")
        PERM = {0: list(range(12)), 1: [0, 1, 3, 6, 9, 2, 4, 7, 10, 5, 8, 11], 2: [0, 3, 6, 9, 1, 4, 7, 10, 2, 5, 8, 11], 3: [0, 1, 2, 3, 6, 9, 4, 7, 10, 5, 8, 11]}[s.opt.get("kperm", 2)]
        def kt_of(i, dst):
            i = PERM[i]
            a(f"s_add_u32 s{dst}, s78, {i}"); a(f"s_cmp_ge_u32 s{dst}, 12"); a(f"s_cselect_b32 s82, 12, 0"); a(f"s_sub_u32 s{dst}, s{dst}, s82")
            a(f"s_add_u32 s{dst}, s{dst}, s79")
        def wb_loads(i):
            kt_of(i, 83); a("s_mul_i32 s83, s83, 5120"); a("s_add_u32 s83, s83, s80")
            r = 12 + 20 * (i % 5)
            for dt in range(5):
                if dt < 4: s.vmem(("wb", i), f"buffer_load_dwordx4 v[{r+4*dt}:{r+4*dt+3}], v7, s[44:47], s83 offen offset:{dt*1024} sc1")
                else: s.vmem(("wb", i), f"buffer_load_dwordx4 v[{r+4*dt}:{r+4*dt+3}], v8, s[44:47], s83 offen sc1")
        def wb_dma(i):
            kt_of(i, 83); a("s_mul_i32 s83, s83, 5120"); a("s_add_u32 s83, s83, s80")
            a(f"s_add_u32 m0, s92, {(i - 5) * 5120}"); a("s_nop 0")
            for dt in range(4):
                s.vmem(("wd", i), f"buffer_load_dwordx4 v7, s[44:47], s83 offen offset:{dt*1024} sc1 lds")
            a(f"s_add_u32 m0, s92, {(i - 5) * 5120 + 4096}"); a("s_nop 0")
            s.vmem(("wd", i), f"buffer_load_dwordx4 v8, s[44:47], s83 offen sc1 lds")
        def wb_lds(i):
            r = 12 + 20 * (i % 5)
            for dt in range(5): a(f"ds_read_b128 v[{r+4*dt}:{r+4*dt+3}], v10 offset:{(i - 5) * 5120 + dt*1024}")
        def hb_loads(i):
            kt_of(i, 83); a("s_lshl_b32 s83, s83, 12"); a("s_add_u32 s83, s83, s81")
            r = 112 + 16 * (i % 4)
            for sb in range(4):
                s.vmem(("hb", i), f"buffer_load_dwordx4 v[{r+4*sb}:{r+4*sb+3}], v7, s[44:47], s83 offen offset:{sb*1024} {s.opt.get('hsc', 'sc1')}")
        wq = [(i, dt) for i in range(5) for dt in range(5)]
        def wb_some(n):
            for _ in range(n):
                if not wq: return
                i, dt = wq.pop(0)
                if dt == 0: kt_of(i, 98); a("s_mul_i32 s98, s98, 5120"); a("s_add_u32 s98, s98, s80")
                r = 12 + 20 * (i % 5)
                if dt < 4: s.vmem(("wb", i), f"buffer_load_dwordx4 v[{r+4*dt}:{r+4*dt+3}], v7, s[44:47], s98 offen offset:{dt*1024} sc1")
                else: s.vmem(("wb", i), f"buffer_load_dwordx4 v[{r+4*dt}:{r+4*dt+3}], v8, s[44:47], s98 offen sc1")
        wpt = s.opt.get("wpt", 1)
        wb_some(s.opt.get("npre", 0))
        a("s_mov_b32 s84, 0xbfb8aa3b"); a("s_mov_b32 s85, 0xbfb8aa3b")
        a("s_lshl_b32 s87, s6, 1"); a("s_add_u32 s87, s87, s74")
        a(f"s_mul_i32 s88, s87, {HBS}")
        a("s_mul_i32 s89, s7, 6"); a("s_mul_i32 s90, s75, 3"); a("s_add_u32 s89, s89, s90")
        for T in range(3):
            a(f"s_add_u32 s90, s89, {T}"); a("s_and_b32 s91, s90, 1"); a("s_lshr_b32 s90, s90, 1")
            a("s_lshl_b32 s90, s90, 12"); a("s_lshl_b32 s91, s91, 9"); a("s_add_u32 s90, s90, s91"); a("s_add_u32 s90, s90, s88")
            for nt in range(2):
                ti = 2 * T + nt
                o = 160 + 16 * ti; p = 120 + 4 * ti
                if ti < s.opt.get("pkt", 0):
                    for e in range(4): a(f"v_pk_mul_f32 v[{o+2*e}:{o+2*e+1}], v[{o+2*e}:{o+2*e+1}], s[84:85]")
                    for e in range(8): a(f"v_exp_f32 v{o+e}, v{o+e}")
                    for e in range(4): a(f"v_pk_add_f32 v[{o+2*e}:{o+2*e+1}], v[{o+2*e}:{o+2*e+1}], 1.0 op_sel_hi:[1,0]")
                    for e in range(8): a(f"v_rcp_f32 v{o+e}, v{o+e}")
                    for e in range(4): a(f"v_pk_mul_f32 v[{o+2*e}:{o+2*e+1}], v[{o+2*e}:{o+2*e+1}], v[{o+8+2*e}:{o+9+2*e}]")
                else:
                    for e in range(8): a(f"v_mul_f32 v{o+e}, s84, v{o+e}")
                    for e in range(8): a(f"v_exp_f32 v{o+e}, v{o+e}")
                    for e in range(8): a(f"v_add_f32 v{o+e}, 1.0, v{o+e}")
                    for e in range(8): a(f"v_rcp_f32 v{o+e}, v{o+e}")
                    for e in range(8): a(f"v_mul_f32 v{o+e}, v{o+e}, v{o+8+e}")
                for e in range(4): a(f"v_cvt_pk_bf16_f32 v{p+e}, v{o+2*e}, v{o+2*e+1}")
                if s.m16:
                    a("s_nop 1"); a(f"v_permlane16_swap_b32 v{p}, v{p+2}"); a(f"v_permlane16_swap_b32 v{p+1}, v{p+3}")
                s.vmem("hst", f"buffer_store_dwordx4 v[{p}:{p+3}], v9, s[44:47], s90 offen offset:{nt*2048} sc1")
                if ti < 5: wb_some(wpt)
        a("s_setprio 0")
        s.stamp(3)
        wb_some(s.opt.get("wmid", 6))
        s.vm_wait({"hst"})
        a("s_lshl_b32 s90, s87, 8"); a("s_lshl_b32 s91, s7, 4"); a("s_add_u32 s90, s90, s91"); a("s_lshl_b32 s91, s75, 3"); a("s_add_u32 s90, s90, s91")
        a(f"s_add_u32 s90, s90, {WS_FH}")
        s.write_flag(144, 90)
        s.lds_set(2, L_XH, 1)
        s.stamp(4)
        wb_some(25)
        s.lds_wait(L_XCNT, 1, 4, 148)
        for i in range(5, 9): wb_dma(i)
        a("v_add_u32 v10, s92, v7")
        a("v_min_u32 v114, 7, v1"); a("v_lshlrev_b32 v114, 3, v114")
        a("s_lshl_b32 s90, s9, 8"); a("s_lshl_b32 s91, s3, 6"); a("s_add_u32 s90, s90, s91"); a(f"s_add_u32 s90, s90, {WS_FH}")
        s.poll(112, 114, "s90")
        s.stamp(5)
        if s.opt.get("g2prio", 0): a(f"s_setprio {s.opt.get('g2prio')}")
        h0 = s.opt.get("h0", 1)
        for i in range(h0): hb_loads(i)
        for i in range(12):
            if i == s.opt.get("xga", -1): s.lds_set(2, L_XG2, 1)
            if i == s.opt.get("xg2", 7): s.lds_set(2, L_XG2, 2)
            s.vm_wait({("hb", i), ("wb", i)})
            if i == 0:
                for k in range(h0, 4): hb_loads(k)
            s.stamp(16 + i, 3)
            if 5 <= i < 9: a("s_waitcnt lgkmcnt(0)")
            rw = 12 + 20 * (i % 5); rh = 112 + 16 * (i % 4)
            n = i + 4
            extra = {k: [] for k in range(20)}
            if n < 12:
                extra[0].append(lambda n=n: (kt_of(n, 83), a("s_mul_i32 s98, s83, 5120"), a("s_add_u32 s98, s98, s80"), a("s_lshl_b32 s83, s83, 12"), a("s_add_u32 s83, s83, s81")))
                for sb in range(4):
                    extra[5 * sb + 4].append(lambda n=n, sb=sb: s.vmem(("hb", n), f"buffer_load_dwordx4 v[{rh+4*sb}:{rh+4*sb+3}], v7, s[44:47], s83 offen offset:{sb*1024} sc1"))
                if n >= 5:
                    r = 12 + 20 * (n % 5)
                    for dt in range(5):
                        if n < 9: f = lambda n=n, dt=dt, r=r: a(f"ds_read_b128 v[{r+4*dt}:{r+4*dt+3}], v10 offset:{(n - 5) * 5120 + dt*1024}")
                        elif dt < 4: f = lambda n=n, dt=dt, r=r: s.vmem(("wb", n), f"buffer_load_dwordx4 v[{r+4*dt}:{r+4*dt+3}], v7, s[44:47], s98 offen offset:{dt*1024} sc1")
                        else: f = lambda n=n, dt=dt, r=r: s.vmem(("wb", n), f"buffer_load_dwordx4 v[{r+4*dt}:{r+4*dt+3}], v8, s[44:47], s98 offen sc1")
                        extra[4 * dt + 2].append(f)
            def pw(k):
                sb, dt = divmod(k, 5); o = 176 + 4 * (4 * dt + sb)
                a(f"ds_write_b128 v12, v[{o}:{o+3}] offset:{sb*5120 + dt*64}")
            if i == 11:
                extra[0].append(lambda: (a("v_and_b32 v12, 15, v1"), a("v_lshrrev_b32 v13, 4, v1"), a("v_bfe_u32 v14, v1, 1, 2"), a("v_xor_b32 v13, v13, v14")))
                extra[1].append(lambda: (a("v_mul_u32_u24 v12, 320, v12"), a("v_lshl_add_u32 v12, v13, 4, v12"), a("v_add_u32 v12, s92, v12")))
                for k in range(12): extra[k + 8].append(lambda k=k: pw(k))
            for sb in range(4):
                for dt in range(5):
                    o = 176 + 4 * (4 * dt + sb)
                    c = "0" if i == 0 else f"v[{o}:{o+3}]"
                    a(f"v_mfma_f32_16x16x32_bf16 v[{o}:{o+3}], v[{rw+4*dt}:{rw+4*dt+3}], v[{rh+4*sb}:{rh+4*sb+3}], {c}")
                    for f in extra[5 * sb + dt]: f()
        s.stamp(6)
        for k in range(12, 20):
            if k == 19: a("s_nop 0")
            pw(k)
        s.stamp(7)

    def final(s):
        a = s.a
        s.label("L_final")
        a("s_setprio 0")
        s.srd(48, 38, 2621440)
        a(f"s_mul_i32 s74, s9, {64*1280}"); a("s_mul_i32 s75, s10, 160"); a("s_add_u32 s74, s74, s75")
        def addr(n, b):
            a(f"v_mul_u32_u24 v13, 6554, v{n}"); a("v_lshrrev_b32 v13, 16, v13")
            a("v_mul_u32_u24 v14, 10, v13"); a(f"v_sub_u32 v14, v{n}, v14")
            a("v_bfe_u32 v15, v13, 1, 2"); a(f"v_lshlrev_b32 v{b}, 1, v14"); a(f"v_xor_b32 v{b}, v{b}, v15"); a(f"v_xor_b32 v{b+1}, 1, v{b}")
            a("v_mul_u32_u24 v15, 320, v13"); a(f"v_lshl_add_u32 v{b}, v{b}, 4, v15"); a(f"v_lshl_add_u32 v{b+1}, v{b+1}, 4, v15")
            a(f"v_lshlrev_b32 v{b+2}, 4, v{n}"); a(f"v_add_u32 v{b+2}, {L_QT}, v{b+2}")
            a(f"v_lshlrev_b32 v{b+3}, 2, v13"); a(f"v_add_u32 v{b+3}, {L_GF}, v{b+3}")
            a(f"v_mul_u32_u24 v{b+4}, 1120, v13"); a(f"v_lshl_add_u32 v{b+4}, v{n}, 4, v{b+4}")
        def rd(b, d):
            for w in range(4):
                a(f"ds_read_b128 v[{d+8*w}:{d+3+8*w}], v{b} offset:{w*20480}")
                a(f"ds_read_b128 v[{d+4+8*w}:{d+7+8*w}], v{b+1} offset:{w*20480}")
            a(f"ds_read_b128 v[{d+32}:{d+35}], v{b+2}"); a(f"ds_read_b32 v{d+36}, v{b+3}")
        def comp(b, d):
            for e in range(4):
                a(f"v_pk_add_f32 v[{d+2*e}:{d+1+2*e}], v[{d+2*e}:{d+1+2*e}], v[{d+8+2*e}:{d+9+2*e}]")
                a(f"v_pk_add_f32 v[{d+16+2*e}:{d+17+2*e}], v[{d+16+2*e}:{d+17+2*e}], v[{d+24+2*e}:{d+25+2*e}]")
            a(f"v_sub_f32 v{d+36}, 1.0, v{d+36}"); a(f"v_cvt_pk_bf16_f32 v{d+36}, v{d+36}, v{d+36}"); a(f"v_and_b32 v{d+36}, 0xffff0000, v{d+36}")
            for e in range(4):
                a(f"v_pk_add_f32 v[{d+2*e}:{d+1+2*e}], v[{d+2*e}:{d+1+2*e}], v[{d+16+2*e}:{d+17+2*e}]")
            for e in range(4):
                a(f"v_lshlrev_b32 v{d+8+2*e}, 16, v{d+32+e}"); a(f"v_and_b32 v{d+9+2*e}, 0xffff0000, v{d+32+e}")
                a(f"v_pk_fma_f32 v[{d+8+2*e}:{d+9+2*e}], v[{d+2*e}:{d+1+2*e}], v[{d+36}:{d+37}], v[{d+8+2*e}:{d+9+2*e}] op_sel_hi:[1,0,1]")
            for e in range(4): a(f"v_cvt_pk_bf16_f32 v{d+32+e}, v{d+8+2*e}, v{d+9+2*e}")
            a(f"buffer_store_dwordx4 v[{d+32}:{d+35}], v{b+4}, s[48:51], s74 offen {s.opt.get('ost', '')}")
        addr(0, 16)
        a("s_lshl_b32 s75, s3, 4"); a("s_add_u32 s75, s75, 512"); a("v_and_b32 v12, 15, v1"); a("v_add_u32 v12, s75, v12")
        addr(12, 24)
        a("s_waitcnt lgkmcnt(0)"); a("s_barrier")
        s.stamp(12)
        rd(16, 32)
        a("s_mov_b64 exec, 0xffff");
        rd(24, 72)
        a("s_mov_b64 exec, -1")
        a("s_waitcnt lgkmcnt(10)")
        comp(16, 32)
        a("s_waitcnt lgkmcnt(0)")
        a("s_mov_b64 exec, 0xffff")
        comp(24, 72)
        a("s_mov_b64 exec, -1")
        s.label("L_fin2")
        if s.opt.get("stamps"):
            s.stamp(13)
            a("s_waitcnt vmcnt(0)")
            s.stamp(14)
            a("s_memrealtime s[96:97]"); a("s_waitcnt lgkmcnt(0)"); a("v_writelane_b32 v11, s96, 15")
            a("s_lshl_b32 s74, s2, 3"); a("s_add_u32 s74, s74, s3"); a("s_lshl_b32 s74, s74, 8"); a(f"s_add_u32 s74, s74, {WS_STAMP}")
            a("v_lshlrev_b32 v12, 2, v1")
            a("buffer_store_dword v11, v12, s[44:47], s74 offen")
            if s.opt.get("dbgout"):
                ld = s.newlab("L_dbo")
                a("s_cmp_lg_u32 s2, 9"); a(f"s_cbranch_scc1 {ld}"); a("s_cmp_lg_u32 s3, 0"); a(f"s_cbranch_scc1 {ld}")
                s.srd(64, 40, 256)
                a("v_readlane_b32 s74, v11, 0"); a("s_nop 1"); a("v_subrev_u32 v11, s74, v11")
                a("v_add_u32 v12, 4, v12")
                a("s_mov_b64 exec, 0x7ffe"); a("buffer_store_dword v11, v12, s[64:67], 0 offen"); a("s_mov_b64 exec, -1")
                s.label(ld)
        s.label("L_end")
        a("s_endpgm")

    def kv_pre(s):
        a = s.a
        a("v_mul_u32_u24 v90, 3277, v1"); a("v_lshrrev_b32 v90, 16, v90"); a("v_mul_u32_u24 v91, 20, v90"); a("v_sub_u32 v91, v1, v91")
        a(f"s_mul_i32 s76, s74, {CV_SZ}"); a(f"s_add_u32 s76, s76, {L_CV + 2*CV_SZ}")
        a("v_lshlrev_b32 v95, 5, v91"); a("v_add_u32 v95, s76, v95")
        a(f"s_mul_i32 s77, s75, {16*192}"); a("s_add_u32 s76, s76, s77"); a("s_and_b32 s77, s10, 1"); a("s_lshl_b32 s77, s77, 5"); a("s_add_u32 s76, s76, s77")
        a(f"v_mul_u32_u24 v10, {6*192}, v90"); a("v_lshl_add_u32 v10, v91, 3, v10"); a("v_add_u32 v10, s76, v10")
        a("s_lshl_b32 s77, s3, 3"); a("v_mul_u32_u24 v85, 3, v90"); a("v_add_u32 v85, s77, v85"); a("v_and_b32 v86, 7, v91")
        for m in range(3):
            a(f"v_sub_u32 v87, {29+m}, v85"); a("v_lshrrev_b32 v88, 2, v87"); a("v_xor_b32 v88, v88, v86"); a("v_lshlrev_b32 v88, 4, v88")
            a("v_and_b32 v87, 3, v87"); a("v_lshl_add_u32 v88, v87, 2, v88"); a(f"v_lshl_add_u32 v{92+m}, v91, 7, v88")
            a(f"v_add_u32 v{92+m}, {L_T}, v{92+m}")
    def kv_main(s):
        a = s.a
        s.label("L_kv")
        a("s_barrier")
        s.stamp(8)
        a(f"ds_read_b128 v[42:45], v95 offset:{SC_SHK}"); a(f"ds_read_b128 v[46:49], v95 offset:{SC_SHK + 16}")
        for i in range(9): a(f"ds_read_b64 v[{12+2*i}:{13+2*i}], v10 offset:{SC_K + 192*i}")
        a("s_waitcnt lgkmcnt(9)")
        for i in range(6): a(f"ds_read_b64 v[{30+2*i}:{31+2*i}], v10 offset:{SC_V + 192*i}")
        for e in range(4):
            a(f"v_lshlrev_b32 v{96+e}, 16, v{42+2*e}"); a(f"v_and_b32 v{100+e}, 0xffff0000, v{42+2*e}")
            a(f"v_lshlrev_b32 v{104+e}, 16, v{43+2*e}"); a(f"v_and_b32 v{108+e}, 0xffff0000, v{43+2*e}")
        a("s_waitcnt lgkmcnt(0)")
        s.ex(60)
        for d in range(2):
            for i in range(9):
                a(f"v_lshlrev_b32 v{112+2*i}, 16, v{12+2*i+d}"); a(f"v_and_b32 v{113+2*i}, 0xffff0000, v{12+2*i+d}")
            for i in range(6):
                a(f"v_lshlrev_b32 v{130+2*i}, 16, v{30+2*i+d}"); a(f"v_and_b32 v{131+2*i}, 0xffff0000, v{30+2*i+d}")
            for r in range(6):
                a(f"v_pk_mul_f32 v[{142+2*r}:{143+2*r}], v[{112+2*r}:{113+2*r}], v[{108+2*d}:{109+2*d}]")
            for j in (2, 1, 0):
                for r in range(6):
                    k = 112 + 2 * (r + 3 - j); w = 96 + 4 * j + 2 * d
                    a(f"v_pk_fma_f32 v[{142+2*r}:{143+2*r}], v[{k}:{k+1}], v[{w}:{w+1}], v[{142+2*r}:{143+2*r}]")
            for r in range(6):
                a(f"v_pk_mul_f32 v[{142+2*r}:{143+2*r}], v[{142+2*r}:{143+2*r}], v[{130+2*r}:{131+2*r}]")
            for e in range(2):
                for m in range(3):
                    hi = 4 - 2 * m
                    a(f"v_cvt_pk_bf16_f32 v{154+3*e+m}, v{142+2*(hi+1)+e}, v{142+2*hi+e}")
            for m in (1, 2, 0):
                if m == 0: a("s_mov_b32 exec_hi, 0xff")
                for e in range(2):
                    a(f"ds_write_b32 v{92+m}, v{154+3*e+m} offset:{(2*d+e)*2560}")
            a("s_mov_b32 exec_hi, 0xfffffff")
        a("s_mov_b64 exec, -1")
        s.stamp(9)
        a("s_branch L_kvret")
        s.label("L_codeend")

    def build(s):
        s.kvt = s.opt.get("kvt", 6); s.m16 = s.opt.get("m16", 1); s.pre = s.opt.get("pre", 1) and s.opt.get("gearly", 1)
        s.nt = "nt" if s.opt.get("nt", 1) else ""
        hdr = open("gated_mix__ssm_conv_h3__glu_gated_glu__prompt.s.ref").read().split("; Override launch")[0]
        out = hdr + f"; @launch grid=(256,1,1) block=(512,1,1) lds={LDS_TOTAL}\n"
        out += '.amdgcn_target "amdgcn-amd-amdhsa--gfx950"\n.text\n' + f".globl {KN}\n.p2align 8\n.type {KN},@function\n{KN}:\n"
        s.prologue(); s.loader(); s.chore(); s.ywave(); s.xwave(); s.final(); s.kv_main()
        out += "\n".join(s.L) + "\n"
        out += f""".section .rodata,"a"
.p2align 6
.amdhsa_kernel {KN}
  .amdhsa_next_free_vgpr 256
  .amdhsa_next_free_sgpr 102
  .amdhsa_accum_offset 256
  .amdhsa_group_segment_fixed_size 0
  .amdhsa_kernarg_size 112
  .amdhsa_user_sgpr_count 2
  .amdhsa_user_sgpr_kernarg_segment_ptr 1
  .amdhsa_system_sgpr_workgroup_id_x 1
.end_amdhsa_kernel
"""
        return out

if __name__ == "__main__":
    opt = {}
    outp = sys.argv[1]
    for x in sys.argv[2:]:
        k, v = x.split("=")
        if "," in v: opt[k] = tuple(int(z) for z in v.split(","))
        else:
            try: opt[k] = int(v)
            except ValueError: opt[k] = v
    open(outp, "w").write(Gen(opt).build())
```

```python
import sys
KN = "gated_mix__ssm_conv_h3__glu_gated_glu__prompt_kernel"

WS_HB = 0x000000; WS_WB = 0x610000; HBS = 48*4096 + 128; WBS = 48*5120 + 128; WS_KT = 0x800000; WS_YT = 0xB00000
WS_G = 0xE00000; WS_FA = 0xE10000; WS_FB = 0xE12000; WS_FH = 0xE14000; WS_FY = 0xE16000
WS_STAMP = 0xF00000
TS = 4224
L_XR = 0; L_WR = 32768; L_CV = 81920; CV_SZ = 17728; H_SZ = 8448; L_QT = 152832; L_MISC = 163072; LDS_TOTAL = 163840
CV_A = 0; CV_B = 4224; CV_U0 = 0; CV_U1 = 4616
L_FULL = L_MISC; L_FREE = L_MISC + 16; L_EPOCH = L_MISC + 32; L_QDONE = L_MISC + 40; L_SDONE = L_MISC + 48; L_XG2 = L_MISC + 56; L_XH = L_MISC + 60; L_FBOK = L_MISC + 28; L_XCNT = L_MISC + 52; L_GF = L_MISC + 256
SC_K = 0; SC_V = 6720; SC_SHK = 13440; L_T = L_CV; L_WDS = L_CV + CV_SZ
SPIN_MAX = 30000
NCONV = 160

class Gen:
    def __init__(s, opt):
        s.L = []; s.opt = opt; s.vm = []; s.lab = 0; s.vstamp = 11
    def a(s, x): s.L.append("    " + x)
    def label(s, x): s.L.append(x + ":")
    def newlab(s, p="L"):
        s.lab += 1; return f"{p}_{s.lab}"
    def vm_reset(s): s.vm = []
    def vmem(s, tag, ins): s.a(ins); s.vm.append(tag)
    def vm_wait(s, tags):
        idx = -1
        for i, t in enumerate(s.vm):
            if t in tags: idx = i
        if idx < 0: return
        n = len(s.vm) - 1 - idx
        assert n <= 63
        s.a(f"s_waitcnt vmcnt({n})")
        s.vm = s.vm[idx + 1:]
    def vm_wait_all(s):
        s.a("s_waitcnt vmcnt(0)"); s.vm = []
    def ex(s, n):
        if n >= 64: s.a("s_mov_b64 exec, -1")
        elif n > 32: s.a("s_mov_b32 exec_lo, -1"); s.a(f"s_mov_b32 exec_hi, {hex((1 << (n - 32)) - 1)}")
        elif n == 32: s.a("s_mov_b32 exec_hi, 0")
        else: s.a(f"s_mov_b32 exec_lo, {hex((1 << n) - 1)}"); s.a("s_mov_b32 exec_hi, 0")
    def srd(s, d, p, nbytes):
        s.a(f"s_mov_b32 s{d}, s{p}"); s.a(f"s_and_b32 s{d+1}, s{p+1}, 0xffff")
        s.a(f"s_mov_b32 s{d+2}, {nbytes}"); s.a(f"s_mov_b32 s{d+3}, 0x20000")
    def stamp(s, idx, lvl=1):
        if s.opt.get("stamps", 0) >= 1 and (lvl == 1 or s.opt.get("stamps", 0) == lvl):
            s.a("s_memtime s[96:97]"); s.a("s_waitcnt lgkmcnt(0)")
            s.a(f"v_writelane_b32 v{s.vstamp}, s96, {idx}")
            if s.opt.get("rt") and lvl == 1 and idx < 15:
                s.a("s_memrealtime s[96:97]"); s.a("s_waitcnt lgkmcnt(0)"); s.a(f"v_writelane_b32 v{s.vstamp}, s96, {idx + 40}")
    def poll(s, vflag, voff, soff, scnt=94, slp=None):
        l0 = s.newlab("L_poll"); l1 = s.newlab("L_pdone")
        s.a(f"s_mov_b32 s{scnt}, {SPIN_MAX}")
        s.label(l0)
        s.a(f"buffer_load_dwordx2 v[{vflag}:{vflag+1}], v{voff}, s[44:47], {soff} offen sc1")
        s.a("s_waitcnt vmcnt(0)")
        s.a(f"v_cmp_ne_u64 vcc, s[72:73], v[{vflag}:{vflag+1}]")
        s.a("s_nop 1")
        s.a(f"s_cbranch_vccz {l1}")
        slp = s.opt.get("slp", 4) if slp is None else slp
        if slp: s.a(f"s_sleep {slp}")
        s.a(f"s_sub_u32 s{scnt}, s{scnt}, 1")
        s.a(f"s_cbranch_scc0 {l0}")
        s.label(l1)
        s.vm = []
    def lds_wait(s, addr, nw, need, vt, scache=None, scnt=94, slp=0):
        a = s.a
        sc = scache if scache is not None else 95
        l0 = s.newlab("L_lw"); l1 = s.newlab("L_lwd")
        if scache is not None:
            a(f"s_cmp_ge_u32 s{sc}, {need}"); a(f"s_cbranch_scc1 {l1}")
        a(f"s_mov_b32 s{scnt}, {SPIN_MAX * 8}")
        a(f"v_mov_b32 v{vt+4}, {addr}")
        s.label(l0)
        if nw == 1: a(f"ds_read_b32 v{vt}, v{vt+4}")
        elif nw == 2: a(f"ds_read_b64 v[{vt}:{vt+1}], v{vt+4}")
        else: a(f"ds_read_b128 v[{vt}:{vt+3}], v{vt+4}")
        a("s_waitcnt lgkmcnt(0)")
        if nw == 2: a(f"v_min_u32 v{vt}, v{vt}, v{vt+1}")
        if nw == 4: a(f"v_min_u32 v{vt}, v{vt}, v{vt+1}"); a(f"v_min3_u32 v{vt}, v{vt}, v{vt+2}, v{vt+3}")
        a("s_nop 0")
        a(f"v_readfirstlane_b32 s{sc}, v{vt}")
        a("s_nop 1")
        a(f"s_cmp_ge_u32 s{sc}, {need}"); a(f"s_cbranch_scc1 {l1}")
        if slp: a(f"s_sleep {slp}")
        a(f"s_sub_u32 s{scnt}, s{scnt}, 1"); a(f"s_cbranch_scc0 {l0}")
        s.label(l1)
    def read_epoch(s, vt):
        a = s.a; l0 = s.newlab("L_re"); l1 = s.newlab("L_red")
        a(f"s_mov_b32 s94, {SPIN_MAX * 8}"); a(f"v_mov_b32 v{vt+2}, {L_EPOCH}")
        s.label(l0)
        a(f"ds_read_b64 v[{vt}:{vt+1}], v{vt+2}")
        a("s_waitcnt lgkmcnt(0)")
        a(f"v_readfirstlane_b32 s72, v{vt}"); a(f"v_readfirstlane_b32 s73, v{vt+1}"); a("s_nop 1")
        a("s_cmp_lg_u32 s73, 0"); a(f"s_cbranch_scc1 {l1}")
        a("s_sub_u32 s94, s94, 1"); a(f"s_cbranch_scc0 {l0}")
        s.label(l1)
    def write_flag(s, vt, sreg):
        s.a(f"v_mov_b32 v{vt}, s72"); s.a(f"v_mov_b32 v{vt+1}, s73"); s.a(f"v_mov_b32 v{vt+2}, 0")
        s.a("s_mov_b64 exec, 1")
        s.vmem("flag", f"buffer_store_dwordx2 v[{vt}:{vt+1}], v{vt+2}, s[44:47], s{sreg} offen sc1")
        s.a("s_mov_b64 exec, -1")
    def h_own(s, syreg):
        a = s.a
        a("s_lshl_b32 s76, s14, 2"); a(f"s_add_u32 s76, s76, s{syreg}"); a("s_lshl_b32 s76, s76, 12")
        for i in range(4):
            s.vmem("h", f"buffer_load_dwordx4 v[{164+4*i}:{167+4*i}], v12, s[60:63], s76 offen offset:{i*1024} {s.nt}")
    def tile_loads(s, base, reg):
        a = s.a
        for i in range(3):
            a(f"s_add_u32 s74, s88, {base + i*8*TS}")
            if i == 2: a("s_mov_b32 exec_hi, 0")
            a(f"buffer_load_dwordx4 v[{reg+4*i}:{reg+4*i+3}], v77, s[44:47], s74 offen sc1")
            if i == 2: a("s_mov_b64 exec, -1")
    def ap_addr(s):
        a = s.a
        a("v_sub_u32 v78, 63, v1"); a("v_lshlrev_b32 v78, 2, v78")
        a("s_mul_i32 s87, s10, 80"); a("s_mul_i32 s88, s83, 20"); a("s_add_u32 s87, s87, s88")
        a(f"s_mul_i32 s88, s87, {TS}"); a("s_lshl_b32 s75, s9, 7"); a("s_sub_u32 s88, s88, s75"); a("s_add_u32 s88, s88, 3968")
        a("v_lshrrev_b32 v77, 3, v1"); a(f"v_mul_u32_u24 v77, {TS}, v77"); a("v_and_b32 v79, 7, v1"); a("v_lshl_add_u32 v77, v79, 4, v77")
    def ap_loads(s):
        a = s.a
        a("s_lshl_b32 s74, s9, 8"); a(f"s_add_u32 s74, s74, {WS_G}")
        a("buffer_load_dword v76, v78, s[44:47], s74 offen sc1")
        s.tile_loads(WS_KT, 64)
    def kwait(s):
        if not s.opt.get("stamps") and s.opt.get("early", 1):
            s.a("s_waitcnt lgkmcnt(0)")
            s.srd(44, 42, 0x10000000)
    def lds_set(s, vt, addr_sreg_or_const, val):
        s.a(f"v_mov_b32 v{vt}, {addr_sreg_or_const}"); s.a(f"v_mov_b32 v{vt+1}, {val}"); s.a(f"ds_write_b32 v{vt}, v{vt+1}")

    def prologue(s):
        a = s.a
        a("s_cmp_ge_u32 s2, 256"); a("s_cbranch_scc1 L_end")
        a("s_load_dwordx16 s[16:31], s[0:1], 0")
        a("s_load_dwordx8 s[32:39], s[0:1], 64")
        a("s_load_dwordx4 s[40:43], s[0:1], 96")
        a("v_lshrrev_b32 v2, 6, v0")
        a("v_and_b32 v1, 63, v0")
        a("v_readfirstlane_b32 s3, v2")
        a("s_and_b32 s4, s2, 7"); a("s_lshr_b32 s5, s2, 3")
        a("s_lshr_b32 s6, s4, 2"); a("s_lshl_b32 s6, s6, 3"); a("s_and_b32 s11, s5, 7"); a("s_add_u32 s6, s6, s11")
        a("s_and_b32 s7, s4, 3"); a("s_lshl_b32 s7, s7, 2"); a("s_lshr_b32 s12, s5, 3"); a("s_add_u32 s7, s7, s12")
        a("s_lshl_b32 s8, s12, 1"); a("s_add_u32 s8, s8, s11"); a("s_and_b32 s8, s8, 7")
        if s.opt.get("g2map", 1):
            a("s_lshr_b32 s9, s4, 1"); a("s_lshl_b32 s9, s9, 3"); a("s_add_u32 s9, s9, s11")
            a("s_and_b32 s10, s4, 1"); a("s_lshl_b32 s10, s10, 2"); a("s_add_u32 s10, s10, s12")
        else:
            a("s_lshl_b32 s9, s4, 2"); a("s_and_b32 s13, s5, 3"); a("s_add_u32 s9, s9, s13"); a("s_lshr_b32 s10, s5, 2")
        if s.opt.get("cmap", 0):
            a("s_mul_i32 s14, s5, 5"); a("s_add_u32 s14, s14, s4"); a("s_cmp_lt_u32 s4, 5"); a("s_cselect_b32 s14, s14, 255")
        else: a("s_mov_b32 s14, s2")
        if s.opt.get("stamps"): a("v_mov_b32 v11, 0")
        a("v_lshlrev_b32 v12, 4, v1")
        if s.opt.get("stamps") or not s.opt.get("early", 1):
            a("s_waitcnt lgkmcnt(0)")
            s.srd(44, 42, 0x10000000)
        s.stamp(0)
        if s.opt.get("stamps"):
            a("s_memrealtime s[96:97]"); a("s_waitcnt lgkmcnt(0)"); a("v_writelane_b32 v11, s96, 62")
        a("s_cmp_lt_u32 s3, 4"); a("s_cbranch_scc1 L_X")
        a("s_cmp_ge_u32 s3, 6"); a("s_cbranch_scc1 L_C")

    def loader(s):
        a = s.a; s.vm_reset()
        s.label("L_L")
        a(f"s_setprio {s.opt.get('lprio', 3)}")
        a("s_sub_u32 s74, s3, 4")
        a("v_lshrrev_b32 v4, 2, v1"); a("v_mul_u32_u24 v2, 3072, v4")
        a("v_and_b32 v5, 3, v1")
        if s.m16: a("v_lshrrev_b32 v6, 5, v1"); a("v_lshlrev_b32 v6, 1, v6"); a("v_xor_b32 v6, v6, v5")
        else: a("s_lshl_b32 s75, s74, 1"); a("v_xor_b32 v6, s75, v5")
        a("v_lshl_add_u32 v2, v6, 4, v2")
        a("s_mul_i32 s75, s7, 192"); a("v_add_u32 v2, s75, v2")
        a("v_mul_u32_u24 v3, 1280, v4")
        if s.m16:
            a("v_lshrrev_b32 v7, 5, v1"); a("v_bfe_u32 v6, v1, 4, 1"); a("v_xor_b32 v6, v6, v7"); a("v_lshl_add_u32 v6, v6, 1, v7"); a("v_xor_b32 v6, v6, v5")
        else:
            a("v_lshrrev_b32 v6, 4, v1"); a("s_lshl_b32 s75, s74, 2"); a("v_add_u32 v6, s75, v6")
            a("v_lshrrev_b32 v7, 1, v6"); a("v_xor_b32 v6, v6, v7"); a("v_and_b32 v6, 3, v6"); a("v_xor_b32 v6, v6, v5")
        a("v_lshl_add_u32 v3, v6, 4, v3")
        a("s_lshl_b32 s75, s6, 3"); a("s_add_u32 s75, s75, s74"); a(f"s_mul_i32 s75, s75, {16*1280}"); a("v_add_u32 v3, s75, v3")
        a("s_lshl_b32 s78, s74, 10")
        a(f"s_mul_i32 s79, s74, 6144"); a(f"s_add_u32 s79, s79, {L_WR}")
        s.kwait()
        s.srd(48, 16, 2621440)
        a("s_cmp_eq_u32 s74, 0")
        a("s_cselect_b32 s52, s30, s32"); a("s_cselect_b32 s53, s31, s33"); a("s_and_b32 s53, s53, 0xffff")
        a("s_mov_b32 s54, 1966080"); a("s_mov_b32 s55, 0x20000")
        groups = s.opt.get("groups", (1,) * 10)
        if s.opt.get("cyc", 1): a("s_mul_i32 s8, s8, 5"); a("s_lshr_b32 s8, s8, 2")
        def dsel(D):
            if s.opt.get("cyc", 1):
                a(f"s_add_u32 s80, s8, {D}"); a("s_cmp_ge_u32 s80, 10"); a("s_cselect_b32 s15, 10, 0"); a("s_sub_u32 s80, s80, s15")
                return
            b = 0
            for g in groups:
                if D < b + g: break
                b += g
            if g == 1: a(f"s_mov_b32 s80, {D}"); return
            assert g in (2, 4, 8)
            src = "s8" if g == 8 else ("s14" if g == 4 else "s15")
            a(f"s_add_u32 s80, {src}, {D - b}"); a(f"s_and_b32 s80, s80, {g - 1}")
            if b: a(f"s_add_u32 s80, s80, {b}")
        def issue_x(D):
            dsel(D); a("s_lshl_b32 s81, s80, 7")
            for gi in range(4):
                for h in range(2):
                    t = 2 * D + h
                    a(f"s_add_u32 m0, s78, {L_XR + (t & 3) * 8192 + gi * 2048}")
                    a(f"s_add_u32 s82, s81, {gi * 32 * 1280 + h * 64}")
                    s.vmem(("x", t), f"buffer_load_dwordx4 v3, s[48:51], s82 offen lds")
        def issue_w(t):
            dsel(t >> 1); a(f"s_mul_i32 s81, s80, {64*3072}")
            for rh in range(2):
                for pc in range(3):
                    a(f"s_add_u32 m0, s79, {(t & 3) * 12288 + pc * 2048 + rh * 1024}")
                    a(f"s_add_u32 s82, s81, {(32 * (t & 1) + 16 * rh) * 3072 + pc * 64}")
                    s.vmem(("w", t), f"buffer_load_dwordx4 v2, s[52:55], s82 offen lds")
        def publish(t):
            s.vm_wait({("x", t), ("w", t), ("x", t | 1)})
            s.stamp(40 + t, 2)
            a("s_barrier")
            s.stamp(16 + t, 2)
        issue_w(0); issue_x(0); issue_w(1)
        a("s_barrier")
        publish(0); publish(1)
        if s.opt.get("lx1", 0):
            issue_x(1)
            a("s_barrier")
            issue_w(2)
        elif s.opt.get("rtouch", 2):
            a("s_barrier")
            issue_x(1); issue_w(2)
        else:
            issue_x(1); issue_w(2)
            a("s_barrier")
        issue_w(3)
        hold = -5
        pend = []
        for n in range(1, 17):
            if n % 2 == 0 and n + 2 < 20: pend.append(lambda n=n: issue_x((n + 2) // 2))
            if n + 3 < 20: pend.append(lambda n=n: issue_w(n + 3))
            if n != hold:
                for f in pend: f()
                pend = []
            if n == s.opt.get("hmid", 7): s.srd(60, 24, 2621440); s.h_own(74)
            hp_ = s.opt.get("hp", 19)
            if s.opt.get("hmid", 7) and hp_ < 17 and n in (hp_, hp_ + 1):
                s.vm_wait({"h"})
                lh_ = s.newlab("L_nh"); a(f"s_cmp_ge_u32 s14, {NCONV}"); a(f"s_cbranch_scc1 {lh_}")
                a("s_mov_b32 s83, s74"); a(f"s_mul_i32 s84, s74, {CV_SZ}"); a(f"s_add_u32 s84, s84, {L_CV}")
                s.h_copies(84, 164, n - hp_); a("s_mov_b32 s74, s83"); s.label(lh_)
            if n < 16: publish(n + 1)
        a("s_mov_b32 s83, s74")
        a("s_branch L_Yt")

    def row_loads(s, srd, nrows, vfirst, vrest, reg, tag, nt):
        a = s.a
        for i in range((nrows + 4) // 5):
            n = min(5, nrows - 5 * i)
            if i == 0 or n < 5: s.ex(12 * n)
            r = reg + 4 * i
            if i == 0: s.vmem(tag, f"buffer_load_dwordx4 v[{r}:{r+3}], v{vfirst}, s[{srd}:{srd+3}], 0 offen {nt}")
            else:
                a(f"s_mov_b32 s77, {6400*(i-1)}")
                s.vmem(tag, f"buffer_load_dwordx4 v[{r}:{r+3}], v{vrest}, s[{srd}:{srd+3}], s77 offen {nt}")
        a("s_mov_b64 exec, -1")
    def dma_rows(s, srd, nrows, vfirst, vrest, ldsbase_s, ldsoff, tag, nt):
        a = s.a
        for i in range((nrows + 4) // 5):
            a(f"s_add_u32 m0, s{ldsbase_s}, {ldsoff + 960*i}")
            n = min(5, nrows - 5 * i)
            if i == 0 or n < 5: s.ex(12 * n)
            if i == 0: s.vmem(tag, f"buffer_load_dwordx4 v{vfirst}, s[{srd}:{srd+3}], 0 offen {nt} lds")
            else:
                a(f"s_mov_b32 s77, {6400*(i-1)}")
                s.vmem(tag, f"buffer_load_dwordx4 v{vrest}, s[{srd}:{srd+3}], s77 offen {nt} lds")
        a("s_mov_b64 exec, -1")
    def img_write(s, sbase, off, n, reg):
        a = s.a
        a(f"v_add_u32 v13, s{sbase}, v12"); s.ex(60)
        for i in range(n): a(f"ds_write_b128 v13, v[{reg+4*i}:{reg+4*i+3}] offset:{off + 960*i}")
        a("s_mov_b64 exec, -1")
    def h_copies(s, sbase, reg, half=None):
        a = s.a
        a(f"v_add_u32 v13, s{sbase}, v12")
        for i in (range(4) if half is None else range(2 * half, 2 * half + 2)):
            r = reg + 4 * i
            if i == 0: a("v_mov_b32 v234, 0")
            else:
                a(f"v_readlane_b32 s74, v{r-1}, 63"); a("s_nop 1"); a("v_mov_b32 v234, s74")
            a("s_nop 1")
            a(f"v_mov_b32_dpp v234, v{r+3} wave_shr:1 row_mask:0xf bank_mask:0xf")
            a(f"ds_write_b128 v13, v[{r}:{r+3}] offset:{CV_B + 64 + i*1024}")
            a(f"v_alignbit_b32 v236, v{r}, v234, 16")
            a(f"v_alignbit_b32 v237, v{r+1}, v{r}, 16")
            a(f"v_alignbit_b32 v238, v{r+2}, v{r+1}, 16")
            a(f"v_alignbit_b32 v239, v{r+3}, v{r+2}, 16")
            a(f"ds_write_b128 v13, v[236:239] offset:{CV_A + 64 + i*1024}")
        if half == 0: return
        a("v_lshrrev_b32 v234, 2, v1"); a("v_and_b32 v235, 1, v234"); a("v_mul_u32_u24 v235, 4160, v235")
        a("v_lshrrev_b32 v234, 1, v234"); a(f"v_mul_u32_u24 v234, {CV_B}, v234"); a("v_add_u32 v235, v235, v234")
        a("v_and_b32 v234, 3, v1"); a("v_lshl_add_u32 v235, v234, 4, v235"); a(f"v_add_u32 v235, s{sbase}, v235")
        for r in range(236, 240): a(f"v_mov_b32 v{r}, 0")
        s.ex(16)
        a("ds_write_b128 v235, v[236:239]")
        a("s_mov_b64 exec, -1")
    def u_addr(s, sbase):
        a = s.a
        def swz(dst, off):
            a(f"v_add_u32 v{dst}, {off}, v12"); a(f"v_lshrrev_b32 v41, 3, v{dst}"); a("v_and_b32 v41, 32, v41"); a(f"v_xor_b32 v{dst}, v{dst}, v41")
            a(f"v_add_u32 v{dst}, s{sbase}, v{dst}"); a(f"v_subrev_u32 v{dst}, 64, v{dst}")
        swz(14, 68); swz(15, 80); swz(40, 72)
        a(f"v_add_u32 v13, s{sbase}, v12")
        for r in range(32, 36): a(f"v_mov_b32 v{r}, 0")
        s.ex(34); a("ds_write_b128 v13, v[32:35] offset:4096")
        s.ex(33); a(f"ds_write_b128 v13, v[32:35] offset:{CV_U1 + 4096 - 8}")
        a("s_mov_b64 exec, 1"); a("ds_write_b128 v13, v[32:35]")
        a("s_mov_b64 exec, -1")
    def u_stage(s, reg, nwait0):
        a = s.a
        for i in range(4):
            a(f"s_waitcnt vmcnt({nwait0 + 3 - i})")
            r = reg + 4 * i
            a(f"ds_write_b64 v40, v[{r}:{r+1}] offset:{CV_U1 + i*1024}")
            a(f"ds_write_b64 v15, v[{r+2}:{r+3}] offset:{CV_U1 + i*1024}")
            a(f"ds_write_b64 v14, v[{r}:{r+1}] offset:{i*1024}") if False else None
            a(f"ds_write_b32 v14, v{r} offset:{i*1024}")
            a(f"ds_write_b64 v14, v[{r+1}:{r+2}] offset:{i*1024 + 4}") if False else None
            a(f"ds_write_b32 v14, v{r+1} offset:{i*1024 + 4}")
            a(f"ds_write_b32 v14, v{r+2} offset:{i*1024 + 8}")
            a(f"ds_write_b32 v15, v{r+3} offset:{i*1024}")

    def chore(s):
        a = s.a; s.vm_reset(); nt = s.nt
        s.label("L_C")
        a(f"s_setprio {s.opt.get('cprio', 2)}")
        a("s_sub_u32 s78, s3, 6")
        a(f"s_mul_i32 s79, s78, {CV_SZ}"); a(f"s_add_u32 s79, s79, {L_CV}")
        a(f"s_add_u32 s84, s79, {2*CV_SZ}")
        a("s_mul_i32 s93, s78, 4800"); a(f"s_add_u32 s93, s93, {L_WDS}")
        a("s_and_b32 s85, s10, 1"); a("s_lshl_b32 s85, s85, 5")
        a("s_mul_i32 s80, s10, 160"); a("s_sub_u32 s80, s80, s85")
        a("s_lshl_b32 s81, s9, 6"); a("s_lshl_b32 s74, s78, 5"); a("s_add_u32 s81, s81, s74")
        a("v_mul_u32_u24 v4, 5462, v1"); a("v_lshrrev_b32 v4, 16, v4")
        a("v_mul_u32_u24 v5, 12, v4"); a("v_sub_u32 v5, v1, v5")
        a("v_mul_u32_u24 v6, 1280, v4"); a("v_lshl_add_u32 v6, v5, 4, v6"); a("v_add_u32 v6, s80, v6")
        a("s_mul_i32 s74, s9, 48"); a("s_mul_i32 s75, s78, 24"); a("s_add_u32 s74, s74, s75"); a("s_mul_i32 s74, s74, 1280")
        a("v_add_u32 v16, s74, v6"); a("v_add_u32 v17, 6400, v16")
        a("s_mul_i32 s74, s81, 1280")
        a("v_add_u32 v20, s74, v6"); a("v_add_u32 v21, 6400, v20")
        a(f"v_subrev_u32 v18, {3*1280}, v20"); a("v_add_u32 v19, 6400, v18")
        s.kwait()
        s.srd(64, 40, 256)
        l = s.newlab("L_noep")
        a("s_cmp_lg_u32 s2, 0"); a(f"s_cbranch_scc1 {l}"); a("s_cmp_lg_u32 s78, 0"); a(f"s_cbranch_scc1 {l}")
        a("s_memrealtime s[74:75]"); a("s_waitcnt lgkmcnt(0)"); a("s_or_b32 s75, s75, 0x40000000")
        a("v_mov_b32 v8, s74"); a("v_mov_b32 v9, s75"); a("v_mov_b32 v10, 0")
        a("s_mov_b64 exec, 1"); a("buffer_store_dwordx2 v[8:9], v10, s[64:67], 0 offen sc1"); a("s_mov_b64 exec, -1")
        s.label(l)
        s.srd(48, 18, 2621440); s.srd(52, 20, 2621440); s.srd(56, 22, 5120); s.srd(60, 24, 2621440)
        s.srd(68, 16, 2621440); s.srd(88, 34, 1966080)
        a("v_mov_b32 v23, 0"); a("v_mov_b32 v37, 1")
        if s.opt.get("ticket", 0):
            lt = s.newlab("L_tk")
            a("s_cmp_eq_u32 s78, 0"); a(f"s_cbranch_scc1 {lt}")
            a("s_mov_b64 exec, 1"); a("buffer_atomic_add v37, v23, s[64:67], 0 offen offset:64 sc0"); a("s_mov_b64 exec, -1")
            s.label(lt)
        elif s.opt.get("cmap", 0):
            a("s_mul_i32 s74, s5, 5"); a("s_add_u32 s74, s74, s4"); a("s_cmp_lt_u32 s4, 5"); a("s_cselect_b32 s74, s74, 255"); a("v_mov_b32 v37, s74")
        else: a("v_mov_b32 v37, s2")
        a("s_barrier")
        s.dma_rows(48, 35, 18, 19, 84, SC_K, "k", nt)
        s.dma_rows(52, 32, 20, 21, 84, SC_V, "k", nt)
        a("s_mul_i32 s75, s10, 640"); a(f"s_add_u32 m0, s84, {SC_SHK}"); s.ex(40)
        s.vmem("k", "buffer_load_dwordx4 v12, s[56:59], s75 offen lds")
        a("s_mov_b64 exec, -1")
        s.vmem("ep", "buffer_load_dwordx2 v[38:39], v23, s[64:67], 0 offen sc1")
        s.stamp(40, 2); a("s_barrier")
        if s.opt.get("rtouch", 2):
            a("s_mov_b32 s76, 0x986431"); a("s_bitcmp1_b32 s11, 0"); a("s_cselect_b32 s76, 0x975420, s76")
            a("v_lshrrev_b32 v240, 4, v1"); a("v_lshlrev_b32 v240, 2, v240"); a("v_lshrrev_b32_e64 v241, v240, s76"); a("v_and_b32 v241, 15, v241")
            a("s_lshr_b32 s76, s76, 16"); a("v_lshrrev_b32_e64 v242, v240, s76"); a("v_and_b32 v242, 15, v242")
            a("v_and_b32 v243, 15, v1"); a("v_mul_u32_u24 v243, 1280, v243")
            a("v_lshl_add_u32 v241, v241, 7, v243"); a("v_lshl_add_u32 v242, v242, 7, v243")
            a("s_lshl_b32 s76, s6, 3"); a("s_lshl_b32 s77, s12, 1"); a("s_add_u32 s76, s76, s77"); a("s_add_u32 s76, s76, s78"); a(f"s_mul_i32 s98, s76, {16*1280}")
            a("v_bfe_u32 v243, v1, 4, 1"); a(f"v_mul_u32_u24 v243, {5*64*3072}, v243"); a("v_bfe_u32 v244, v1, 1, 3"); a("v_mul_u32_u24 v244, 3072, v244"); a("v_add_u32 v243, v243, v244")
            a("v_and_b32 v244, 1, v1"); a("v_lshl_add_u32 v243, v244, 7, v243")
            a("s_mul_i32 s76, s7, 192"); a("s_and_b32 s76, s76, 0xffffff80"); a(f"s_mul_i32 s77, s11, {8*3072}"); a("s_add_u32 s76, s76, s77"); a(f"s_add_u32 s99, s76, {4*64*3072}")
            a("s_cmp_eq_u32 s78, 0")
            a("s_cselect_b32 s48, s30, s32"); a("s_cselect_b32 s49, s31, s33"); a("s_and_b32 s49, s49, 0xffff"); a("s_mov_b32 s50, 1966080"); a("s_mov_b32 s51, 0x20000")
        s.stamp(41, 2); a("s_barrier")
        if s.opt.get("rtouch", 2):
            a("s_mov_b32 exec_hi, 0")
            s.vmem("t", "buffer_load_dword v250, v243, s[48:51], s99 offen")
            if s.opt.get("rtouch", 2) == 1:
                s.vmem("t", "buffer_load_dword v251, v242, s[68:71], s98 offen")
                a("s_mov_b64 exec, -1")
                s.vmem("t", "buffer_load_dword v252, v241, s[68:71], s98 offen")
            a("s_mov_b64 exec, -1")
        if not s.opt.get("wdlate", 0): s.dma_rows(88, 24, 16, 17, 93, 0, "wd", nt)
        if s.opt.get("tlb", 0):
            def tlbt():
                l1 = s.newlab("L_t1"); l2 = s.newlab("L_t2")
                a("s_cmp_eq_u32 s78, 1"); a(f"s_cbranch_scc1 {l1}")
                a(f"s_mov_b32 s76, {HBS}"); a("v_mul_lo_u32 v253, v1, s76"); a(f"s_mov_b32 s76, {WS_HB + HBS - 128}")
                s.ex(32); a("buffer_load_dword v254, v253, s[44:47], s76 offen")
                a(f"s_mov_b32 s76, {WBS}"); a("v_mul_lo_u32 v253, v1, s76"); a(f"s_mov_b32 s76, {WS_WB + WBS - 128}")
                s.ex(8); a("buffer_load_dword v254, v253, s[44:47], s76 offen")
                a(f"s_mov_b32 s76, {64*TS}"); a("s_mov_b64 exec, -1"); a("v_mul_lo_u32 v253, v1, s76"); a(f"s_mov_b32 s76, {WS_KT + 4096}")
                s.ex(10); a("buffer_load_dword v254, v253, s[44:47], s76 offen")
                a(f"s_branch {l2}")
                s.label(l1)
                a(f"s_mov_b32 s76, {64*TS}"); a("v_mul_lo_u32 v253, v1, s76"); a(f"s_mov_b32 s76, {WS_YT + 4096}")
                s.ex(10); a("buffer_load_dword v254, v253, s[44:47], s76 offen")
                a("v_lshlrev_b32 v253, 18, v1")
                a("buffer_load_dword v254, v253, s[60:63], 0 offen")
                a("s_mov_b32 s48, s38"); a("s_and_b32 s49, s39, 0xffff"); a("s_mov_b32 s50, 2621440"); a("s_mov_b32 s51, 0x20000")
                a("buffer_load_dword v254, v253, s[48:51], 0 offen")
                s.label(l2)
                a("s_mov_b64 exec, -1")
                for _ in range(3): s.vm.append("t")
            tlbt()
        if s.opt.get("htouch", 0):
            a("s_lshl_b32 s76, s2, 1"); a("s_add_u32 s76, s76, s78"); a("s_mul_i32 s76, s76, 5120"); a("v_lshlrev_b32 v253, 7, v1")
            s.ex(40); s.vmem("t", "buffer_load_dword v254, v253, s[60:63], s76 offen"); a("s_mov_b64 exec, -1")
        a("s_lshr_b32 s74, s85, 4"); a("v_subrev_u32 v7, s74, v5")
        a("v_cmp_gt_u32 s[86:87], 10, v7"); a("v_cmp_gt_u32 vcc, 60, v1"); a("s_and_b64 s[86:87], s[86:87], vcc")
        a("v_mul_u32_u24 v22, 160, v4"); a("v_lshl_add_u32 v22, v7, 4, v22")
        a(f"s_mul_i32 s76, s78, 5120"); a(f"s_add_u32 s76, s76, {L_QT}"); a("v_add_u32 v22, s76, v22")
        a("s_lshl_b32 s75, s9, 6"); a("s_lshl_b32 s76, s10, 3"); a("s_add_u32 s75, s75, s76"); a("s_lshl_b32 s76, s78, 2"); a("s_add_u32 s82, s75, s76")
        a("v_lshrrev_b32 v14, 4, v1"); a("v_mul_u32_u24 v14, 1280, v14"); a("v_and_b32 v15, 15, v1"); a("v_lshlrev_b32 v15, 4, v15"); a("v_add_u32 v14, v14, v15")
        a("v_and_b32 v240, 15, v1"); a("v_lshrrev_b32 v241, 4, v1")
        a("v_lshrrev_b32 v242, 2, v240"); a("v_mul_u32_u24 v242, 192, v242"); a("v_and_b32 v243, 3, v240"); a("v_lshl_add_u32 v242, v243, 3, v242")
        a(f"v_add_u32 v242, s93, v242"); a("v_add_u32 v242, s85, v242")
        a("s_mul_i32 s74, s9, 6"); a("s_mul_i32 s75, s78, 3"); a("s_add_u32 s74, s74, s75")
        for p in range(4):
            a(f"v_add_u32 v243, {4*p}, v241"); a("v_mul_u32_u24 v244, 52, v243"); a("v_lshrrev_b32 v244, 8, v244")
            a("v_mul_u32_u24 v245, 5, v244"); a("v_sub_u32 v245, v243, v245")
            a(f"v_mul_u32_u24 v{24+p}, 1536, v244"); a(f"v_lshl_add_u32 v{24+p}, v245, 5, v{24+p}"); a(f"v_add_u32 v{24+p}, v{24+p}, v242")
            a("v_add_u32 v244, s74, v244"); a("v_lshrrev_b32 v247, 2, v244"); a(f"v_mul_u32_u24 v{28+p}, 5120, v247")
            a("v_and_b32 v244, 3, v244"); a(f"v_lshl_add_u32 v{28+p}, v244, 8, v{28+p}"); a(f"v_lshl_add_u32 v{28+p}, v245, 10, v{28+p}")
            a(f"v_lshl_add_u32 v{28+p}, v240, 4, v{28+p}")
        a("v_lshrrev_b32 v6, 3, v1"); a("v_and_b32 v7, 7, v1"); a("s_mul_i32 s74, s78, 40"); a("v_add_u32 v6, s74, v6")
        for i in range(5):
            a(f"v_add_u32 v8, {8*i}, v6"); a("v_mul_u32_u24 v9, 3277, v8"); a("v_lshrrev_b32 v9, 16, v9")
            a("v_mul_u32_u24 v10, 20, v9"); a("v_sub_u32 v8, v8, v10")
            a("v_lshl_add_u32 v9, v8, 2, v9"); a("v_xor_b32 v8, v8, v7"); a("v_and_b32 v8, 7, v8"); a("v_lshlrev_b32 v8, 4, v8")
            a(f"v_mul_u32_u24 v9, {TS}, v9"); a(f"v_add_u32 v{32+i}, v9, v8")
        a("v_mov_b32 v23, 0")
        sched = {t: [] for t in range(21)}
        dl = s.opt.get("dl", 3)
        def rowl(srd, nrows, vfirst, vrest, reg, tag, ntf):
            out = []
            for i in range((nrows + 4) // 5):
                def f(i=i):
                    n = min(5, nrows - 5 * i); r = reg + 4 * i
                    s.ex(12 * n)
                    if i == 0: s.vmem(tag, f"buffer_load_dwordx4 v[{r}:{r+3}], v{vfirst}, s[{srd}:{srd+3}], 0 offen {ntf}")
                    else:
                        a(f"s_mov_b32 s77, {6400*(i-1)}")
                        s.vmem(tag, f"buffer_load_dwordx4 v[{r}:{r+3}], v{vrest}, s[{srd}:{srd+3}], s77 offen {ntf}")
                    a("s_mov_b64 exec, -1")
                out.append(f)
            return out
        Lk = rowl(48, 35, 18, 19, 40, "k", nt); Lv = rowl(52, 32, 20, 21, 68, "v", nt); Lw = rowl(88, 24, 16, 17, 96, "wd", nt)
        Lq = rowl(68, 32, 20, 21, 196, "q", "")
        def lshk():
            a("s_mul_i32 s75, s10, 640"); s.ex(40)
            s.vmem("v", "buffer_load_dwordx4 v[116:119], v12, s[56:59], s75 offen")
            a("s_mov_b64 exec, -1")
        def lgx(i):
            a("s_mul_i32 s75, s82, 1280")
            s.vmem("gx", f"buffer_load_dwordx4 v[{124+4*i}:{127+4*i}], v14, s[68:71], s75 offen offset:{i*256}")
        def lgw():
            s.srd(56, 36, 1280)
            for i in range(5):
                s.vmem("gx", f"buffer_load_dwordx4 v[{144+4*i}:{147+4*i}], v15, s[56:59], 0 offen offset:{i*256}")
        def lh(i):
            a("s_lshl_b32 s74, s14, 2"); a(f"s_add_u32 s74, s74, {2*(i//4)}"); a("s_add_u32 s74, s74, s78"); a("s_lshl_b32 s74, s74, 12")
            s.vmem("h", f"buffer_load_dwordx4 v[{164+4*i}:{167+4*i}], v12, s[60:63], s74 offen offset:{(i&3)*1024} {nt}")
        def two(f, g): return lambda: (f(), g())
        cold = Lk + [two(Lv[0], lshk)] + Lv[1:] + Lw
        def w1(): s.vm_wait({"k"}); s.stamp(2); s.img_write(84, SC_K, 7, 40)
        def w2():
            s.vm_wait({"v"}); s.img_write(84, SC_V, 7, 68)
            s.ex(40); a(f"ds_write_b128 v13, v[116:119] offset:{SC_SHK}"); a("s_mov_b64 exec, -1")
        def w3(): s.vm_wait({"wd"}); s.img_write(93, 0, 5, 96); a("s_waitcnt lgkmcnt(0)")
        def wd():
            for p in range(4):
                a(f"ds_read_b64_tr_b16 v[{96+4*p}:{97+4*p}], v{24+p}")
                a(f"ds_read_b64_tr_b16 v[{98+4*p}:{99+4*p}], v{24+p} offset:768")
            a(f"s_mul_i32 s74, s10, {WBS}"); a(f"s_add_u32 s74, s74, {WS_WB}")
            a("s_waitcnt lgkmcnt(0)")
            for p in range(4):
                if p == 3: s.ex(48)
                s.vmem("st", f"buffer_store_dwordx4 v[{96+4*p}:{99+4*p}], v{28+p}, s[44:47], s74 offen sc1")
            a("s_mov_b64 exec, -1")
        def epoch():
            s.vm_wait({"ep"})
            l0 = s.newlab("L_ep"); l1_ = s.newlab("L_epd")
            a(f"s_mov_b32 s94, {SPIN_MAX}")
            s.label(l0)
            a("v_readfirstlane_b32 s72, v38"); a("v_readfirstlane_b32 s73, v39"); a("s_nop 1")
            a("s_cmp_lg_u32 s73, 0"); a(f"s_cbranch_scc1 {l1_}")
            a("buffer_load_dwordx2 v[38:39], v23, s[64:67], 0 offen sc1")
            a("s_waitcnt vmcnt(0)")
            a("s_sub_u32 s94, s94, 1"); a(f"s_cbranch_scc0 {l0}")
            s.label(l1_)
            a(f"v_mov_b32 v242, {L_EPOCH}"); a("ds_write_b64 v242, v[38:39]")
            lt2 = s.newlab("L_tk")
            a("s_cmp_eq_u32 s78, 0"); a(f"s_cbranch_scc1 {lt2}")
            a("s_mov_b64 exec, 1"); a("ds_write_b32 v242, v37 offset:16"); a("s_mov_b64 exec, -1")
            s.label(lt2)
        def gate():
            s.vm_wait({"gx"})
            a("v_mov_b32 v240, 0"); a("v_mov_b32 v241, 0")
            for i in range(20): a(f"v_dot2_f32_bf16 v{240 + (i & 1)}, v{124+i}, v{144+i}, v{240 + (i & 1)}")
        def gate2():
            a("s_nop 2")
            a("v_add_f32 v240, v240, v241"); a("s_nop 1")
            for ctl in ("quad_perm:[1,0,3,2]", "quad_perm:[2,3,0,1]", "row_half_mirror", "row_mirror"):
                a(f"v_add_f32_dpp v240, v240, v240 {ctl} row_mask:0xf bank_mask:0xf"); a("s_nop 1")
            a("v_cvt_pk_bf16_f32 v240, v240, v240"); a("v_and_b32 v240, 0xffff0000, v240")
            a("v_mul_f32 v240, 0xbfb8aa3b, v240"); a("v_exp_f32 v240, v240"); a("s_nop 0"); a("v_add_f32 v240, 1.0, v240")
            a("v_rcp_f32 v240, v240"); a("s_nop 0")
            a("v_cvt_pk_bf16_f32 v240, v240, v240"); a("v_and_b32 v240, 0xffff0000, v240")
            a("s_lshl_b32 s74, s82, 2"); a(f"s_add_u32 s74, s74, {WS_G}")
            a("v_lshrrev_b32 v241, 4, v1"); a("v_lshlrev_b32 v241, 2, v241")
            a("s_mov_b32 exec_lo, 0x00010001"); a("s_mov_b32 exec_hi, 0x00010001")
            s.vmem("st", "buffer_store_dword v240, v241, s[44:47], s74 offen sc1")
            a("s_mov_b64 exec, -1")
        def qc():
            a("s_mov_b64 exec, s[86:87]")
            for i in range(7):
                if i == 6: a("s_and_b32 exec_lo, exec_lo, 0xffffff"); a("s_mov_b32 exec_hi, 0")
                a(f"ds_write_b128 v22, v[{196+4*i}:{199+4*i}] offset:{800*i}")
            a("s_mov_b64 exec, -1")
        def ktst_rd():
            a("s_mul_i32 s74, s78, 5120"); a(f"s_add_u32 s74, s74, {L_T}"); a("v_add_u32 v13, s74, v12")
            for i in range(5): a(f"ds_read_b128 v[{40+4*i}:{43+4*i}], v13 offset:{i*1024}")
        def ktst_st():
            a(f"s_mul_i32 s74, s10, {80*TS}"); a("s_lshl_b32 s75, s9, 7"); a("s_sub_u32 s74, s74, s75")
            a(f"s_add_u32 s74, s74, {WS_KT + 3968}")
            for i in range(5):
                s.vmem("st", f"buffer_store_dwordx4 v[{40+4*i}:{43+4*i}], v{32+i}, s[44:47], s74 offen sc1")
        def hc(base, reg, half):
            s.vm_wait({"h"})
            l = s.newlab("L_nh"); a(f"s_cmp_ge_u32 s14, {NCONV}"); a(f"s_cbranch_scc1 {l}")
            s.h_copies(base, reg, half); s.label(l)
        def flagsA():
            s.vm_wait({"st"})
            a("s_lshl_b32 s74, s10, 9"); a("s_lshl_b32 s75, s9, 4"); a("s_add_u32 s74, s74, s75"); a("s_lshl_b32 s76, s78, 3"); a("s_add_u32 s74, s74, s76")
            a(f"s_add_u32 s74, s74, {WS_FA}")
            s.write_flag(244, 74)
            s.stamp(5)
        def flagsB():
            lb = s.newlab("L_nb")
            a("s_cmp_lt_u32 s83, 2"); a(f"s_cbranch_scc1 {lb}")
            a("s_waitcnt vmcnt(0)")
            a("s_lshl_b32 s76, s78, 3")
            a("s_lshl_b32 s74, s9, 7"); a("s_lshl_b32 s75, s10, 4"); a("s_add_u32 s74, s74, s75"); a("s_add_u32 s74, s74, s76"); a(f"s_add_u32 s74, s74, {WS_FB}")
            s.write_flag(8, 74)
            s.label(lb)
        KVT = s.kvt
        ge = s.opt.get("gearly", 1)
        if ge == 1:
            for i in range(5): lgx(i)
            lgw()
        he = s.opt.get("hearly", 0)
        if he == 1:
            for i in range(8): lh(i)
        s.vm_wait({"k"}); s.stamp(2)
        a("s_barrier")
        if s.opt.get("wdlate", 0) == 1: s.dma_rows(88, 24, 16, 17, 93, 0, "wd", nt)
        if he == 2:
            for i in range(8): lh(i)
        if he:
            for j, (b, r, hf) in enumerate(((79, 164, 0), (79, 164, 1), (84, 180, 0), (84, 180, 1))):
                sched[8 + j].append(lambda b=b, r=r, hf=hf: hc(b, r, hf))
        epoch()
        ts = s.opt.get("ts", 3)
        sched[ts].append(lambda: (ktst_rd(), a("s_waitcnt lgkmcnt(0)"), ktst_st()))
        sched[ts + 1].append(lambda: (s.vm_wait({"wd"}), wd(), s.stamp(3)))
        tf = s.opt.get("tf", 7); sched[tf].append(flagsA)
        tg = s.opt.get("tg", 16)
        if ge:
            if ge == 2: sched[2] += [lambda i=i: lgx(i) for i in range(5)] + [lgw]
            sched[ts + (0 if ge == 2 else -1) + s.opt.get("gd", 0)].append(gate)
            sched[ts + 1 + s.opt.get("gd", 0)].insert(0, gate2)
            def fb_now():
                a("s_lshl_b32 s76, s78, 3")
                a("s_lshl_b32 s74, s9, 7"); a("s_lshl_b32 s75, s10, 4"); a("s_add_u32 s74, s74, s75"); a("s_add_u32 s74, s74, s76"); a(f"s_add_u32 s74, s74, {WS_FB}")
                s.write_flag(248, 74)
            sched[tf].append(fb_now)
            s.flagsB = lambda: None
        else:
            sched[tg - 4] += [lambda i=i: lgx(i) for i in range(5)] + [lgw]
            sched[tg - 1].append(gate); sched[tg].append(gate2)
            s.flagsB = flagsB
        tp = s.opt.get("tp", 13)
        def fa_ld():
            a(f"v_mov_b32 v2, {L_SDONE}"); a("ds_read_b32 v2, v2"); a("s_waitcnt lgkmcnt(0)"); a("v_readfirstlane_b32 s14, v2"); a("s_nop 1")
            a("s_mul_i32 s74, s14, 3277"); a("s_lshr_b32 s74, s74, 16"); a("s_min_u32 s74, s74, 7")
            a("s_cmp_eq_u32 s78, 0"); a("s_cselect_b32 s74, s74, s10"); a("s_lshl_b32 s74, s74, 9"); a(f"s_add_u32 s74, s74, {WS_FA}")
            a("v_lshlrev_b32 v2, 3, v1")
            s.vmem("fa", "buffer_load_dwordx2 v[4:5], v2, s[44:47], s74 offen sc1")
            if s.pre:
                a("v_min_u32 v3, 15, v1"); a("v_lshlrev_b32 v3, 3, v3"); a("s_lshl_b32 s74, s9, 7"); a(f"s_add_u32 s74, s74, {WS_FB}")
                s.vmem("fa", "buffer_load_dwordx2 v[6:7], v3, s[44:47], s74 offen sc1")
        def fa_ck():
            s.vm_wait({"fa"})
            if s.pre:
                a("v_cmp_ne_u64 vcc, s[72:73], v[6:7]"); a("s_nop 1")
                lf2 = s.newlab("L_nf")
                a(f"s_cbranch_vccnz {lf2}")
                s.lds_set(8, L_FBOK, 1)
                s.label(lf2)
            a("v_cmp_ne_u64 vcc, s[72:73], v[4:5]"); a("s_nop 1")
            lf = s.newlab("L_nf")
            a(f"s_cbranch_vccnz {lf}")
            a("s_lshl_b32 s74, s78, 2"); a(f"s_add_u32 s74, s74, {L_QDONE}"); s.lds_set(8, "s74", 1)
            s.label(lf)
        if s.opt.get("hmid", 7): sched[s.opt.get("hmid", 7)].append(lambda: (a("s_add_u32 s83, s78, 2"), s.h_own(83)))
        if s.opt.get("hmid", 7) and s.opt.get("hp", 19) < 17:
            for hf in range(2): sched[s.opt.get("hp") + hf].append(lambda hf=hf: hc(84, 164, hf))
        sched[4].append(lambda: a("s_waitcnt lgkmcnt(0)"))
        sched[tp].append(fa_ld); sched[tp + 2].insert(0, fa_ck); sched[tp + 3].append(lambda: a("s_waitcnt lgkmcnt(0)"))
        tq = s.opt.get("tq", 14)
        sched[tq] += Lq
        if s.opt.get("qearly", 0): sched[tq + 2].append(lambda: (s.vm_wait({"q"}), qc()))
        for t in range(2, 17):
            s.stamp(40 + t, 2)
            a("s_barrier")
            if not s.opt.get("noc"):
                for f in sched[t]: f()
        assert all(not sched[t] for t in range(17, 21))
        s.qc = qc
        a("s_add_u32 s83, s78, 2")

    def ywave(s):
        a = s.a; s.vm_reset()
        s.label("L_Yt")
        a(f"s_mul_i32 s84, s83, {CV_SZ}"); a(f"s_add_u32 s84, s84, {L_CV}"); a(f"s_add_u32 s93, s84, {H_SZ}")
        s.srd(60, 24, 2621440)
        a(f"v_mov_b32 v16, {L_EPOCH}"); a("ds_read_b32 v20, v16 offset:16"); a(f"v_mov_b32 v21, {L_FBOK}"); a("ds_read_b32 v21, v21"); a("ds_read_b128 v[16:19], v16")
        a("v_lshlrev_b32 v2, 3, v1")
        a("s_waitcnt lgkmcnt(0)")
        a("v_readfirstlane_b32 s14, v20"); a("v_readfirstlane_b32 s15, v21")
        a("v_readfirstlane_b32 s72, v16"); a("v_readfirstlane_b32 s73, v17"); a("v_readfirstlane_b32 s99, v18")
        a("s_mul_i32 s98, s14, 3277"); a("s_lshr_b32 s98, s98, 16"); a("s_lshl_b32 s98, s98, 9"); a(f"s_add_u32 s98, s98, {WS_FA}")
        a("s_lshl_b32 s85, s14, 2"); a("s_add_u32 s85, s85, s83"); a("s_lshl_b32 s74, s85, 12")
        a(f"s_mul_i32 s100, s85, {TS}"); a(f"s_add_u32 s100, s100, {WS_KT}")
        a("s_waitcnt vmcnt(20)"); s.stamp(57, 2); a("s_barrier"); s.stamp(33, 2)
        a(f"s_cmp_lt_u32 s14, {NCONV}"); a("s_cselect_b32 s99, s99, 0")
        a("s_cmp_lg_u32 s99, 0"); a("s_cselect_b32 s101, s100, 0x7ff00000")
        a("s_cmp_lg_u32 s99, 0"); a("s_cselect_b32 s75, 0x7ff00000, s98")
        a(f"s_cmp_lt_u32 s14, {NCONV}"); a("s_cselect_b32 s75, s75, 0x7ff00000")
        a("buffer_load_dwordx2 v[4:5], v2, s[44:47], s75 offen sc1")
        nh = 0 if (s.opt.get("hearly", 0) or s.opt.get("hmid", 7)) else 4
        for i in range(nh):
            a(f"buffer_load_dwordx4 v[{164+4*i}:{167+4*i}], v12, s[60:63], s74 offen offset:{i*1024} {'' if s.opt.get('htouch', 0) else s.nt}")
        for i in range(4):
            a(f"buffer_load_dwordx4 v[{48+4*i}:{51+4*i}], v12, s[44:47], s101 offen offset:{i*1024} sc1")
        lq = s.newlab("L_nq")
        a(f"s_waitcnt vmcnt({11 + nh})")
        if not s.opt.get("qearly", 0):
            a("s_cmp_lt_u32 s83, 2"); a(f"s_cbranch_scc1 {lq}")
            a(f"s_waitcnt vmcnt({5 + nh})")
            s.qc()
            s.label(lq)
        hp = s.opt.get("hp", 19) if s.opt.get("hmid", 7) else 0
        def hcp():
            lh_ = s.newlab("L_nh"); a(f"s_cmp_ge_u32 s14, {NCONV}"); a(f"s_cbranch_scc1 {lh_}")
            s.h_copies(84, 164); s.label(lh_)
        s.stamp(58, 2); a("s_barrier"); s.stamp(34, 2)
        if hp == 18: hcp()
        s.u_addr(93)
        a(f"s_waitcnt vmcnt({5 + nh})"); a("s_waitcnt lgkmcnt(0)")
        s.stamp(59, 2); a("s_barrier"); s.stamp(35, 2)
        s.ap_addr()
        s.stamp(1)
        if s.opt.get("g1only"): a("s_branch L_fin2")
        if s.opt.get("noconv"): a("s_branch L_apart")
        lcv = s.newlab("L_cvgo")
        a(f"s_cmp_lt_u32 s14, {NCONV}"); a(f"s_cbranch_scc1 {lcv}")
        s.flagsB()
        a("s_branch L_apart")
        s.label(lcv)
        a(f"s_setprio {s.opt.get('sprio', 1)}")
        lk2 = s.newlab("L_hk")
        a("s_cmp_lg_u32 s99, 0"); a(f"s_cbranch_scc1 {lk2}")
        lk3 = s.newlab("L_hk")
        a(f"s_waitcnt vmcnt({4 + nh})")
        a("v_cmp_ne_u64 vcc, s[72:73], v[4:5]"); a("s_nop 1"); a(f"s_cbranch_vccz {lk3}")
        s.poll(4, 2, "s98")
        s.label(lk3)
        for i in range(4):
            a(f"buffer_load_dwordx4 v[{48+4*i}:{51+4*i}], v12, s[44:47], s100 offen offset:{i*1024} sc1")
        s.label(lk2)
        s.stamp(6)
        if hp == 19: s.h_copies(84, 164)
        if nh:
            a("s_waitcnt vmcnt(4)")
            s.h_copies(84, 164)
        s.u_stage(48, 0)
        s.flagsB()
        if s.pre and not s.opt.get("pit", 0):
            lnp0 = s.newlab("L_np")
            a("s_cmp_lg_u32 s15, 1"); a(f"s_cbranch_scc1 {lnp0}")
            s.ap_loads(); a("s_mov_b32 s15, 2")
            s.label(lnp0)
        s.stamp(7)
        if s.opt.get("sprio", 1) != 1: a("s_setprio 1")
        a("v_add_u32 v13, s93, v12")
        a("v_and_b32 v2, 15, v1"); a("v_lshrrev_b32 v3, 4, v1"); a("v_and_b32 v4, 1, v2"); a("v_lshrrev_b32 v5, 1, v2")
        a(f"v_mul_u32_u24 v6, {CV_B}, v4"); a("v_lshl_add_u32 v6, v3, 4, v6"); a("v_lshl_add_u32 v6, v5, 3, v6"); a("v_add_u32 v6, s84, v6")
        a("v_lshlrev_b32 v7, 4, v3"); a("v_lshlrev_b32 v8, 6, v5"); a("v_sub_u32 v7, v7, v8"); a("v_add_u32 v7, 512, v7")
        a(f"v_mul_u32_u24 v9, {CV_U1}, v4"); a("v_add_u32 v9, s93, v9"); a("v_subrev_u32 v9, 64, v9")
        def baddr():
            a("v_lshrrev_b32 v10, 3, v7"); a("v_and_b32 v10, 32, v10"); a("v_xor_b32 v10, v10, v7"); a("v_add_u32 v10, v10, v9"); a("v_add_u32 v7, 64, v7")
        SA = (96, 160); SB = (128, 192)
        def reads(st, par):
            R = []
            for c in range(8):
                for hh in range(2):
                    R.append(f"ds_read_b64 v[{SA[st]+4*c+2*hh}:{SA[st]+4*c+2*hh+1}], v6 offset:{512*c + 8*hh + 64*par}")
                for hh in range(2):
                    R.append(f"ds_read_b64 v[{SB[st]+4*c+2*hh}:{SB[st]+4*c+2*hh+1}], v10 offset:{512*(7-c) + 8*hh}")
            return R
        def mfmas(st, full=True):
            M = []
            for aa in range(8):
                for c in (range(aa + 1) if full else [aa]):
                    b = aa - c; o = 224 + 4 * aa
                    M.append(f"v_mfma_f32_16x16x32_bf16 v[{o}:{o+3}], v[{SA[st]+4*c}:{SA[st]+4*c+3}], v[{SB[st]+4*b}:{SB[st]+4*b+3}], v[{o}:{o+3}]")
            return M
        def inter(M, R):
            a("s_waitcnt lgkmcnt(12)")
            for mi, m in enumerate(M):
                if mi == 15: a("s_waitcnt lgkmcnt(15)")
                a(m)
                if mi < len(R): a(R[mi])
        baddr()
        a("s_waitcnt lgkmcnt(0)")
        for r in reads(0, 0): a(r)
        for r in range(224, 256): a(f"v_mov_b32 v{r}, 0")
        a("s_mov_b32 s86, 0")
        s.label("L_cv")
        baddr()
        inter(mfmas(0), reads(1, 1))
        a("v_add_u32 v6, 128, v6"); baddr()
        inter(mfmas(1), reads(0, 0))
        a("s_add_u32 s86, s86, 1")
        if s.pre and s.opt.get("pit", 0):
            lnp0 = s.newlab("L_np")
            a(f"s_cmp_lg_u32 s86, {s.opt.get('pit', 0)}"); a(f"s_cbranch_scc1 {lnp0}")
            a("s_cmp_lg_u32 s15, 1"); a(f"s_cbranch_scc1 {lnp0}")
            s.ap_loads(); a("s_mov_b32 s15, 2")
            s.label(lnp0)
        a("s_cmp_lt_u32 s86, 4"); a("s_cbranch_scc1 L_cv")
        a("s_waitcnt lgkmcnt(0)")
        for m in mfmas(0, False): a(m)
        a("v_lshlrev_b32 v8, 4, v3"); a("v_lshl_add_u32 v8, v4, 2, v8"); a("v_lshl_add_u32 v8, v5, 6, v8")
        a(f"v_sub_u32 v8, {CV_U0 + 2*(2046 - 4) - 512}, v8"); a("v_add_u32 v8, s93, v8")
        a("s_nop 4")
        for t in range(8):
            o = 224 + 4 * t
            a(f"v_cvt_pk_bf16_f32 v{16+2*t}, v{o+3}, v{o+2}")
            a(f"v_cvt_pk_bf16_f32 v{17+2*t}, v{o+1}, v{o}")
        for t in range(8):
            off = 128 if t % 2 == 0 else 0
            a(f"ds_write2_b32 v8, v{16+2*t}, v{17+2*t} offset0:{off} offset1:{off+2}")
            if t % 2 == 1 and t < 7: a("v_subrev_u32 v8, 1024, v8")
        a("s_waitcnt lgkmcnt(0)")
        for i in range(4): a(f"ds_read_b128 v[{32+4*i}:{35+4*i}], v13 offset:{CV_U0 + i*1024}")
        a(f"s_mul_i32 s74, s85, {TS}"); a(f"s_add_u32 s74, s74, {WS_YT}")
        for i in range(4):
            a(f"s_waitcnt lgkmcnt({3-i})")
            a(f"buffer_store_dwordx4 v[{32+4*i}:{35+4*i}], v12, s[44:47], s74 offen offset:{i*1024} sc1")
        s.stamp(8)
        a("s_waitcnt vmcnt(0)")
        a("s_lshl_b32 s74, s85, 3"); a(f"s_add_u32 s74, s74, {WS_FY}")
        s.write_flag(48, 74)
        a("s_setprio 0")
        s.label("L_apart")
        a("s_setprio 0")
        if s.opt.get("xh", 1): s.lds_wait(L_XH, 1, 1, 148, slp=2)
        s.stamp(9)
        lpre = s.newlab("L_pre"); lnp = s.newlab("L_np")
        a("s_cmp_eq_u32 s15, 2"); a(f"s_cbranch_scc1 {lpre}")
        a("s_cmp_eq_u32 s15, 1"); a(f"s_cbranch_scc1 {lnp}")
        a("v_min_u32 v2, 15, v1"); a("v_lshlrev_b32 v2, 3, v2")
        a("s_lshl_b32 s74, s9, 7"); a(f"s_add_u32 s74, s74, {WS_FB}")
        s.poll(4, 2, "s74")
        s.label(lnp)
        s.ap_loads()
        a("s_waitcnt vmcnt(0)")
        s.label(lpre)
        a("v_sub_u32 v3, 63, v1")
        tile_loads = s.tile_loads
        a("s_lshl_b32 s74, s87, 1"); a("s_add_u32 s26, s26, s74"); a("s_addc_u32 s27, s27, 0")
        a("s_load_dwordx8 s[48:55], s[26:27], 0"); a("s_load_dwordx2 s[56:57], s[26:27], 32")
        a("v_add_u32 v13, s84, v12")
        a("v_mul_u32_u24 v7, 160, v3"); a("s_mul_i32 s74, s83, 40"); a(f"s_add_u32 s74, s74, {L_QT}"); a("v_add_u32 v7, s74, v7")
        for gq in range(5): a(f"ds_read_b64 v[{80+2*gq}:{81+2*gq}], v7 offset:{8*gq}")
        for i in range(3):
            if i == 2: a("s_mov_b32 exec_hi, 0")
            a(f"ds_write_b128 v13, v[{64+4*i}:{67+4*i}] offset:{i*1024}")
            if i == 2: a("s_mov_b64 exec, -1")
        a("v_and_b32 v8, 15, v1"); a("v_lshrrev_b32 v9, 2, v8"); a("v_lshlrev_b32 v9, 7, v9"); a("v_and_b32 v8, 3, v8"); a("v_lshl_add_u32 v9, v8, 3, v9")
        a("v_lshrrev_b32 v8, 4, v1"); a("v_lshl_add_u32 v9, v8, 5, v9"); a("v_add_u32 v9, s84, v9")
        a(f"v_add_u32 v2, {L_GF}, v78"); a("ds_write_b32 v2, v76")
        a("s_waitcnt lgkmcnt(0)")
        for gq in range(5): a(f"ds_read_b64_tr_b16 v[{150+2*gq}:{151+2*gq}], v9 offset:{512*gq}")
        for gq in range(5):
            for e in range(2):
                r = 96 + 4 * gq + 2 * e
                a(f"v_lshlrev_b32 v{r}, 16, v{80+2*gq+e}"); a(f"v_and_b32 v{r+1}, 0xffff0000, v{80+2*gq+e}")
                a(f"v_mul_f32 v{r}, v{r}, v76"); a(f"v_mul_f32 v{r+1}, v{r+1}, v76")
        a("s_waitcnt lgkmcnt(0)")
        for gq in range(5):
            for e in range(2):
                sd = 48 + 2 * gq + e; r = 120 + 4 * gq + 2 * e
                a(f"s_lshl_b32 s58, s{sd}, 16"); a(f"s_and_b32 s59, s{sd}, 0xffff0000")
                a(f"v_lshlrev_b32 v{r}, 16, v{150+2*gq+e}"); a(f"v_and_b32 v{r+1}, 0xffff0000, v{150+2*gq+e}")
                a(f"v_mul_f32 v{r}, s58, v{r}"); a(f"v_mul_f32 v{r+1}, s59, v{r+1}")
        s.lds_wait(L_XG2, 1, 1, 160, slp=2)
        a("v_min_u32 v2, 19, v1"); a("v_lshlrev_b32 v2, 3, v2")
        a("s_lshl_b32 s74, s87, 3"); a(f"s_add_u32 s74, s74, {WS_FY}")
        if not s.opt.get("noconv"): s.poll(146, 2, "s74", slp=s.opt.get("yslp", 12))
        s.stamp(10)
        if s.opt.get("aprio", 2): a(f"s_setprio {s.opt.get('aprio', 2)}")
        if s.opt.get("xga", -1) >= 0: s.lds_wait(L_XG2, 1, 2, 160, slp=1)
        tile_loads(WS_YT, 16)
        for i in range(3):
            a(f"s_waitcnt vmcnt({2-i})")
            if i == 2: a("s_mov_b32 exec_hi, 0")
            a(f"ds_write_b128 v13, v[{16+4*i}:{19+4*i}] offset:{i*1024}")
            if i == 2: a("s_mov_b64 exec, -1")
        a("s_waitcnt lgkmcnt(0)")
        for gq in range(5): a(f"ds_read_b64_tr_b16 v[{150+2*gq}:{151+2*gq}], v9 offset:{512*gq}")
        for gq in range(5):
            a("s_waitcnt lgkmcnt(4)")
            for e in range(2):
                a(f"v_lshlrev_b32 v144, 16, v{150+2*gq+e}"); a(f"v_and_b32 v145, 0xffff0000, v{150+2*gq+e}")
                a(f"v_add_f32 v144, v144, v{120+4*gq+2*e}"); a(f"v_add_f32 v145, v145, v{121+4*gq+2*e}")
                a(f"v_mul_f32 v144, v144, v{96+4*gq+2*e}"); a(f"v_mul_f32 v145, v145, v{97+4*gq+2*e}")
                a(f"v_cvt_pk_bf16_f32 v{80+2*gq+e}, v144, v145")
            a(f"ds_write_b64 v7, v[{80+2*gq}:{81+2*gq}] offset:{8*gq}")
        s.stamp(11)
        a("s_branch L_final")

    def xwave(s):
        a = s.a; s.vm_reset()
        s.label("L_X")
        a("s_setprio 2")
        a("v_mov_b32 v16, 0"); a("v_mov_b32 v17, 0"); a("v_mov_b32 v18, 0"); a("v_mov_b32 v19, 0")
        a(f"v_add_u32 v20, {L_MISC}, v12")
        a("s_mov_b64 exec, 15"); a("ds_write_b128 v20, v[16:19]"); a("s_mov_b64 exec, -1")
        a("s_lshr_b32 s74, s3, 1"); a("s_and_b32 s75, s3, 1")
        if s.m16:
            a("v_lshrrev_b32 v14, 5, v1")
            a("v_bfe_u32 v13, v1, 3, 1"); a("v_bfe_u32 v15, v1, 2, 1"); a("v_xor_b32 v15, v15, v13"); a("v_lshl_add_u32 v13, v15, 1, v13")
            a("v_lshrrev_b32 v16, 4, v1"); a("v_xor_b32 v13, v13, v16")
            a("v_and_b32 v17, 15, v1"); a("v_lshlrev_b32 v17, 6, v17"); a("s_lshl_b32 s76, s74, 12"); a("v_add_u32 v17, s76, v17"); a("v_lshl_add_u32 v5, v13, 4, v17")
            a("v_bfe_u32 v15, v1, 4, 1")
            a("v_bfe_u32 v17, v1, 2, 2"); a("v_lshl_add_u32 v16, v16, 3, v17"); a("v_lshlrev_b32 v16, 6, v16")
            a("v_and_b32 v17, 3, v1"); a("v_lshl_add_u32 v16, v17, 3, v16"); a(f"v_add_u32 v16, {L_WR}, v16")
        else:
            a("v_and_b32 v20, 31, v1"); a("v_lshrrev_b32 v13, 2, v20"); a("v_lshrrev_b32 v14, 1, v13"); a("v_xor_b32 v13, v13, v14"); a("v_and_b32 v13, 3, v13")
            a("v_lshrrev_b32 v14, 5, v1"); a("v_xor_b32 v15, v14, v13"); a("v_xor_b32 v16, 2, v15")
            a("v_lshlrev_b32 v17, 6, v20"); a("s_lshl_b32 s76, s74, 12"); a("v_add_u32 v17, s76, v17")
            a("v_lshl_add_u32 v5, v15, 4, v17"); a("v_lshl_add_u32 v6, v16, 4, v17")
            a("v_bfe_u32 v15, v1, 4, 1"); a("v_bfe_u32 v16, v1, 2, 2"); a("v_lshl_add_u32 v16, v14, 3, v16"); a("v_lshlrev_b32 v16, 6, v16")
            a("v_mul_u32_u24 v17, 6144, v15"); a("v_add_u32 v16, v16, v17")
            a("v_and_b32 v17, 1, v1"); a("v_lshl_add_u32 v16, v17, 4, v16"); a("v_bfe_u32 v17, v1, 1, 1"); a("v_lshl_add_u32 v16, v17, 3, v16")
            a(f"v_add_u32 v16, {L_WR}, v16")
        a("s_mul_i32 s76, s75, 3")
        for T in range(3):
            a(f"s_add_u32 s77, s76, {T}"); a("s_and_b32 s78, s77, 1"); a("s_lshr_b32 s77, s77, 1"); a("s_lshl_b32 s77, s77, 11")
            a("v_xor_b32 v17, s78, v15"); a(f"v_lshl_add_u32 v{2+T}, v17, 5, v16"); a(f"v_add_u32 v{2+T}, s77, v{2+T}")
        a("v_mov_b32 v7, v12"); a("v_add_u32 v8, 4096, v7")
        a("v_bfe_u32 v9, v1, 4, 1"); a("v_lshlrev_b32 v9, 10, v9"); a("v_lshl_add_u32 v9, v14, 8, v9"); a("v_and_b32 v17, 15, v1"); a("v_lshl_add_u32 v9, v17, 4, v9")
        for r in range(160, 256): a(f"v_mov_b32 v{r}, 0")
        touch = s.opt.get("touch", 0)
        if touch:
            lw = s.newlab("L_tw"); le = s.newlab("L_te")
            a("s_cmp_ge_u32 s3, 2"); a(f"s_cbranch_scc1 {lw}")
            s.srd(48, 16, 2621440)
            a("s_lshr_b32 s76, s4, 2"); a("s_lshl_b32 s76, s76, 6"); a("s_lshl_b32 s77, s5, 1"); a("s_add_u32 s76, s76, s77"); a("s_add_u32 s76, s76, s3")
            a(f"s_mul_i32 s98, s76, {16*1280}")
            a("v_and_b32 v92, 15, v1"); a("v_mul_u32_u24 v92, 1280, v92"); a("v_bfe_u32 v93, v1, 4, 1"); a("v_lshl_add_u32 v92, v93, 7, v92")
            a("s_mov_b32 s99, 256"); a("s_mov_b32 s100, -1")
            a(f"s_branch {le}")
            s.label(lw)
            a("s_cmp_eq_u32 s3, 2")
            a("s_cselect_b32 s48, s30, s32"); a("s_cselect_b32 s49, s31, s33"); a("s_and_b32 s49, s49, 0xffff")
            a("s_mov_b32 s50, 1966080"); a("s_mov_b32 s51, 0x20000")
            a("v_mul_u32_u24 v93, 5462, v1"); a("v_lshrrev_b32 v93, 16, v93"); a("v_mul_u32_u24 v94, 12, v93"); a("v_sub_u32 v94, v1, v94")
            a("v_cmp_lt_u32 vcc, 5, v94"); a(f"v_mul_u32_u24 v92, {64*3072}, v93"); a(f"v_mov_b32 v95, {3072 - 768}"); a("v_cndmask_b32 v95, 0, v95, vcc")
            a("v_lshl_add_u32 v92, v94, 7, v92"); a("v_add_u32 v92, v92, v95")
            a("s_and_b32 s76, s4, 3"); a("s_mul_i32 s76, s76, 768"); a(f"s_mul_i32 s77, s5, {2*3072}"); a("s_add_u32 s98, s76, s77")
            a(f"s_mov_b32 s99, {2*64*3072}"); a("s_mov_b32 s100, 0xffffff")
            s.label(le)
        def do_touch():
            a("s_mov_b32 exec_lo, s100"); a("s_mov_b32 exec_hi, 0")
            a("buffer_load_dword v93, v92, s[48:51], s98 offen")
            a("s_mov_b64 exec, -1"); a("s_add_u32 s98, s98, s99")
        tpre = s.opt.get("tpre", 2)
        if touch:
            for _ in range(tpre if touch == 2 else 5): do_touch()
        SB = (12, 52)
        def reads(st, slot):
            R = []
            if s.m16:
                W = [f"ds_read_b64_tr_b16 v[{SB[st]+8*T+4*u+2*hh}:{SB[st]+8*T+4*u+2*hh+1}], v{2+T} offset:{slot*12288 + u*6144 + hh*256}" for T in range(3) for u in range(2) for hh in range(2)]
                X = [f"ds_read_b128 v[{SB[st]+24+4*nt}:{SB[st]+24+4*nt+3}], v5 offset:{slot*8192 + nt*1024}" for nt in range(4)]
                return [X[0], W[0], W[1], X[1], X[2], X[3]] + W[2:]
            for sub in range(2):
                W = []
                for T in range(3):
                    for hh in range(2):
                        r = SB[st] + 12 * sub + 4 * T + 2 * hh
                        W.append(f"ds_read_b64_tr_b16 v[{r}:{r+1}], v{2+T} offset:{slot*12288 + sub*1024 + hh*256}")
                X = [f"ds_read_b128 v[{SB[st]+24+8*sub+4*nt}:{SB[st]+24+8*sub+4*nt+3}], v{5+sub} offset:{slot*8192 + nt*2048}" for nt in range(2)]
                R += [X[0], W[0], W[1], X[1], W[2], W[3], W[4], W[5]]
            return R
        def mfmas(st):
            M = []
            if s.m16:
                seq = [(T, u, nt) for T in range(3) for u in range(2) for nt in range(4)]
                mo = s.opt.get("mord", 0)
                if mo == 1: seq = [(T, u, nt) for nt in range(4) for T in range(3) for u in range(2)]
                if mo == 2: seq = [(T, u, nt if (2 * T + u) % 2 == 0 else 3 - nt) for T in range(3) for u in range(2) for nt in range(4)]
                for (T, u, nt) in seq:
                    if True:
                        if True:
                            o = 160 + 16 * (2 * T + nt // 2) + 8 * u + 4 * (nt & 1); w = SB[st] + 8 * T + 4 * u; x = SB[st] + 24 + 4 * nt
                            M.append(f"v_mfma_f32_16x16x32_bf16 v[{o}:{o+3}], v[{w}:{w+3}], v[{x}:{x+3}], v[{o}:{o+3}]")
                return M
            for sub in range(2):
                for T in range(3):
                    for nt in range(2):
                        o = 160 + 16 * (2 * T + nt); w = SB[st] + 12 * sub + 4 * T; x = SB[st] + 24 + 8 * sub + 4 * nt
                        M.append(f"v_mfma_f32_32x32x16_bf16 v[{o}:{o+15}], v[{w}:{w+3}], v[{x}:{x+3}], v[{o}:{o+15}]")
            return M
        a("s_mov_b32 s86, 0")
        a("s_waitcnt lgkmcnt(0)")
        s.kwait()
        if s.opt.get("ctouch", 1):
            lct = s.newlab("L_ct")
            a("s_cmp_lg_u32 s3, 1"); a(f"s_cbranch_scc1 {lct}")
            a("s_getpc_b64 s[76:77]")
            s.label("L_pc")
            a(f"s_sub_u32 s76, s76, L_pc-{KN}"); a("s_subb_u32 s77, s77, 0")
            a("s_mul_i32 s78, s5, 7"); a("v_add_u32 v50, s78, v1"); a("v_lshlrev_b32 v50, 7, v50"); a(f"v_min_u32 v50, L_codeend-{KN}-4, v50")
            a("s_mov_b64 exec, 0x7f"); a("global_load_dword v51, v50, s[76:77]"); a("s_mov_b64 exec, -1")
            s.label(lct)
        a("s_barrier")
        s.kv_pre()
        a("s_waitcnt vmcnt(0)")
        a("s_barrier")
        for r in reads(0, 0): a(r)
        a("s_waitcnt lgkmcnt(0)")
        s.label("L_g1")
        for slot in range(4):
            M = mfmas(slot & 1); R = reads((slot + 1) & 1, (slot + 1) & 3)
            if s.opt.get("stamps", 0) == 2:
                a("s_memtime s[96:97]"); a(f"s_add_u32 m0, s86, {41 + slot}"); a("s_waitcnt lgkmcnt(0)"); a("v_writelane_b32 v11, s96, m0")
            a(M[0])
            if s.m16: a(M[1])
            if slot == 3:
                lnb = s.newlab("L_nb"); a("s_cmp_eq_u32 s86, 16"); a(f"s_cbranch_scc1 {lnb}"); a("s_barrier"); s.label(lnb)
            else: a("s_barrier")
            if s.m16:
                rp = s.opt.get("rp", 1)
                ri = 0; mi = 2
                while ri < 16:
                    for _ in range(2 if (rp == 2 and mi % 2 == 0) else 1):
                        if ri < 16: a(R[ri]); ri += 1
                    a(M[mi]); mi += 1
                M = M[:6] + M[mi:]
            else:
                for i in range(5):
                    for r in R[3 * i:3 * i + 3]: a(r)
                    a(M[1 + i])
                a(R[15])
            if touch == 2 and slot == s.opt.get("tslot", 0):
                lt = s.newlab("L_nt")
                a(f"s_cmp_ge_u32 s86, {4 * (5 - tpre)}"); a(f"s_cbranch_scc1 {lt}"); do_touch(); s.label(lt)
            for m in M[6:]: a(m)
            a("s_waitcnt lgkmcnt(0)")
            if slot == 0:
                a("s_cmp_eq_u32 s86, 0"); a("s_cbranch_scc1 L_kv")
                s.label("L_kvret")
        a("s_add_u32 s86, s86, 4")
        a("s_cmp_lt_u32 s86, 20"); a("s_cbranch_scc1 L_g1")
        s.stamp(1)
        if s.opt.get("g1only"): a("s_branch L_fin2")
        if s.opt.get("xidle"): s.lds_set(2, L_XG2, 1); a("s_branch L_final")
        a(f"v_mov_b32 v116, {L_EPOCH}"); a("v_mov_b32 v117, 1"); a("s_mov_b64 exec, 1"); a(f"ds_add_u32 v116, v117 offset:{L_XCNT - L_EPOCH}"); a("s_mov_b64 exec, -1")
        a("ds_read_b128 v[116:119], v116"); a("s_waitcnt lgkmcnt(0)")
        a("v_readfirstlane_b32 s72, v116"); a("v_readfirstlane_b32 s73, v117"); a("v_readfirstlane_b32 s76, v119"); a("s_nop 1")
        lfa = s.newlab("L_faok")
        a("s_cmp_lg_u32 s76, 0"); a(f"s_cbranch_scc1 {lfa}")
        a("v_lshlrev_b32 v114, 3, v1")
        a("s_lshl_b32 s76, s10, 9"); a(f"s_add_u32 s76, s76, {WS_FA}")
        s.poll(112, 114, "s76")
        s.label(lfa)
        s.stamp(2)
        if s.opt.get("g2map", 1): a("s_mul_i32 s78, s11, 3"); a("s_lshr_b32 s78, s78, 1"); a("s_mul_i32 s79, s12, 3"); a("s_add_u32 s78, s78, s79")
        else: a("s_mul_i32 s78, s10, 3"); a("s_lshr_b32 s78, s78, 1"); a("s_mul_i32 s79, s13, 3"); a("s_add_u32 s78, s78, s79")
        a("s_cmp_ge_u32 s78, 12"); a("s_cselect_b32 s79, 12, 0"); a("s_sub_u32 s78, s78, s79")
        if s.opt.get("g2rot") == 0: a("s_mov_b32 s78, 0")
        a("s_mul_i32 s79, s3, 12")
        a(f"s_mul_i32 s80, s10, {WBS}"); a(f"s_add_u32 s80, s80, {WS_WB}")
        a(f"s_mul_i32 s81, s9, {HBS}"); a(f"s_add_u32 s81, s81, {WS_HB}")
        a("s_mul_i32 s92, s3, 20480")
        PERM = {0: list(range(12)), 1: [0, 1, 3, 6, 9, 2, 4, 7, 10, 5, 8, 11], 2: [0, 3, 6, 9, 1, 4, 7, 10, 2, 5, 8, 11], 3: [0, 1, 2, 3, 6, 9, 4, 7, 10, 5, 8, 11]}[s.opt.get("kperm", 2)]
        def kt_of(i, dst):
            i = PERM[i]
            a(f"s_add_u32 s{dst}, s78, {i}"); a(f"s_cmp_ge_u32 s{dst}, 12"); a(f"s_cselect_b32 s82, 12, 0"); a(f"s_sub_u32 s{dst}, s{dst}, s82")
            a(f"s_add_u32 s{dst}, s{dst}, s79")
        def wb_loads(i):
            kt_of(i, 83); a("s_mul_i32 s83, s83, 5120"); a("s_add_u32 s83, s83, s80")
            r = 12 + 20 * (i % 5)
            for dt in range(5):
                if dt < 4: s.vmem(("wb", i), f"buffer_load_dwordx4 v[{r+4*dt}:{r+4*dt+3}], v7, s[44:47], s83 offen offset:{dt*1024} sc1")
                else: s.vmem(("wb", i), f"buffer_load_dwordx4 v[{r+4*dt}:{r+4*dt+3}], v8, s[44:47], s83 offen sc1")
        def wb_dma(i):
            kt_of(i, 83); a("s_mul_i32 s83, s83, 5120"); a("s_add_u32 s83, s83, s80")
            a(f"s_add_u32 m0, s92, {(i - 5) * 5120}"); a("s_nop 0")
            for dt in range(4):
                s.vmem(("wd", i), f"buffer_load_dwordx4 v7, s[44:47], s83 offen offset:{dt*1024} sc1 lds")
            a(f"s_add_u32 m0, s92, {(i - 5) * 5120 + 4096}"); a("s_nop 0")
            s.vmem(("wd", i), f"buffer_load_dwordx4 v8, s[44:47], s83 offen sc1 lds")
        def wb_lds(i):
            r = 12 + 20 * (i % 5)
            for dt in range(5): a(f"ds_read_b128 v[{r+4*dt}:{r+4*dt+3}], v10 offset:{(i - 5) * 5120 + dt*1024}")
        def hb_loads(i):
            kt_of(i, 83); a("s_lshl_b32 s83, s83, 12"); a("s_add_u32 s83, s83, s81")
            r = 112 + 16 * (i % 4)
            for sb in range(4):
                s.vmem(("hb", i), f"buffer_load_dwordx4 v[{r+4*sb}:{r+4*sb+3}], v7, s[44:47], s83 offen offset:{sb*1024} {s.opt.get('hsc', 'sc1')}")
        wq = [(i, dt) for i in range(5) for dt in range(5)]
        def wb_some(n):
            for _ in range(n):
                if not wq: return
                i, dt = wq.pop(0)
                if dt == 0: kt_of(i, 98); a("s_mul_i32 s98, s98, 5120"); a("s_add_u32 s98, s98, s80")
                r = 12 + 20 * (i % 5)
                if dt < 4: s.vmem(("wb", i), f"buffer_load_dwordx4 v[{r+4*dt}:{r+4*dt+3}], v7, s[44:47], s98 offen offset:{dt*1024} sc1")
                else: s.vmem(("wb", i), f"buffer_load_dwordx4 v[{r+4*dt}:{r+4*dt+3}], v8, s[44:47], s98 offen sc1")
        wpt = s.opt.get("wpt", 1)
        wb_some(s.opt.get("npre", 0))
        a("s_mov_b32 s84, 0xbfb8aa3b"); a("s_mov_b32 s85, 0xbfb8aa3b")
        a("s_lshl_b32 s87, s6, 1"); a("s_add_u32 s87, s87, s74")
        a(f"s_mul_i32 s88, s87, {HBS}")
        a("s_mul_i32 s89, s7, 6"); a("s_mul_i32 s90, s75, 3"); a("s_add_u32 s89, s89, s90")
        for T in range(3):
            a(f"s_add_u32 s90, s89, {T}"); a("s_and_b32 s91, s90, 1"); a("s_lshr_b32 s90, s90, 1")
            a("s_lshl_b32 s90, s90, 12"); a("s_lshl_b32 s91, s91, 9"); a("s_add_u32 s90, s90, s91"); a("s_add_u32 s90, s90, s88")
            for nt in range(2):
                ti = 2 * T + nt
                o = 160 + 16 * ti; p = 120 + 4 * ti
                if ti < s.opt.get("pkt", 0):
                    for e in range(4): a(f"v_pk_mul_f32 v[{o+2*e}:{o+2*e+1}], v[{o+2*e}:{o+2*e+1}], s[84:85]")
                    for e in range(8): a(f"v_exp_f32 v{o+e}, v{o+e}")
                    for e in range(4): a(f"v_pk_add_f32 v[{o+2*e}:{o+2*e+1}], v[{o+2*e}:{o+2*e+1}], 1.0 op_sel_hi:[1,0]")
                    for e in range(8): a(f"v_rcp_f32 v{o+e}, v{o+e}")
                    for e in range(4): a(f"v_pk_mul_f32 v[{o+2*e}:{o+2*e+1}], v[{o+2*e}:{o+2*e+1}], v[{o+8+2*e}:{o+9+2*e}]")
                else:
                    for e in range(8): a(f"v_mul_f32 v{o+e}, s84, v{o+e}")
                    for e in range(8): a(f"v_exp_f32 v{o+e}, v{o+e}")
                    for e in range(8): a(f"v_add_f32 v{o+e}, 1.0, v{o+e}")
                    for e in range(8): a(f"v_rcp_f32 v{o+e}, v{o+e}")
                    for e in range(8): a(f"v_mul_f32 v{o+e}, v{o+e}, v{o+8+e}")
                for e in range(4): a(f"v_cvt_pk_bf16_f32 v{p+e}, v{o+2*e}, v{o+2*e+1}")
                if s.m16:
                    a("s_nop 1"); a(f"v_permlane16_swap_b32 v{p}, v{p+2}"); a(f"v_permlane16_swap_b32 v{p+1}, v{p+3}")
                s.vmem("hst", f"buffer_store_dwordx4 v[{p}:{p+3}], v9, s[44:47], s90 offen offset:{nt*2048} sc1")
                if ti < 5: wb_some(wpt)
        a("s_setprio 0")
        s.stamp(3)
        wb_some(s.opt.get("wmid", 6))
        s.vm_wait({"hst"})
        a("s_lshl_b32 s90, s87, 8"); a("s_lshl_b32 s91, s7, 4"); a("s_add_u32 s90, s90, s91"); a("s_lshl_b32 s91, s75, 3"); a("s_add_u32 s90, s90, s91")
        a(f"s_add_u32 s90, s90, {WS_FH}")
        s.write_flag(144, 90)
        s.lds_set(2, L_XH, 1)
        s.stamp(4)
        wb_some(25)
        s.lds_wait(L_XCNT, 1, 4, 148)
        a("v_min_u32 v114, 7, v1"); a("v_lshlrev_b32 v114, 3, v114")
        a("s_lshl_b32 s90, s9, 8"); a("s_lshl_b32 s91, s3, 6"); a("s_add_u32 s90, s90, s91"); a(f"s_add_u32 s90, s90, {WS_FH}")
        p1 = s.opt.get("p1at", 2)
        for i in range(5, 9):
            if i - 5 == p1: s.vmem("p1", "buffer_load_dwordx2 v[148:149], v114, s[44:47], s90 offen sc1")
            wb_dma(i)
        a("v_add_u32 v10, s92, v7")
        if p1 >= 0:
            lgo = s.newlab("L_go")
            s.vm_wait({"p1"})
            keep = list(s.vm)
            a("v_cmp_ne_u64 vcc, s[72:73], v[148:149]"); a("s_nop 1"); a(f"s_cbranch_vccz {lgo}")
            s.poll(112, 114, "s90")
            s.label(lgo)
            s.vm = keep
        else: s.poll(112, 114, "s90")
        s.stamp(5)
        if s.opt.get("g2prio", 0): a(f"s_setprio {s.opt.get('g2prio')}")
        h0 = s.opt.get("h0", 1)
        for i in range(h0): hb_loads(i)
        for i in range(12):
            if i == s.opt.get("xga", -1): s.lds_set(2, L_XG2, 1)
            if i == s.opt.get("xg2", 7): s.lds_set(2, L_XG2, 2)
            s.vm_wait({("hb", i), ("wb", i)})
            if i == 0:
                for k in range(h0, 4): hb_loads(k)
            s.stamp(16 + i, 3)
            if 5 <= i < 9: a("s_waitcnt lgkmcnt(0)")
            rw = 12 + 20 * (i % 5); rh = 112 + 16 * (i % 4)
            n = i + 4
            extra = {k: [] for k in range(20)}
            if n < 12:
                extra[0].append(lambda n=n: (kt_of(n, 83), a("s_mul_i32 s98, s83, 5120"), a("s_add_u32 s98, s98, s80"), a("s_lshl_b32 s83, s83, 12"), a("s_add_u32 s83, s83, s81")))
                for sb in range(4):
                    extra[5 * sb + 4].append(lambda n=n, sb=sb: s.vmem(("hb", n), f"buffer_load_dwordx4 v[{rh+4*sb}:{rh+4*sb+3}], v7, s[44:47], s83 offen offset:{sb*1024} sc1"))
                if n >= 5:
                    r = 12 + 20 * (n % 5)
                    for dt in range(5):
                        if n < 9: f = lambda n=n, dt=dt, r=r: a(f"ds_read_b128 v[{r+4*dt}:{r+4*dt+3}], v10 offset:{(n - 5) * 5120 + dt*1024}")
                        elif dt < 4: f = lambda n=n, dt=dt, r=r: s.vmem(("wb", n), f"buffer_load_dwordx4 v[{r+4*dt}:{r+4*dt+3}], v7, s[44:47], s98 offen offset:{dt*1024} sc1")
                        else: f = lambda n=n, dt=dt, r=r: s.vmem(("wb", n), f"buffer_load_dwordx4 v[{r+4*dt}:{r+4*dt+3}], v8, s[44:47], s98 offen sc1")
                        extra[4 * dt + 2].append(f)
            def pw(k):
                sb, dt = divmod(k, 5); o = 176 + 4 * (4 * dt + sb)
                a(f"ds_write_b128 v12, v[{o}:{o+3}] offset:{sb*5120 + dt*64}")
            if i == 11:
                extra[0].append(lambda: (a("v_and_b32 v12, 15, v1"), a("v_lshrrev_b32 v13, 4, v1"), a("v_bfe_u32 v14, v1, 1, 2"), a("v_xor_b32 v13, v13, v14")))
                extra[1].append(lambda: (a("v_mul_u32_u24 v12, 320, v12"), a("v_lshl_add_u32 v12, v13, 4, v12"), a("v_add_u32 v12, s92, v12")))
                for k in range(12): extra[k + 8].append(lambda k=k: pw(k))
            for sb in range(4):
                for dt in range(5):
                    o = 176 + 4 * (4 * dt + sb)
                    c = "0" if i == 0 else f"v[{o}:{o+3}]"
                    a(f"v_mfma_f32_16x16x32_bf16 v[{o}:{o+3}], v[{rw+4*dt}:{rw+4*dt+3}], v[{rh+4*sb}:{rh+4*sb+3}], {c}")
                    for f in extra[5 * sb + dt]: f()
        s.stamp(6)
        for k in range(12, 20):
            if k == 19: a("s_nop 0")
            pw(k)
        s.stamp(7)

    def final(s):
        a = s.a
        s.label("L_final")
        a("s_setprio 0")
        s.srd(48, 38, 2621440)
        a(f"s_mul_i32 s74, s9, {64*1280}"); a("s_mul_i32 s75, s10, 160"); a("s_add_u32 s74, s74, s75")
        def addr(n, b):
            a(f"v_mul_u32_u24 v13, 6554, v{n}"); a("v_lshrrev_b32 v13, 16, v13")
            a("v_mul_u32_u24 v14, 10, v13"); a(f"v_sub_u32 v14, v{n}, v14")
            a("v_bfe_u32 v15, v13, 1, 2"); a(f"v_lshlrev_b32 v{b}, 1, v14"); a(f"v_xor_b32 v{b}, v{b}, v15"); a(f"v_xor_b32 v{b+1}, 1, v{b}")
            a("v_mul_u32_u24 v15, 320, v13"); a(f"v_lshl_add_u32 v{b}, v{b}, 4, v15"); a(f"v_lshl_add_u32 v{b+1}, v{b+1}, 4, v15")
            a(f"v_lshlrev_b32 v{b+2}, 4, v{n}"); a(f"v_add_u32 v{b+2}, {L_QT}, v{b+2}")
            a(f"v_lshlrev_b32 v{b+3}, 2, v13"); a(f"v_add_u32 v{b+3}, {L_GF}, v{b+3}")
            a(f"v_mul_u32_u24 v{b+4}, 1120, v13"); a(f"v_lshl_add_u32 v{b+4}, v{n}, 4, v{b+4}")
        def rd(b, d):
            for w in range(4):
                a(f"ds_read_b128 v[{d+8*w}:{d+3+8*w}], v{b} offset:{w*20480}")
                a(f"ds_read_b128 v[{d+4+8*w}:{d+7+8*w}], v{b+1} offset:{w*20480}")
            a(f"ds_read_b128 v[{d+32}:{d+35}], v{b+2}"); a(f"ds_read_b32 v{d+36}, v{b+3}")
        def comp(b, d):
            for e in range(4):
                a(f"v_pk_add_f32 v[{d+2*e}:{d+1+2*e}], v[{d+2*e}:{d+1+2*e}], v[{d+8+2*e}:{d+9+2*e}]")
                a(f"v_pk_add_f32 v[{d+16+2*e}:{d+17+2*e}], v[{d+16+2*e}:{d+17+2*e}], v[{d+24+2*e}:{d+25+2*e}]")
            a(f"v_sub_f32 v{d+36}, 1.0, v{d+36}"); a(f"v_cvt_pk_bf16_f32 v{d+36}, v{d+36}, v{d+36}"); a(f"v_and_b32 v{d+36}, 0xffff0000, v{d+36}")
            for e in range(4):
                a(f"v_pk_add_f32 v[{d+2*e}:{d+1+2*e}], v[{d+2*e}:{d+1+2*e}], v[{d+16+2*e}:{d+17+2*e}]")
            for e in range(4):
                a(f"v_lshlrev_b32 v{d+8+2*e}, 16, v{d+32+e}"); a(f"v_and_b32 v{d+9+2*e}, 0xffff0000, v{d+32+e}")
                a(f"v_pk_fma_f32 v[{d+8+2*e}:{d+9+2*e}], v[{d+2*e}:{d+1+2*e}], v[{d+36}:{d+37}], v[{d+8+2*e}:{d+9+2*e}] op_sel_hi:[1,0,1]")
            for e in range(4): a(f"v_cvt_pk_bf16_f32 v{d+32+e}, v{d+8+2*e}, v{d+9+2*e}")
            a(f"buffer_store_dwordx4 v[{d+32}:{d+35}], v{b+4}, s[48:51], s74 offen {s.opt.get('ost', '')}")
        addr(0, 16)
        a("s_lshl_b32 s75, s3, 4"); a("s_add_u32 s75, s75, 512"); a("v_and_b32 v12, 15, v1"); a("v_add_u32 v12, s75, v12")
        addr(12, 24)
        a("s_waitcnt lgkmcnt(0)"); a("s_barrier")
        s.stamp(12)
        rd(16, 32)
        a("s_mov_b64 exec, 0xffff");
        rd(24, 72)
        a("s_mov_b64 exec, -1")
        a("s_waitcnt lgkmcnt(10)")
        comp(16, 32)
        a("s_waitcnt lgkmcnt(0)")
        a("s_mov_b64 exec, 0xffff")
        comp(24, 72)
        a("s_mov_b64 exec, -1")
        s.label("L_fin2")
        if s.opt.get("stamps"):
            s.stamp(13)
            a("s_waitcnt vmcnt(0)")
            s.stamp(14)
            a("s_memrealtime s[96:97]"); a("s_waitcnt lgkmcnt(0)"); a("v_writelane_b32 v11, s96, 15")
            a("s_lshl_b32 s74, s2, 3"); a("s_add_u32 s74, s74, s3"); a("s_lshl_b32 s74, s74, 8"); a(f"s_add_u32 s74, s74, {WS_STAMP}")
            a("v_lshlrev_b32 v12, 2, v1")
            a("buffer_store_dword v11, v12, s[44:47], s74 offen")
            if s.opt.get("dbgout"):
                ld = s.newlab("L_dbo")
                a("s_cmp_lg_u32 s2, 9"); a(f"s_cbranch_scc1 {ld}"); a("s_cmp_lg_u32 s3, 0"); a(f"s_cbranch_scc1 {ld}")
                s.srd(64, 40, 256)
                a("v_readlane_b32 s74, v11, 0"); a("s_nop 1"); a("v_subrev_u32 v11, s74, v11")
                a("v_add_u32 v12, 4, v12")
                a("s_mov_b64 exec, 0x7ffe"); a("buffer_store_dword v11, v12, s[64:67], 0 offen"); a("s_mov_b64 exec, -1")
                s.label(ld)
        s.label("L_end")
        a("s_endpgm")

    def kv_pre(s):
        a = s.a
        a("v_mul_u32_u24 v90, 3277, v1"); a("v_lshrrev_b32 v90, 16, v90"); a("v_mul_u32_u24 v91, 20, v90"); a("v_sub_u32 v91, v1, v91")
        a(f"s_mul_i32 s76, s74, {CV_SZ}"); a(f"s_add_u32 s76, s76, {L_CV + 2*CV_SZ}")
        a("v_lshlrev_b32 v95, 5, v91"); a("v_add_u32 v95, s76, v95")
        a(f"s_mul_i32 s77, s75, {16*192}"); a("s_add_u32 s76, s76, s77"); a("s_and_b32 s77, s10, 1"); a("s_lshl_b32 s77, s77, 5"); a("s_add_u32 s76, s76, s77")
        a(f"v_mul_u32_u24 v10, {6*192}, v90"); a("v_lshl_add_u32 v10, v91, 3, v10"); a("v_add_u32 v10, s76, v10")
        a("s_lshl_b32 s77, s3, 3"); a("v_mul_u32_u24 v85, 3, v90"); a("v_add_u32 v85, s77, v85"); a("v_and_b32 v86, 7, v91")
        for m in range(3):
            a(f"v_sub_u32 v87, {29+m}, v85"); a("v_lshrrev_b32 v88, 2, v87"); a("v_xor_b32 v88, v88, v86"); a("v_lshlrev_b32 v88, 4, v88")
            a("v_and_b32 v87, 3, v87"); a("v_lshl_add_u32 v88, v87, 2, v88"); a(f"v_lshl_add_u32 v{92+m}, v91, 7, v88")
            a(f"v_add_u32 v{92+m}, {L_T}, v{92+m}")
    def kv_main(s):
        a = s.a
        s.label("L_kv")
        a("s_barrier")
        s.stamp(8)
        a(f"ds_read_b128 v[42:45], v95 offset:{SC_SHK}"); a(f"ds_read_b128 v[46:49], v95 offset:{SC_SHK + 16}")
        for i in range(9): a(f"ds_read_b64 v[{12+2*i}:{13+2*i}], v10 offset:{SC_K + 192*i}")
        a("s_waitcnt lgkmcnt(9)")
        for i in range(6): a(f"ds_read_b64 v[{30+2*i}:{31+2*i}], v10 offset:{SC_V + 192*i}")
        for e in range(4):
            a(f"v_lshlrev_b32 v{96+e}, 16, v{42+2*e}"); a(f"v_and_b32 v{100+e}, 0xffff0000, v{42+2*e}")
            a(f"v_lshlrev_b32 v{104+e}, 16, v{43+2*e}"); a(f"v_and_b32 v{108+e}, 0xffff0000, v{43+2*e}")
        a("s_waitcnt lgkmcnt(0)")
        s.ex(60)
        for d in range(2):
            for i in range(9):
                a(f"v_lshlrev_b32 v{112+2*i}, 16, v{12+2*i+d}"); a(f"v_and_b32 v{113+2*i}, 0xffff0000, v{12+2*i+d}")
            for i in range(6):
                a(f"v_lshlrev_b32 v{130+2*i}, 16, v{30+2*i+d}"); a(f"v_and_b32 v{131+2*i}, 0xffff0000, v{30+2*i+d}")
            for r in range(6):
                a(f"v_pk_mul_f32 v[{142+2*r}:{143+2*r}], v[{112+2*r}:{113+2*r}], v[{108+2*d}:{109+2*d}]")
            for j in (2, 1, 0):
                for r in range(6):
                    k = 112 + 2 * (r + 3 - j); w = 96 + 4 * j + 2 * d
                    a(f"v_pk_fma_f32 v[{142+2*r}:{143+2*r}], v[{k}:{k+1}], v[{w}:{w+1}], v[{142+2*r}:{143+2*r}]")
            for r in range(6):
                a(f"v_pk_mul_f32 v[{142+2*r}:{143+2*r}], v[{142+2*r}:{143+2*r}], v[{130+2*r}:{131+2*r}]")
            for e in range(2):
                for m in range(3):
                    hi = 4 - 2 * m
                    a(f"v_cvt_pk_bf16_f32 v{154+3*e+m}, v{142+2*(hi+1)+e}, v{142+2*hi+e}")
            for m in (1, 2, 0):
                if m == 0: a("s_mov_b32 exec_hi, 0xff")
                for e in range(2):
                    a(f"ds_write_b32 v{92+m}, v{154+3*e+m} offset:{(2*d+e)*2560}")
            a("s_mov_b32 exec_hi, 0xfffffff")
        a("s_mov_b64 exec, -1")
        s.stamp(9)
        a("s_branch L_kvret")
        s.label("L_codeend")

    def build(s):
        s.kvt = s.opt.get("kvt", 6); s.m16 = s.opt.get("m16", 1); s.pre = s.opt.get("pre", 1) and s.opt.get("gearly", 1)
        s.nt = "nt" if s.opt.get("nt", 1) else ""
        hdr = open("gated_mix__ssm_conv_h3__glu_gated_glu__prompt.s.ref").read().split("; Override launch")[0]
        out = hdr + f"; @launch grid=(256,1,1) block=(512,1,1) lds={LDS_TOTAL}\n"
        out += '.amdgcn_target "amdgcn-amd-amdhsa--gfx950"\n.text\n' + f".globl {KN}\n.p2align 8\n.type {KN},@function\n{KN}:\n"
        s.prologue(); s.loader(); s.chore(); s.ywave(); s.xwave(); s.final(); s.kv_main()
        out += "\n".join(s.L) + "\n"
        out += f""".section .rodata,"a"
.p2align 6
.amdhsa_kernel {KN}
  .amdhsa_next_free_vgpr 256
  .amdhsa_next_free_sgpr 102
  .amdhsa_accum_offset 256
  .amdhsa_group_segment_fixed_size 0
  .amdhsa_kernarg_size 112
  .amdhsa_user_sgpr_count 2
  .amdhsa_user_sgpr_kernarg_segment_ptr 1
  .amdhsa_system_sgpr_workgroup_id_x 1
.end_amdhsa_kernel
"""
        return out

if __name__ == "__main__":
    opt = {}
    outp = sys.argv[1]
    for x in sys.argv[2:]:
        k, v = x.split("=")
        if "," in v: opt[k] = tuple(int(z) for z in v.split(","))
        else:
            try: opt[k] = int(v)
            except ValueError: opt[k] = v
    open(outp, "w").write(Gen(opt).build())
```

```python
import sys
KN = "gated_mix__ssm_conv_h3__glu_gated_glu__prompt_kernel"

WS_HB = 0x000000; WS_WB = 0x610000; HBS = 48*4096 + 128; WBS = 48*5120 + 128; WS_KT = 0x800000; WS_YT = 0xB00000
WS_G = 0xE00000; WS_FA = 0xE10000; WS_FB = 0xE12000; WS_FH = 0xE14000; WS_FY = 0xE16000
WS_STAMP = 0xF00000
TS = 4224
L_XR = 0; L_WR = 32768; L_CV = 81920; CV_SZ = 17728; H_SZ = 8448; L_QT = 152832; L_MISC = 163072; LDS_TOTAL = 163840
CV_A = 0; CV_B = 4224; CV_U0 = 0; CV_U1 = 4616
L_FULL = L_MISC; L_FREE = L_MISC + 16; L_EPOCH = L_MISC + 32; L_QDONE = L_MISC + 40; L_SDONE = L_MISC + 48; L_XG2 = L_MISC + 56; L_XH = L_MISC + 60; L_FBOK = L_MISC + 28; L_XCNT = L_MISC + 52; L_GF = L_MISC + 256
SC_K = 0; SC_V = 6720; SC_SHK = 13440; L_T = L_CV; L_WDS = L_CV + CV_SZ
SPIN_MAX = 30000
NCONV = 160

class Gen:
    def __init__(s, opt):
        s.L = []; s.opt = opt; s.vm = []; s.lab = 0; s.vstamp = 11
    def a(s, x): s.L.append("    " + x)
    def label(s, x): s.L.append(x + ":")
    def newlab(s, p="L"):
        s.lab += 1; return f"{p}_{s.lab}"
    def vm_reset(s): s.vm = []
    def vmem(s, tag, ins): s.a(ins); s.vm.append(tag)
    def vm_wait(s, tags):
        idx = -1
        for i, t in enumerate(s.vm):
            if t in tags: idx = i
        if idx < 0: return
        n = len(s.vm) - 1 - idx
        assert n <= 63
        s.a(f"s_waitcnt vmcnt({n})")
        s.vm = s.vm[idx + 1:]
    def vm_wait_all(s):
        s.a("s_waitcnt vmcnt(0)"); s.vm = []
    def ex(s, n):
        if n >= 64: s.a("s_mov_b64 exec, -1")
        elif n > 32: s.a("s_mov_b32 exec_lo, -1"); s.a(f"s_mov_b32 exec_hi, {hex((1 << (n - 32)) - 1)}")
        elif n == 32: s.a("s_mov_b32 exec_hi, 0")
        else: s.a(f"s_mov_b32 exec_lo, {hex((1 << n) - 1)}"); s.a("s_mov_b32 exec_hi, 0")
    def srd(s, d, p, nbytes):
        s.a(f"s_mov_b32 s{d}, s{p}"); s.a(f"s_and_b32 s{d+1}, s{p+1}, 0xffff")
        s.a(f"s_mov_b32 s{d+2}, {nbytes}"); s.a(f"s_mov_b32 s{d+3}, 0x20000")
    def stamp(s, idx, lvl=1):
        if s.opt.get("stamps", 0) >= 1 and (lvl == 1 or s.opt.get("stamps", 0) == lvl):
            s.a("s_memtime s[96:97]"); s.a("s_waitcnt lgkmcnt(0)")
            s.a(f"v_writelane_b32 v{s.vstamp}, s96, {idx}")
            if s.opt.get("rt") and lvl == 1 and idx < 15:
                s.a("s_memrealtime s[96:97]"); s.a("s_waitcnt lgkmcnt(0)"); s.a(f"v_writelane_b32 v{s.vstamp}, s96, {idx + 40}")
    def poll(s, vflag, voff, soff, scnt=94, slp=None):
        l0 = s.newlab("L_poll"); l1 = s.newlab("L_pdone")
        s.a(f"s_mov_b32 s{scnt}, {SPIN_MAX}")
        s.label(l0)
        s.a(f"buffer_load_dwordx2 v[{vflag}:{vflag+1}], v{voff}, s[44:47], {soff} offen sc1")
        s.a("s_waitcnt vmcnt(0)")
        s.a(f"v_cmp_ne_u64 vcc, s[72:73], v[{vflag}:{vflag+1}]")
        s.a("s_nop 1")
        s.a(f"s_cbranch_vccz {l1}")
        slp = s.opt.get("slp", 4) if slp is None else slp
        if slp: s.a(f"s_sleep {slp}")
        s.a(f"s_sub_u32 s{scnt}, s{scnt}, 1")
        s.a(f"s_cbranch_scc0 {l0}")
        s.label(l1)
        s.vm = []
    def lds_wait(s, addr, nw, need, vt, scache=None, scnt=94, slp=0):
        a = s.a
        sc = scache if scache is not None else 95
        l0 = s.newlab("L_lw"); l1 = s.newlab("L_lwd")
        if scache is not None:
            a(f"s_cmp_ge_u32 s{sc}, {need}"); a(f"s_cbranch_scc1 {l1}")
        a(f"s_mov_b32 s{scnt}, {SPIN_MAX * 8}")
        a(f"v_mov_b32 v{vt+4}, {addr}")
        s.label(l0)
        if nw == 1: a(f"ds_read_b32 v{vt}, v{vt+4}")
        elif nw == 2: a(f"ds_read_b64 v[{vt}:{vt+1}], v{vt+4}")
        else: a(f"ds_read_b128 v[{vt}:{vt+3}], v{vt+4}")
        a("s_waitcnt lgkmcnt(0)")
        if nw == 2: a(f"v_min_u32 v{vt}, v{vt}, v{vt+1}")
        if nw == 4: a(f"v_min_u32 v{vt}, v{vt}, v{vt+1}"); a(f"v_min3_u32 v{vt}, v{vt}, v{vt+2}, v{vt+3}")
        a("s_nop 0")
        a(f"v_readfirstlane_b32 s{sc}, v{vt}")
        a("s_nop 1")
        a(f"s_cmp_ge_u32 s{sc}, {need}"); a(f"s_cbranch_scc1 {l1}")
        if slp: a(f"s_sleep {slp}")
        a(f"s_sub_u32 s{scnt}, s{scnt}, 1"); a(f"s_cbranch_scc0 {l0}")
        s.label(l1)
    def read_epoch(s, vt):
        a = s.a; l0 = s.newlab("L_re"); l1 = s.newlab("L_red")
        a(f"s_mov_b32 s94, {SPIN_MAX * 8}"); a(f"v_mov_b32 v{vt+2}, {L_EPOCH}")
        s.label(l0)
        a(f"ds_read_b64 v[{vt}:{vt+1}], v{vt+2}")
        a("s_waitcnt lgkmcnt(0)")
        a(f"v_readfirstlane_b32 s72, v{vt}"); a(f"v_readfirstlane_b32 s73, v{vt+1}"); a("s_nop 1")
        a("s_cmp_lg_u32 s73, 0"); a(f"s_cbranch_scc1 {l1}")
        a("s_sub_u32 s94, s94, 1"); a(f"s_cbranch_scc0 {l0}")
        s.label(l1)
    def write_flag(s, vt, sreg):
        s.a(f"v_mov_b32 v{vt}, s72"); s.a(f"v_mov_b32 v{vt+1}, s73"); s.a(f"v_mov_b32 v{vt+2}, 0")
        s.a("s_mov_b64 exec, 1")
        s.vmem("flag", f"buffer_store_dwordx2 v[{vt}:{vt+1}], v{vt+2}, s[44:47], s{sreg} offen sc1")
        s.a("s_mov_b64 exec, -1")
    def h_own(s, syreg):
        a = s.a
        a("s_lshl_b32 s76, s14, 2"); a(f"s_add_u32 s76, s76, s{syreg}"); a("s_lshl_b32 s76, s76, 12")
        for i in range(4):
            s.vmem("h", f"buffer_load_dwordx4 v[{164+4*i}:{167+4*i}], v12, s[60:63], s76 offen offset:{i*1024} {s.nt}")
    def tile_loads(s, base, reg):
        a = s.a
        for i in range(3):
            a(f"s_add_u32 s74, s88, {base + i*8*TS}")
            if i == 2: a("s_mov_b32 exec_hi, 0")
            a(f"buffer_load_dwordx4 v[{reg+4*i}:{reg+4*i+3}], v77, s[44:47], s74 offen sc1")
            if i == 2: a("s_mov_b64 exec, -1")
    def ap_addr(s):
        a = s.a
        a("v_sub_u32 v78, 63, v1"); a("v_lshlrev_b32 v78, 2, v78")
        a("s_mul_i32 s87, s10, 80"); a("s_mul_i32 s88, s83, 20"); a("s_add_u32 s87, s87, s88")
        a(f"s_mul_i32 s88, s87, {TS}"); a("s_lshl_b32 s75, s9, 7"); a("s_sub_u32 s88, s88, s75"); a("s_add_u32 s88, s88, 3968")
        a("v_lshrrev_b32 v77, 3, v1"); a(f"v_mul_u32_u24 v77, {TS}, v77"); a("v_and_b32 v79, 7, v1"); a("v_lshl_add_u32 v77, v79, 4, v77")
    def ap_loads(s):
        a = s.a
        a("s_lshl_b32 s74, s9, 8"); a(f"s_add_u32 s74, s74, {WS_G}")
        a("buffer_load_dword v76, v78, s[44:47], s74 offen sc1")
        s.tile_loads(WS_KT, 64)
    def kwait(s):
        if not s.opt.get("stamps") and s.opt.get("early", 1):
            s.a("s_waitcnt lgkmcnt(0)")
            s.srd(44, 42, 0x10000000)
    def lds_set(s, vt, addr_sreg_or_const, val):
        s.a(f"v_mov_b32 v{vt}, {addr_sreg_or_const}"); s.a(f"v_mov_b32 v{vt+1}, {val}"); s.a(f"ds_write_b32 v{vt}, v{vt+1}")

    def prologue(s):
        a = s.a
        a("s_cmp_ge_u32 s2, 256"); a("s_cbranch_scc1 L_end")
        a("s_load_dwordx16 s[16:31], s[0:1], 0")
        a("s_load_dwordx8 s[32:39], s[0:1], 64")
        a("s_load_dwordx4 s[40:43], s[0:1], 96")
        a("v_lshrrev_b32 v2, 6, v0")
        a("v_and_b32 v1, 63, v0")
        a("v_readfirstlane_b32 s3, v2")
        a("s_and_b32 s4, s2, 7"); a("s_lshr_b32 s5, s2, 3")
        a("s_lshr_b32 s6, s4, 2"); a("s_lshl_b32 s6, s6, 3"); a("s_and_b32 s11, s5, 7"); a("s_add_u32 s6, s6, s11")
        a("s_and_b32 s7, s4, 3"); a("s_lshl_b32 s7, s7, 2"); a("s_lshr_b32 s12, s5, 3"); a("s_add_u32 s7, s7, s12")
        a("s_lshl_b32 s8, s12, 1"); a("s_add_u32 s8, s8, s11"); a("s_and_b32 s8, s8, 7")
        if s.opt.get("g2map", 1):
            a("s_lshr_b32 s9, s4, 1"); a("s_lshl_b32 s9, s9, 3"); a("s_add_u32 s9, s9, s11")
            a("s_and_b32 s10, s4, 1"); a("s_lshl_b32 s10, s10, 2"); a("s_add_u32 s10, s10, s12")
        else:
            a("s_lshl_b32 s9, s4, 2"); a("s_and_b32 s13, s5, 3"); a("s_add_u32 s9, s9, s13"); a("s_lshr_b32 s10, s5, 2")
        if s.opt.get("cmap", 0):
            a("s_mul_i32 s14, s5, 5"); a("s_add_u32 s14, s14, s4"); a("s_cmp_lt_u32 s4, 5"); a("s_cselect_b32 s14, s14, 255")
        else: a("s_mov_b32 s14, s2")
        if s.opt.get("stamps"): a("v_mov_b32 v11, 0")
        a("v_lshlrev_b32 v12, 4, v1")
        if s.opt.get("stamps") or not s.opt.get("early", 1):
            a("s_waitcnt lgkmcnt(0)")
            s.srd(44, 42, 0x10000000)
        s.stamp(0)
        if s.opt.get("stamps"):
            a("s_memrealtime s[96:97]"); a("s_waitcnt lgkmcnt(0)"); a("v_writelane_b32 v11, s96, 62")
        a("s_cmp_lt_u32 s3, 4"); a("s_cbranch_scc1 L_X")
        a("s_cmp_ge_u32 s3, 6"); a("s_cbranch_scc1 L_C")

    def loader(s):
        a = s.a; s.vm_reset()
        s.label("L_L")
        a(f"s_setprio {s.opt.get('lprio', 3)}")
        a("s_sub_u32 s74, s3, 4")
        a("v_lshrrev_b32 v4, 2, v1"); a("v_mul_u32_u24 v2, 3072, v4")
        a("v_and_b32 v5, 3, v1")
        if s.m16: a("v_lshrrev_b32 v6, 5, v1"); a("v_lshlrev_b32 v6, 1, v6"); a("v_xor_b32 v6, v6, v5")
        else: a("s_lshl_b32 s75, s74, 1"); a("v_xor_b32 v6, s75, v5")
        a("v_lshl_add_u32 v2, v6, 4, v2")
        a("s_mul_i32 s75, s7, 192"); a("v_add_u32 v2, s75, v2")
        a("v_mul_u32_u24 v3, 1280, v4")
        if s.m16:
            a("v_lshrrev_b32 v7, 5, v1"); a("v_bfe_u32 v6, v1, 4, 1"); a("v_xor_b32 v6, v6, v7"); a("v_lshl_add_u32 v6, v6, 1, v7"); a("v_xor_b32 v6, v6, v5")
        else:
            a("v_lshrrev_b32 v6, 4, v1"); a("s_lshl_b32 s75, s74, 2"); a("v_add_u32 v6, s75, v6")
            a("v_lshrrev_b32 v7, 1, v6"); a("v_xor_b32 v6, v6, v7"); a("v_and_b32 v6, 3, v6"); a("v_xor_b32 v6, v6, v5")
        a("v_lshl_add_u32 v3, v6, 4, v3")
        a("s_lshl_b32 s75, s6, 3"); a("s_add_u32 s75, s75, s74"); a(f"s_mul_i32 s75, s75, {16*1280}"); a("v_add_u32 v3, s75, v3")
        a("s_lshl_b32 s78, s74, 10")
        a(f"s_mul_i32 s79, s74, 6144"); a(f"s_add_u32 s79, s79, {L_WR}")
        s.kwait()
        s.srd(48, 16, 2621440)
        a("s_cmp_eq_u32 s74, 0")
        a("s_cselect_b32 s52, s30, s32"); a("s_cselect_b32 s53, s31, s33"); a("s_and_b32 s53, s53, 0xffff")
        a("s_mov_b32 s54, 1966080"); a("s_mov_b32 s55, 0x20000")
        groups = s.opt.get("groups", (1,) * 10)
        if s.opt.get("cyc", 1): a("s_mul_i32 s8, s8, 5"); a("s_lshr_b32 s8, s8, 2")
        def dsel(D):
            if s.opt.get("cyc", 1):
                a(f"s_add_u32 s80, s8, {D}"); a("s_cmp_ge_u32 s80, 10"); a("s_cselect_b32 s15, 10, 0"); a("s_sub_u32 s80, s80, s15")
                return
            b = 0
            for g in groups:
                if D < b + g: break
                b += g
            if g == 1: a(f"s_mov_b32 s80, {D}"); return
            assert g in (2, 4, 8)
            src = "s8" if g == 8 else ("s14" if g == 4 else "s15")
            a(f"s_add_u32 s80, {src}, {D - b}"); a(f"s_and_b32 s80, s80, {g - 1}")
            if b: a(f"s_add_u32 s80, s80, {b}")
        def issue_x(D):
            dsel(D); a("s_lshl_b32 s81, s80, 7")
            for gi in range(4):
                for h in range(2):
                    t = 2 * D + h
                    a(f"s_add_u32 m0, s78, {L_XR + (t & 3) * 8192 + gi * 2048}")
                    a(f"s_add_u32 s82, s81, {gi * 32 * 1280 + h * 64}")
                    s.vmem(("x", t), f"buffer_load_dwordx4 v3, s[48:51], s82 offen lds")
        def issue_w(t):
            dsel(t >> 1); a(f"s_mul_i32 s81, s80, {64*3072}")
            for rh in range(2):
                for pc in range(3):
                    a(f"s_add_u32 m0, s79, {(t & 3) * 12288 + pc * 2048 + rh * 1024}")
                    a(f"s_add_u32 s82, s81, {(32 * (t & 1) + 16 * rh) * 3072 + pc * 64}")
                    s.vmem(("w", t), f"buffer_load_dwordx4 v2, s[52:55], s82 offen lds")
        def publish(t):
            s.vm_wait({("x", t), ("w", t), ("x", t | 1)})
            s.stamp(40 + t, 2)
            a("s_barrier")
            s.stamp(16 + t, 2)
        issue_w(0); issue_x(0); issue_w(1)
        a("s_barrier")
        publish(0); publish(1)
        if s.opt.get("lx1", 0):
            issue_x(1)
            a("s_barrier")
            issue_w(2)
        elif s.opt.get("rtouch", 2):
            a("s_barrier")
            issue_x(1); issue_w(2)
        else:
            issue_x(1); issue_w(2)
            a("s_barrier")
        issue_w(3)
        hold = -5
        pend = []
        for n in range(1, 17):
            if n % 2 == 0 and n + 2 < 20: pend.append(lambda n=n: issue_x((n + 2) // 2))
            if n + 3 < 20: pend.append(lambda n=n: issue_w(n + 3))
            if n != hold:
                for f in pend: f()
                pend = []
            if n == s.opt.get("hmid", 7): s.srd(60, 24, 2621440); s.h_own(74)
            hp_ = s.opt.get("hp", 19)
            if s.opt.get("hmid", 7) and hp_ < 17 and n in (hp_, hp_ + 1):
                s.vm_wait({"h"})
                lh_ = s.newlab("L_nh"); a(f"s_cmp_ge_u32 s14, {NCONV}"); a(f"s_cbranch_scc1 {lh_}")
                a("s_mov_b32 s83, s74"); a(f"s_mul_i32 s84, s74, {CV_SZ}"); a(f"s_add_u32 s84, s84, {L_CV}")
                s.h_copies(84, 164, n - hp_); a("s_mov_b32 s74, s83"); s.label(lh_)
            if n < 16: publish(n + 1)
        a("s_mov_b32 s83, s74")
        a("s_branch L_Yt")

    def row_loads(s, srd, nrows, vfirst, vrest, reg, tag, nt):
        a = s.a
        for i in range((nrows + 4) // 5):
            n = min(5, nrows - 5 * i)
            if i == 0 or n < 5: s.ex(12 * n)
            r = reg + 4 * i
            if i == 0: s.vmem(tag, f"buffer_load_dwordx4 v[{r}:{r+3}], v{vfirst}, s[{srd}:{srd+3}], 0 offen {nt}")
            else:
                a(f"s_mov_b32 s77, {6400*(i-1)}")
                s.vmem(tag, f"buffer_load_dwordx4 v[{r}:{r+3}], v{vrest}, s[{srd}:{srd+3}], s77 offen {nt}")
        a("s_mov_b64 exec, -1")
    def dma_rows(s, srd, nrows, vfirst, vrest, ldsbase_s, ldsoff, tag, nt):
        a = s.a
        for i in range((nrows + 4) // 5):
            a(f"s_add_u32 m0, s{ldsbase_s}, {ldsoff + 960*i}")
            n = min(5, nrows - 5 * i)
            if i == 0 or n < 5: s.ex(12 * n)
            if i == 0: s.vmem(tag, f"buffer_load_dwordx4 v{vfirst}, s[{srd}:{srd+3}], 0 offen {nt} lds")
            else:
                a(f"s_mov_b32 s77, {6400*(i-1)}")
                s.vmem(tag, f"buffer_load_dwordx4 v{vrest}, s[{srd}:{srd+3}], s77 offen {nt} lds")
        a("s_mov_b64 exec, -1")
    def img_write(s, sbase, off, n, reg):
        a = s.a
        a(f"v_add_u32 v13, s{sbase}, v12"); s.ex(60)
        for i in range(n): a(f"ds_write_b128 v13, v[{reg+4*i}:{reg+4*i+3}] offset:{off + 960*i}")
        a("s_mov_b64 exec, -1")
    def h_copies(s, sbase, reg, half=None):
        a = s.a
        a(f"v_add_u32 v13, s{sbase}, v12")
        for i in (range(4) if half is None else range(2 * half, 2 * half + 2)):
            r = reg + 4 * i
            if i == 0: a("v_mov_b32 v234, 0")
            else:
                a(f"v_readlane_b32 s74, v{r-1}, 63"); a("s_nop 1"); a("v_mov_b32 v234, s74")
            a("s_nop 1")
            a(f"v_mov_b32_dpp v234, v{r+3} wave_shr:1 row_mask:0xf bank_mask:0xf")
            a(f"ds_write_b128 v13, v[{r}:{r+3}] offset:{CV_B + 64 + i*1024}")
            a(f"v_alignbit_b32 v236, v{r}, v234, 16")
            a(f"v_alignbit_b32 v237, v{r+1}, v{r}, 16")
            a(f"v_alignbit_b32 v238, v{r+2}, v{r+1}, 16")
            a(f"v_alignbit_b32 v239, v{r+3}, v{r+2}, 16")
            a(f"ds_write_b128 v13, v[236:239] offset:{CV_A + 64 + i*1024}")
        if half == 0: return
        a("v_lshrrev_b32 v234, 2, v1"); a("v_and_b32 v235, 1, v234"); a("v_mul_u32_u24 v235, 4160, v235")
        a("v_lshrrev_b32 v234, 1, v234"); a(f"v_mul_u32_u24 v234, {CV_B}, v234"); a("v_add_u32 v235, v235, v234")
        a("v_and_b32 v234, 3, v1"); a("v_lshl_add_u32 v235, v234, 4, v235"); a(f"v_add_u32 v235, s{sbase}, v235")
        for r in range(236, 240): a(f"v_mov_b32 v{r}, 0")
        s.ex(16)
        a("ds_write_b128 v235, v[236:239]")
        a("s_mov_b64 exec, -1")
    def u_addr(s, sbase):
        a = s.a
        def swz(dst, off):
            a(f"v_add_u32 v{dst}, {off}, v12"); a(f"v_lshrrev_b32 v41, 3, v{dst}"); a("v_and_b32 v41, 32, v41"); a(f"v_xor_b32 v{dst}, v{dst}, v41")
            a(f"v_add_u32 v{dst}, s{sbase}, v{dst}"); a(f"v_subrev_u32 v{dst}, 64, v{dst}")
        swz(14, 68); swz(15, 80); swz(40, 72)
        a(f"v_add_u32 v13, s{sbase}, v12")
        for r in range(32, 36): a(f"v_mov_b32 v{r}, 0")
        s.ex(34); a("ds_write_b128 v13, v[32:35] offset:4096")
        s.ex(33); a(f"ds_write_b128 v13, v[32:35] offset:{CV_U1 + 4096 - 8}")
        a("s_mov_b64 exec, 1"); a("ds_write_b128 v13, v[32:35]")
        a("s_mov_b64 exec, -1")
    def u_stage(s, reg, nwait0):
        a = s.a
        for i in range(4):
            a(f"s_waitcnt vmcnt({nwait0 + 3 - i})")
            r = reg + 4 * i
            a(f"ds_write_b64 v40, v[{r}:{r+1}] offset:{CV_U1 + i*1024}")
            a(f"ds_write_b64 v15, v[{r+2}:{r+3}] offset:{CV_U1 + i*1024}")
            a(f"ds_write_b64 v14, v[{r}:{r+1}] offset:{i*1024}") if False else None
            a(f"ds_write_b32 v14, v{r} offset:{i*1024}")
            a(f"ds_write_b64 v14, v[{r+1}:{r+2}] offset:{i*1024 + 4}") if False else None
            a(f"ds_write_b32 v14, v{r+1} offset:{i*1024 + 4}")
            a(f"ds_write_b32 v14, v{r+2} offset:{i*1024 + 8}")
            a(f"ds_write_b32 v15, v{r+3} offset:{i*1024}")

    def chore(s):
        a = s.a; s.vm_reset(); nt = s.nt
        s.label("L_C")
        a(f"s_setprio {s.opt.get('cprio', 2)}")
        a("s_sub_u32 s78, s3, 6")
        a(f"s_mul_i32 s79, s78, {CV_SZ}"); a(f"s_add_u32 s79, s79, {L_CV}")
        a(f"s_add_u32 s84, s79, {2*CV_SZ}")
        a("s_mul_i32 s93, s78, 4800"); a(f"s_add_u32 s93, s93, {L_WDS}")
        a("s_and_b32 s85, s10, 1"); a("s_lshl_b32 s85, s85, 5")
        a("s_mul_i32 s80, s10, 160"); a("s_sub_u32 s80, s80, s85")
        a("s_lshl_b32 s81, s9, 6"); a("s_lshl_b32 s74, s78, 5"); a("s_add_u32 s81, s81, s74")
        a("v_mul_u32_u24 v4, 5462, v1"); a("v_lshrrev_b32 v4, 16, v4")
        a("v_mul_u32_u24 v5, 12, v4"); a("v_sub_u32 v5, v1, v5")
        a("v_mul_u32_u24 v6, 1280, v4"); a("v_lshl_add_u32 v6, v5, 4, v6"); a("v_add_u32 v6, s80, v6")
        a("s_mul_i32 s74, s9, 48"); a("s_mul_i32 s75, s78, 24"); a("s_add_u32 s74, s74, s75"); a("s_mul_i32 s74, s74, 1280")
        a("v_add_u32 v16, s74, v6"); a("v_add_u32 v17, 6400, v16")
        a("s_mul_i32 s74, s81, 1280")
        a("v_add_u32 v20, s74, v6"); a("v_add_u32 v21, 6400, v20")
        a(f"v_subrev_u32 v18, {3*1280}, v20"); a("v_add_u32 v19, 6400, v18")
        s.kwait()
        s.srd(64, 40, 256)
        l = s.newlab("L_noep")
        a("s_cmp_lg_u32 s2, 0"); a(f"s_cbranch_scc1 {l}"); a("s_cmp_lg_u32 s78, 0"); a(f"s_cbranch_scc1 {l}")
        a("s_memrealtime s[74:75]"); a("s_waitcnt lgkmcnt(0)"); a("s_or_b32 s75, s75, 0x40000000")
        a("v_mov_b32 v8, s74"); a("v_mov_b32 v9, s75"); a("v_mov_b32 v10, 0")
        a("s_mov_b64 exec, 1"); a("buffer_store_dwordx2 v[8:9], v10, s[64:67], 0 offen sc1"); a("s_mov_b64 exec, -1")
        s.label(l)
        s.srd(48, 18, 2621440); s.srd(52, 20, 2621440); s.srd(56, 22, 5120); s.srd(60, 24, 2621440)
        s.srd(68, 16, 2621440); s.srd(88, 34, 1966080)
        a("v_mov_b32 v23, 0"); a("v_mov_b32 v37, 1")
        if s.opt.get("ticket", 0):
            lt = s.newlab("L_tk")
            a("s_cmp_eq_u32 s78, 0"); a(f"s_cbranch_scc1 {lt}")
            a("s_mov_b64 exec, 1"); a("buffer_atomic_add v37, v23, s[64:67], 0 offen offset:64 sc0"); a("s_mov_b64 exec, -1")
            s.label(lt)
        elif s.opt.get("cmap", 0):
            a("s_mul_i32 s74, s5, 5"); a("s_add_u32 s74, s74, s4"); a("s_cmp_lt_u32 s4, 5"); a("s_cselect_b32 s74, s74, 255"); a("v_mov_b32 v37, s74")
        else: a("v_mov_b32 v37, s2")
        a("s_barrier")
        s.dma_rows(48, 35, 18, 19, 84, SC_K, "k", nt)
        s.dma_rows(52, 32, 20, 21, 84, SC_V, "k", nt)
        a("s_mul_i32 s75, s10, 640"); a(f"s_add_u32 m0, s84, {SC_SHK}"); s.ex(40)
        s.vmem("k", "buffer_load_dwordx4 v12, s[56:59], s75 offen lds")
        a("s_mov_b64 exec, -1")
        s.vmem("ep", "buffer_load_dwordx2 v[38:39], v23, s[64:67], 0 offen sc1")
        s.stamp(40, 2); a("s_barrier")
        if s.opt.get("rtouch", 2):
            a("s_mov_b32 s76, 0x986431"); a("s_bitcmp1_b32 s11, 0"); a("s_cselect_b32 s76, 0x975420, s76")
            a("v_lshrrev_b32 v240, 4, v1"); a("v_lshlrev_b32 v240, 2, v240"); a("v_lshrrev_b32_e64 v241, v240, s76"); a("v_and_b32 v241, 15, v241")
            a("s_lshr_b32 s76, s76, 16"); a("v_lshrrev_b32_e64 v242, v240, s76"); a("v_and_b32 v242, 15, v242")
            a("v_and_b32 v243, 15, v1"); a("v_mul_u32_u24 v243, 1280, v243")
            a("v_lshl_add_u32 v241, v241, 7, v243"); a("v_lshl_add_u32 v242, v242, 7, v243")
            a("s_lshl_b32 s76, s6, 3"); a("s_lshl_b32 s77, s12, 1"); a("s_add_u32 s76, s76, s77"); a("s_add_u32 s76, s76, s78"); a(f"s_mul_i32 s98, s76, {16*1280}")
            a("v_bfe_u32 v243, v1, 4, 1"); a(f"v_mul_u32_u24 v243, {5*64*3072}, v243"); a("v_bfe_u32 v244, v1, 1, 3"); a("v_mul_u32_u24 v244, 3072, v244"); a("v_add_u32 v243, v243, v244")
            a("v_and_b32 v244, 1, v1"); a("v_lshl_add_u32 v243, v244, 7, v243")
            a("s_mul_i32 s76, s7, 192"); a("s_and_b32 s76, s76, 0xffffff80"); a(f"s_mul_i32 s77, s11, {8*3072}"); a("s_add_u32 s76, s76, s77"); a(f"s_add_u32 s99, s76, {4*64*3072}")
            a("s_cmp_eq_u32 s78, 0")
            a("s_cselect_b32 s48, s30, s32"); a("s_cselect_b32 s49, s31, s33"); a("s_and_b32 s49, s49, 0xffff"); a("s_mov_b32 s50, 1966080"); a("s_mov_b32 s51, 0x20000")
        s.stamp(41, 2); a("s_barrier")
        if s.opt.get("rtouch", 2):
            a("s_mov_b32 exec_hi, 0")
            s.vmem("t", "buffer_load_dword v250, v243, s[48:51], s99 offen")
            if s.opt.get("rtouch", 2) == 1:
                s.vmem("t", "buffer_load_dword v251, v242, s[68:71], s98 offen")
                a("s_mov_b64 exec, -1")
                s.vmem("t", "buffer_load_dword v252, v241, s[68:71], s98 offen")
            a("s_mov_b64 exec, -1")
        if not s.opt.get("wdlate", 0): s.dma_rows(88, 24, 16, 17, 93, 0, "wd", nt)
        if s.opt.get("tlb", 0):
            def tlbt():
                l1 = s.newlab("L_t1"); l2 = s.newlab("L_t2")
                a("s_cmp_eq_u32 s78, 1"); a(f"s_cbranch_scc1 {l1}")
                a(f"s_mov_b32 s76, {HBS}"); a("v_mul_lo_u32 v253, v1, s76"); a(f"s_mov_b32 s76, {WS_HB + HBS - 128}")
                s.ex(32); a("buffer_load_dword v254, v253, s[44:47], s76 offen")
                a(f"s_mov_b32 s76, {WBS}"); a("v_mul_lo_u32 v253, v1, s76"); a(f"s_mov_b32 s76, {WS_WB + WBS - 128}")
                s.ex(8); a("buffer_load_dword v254, v253, s[44:47], s76 offen")
                a(f"s_mov_b32 s76, {64*TS}"); a("s_mov_b64 exec, -1"); a("v_mul_lo_u32 v253, v1, s76"); a(f"s_mov_b32 s76, {WS_KT + 4096}")
                s.ex(10); a("buffer_load_dword v254, v253, s[44:47], s76 offen")
                a(f"s_branch {l2}")
                s.label(l1)
                a(f"s_mov_b32 s76, {64*TS}"); a("v_mul_lo_u32 v253, v1, s76"); a(f"s_mov_b32 s76, {WS_YT + 4096}")
                s.ex(10); a("buffer_load_dword v254, v253, s[44:47], s76 offen")
                a("v_lshlrev_b32 v253, 18, v1")
                a("buffer_load_dword v254, v253, s[60:63], 0 offen")
                a("s_mov_b32 s48, s38"); a("s_and_b32 s49, s39, 0xffff"); a("s_mov_b32 s50, 2621440"); a("s_mov_b32 s51, 0x20000")
                a("buffer_load_dword v254, v253, s[48:51], 0 offen")
                s.label(l2)
                a("s_mov_b64 exec, -1")
                for _ in range(3): s.vm.append("t")
            tlbt()
        if s.opt.get("htouch", 0):
            a("s_lshl_b32 s76, s2, 1"); a("s_add_u32 s76, s76, s78"); a("s_mul_i32 s76, s76, 5120"); a("v_lshlrev_b32 v253, 7, v1")
            s.ex(40); s.vmem("t", "buffer_load_dword v254, v253, s[60:63], s76 offen"); a("s_mov_b64 exec, -1")
        a("s_lshr_b32 s74, s85, 4"); a("v_subrev_u32 v7, s74, v5")
        a("v_cmp_gt_u32 s[86:87], 10, v7"); a("v_cmp_gt_u32 vcc, 60, v1"); a("s_and_b64 s[86:87], s[86:87], vcc")
        a("v_mul_u32_u24 v22, 160, v4"); a("v_lshl_add_u32 v22, v7, 4, v22")
        a(f"s_mul_i32 s76, s78, 5120"); a(f"s_add_u32 s76, s76, {L_QT}"); a("v_add_u32 v22, s76, v22")
        a("s_lshl_b32 s75, s9, 6"); a("s_lshl_b32 s76, s10, 3"); a("s_add_u32 s75, s75, s76"); a("s_lshl_b32 s76, s78, 2"); a("s_add_u32 s82, s75, s76")
        a("v_lshrrev_b32 v14, 4, v1"); a("v_mul_u32_u24 v14, 1280, v14"); a("v_and_b32 v15, 15, v1"); a("v_lshlrev_b32 v15, 4, v15"); a("v_add_u32 v14, v14, v15")
        a("v_and_b32 v240, 15, v1"); a("v_lshrrev_b32 v241, 4, v1")
        a("v_lshrrev_b32 v242, 2, v240"); a("v_mul_u32_u24 v242, 192, v242"); a("v_and_b32 v243, 3, v240"); a("v_lshl_add_u32 v242, v243, 3, v242")
        a(f"v_add_u32 v242, s93, v242"); a("v_add_u32 v242, s85, v242")
        a("s_mul_i32 s74, s9, 6"); a("s_mul_i32 s75, s78, 3"); a("s_add_u32 s74, s74, s75")
        for p in range(4):
            a(f"v_add_u32 v243, {4*p}, v241"); a("v_mul_u32_u24 v244, 52, v243"); a("v_lshrrev_b32 v244, 8, v244")
            a("v_mul_u32_u24 v245, 5, v244"); a("v_sub_u32 v245, v243, v245")
            a(f"v_mul_u32_u24 v{24+p}, 1536, v244"); a(f"v_lshl_add_u32 v{24+p}, v245, 5, v{24+p}"); a(f"v_add_u32 v{24+p}, v{24+p}, v242")
            a("v_add_u32 v244, s74, v244"); a("v_lshrrev_b32 v247, 2, v244"); a(f"v_mul_u32_u24 v{28+p}, 5120, v247")
            a("v_and_b32 v244, 3, v244"); a(f"v_lshl_add_u32 v{28+p}, v244, 8, v{28+p}"); a(f"v_lshl_add_u32 v{28+p}, v245, 10, v{28+p}")
            a(f"v_lshl_add_u32 v{28+p}, v240, 4, v{28+p}")
        a("v_lshrrev_b32 v6, 3, v1"); a("v_and_b32 v7, 7, v1"); a("s_mul_i32 s74, s78, 40"); a("v_add_u32 v6, s74, v6")
        for i in range(5):
            a(f"v_add_u32 v8, {8*i}, v6"); a("v_mul_u32_u24 v9, 3277, v8"); a("v_lshrrev_b32 v9, 16, v9")
            a("v_mul_u32_u24 v10, 20, v9"); a("v_sub_u32 v8, v8, v10")
            a("v_lshl_add_u32 v9, v8, 2, v9"); a("v_xor_b32 v8, v8, v7"); a("v_and_b32 v8, 7, v8"); a("v_lshlrev_b32 v8, 4, v8")
            a(f"v_mul_u32_u24 v9, {TS}, v9"); a(f"v_add_u32 v{32+i}, v9, v8")
        a("v_mov_b32 v23, 0")
        sched = {t: [] for t in range(21)}
        dl = s.opt.get("dl", 3)
        def rowl(srd, nrows, vfirst, vrest, reg, tag, ntf):
            out = []
            for i in range((nrows + 4) // 5):
                def f(i=i):
                    n = min(5, nrows - 5 * i); r = reg + 4 * i
                    s.ex(12 * n)
                    if i == 0: s.vmem(tag, f"buffer_load_dwordx4 v[{r}:{r+3}], v{vfirst}, s[{srd}:{srd+3}], 0 offen {ntf}")
                    else:
                        a(f"s_mov_b32 s77, {6400*(i-1)}")
                        s.vmem(tag, f"buffer_load_dwordx4 v[{r}:{r+3}], v{vrest}, s[{srd}:{srd+3}], s77 offen {ntf}")
                    a("s_mov_b64 exec, -1")
                out.append(f)
            return out
        Lk = rowl(48, 35, 18, 19, 40, "k", nt); Lv = rowl(52, 32, 20, 21, 68, "v", nt); Lw = rowl(88, 24, 16, 17, 96, "wd", nt)
        Lq = rowl(68, 32, 20, 21, 196, "q", "")
        def lshk():
            a("s_mul_i32 s75, s10, 640"); s.ex(40)
            s.vmem("v", "buffer_load_dwordx4 v[116:119], v12, s[56:59], s75 offen")
            a("s_mov_b64 exec, -1")
        def lgx(i):
            a("s_mul_i32 s75, s82, 1280")
            s.vmem("gx", f"buffer_load_dwordx4 v[{124+4*i}:{127+4*i}], v14, s[68:71], s75 offen offset:{i*256}")
        def lgw():
            s.srd(56, 36, 1280)
            for i in range(5):
                s.vmem("gx", f"buffer_load_dwordx4 v[{144+4*i}:{147+4*i}], v15, s[56:59], 0 offen offset:{i*256}")
        def lh(i):
            a("s_lshl_b32 s74, s14, 2"); a(f"s_add_u32 s74, s74, {2*(i//4)}"); a("s_add_u32 s74, s74, s78"); a("s_lshl_b32 s74, s74, 12")
            s.vmem("h", f"buffer_load_dwordx4 v[{164+4*i}:{167+4*i}], v12, s[60:63], s74 offen offset:{(i&3)*1024} {nt}")
        def two(f, g): return lambda: (f(), g())
        cold = Lk + [two(Lv[0], lshk)] + Lv[1:] + Lw
        def w1(): s.vm_wait({"k"}); s.stamp(2); s.img_write(84, SC_K, 7, 40)
        def w2():
            s.vm_wait({"v"}); s.img_write(84, SC_V, 7, 68)
            s.ex(40); a(f"ds_write_b128 v13, v[116:119] offset:{SC_SHK}"); a("s_mov_b64 exec, -1")
        def w3(): s.vm_wait({"wd"}); s.img_write(93, 0, 5, 96); a("s_waitcnt lgkmcnt(0)")
        def wd(part=0):
            for p in range(4 if part != 2 else 0):
                a(f"ds_read_b64_tr_b16 v[{96+4*p}:{97+4*p}], v{24+p}")
                a(f"ds_read_b64_tr_b16 v[{98+4*p}:{99+4*p}], v{24+p} offset:768")
            if part == 1: return
            a(f"s_mul_i32 s74, s10, {WBS}"); a(f"s_add_u32 s74, s74, {WS_WB}")
            a("s_waitcnt lgkmcnt(0)")
            for p in range(4):
                if p == 3: s.ex(48)
                s.vmem("st", f"buffer_store_dwordx4 v[{96+4*p}:{99+4*p}], v{28+p}, s[44:47], s74 offen sc1")
            a("s_mov_b64 exec, -1")
        def epoch():
            s.vm_wait({"ep"})
            l0 = s.newlab("L_ep"); l1_ = s.newlab("L_epd")
            a(f"s_mov_b32 s94, {SPIN_MAX}")
            s.label(l0)
            a("v_readfirstlane_b32 s72, v38"); a("v_readfirstlane_b32 s73, v39"); a("s_nop 1")
            a("s_cmp_lg_u32 s73, 0"); a(f"s_cbranch_scc1 {l1_}")
            a("buffer_load_dwordx2 v[38:39], v23, s[64:67], 0 offen sc1")
            a("s_waitcnt vmcnt(0)")
            a("s_sub_u32 s94, s94, 1"); a(f"s_cbranch_scc0 {l0}")
            s.label(l1_)
            a(f"v_mov_b32 v242, {L_EPOCH}"); a("ds_write_b64 v242, v[38:39]")
            lt2 = s.newlab("L_tk")
            a("s_cmp_eq_u32 s78, 0"); a(f"s_cbranch_scc1 {lt2}")
            a("s_mov_b64 exec, 1"); a("ds_write_b32 v242, v37 offset:16"); a("s_mov_b64 exec, -1")
            s.label(lt2)
        def gate():
            s.vm_wait({"gx"})
            a("v_mov_b32 v240, 0"); a("v_mov_b32 v241, 0")
            for i in range(20): a(f"v_dot2_f32_bf16 v{240 + (i & 1)}, v{124+i}, v{144+i}, v{240 + (i & 1)}")
        def gate2():
            a("s_nop 2")
            a("v_add_f32 v240, v240, v241"); a("s_nop 1")
            for ctl in ("quad_perm:[1,0,3,2]", "quad_perm:[2,3,0,1]", "row_half_mirror", "row_mirror"):
                a(f"v_add_f32_dpp v240, v240, v240 {ctl} row_mask:0xf bank_mask:0xf"); a("s_nop 1")
            a("v_cvt_pk_bf16_f32 v240, v240, v240"); a("v_and_b32 v240, 0xffff0000, v240")
            a("v_mul_f32 v240, 0xbfb8aa3b, v240"); a("v_exp_f32 v240, v240"); a("s_nop 0"); a("v_add_f32 v240, 1.0, v240")
            a("v_rcp_f32 v240, v240"); a("s_nop 0")
            a("v_cvt_pk_bf16_f32 v240, v240, v240"); a("v_and_b32 v240, 0xffff0000, v240")
            a("s_lshl_b32 s74, s82, 2"); a(f"s_add_u32 s74, s74, {WS_G}")
            a("v_lshrrev_b32 v241, 4, v1"); a("v_lshlrev_b32 v241, 2, v241")
            a("s_mov_b32 exec_lo, 0x00010001"); a("s_mov_b32 exec_hi, 0x00010001")
            s.vmem("st", "buffer_store_dword v240, v241, s[44:47], s74 offen sc1")
            a("s_mov_b64 exec, -1")
        def qc():
            a("s_mov_b64 exec, s[86:87]")
            for i in range(7):
                if i == 6: a("s_and_b32 exec_lo, exec_lo, 0xffffff"); a("s_mov_b32 exec_hi, 0")
                a(f"ds_write_b128 v22, v[{196+4*i}:{199+4*i}] offset:{800*i}")
            a("s_mov_b64 exec, -1")
        def ktst_rd():
            a("s_mul_i32 s74, s78, 5120"); a(f"s_add_u32 s74, s74, {L_T}"); a("v_add_u32 v13, s74, v12")
            for i in range(5): a(f"ds_read_b128 v[{40+4*i}:{43+4*i}], v13 offset:{i*1024}")
        def ktst_st():
            a(f"s_mul_i32 s74, s10, {80*TS}"); a("s_lshl_b32 s75, s9, 7"); a("s_sub_u32 s74, s74, s75")
            a(f"s_add_u32 s74, s74, {WS_KT + 3968}")
            for i in range(5):
                s.vmem("st", f"buffer_store_dwordx4 v[{40+4*i}:{43+4*i}], v{32+i}, s[44:47], s74 offen sc1")
        def hc(base, reg, half):
            s.vm_wait({"h"})
            l = s.newlab("L_nh"); a(f"s_cmp_ge_u32 s14, {NCONV}"); a(f"s_cbranch_scc1 {l}")
            s.h_copies(base, reg, half); s.label(l)
        def flagsA():
            s.vm_wait({"st"})
            a("s_lshl_b32 s74, s10, 9"); a("s_lshl_b32 s75, s9, 4"); a("s_add_u32 s74, s74, s75"); a("s_lshl_b32 s76, s78, 3"); a("s_add_u32 s74, s74, s76")
            a(f"s_add_u32 s74, s74, {WS_FA}")
            s.write_flag(244, 74)
            s.stamp(5)
        def flagsB():
            lb = s.newlab("L_nb")
            a("s_cmp_lt_u32 s83, 2"); a(f"s_cbranch_scc1 {lb}")
            a("s_waitcnt vmcnt(0)")
            a("s_lshl_b32 s76, s78, 3")
            a("s_lshl_b32 s74, s9, 7"); a("s_lshl_b32 s75, s10, 4"); a("s_add_u32 s74, s74, s75"); a("s_add_u32 s74, s74, s76"); a(f"s_add_u32 s74, s74, {WS_FB}")
            s.write_flag(8, 74)
            s.label(lb)
        KVT = s.kvt
        ge = s.opt.get("gearly", 1)
        if ge == 1:
            for i in range(5): lgx(i)
            lgw()
        he = s.opt.get("hearly", 0)
        if he == 1:
            for i in range(8): lh(i)
        s.vm_wait({"k"}); s.stamp(2)
        a("s_barrier")
        if s.opt.get("wdlate", 0) == 1: s.dma_rows(88, 24, 16, 17, 93, 0, "wd", nt)
        if s.opt.get("wdlate", 0) == 2: sched[2].append(lambda: s.dma_rows(88, 24, 16, 17, 93, 0, "wd", nt))
        if he == 2:
            for i in range(8): lh(i)
        if he:
            for j, (b, r, hf) in enumerate(((79, 164, 0), (79, 164, 1), (84, 180, 0), (84, 180, 1))):
                sched[8 + j].append(lambda b=b, r=r, hf=hf: hc(b, r, hf))
        epoch()
        ts = s.opt.get("ts", 3)
        if s.opt.get("mst", 0):
            sched[ts].append(lambda: (ktst_rd(), s.vm_wait({"wd"}), wd(1)))
            sched[ts + 1].append(lambda: (a("s_waitcnt lgkmcnt(0)"), ktst_st(), wd(2), s.stamp(3)))
        else:
            sched[ts].append(lambda: (ktst_rd(), a("s_waitcnt lgkmcnt(0)"), ktst_st()))
            sched[ts + 1].append(lambda: (s.vm_wait({"wd"}), wd(), s.stamp(3)))
        tf = s.opt.get("tf", 7); sched[tf].append(flagsA)
        tg = s.opt.get("tg", 16)
        if ge:
            if ge == 2: sched[2] += [lambda i=i: lgx(i) for i in range(5)] + [lgw]
            sched[ts + (0 if ge == 2 else -1) + s.opt.get("gd", 0)].append(gate)
            sched[ts + 1 + s.opt.get("gd", 0)].insert(0, gate2)
            def fb_now():
                a("s_lshl_b32 s76, s78, 3")
                a("s_lshl_b32 s74, s9, 7"); a("s_lshl_b32 s75, s10, 4"); a("s_add_u32 s74, s74, s75"); a("s_add_u32 s74, s74, s76"); a(f"s_add_u32 s74, s74, {WS_FB}")
                s.write_flag(248, 74)
            sched[tf].append(fb_now)
            s.flagsB = lambda: None
        else:
            sched[tg - 4] += [lambda i=i: lgx(i) for i in range(5)] + [lgw]
            sched[tg - 1].append(gate); sched[tg].append(gate2)
            s.flagsB = flagsB
        tp = s.opt.get("tp", 13)
        def fa_ld():
            a(f"v_mov_b32 v2, {L_SDONE}"); a("ds_read_b32 v2, v2"); a("s_waitcnt lgkmcnt(0)"); a("v_readfirstlane_b32 s14, v2"); a("s_nop 1")
            a("s_mul_i32 s74, s14, 3277"); a("s_lshr_b32 s74, s74, 16"); a("s_min_u32 s74, s74, 7")
            a("s_cmp_eq_u32 s78, 0"); a("s_cselect_b32 s74, s74, s10"); a("s_lshl_b32 s74, s74, 9"); a(f"s_add_u32 s74, s74, {WS_FA}")
            a("v_lshlrev_b32 v2, 3, v1")
            s.vmem("fa", "buffer_load_dwordx2 v[4:5], v2, s[44:47], s74 offen sc1")
            if s.pre:
                a("v_min_u32 v3, 15, v1"); a("v_lshlrev_b32 v3, 3, v3"); a("s_lshl_b32 s74, s9, 7"); a(f"s_add_u32 s74, s74, {WS_FB}")
                s.vmem("fa", "buffer_load_dwordx2 v[6:7], v3, s[44:47], s74 offen sc1")
        def fa_ck():
            s.vm_wait({"fa"})
            if s.pre:
                a("v_cmp_ne_u64 vcc, s[72:73], v[6:7]"); a("s_nop 1")
                lf2 = s.newlab("L_nf")
                a(f"s_cbranch_vccnz {lf2}")
                s.lds_set(8, L_FBOK, 1)
                s.label(lf2)
            a("v_cmp_ne_u64 vcc, s[72:73], v[4:5]"); a("s_nop 1")
            lf = s.newlab("L_nf")
            a(f"s_cbranch_vccnz {lf}")
            a("s_lshl_b32 s74, s78, 2"); a(f"s_add_u32 s74, s74, {L_QDONE}"); s.lds_set(8, "s74", 1)
            s.label(lf)
        if s.opt.get("hmid", 7): sched[s.opt.get("hmid", 7)].append(lambda: (a("s_add_u32 s83, s78, 2"), s.h_own(83)))
        if s.opt.get("hmid", 7) and s.opt.get("hp", 19) < 17:
            for hf in range(2): sched[s.opt.get("hp") + hf].append(lambda hf=hf: hc(84, 164, hf))
        sched[4].append(lambda: a("s_waitcnt lgkmcnt(0)"))
        sched[tp].append(fa_ld); sched[tp + 2].insert(0, fa_ck); sched[tp + 3].append(lambda: a("s_waitcnt lgkmcnt(0)"))
        tq = s.opt.get("tq", 14)
        sched[tq] += Lq
        if s.opt.get("qearly", 0): sched[tq + 2].append(lambda: (s.vm_wait({"q"}), qc()))
        for t in range(2, 17):
            s.stamp(40 + t, 2)
            a("s_barrier")
            if not s.opt.get("noc"):
                for f in sched[t]: f()
        assert all(not sched[t] for t in range(17, 21))
        s.qc = qc
        a("s_add_u32 s83, s78, 2")

    def ywave(s):
        a = s.a; s.vm_reset()
        s.label("L_Yt")
        a(f"s_mul_i32 s84, s83, {CV_SZ}"); a(f"s_add_u32 s84, s84, {L_CV}"); a(f"s_add_u32 s93, s84, {H_SZ}")
        s.srd(60, 24, 2621440)
        a(f"v_mov_b32 v16, {L_EPOCH}"); a("ds_read_b32 v20, v16 offset:16"); a(f"v_mov_b32 v21, {L_FBOK}"); a("ds_read_b32 v21, v21"); a("ds_read_b128 v[16:19], v16")
        a("v_lshlrev_b32 v2, 3, v1")
        a("s_waitcnt lgkmcnt(0)")
        a("v_readfirstlane_b32 s14, v20"); a("v_readfirstlane_b32 s15, v21")
        a("v_readfirstlane_b32 s72, v16"); a("v_readfirstlane_b32 s73, v17"); a("v_readfirstlane_b32 s99, v18")
        a("s_mul_i32 s98, s14, 3277"); a("s_lshr_b32 s98, s98, 16"); a("s_lshl_b32 s98, s98, 9"); a(f"s_add_u32 s98, s98, {WS_FA}")
        a("s_lshl_b32 s85, s14, 2"); a("s_add_u32 s85, s85, s83"); a("s_lshl_b32 s74, s85, 12")
        a(f"s_mul_i32 s100, s85, {TS}"); a(f"s_add_u32 s100, s100, {WS_KT}")
        a("s_waitcnt vmcnt(20)"); s.stamp(57, 2); a("s_barrier"); s.stamp(33, 2)
        a(f"s_cmp_lt_u32 s14, {NCONV}"); a("s_cselect_b32 s99, s99, 0")
        a("s_cmp_lg_u32 s99, 0"); a("s_cselect_b32 s101, s100, 0x7ff00000")
        a("s_cmp_lg_u32 s99, 0"); a("s_cselect_b32 s75, 0x7ff00000, s98")
        a(f"s_cmp_lt_u32 s14, {NCONV}"); a("s_cselect_b32 s75, s75, 0x7ff00000")
        a("buffer_load_dwordx2 v[4:5], v2, s[44:47], s75 offen sc1")
        nh = 0 if (s.opt.get("hearly", 0) or s.opt.get("hmid", 7)) else 4
        for i in range(nh):
            a(f"buffer_load_dwordx4 v[{164+4*i}:{167+4*i}], v12, s[60:63], s74 offen offset:{i*1024} {'' if s.opt.get('htouch', 0) else s.nt}")
        for i in range(4):
            a(f"buffer_load_dwordx4 v[{48+4*i}:{51+4*i}], v12, s[44:47], s101 offen offset:{i*1024} sc1")
        lq = s.newlab("L_nq")
        a(f"s_waitcnt vmcnt({11 + nh})")
        if not s.opt.get("qearly", 0):
            a("s_cmp_lt_u32 s83, 2"); a(f"s_cbranch_scc1 {lq}")
            a(f"s_waitcnt vmcnt({5 + nh})")
            s.qc()
            s.label(lq)
        hp = s.opt.get("hp", 19) if s.opt.get("hmid", 7) else 0
        def hcp():
            lh_ = s.newlab("L_nh"); a(f"s_cmp_ge_u32 s14, {NCONV}"); a(f"s_cbranch_scc1 {lh_}")
            s.h_copies(84, 164); s.label(lh_)
        s.stamp(58, 2); a("s_barrier"); s.stamp(34, 2)
        if hp == 18: hcp()
        s.u_addr(93)
        a(f"s_waitcnt vmcnt({5 + nh})"); a("s_waitcnt lgkmcnt(0)")
        s.stamp(59, 2); a("s_barrier"); s.stamp(35, 2)
        s.ap_addr()
        s.stamp(1)
        if s.opt.get("g1only"): a("s_branch L_fin2")
        if s.opt.get("noconv"): a("s_branch L_apart")
        lcv = s.newlab("L_cvgo")
        a(f"s_cmp_lt_u32 s14, {NCONV}"); a(f"s_cbranch_scc1 {lcv}")
        s.flagsB()
        a("s_branch L_apart")
        s.label(lcv)
        a(f"s_setprio {s.opt.get('sprio', 1)}")
        lk2 = s.newlab("L_hk")
        a("s_cmp_lg_u32 s99, 0"); a(f"s_cbranch_scc1 {lk2}")
        lk3 = s.newlab("L_hk")
        a(f"s_waitcnt vmcnt({4 + nh})")
        a("v_cmp_ne_u64 vcc, s[72:73], v[4:5]"); a("s_nop 1"); a(f"s_cbranch_vccz {lk3}")
        s.poll(4, 2, "s98")
        s.label(lk3)
        for i in range(4):
            a(f"buffer_load_dwordx4 v[{48+4*i}:{51+4*i}], v12, s[44:47], s100 offen offset:{i*1024} sc1")
        s.label(lk2)
        s.stamp(6)
        if hp == 19: s.h_copies(84, 164)
        if nh:
            a("s_waitcnt vmcnt(4)")
            s.h_copies(84, 164)
        s.u_stage(48, 0)
        s.flagsB()
        if s.pre and not s.opt.get("pit", 0):
            lnp0 = s.newlab("L_np")
            a("s_cmp_lg_u32 s15, 1"); a(f"s_cbranch_scc1 {lnp0}")
            s.ap_loads(); a("s_mov_b32 s15, 2")
            s.label(lnp0)
        s.stamp(7)
        if s.opt.get("sprio", 1) != 1: a("s_setprio 1")
        a("v_add_u32 v13, s93, v12")
        a("v_and_b32 v2, 15, v1"); a("v_lshrrev_b32 v3, 4, v1"); a("v_and_b32 v4, 1, v2"); a("v_lshrrev_b32 v5, 1, v2")
        a(f"v_mul_u32_u24 v6, {CV_B}, v4"); a("v_lshl_add_u32 v6, v3, 4, v6"); a("v_lshl_add_u32 v6, v5, 3, v6"); a("v_add_u32 v6, s84, v6")
        a("v_lshlrev_b32 v7, 4, v3"); a("v_lshlrev_b32 v8, 6, v5"); a("v_sub_u32 v7, v7, v8"); a("v_add_u32 v7, 512, v7")
        a(f"v_mul_u32_u24 v9, {CV_U1}, v4"); a("v_add_u32 v9, s93, v9"); a("v_subrev_u32 v9, 64, v9")
        def baddr():
            a("v_lshrrev_b32 v10, 3, v7"); a("v_and_b32 v10, 32, v10"); a("v_xor_b32 v10, v10, v7"); a("v_add_u32 v10, v10, v9"); a("v_add_u32 v7, 64, v7")
        SA = (96, 160); SB = (128, 192)
        def reads(st, par):
            R = []
            for c in range(8):
                for hh in range(2):
                    R.append(f"ds_read_b64 v[{SA[st]+4*c+2*hh}:{SA[st]+4*c+2*hh+1}], v6 offset:{512*c + 8*hh + 64*par}")
                for hh in range(2):
                    R.append(f"ds_read_b64 v[{SB[st]+4*c+2*hh}:{SB[st]+4*c+2*hh+1}], v10 offset:{512*(7-c) + 8*hh}")
            return R
        def mfmas(st, full=True):
            M = []
            for aa in range(8):
                for c in (range(aa + 1) if full else [aa]):
                    b = aa - c; o = 224 + 4 * aa
                    M.append(f"v_mfma_f32_16x16x32_bf16 v[{o}:{o+3}], v[{SA[st]+4*c}:{SA[st]+4*c+3}], v[{SB[st]+4*b}:{SB[st]+4*b+3}], v[{o}:{o+3}]")
            return M
        def inter(M, R):
            a("s_waitcnt lgkmcnt(12)")
            for mi, m in enumerate(M):
                if mi == 15: a("s_waitcnt lgkmcnt(15)")
                a(m)
                if mi < len(R): a(R[mi])
        baddr()
        a("s_waitcnt lgkmcnt(0)")
        for r in reads(0, 0): a(r)
        for r in range(224, 256): a(f"v_mov_b32 v{r}, 0")
        a("s_mov_b32 s86, 0")
        s.label("L_cv")
        baddr()
        inter(mfmas(0), reads(1, 1))
        a("v_add_u32 v6, 128, v6"); baddr()
        inter(mfmas(1), reads(0, 0))
        a("s_add_u32 s86, s86, 1")
        if s.pre and s.opt.get("pit", 0):
            lnp0 = s.newlab("L_np")
            a(f"s_cmp_lg_u32 s86, {s.opt.get('pit', 0)}"); a(f"s_cbranch_scc1 {lnp0}")
            a("s_cmp_lg_u32 s15, 1"); a(f"s_cbranch_scc1 {lnp0}")
            s.ap_loads(); a("s_mov_b32 s15, 2")
            s.label(lnp0)
        a("s_cmp_lt_u32 s86, 4"); a("s_cbranch_scc1 L_cv")
        a("s_waitcnt lgkmcnt(0)")
        for m in mfmas(0, False): a(m)
        a("v_lshlrev_b32 v8, 4, v3"); a("v_lshl_add_u32 v8, v4, 2, v8"); a("v_lshl_add_u32 v8, v5, 6, v8")
        a(f"v_sub_u32 v8, {CV_U0 + 2*(2046 - 4) - 512}, v8"); a("v_add_u32 v8, s93, v8")
        a("s_nop 4")
        for t in range(8):
            o = 224 + 4 * t
            a(f"v_cvt_pk_bf16_f32 v{16+2*t}, v{o+3}, v{o+2}")
            a(f"v_cvt_pk_bf16_f32 v{17+2*t}, v{o+1}, v{o}")
        for t in range(8):
            off = 128 if t % 2 == 0 else 0
            a(f"ds_write2_b32 v8, v{16+2*t}, v{17+2*t} offset0:{off} offset1:{off+2}")
            if t % 2 == 1 and t < 7: a("v_subrev_u32 v8, 1024, v8")
        a("s_waitcnt lgkmcnt(0)")
        for i in range(4): a(f"ds_read_b128 v[{32+4*i}:{35+4*i}], v13 offset:{CV_U0 + i*1024}")
        a(f"s_mul_i32 s74, s85, {TS}"); a(f"s_add_u32 s74, s74, {WS_YT}")
        for i in range(4):
            a(f"s_waitcnt lgkmcnt({3-i})")
            a(f"buffer_store_dwordx4 v[{32+4*i}:{35+4*i}], v12, s[44:47], s74 offen offset:{i*1024} sc1")
        s.stamp(8)
        a("s_waitcnt vmcnt(0)")
        a("s_lshl_b32 s74, s85, 3"); a(f"s_add_u32 s74, s74, {WS_FY}")
        s.write_flag(48, 74)
        a("s_setprio 0")
        s.label("L_apart")
        a("s_setprio 0")
        if s.opt.get("xh", 1): s.lds_wait(L_XH, 1, 1, 148, slp=2)
        s.stamp(9)
        lpre = s.newlab("L_pre"); lnp = s.newlab("L_np")
        a("s_cmp_eq_u32 s15, 2"); a(f"s_cbranch_scc1 {lpre}")
        a("s_cmp_eq_u32 s15, 1"); a(f"s_cbranch_scc1 {lnp}")
        a("v_min_u32 v2, 15, v1"); a("v_lshlrev_b32 v2, 3, v2")
        a("s_lshl_b32 s74, s9, 7"); a(f"s_add_u32 s74, s74, {WS_FB}")
        s.poll(4, 2, "s74")
        s.label(lnp)
        s.ap_loads()
        a("s_waitcnt vmcnt(0)")
        s.label(lpre)
        a("v_sub_u32 v3, 63, v1")
        tile_loads = s.tile_loads
        a("s_lshl_b32 s74, s87, 1"); a("s_add_u32 s26, s26, s74"); a("s_addc_u32 s27, s27, 0")
        a("s_load_dwordx8 s[48:55], s[26:27], 0"); a("s_load_dwordx2 s[56:57], s[26:27], 32")
        a("v_add_u32 v13, s84, v12")
        a("v_mul_u32_u24 v7, 160, v3"); a("s_mul_i32 s74, s83, 40"); a(f"s_add_u32 s74, s74, {L_QT}"); a("v_add_u32 v7, s74, v7")
        for gq in range(5): a(f"ds_read_b64 v[{80+2*gq}:{81+2*gq}], v7 offset:{8*gq}")
        for i in range(3):
            if i == 2: a("s_mov_b32 exec_hi, 0")
            a(f"ds_write_b128 v13, v[{64+4*i}:{67+4*i}] offset:{i*1024}")
            if i == 2: a("s_mov_b64 exec, -1")
        a("v_and_b32 v8, 15, v1"); a("v_lshrrev_b32 v9, 2, v8"); a("v_lshlrev_b32 v9, 7, v9"); a("v_and_b32 v8, 3, v8"); a("v_lshl_add_u32 v9, v8, 3, v9")
        a("v_lshrrev_b32 v8, 4, v1"); a("v_lshl_add_u32 v9, v8, 5, v9"); a("v_add_u32 v9, s84, v9")
        a(f"v_add_u32 v2, {L_GF}, v78"); a("ds_write_b32 v2, v76")
        a("s_waitcnt lgkmcnt(0)")
        for gq in range(5): a(f"ds_read_b64_tr_b16 v[{150+2*gq}:{151+2*gq}], v9 offset:{512*gq}")
        for gq in range(5):
            for e in range(2):
                r = 96 + 4 * gq + 2 * e
                a(f"v_lshlrev_b32 v{r}, 16, v{80+2*gq+e}"); a(f"v_and_b32 v{r+1}, 0xffff0000, v{80+2*gq+e}")
                a(f"v_mul_f32 v{r}, v{r}, v76"); a(f"v_mul_f32 v{r+1}, v{r+1}, v76")
        a("s_waitcnt lgkmcnt(0)")
        for gq in range(5):
            for e in range(2):
                sd = 48 + 2 * gq + e; r = 120 + 4 * gq + 2 * e
                a(f"s_lshl_b32 s58, s{sd}, 16"); a(f"s_and_b32 s59, s{sd}, 0xffff0000")
                a(f"v_lshlrev_b32 v{r}, 16, v{150+2*gq+e}"); a(f"v_and_b32 v{r+1}, 0xffff0000, v{150+2*gq+e}")
                a(f"v_mul_f32 v{r}, s58, v{r}"); a(f"v_mul_f32 v{r+1}, s59, v{r+1}")
        s.lds_wait(L_XG2, 1, 1, 160, slp=2)
        a("v_min_u32 v2, 19, v1"); a("v_lshlrev_b32 v2, 3, v2")
        a("s_lshl_b32 s74, s87, 3"); a(f"s_add_u32 s74, s74, {WS_FY}")
        if not s.opt.get("noconv"): s.poll(146, 2, "s74", slp=s.opt.get("yslp", 12))
        s.stamp(10)
        if s.opt.get("aprio", 2): a(f"s_setprio {s.opt.get('aprio', 2)}")
        if s.opt.get("xga", -1) >= 0: s.lds_wait(L_XG2, 1, 2, 160, slp=1)
        tile_loads(WS_YT, 16)
        for i in range(3):
            a(f"s_waitcnt vmcnt({2-i})")
            if i == 2: a("s_mov_b32 exec_hi, 0")
            a(f"ds_write_b128 v13, v[{16+4*i}:{19+4*i}] offset:{i*1024}")
            if i == 2: a("s_mov_b64 exec, -1")
        a("s_waitcnt lgkmcnt(0)")
        for gq in range(5): a(f"ds_read_b64_tr_b16 v[{150+2*gq}:{151+2*gq}], v9 offset:{512*gq}")
        for gq in range(5):
            a("s_waitcnt lgkmcnt(4)")
            for e in range(2):
                a(f"v_lshlrev_b32 v144, 16, v{150+2*gq+e}"); a(f"v_and_b32 v145, 0xffff0000, v{150+2*gq+e}")
                a(f"v_add_f32 v144, v144, v{120+4*gq+2*e}"); a(f"v_add_f32 v145, v145, v{121+4*gq+2*e}")
                a(f"v_mul_f32 v144, v144, v{96+4*gq+2*e}"); a(f"v_mul_f32 v145, v145, v{97+4*gq+2*e}")
                a(f"v_cvt_pk_bf16_f32 v{80+2*gq+e}, v144, v145")
            a(f"ds_write_b64 v7, v[{80+2*gq}:{81+2*gq}] offset:{8*gq}")
        s.stamp(11)
        a("s_branch L_final")

    def xwave(s):
        a = s.a; s.vm_reset()
        s.label("L_X")
        a("s_setprio 2")
        a("v_mov_b32 v16, 0"); a("v_mov_b32 v17, 0"); a("v_mov_b32 v18, 0"); a("v_mov_b32 v19, 0")
        a(f"v_add_u32 v20, {L_MISC}, v12")
        a("s_mov_b64 exec, 15"); a("ds_write_b128 v20, v[16:19]"); a("s_mov_b64 exec, -1")
        a("s_lshr_b32 s74, s3, 1"); a("s_and_b32 s75, s3, 1")
        if s.m16:
            a("v_lshrrev_b32 v14, 5, v1")
            a("v_bfe_u32 v13, v1, 3, 1"); a("v_bfe_u32 v15, v1, 2, 1"); a("v_xor_b32 v15, v15, v13"); a("v_lshl_add_u32 v13, v15, 1, v13")
            a("v_lshrrev_b32 v16, 4, v1"); a("v_xor_b32 v13, v13, v16")
            a("v_and_b32 v17, 15, v1"); a("v_lshlrev_b32 v17, 6, v17"); a("s_lshl_b32 s76, s74, 12"); a("v_add_u32 v17, s76, v17"); a("v_lshl_add_u32 v5, v13, 4, v17")
            a("v_bfe_u32 v15, v1, 4, 1")
            a("v_bfe_u32 v17, v1, 2, 2"); a("v_lshl_add_u32 v16, v16, 3, v17"); a("v_lshlrev_b32 v16, 6, v16")
            a("v_and_b32 v17, 3, v1"); a("v_lshl_add_u32 v16, v17, 3, v16"); a(f"v_add_u32 v16, {L_WR}, v16")
        else:
            a("v_and_b32 v20, 31, v1"); a("v_lshrrev_b32 v13, 2, v20"); a("v_lshrrev_b32 v14, 1, v13"); a("v_xor_b32 v13, v13, v14"); a("v_and_b32 v13, 3, v13")
            a("v_lshrrev_b32 v14, 5, v1"); a("v_xor_b32 v15, v14, v13"); a("v_xor_b32 v16, 2, v15")
            a("v_lshlrev_b32 v17, 6, v20"); a("s_lshl_b32 s76, s74, 12"); a("v_add_u32 v17, s76, v17")
            a("v_lshl_add_u32 v5, v15, 4, v17"); a("v_lshl_add_u32 v6, v16, 4, v17")
            a("v_bfe_u32 v15, v1, 4, 1"); a("v_bfe_u32 v16, v1, 2, 2"); a("v_lshl_add_u32 v16, v14, 3, v16"); a("v_lshlrev_b32 v16, 6, v16")
            a("v_mul_u32_u24 v17, 6144, v15"); a("v_add_u32 v16, v16, v17")
            a("v_and_b32 v17, 1, v1"); a("v_lshl_add_u32 v16, v17, 4, v16"); a("v_bfe_u32 v17, v1, 1, 1"); a("v_lshl_add_u32 v16, v17, 3, v16")
            a(f"v_add_u32 v16, {L_WR}, v16")
        a("s_mul_i32 s76, s75, 3")
        for T in range(3):
            a(f"s_add_u32 s77, s76, {T}"); a("s_and_b32 s78, s77, 1"); a("s_lshr_b32 s77, s77, 1"); a("s_lshl_b32 s77, s77, 11")
            a("v_xor_b32 v17, s78, v15"); a(f"v_lshl_add_u32 v{2+T}, v17, 5, v16"); a(f"v_add_u32 v{2+T}, s77, v{2+T}")
        a("v_mov_b32 v7, v12"); a("v_add_u32 v8, 4096, v7")
        a("v_bfe_u32 v9, v1, 4, 1"); a("v_lshlrev_b32 v9, 10, v9"); a("v_lshl_add_u32 v9, v14, 8, v9"); a("v_and_b32 v17, 15, v1"); a("v_lshl_add_u32 v9, v17, 4, v9")
        for r in range(160, 256): a(f"v_mov_b32 v{r}, 0")
        touch = s.opt.get("touch", 0)
        if touch:
            lw = s.newlab("L_tw"); le = s.newlab("L_te")
            a("s_cmp_ge_u32 s3, 2"); a(f"s_cbranch_scc1 {lw}")
            s.srd(48, 16, 2621440)
            a("s_lshr_b32 s76, s4, 2"); a("s_lshl_b32 s76, s76, 6"); a("s_lshl_b32 s77, s5, 1"); a("s_add_u32 s76, s76, s77"); a("s_add_u32 s76, s76, s3")
            a(f"s_mul_i32 s98, s76, {16*1280}")
            a("v_and_b32 v92, 15, v1"); a("v_mul_u32_u24 v92, 1280, v92"); a("v_bfe_u32 v93, v1, 4, 1"); a("v_lshl_add_u32 v92, v93, 7, v92")
            a("s_mov_b32 s99, 256"); a("s_mov_b32 s100, -1")
            a(f"s_branch {le}")
            s.label(lw)
            a("s_cmp_eq_u32 s3, 2")
            a("s_cselect_b32 s48, s30, s32"); a("s_cselect_b32 s49, s31, s33"); a("s_and_b32 s49, s49, 0xffff")
            a("s_mov_b32 s50, 1966080"); a("s_mov_b32 s51, 0x20000")
            a("v_mul_u32_u24 v93, 5462, v1"); a("v_lshrrev_b32 v93, 16, v93"); a("v_mul_u32_u24 v94, 12, v93"); a("v_sub_u32 v94, v1, v94")
            a("v_cmp_lt_u32 vcc, 5, v94"); a(f"v_mul_u32_u24 v92, {64*3072}, v93"); a(f"v_mov_b32 v95, {3072 - 768}"); a("v_cndmask_b32 v95, 0, v95, vcc")
            a("v_lshl_add_u32 v92, v94, 7, v92"); a("v_add_u32 v92, v92, v95")
            a("s_and_b32 s76, s4, 3"); a("s_mul_i32 s76, s76, 768"); a(f"s_mul_i32 s77, s5, {2*3072}"); a("s_add_u32 s98, s76, s77")
            a(f"s_mov_b32 s99, {2*64*3072}"); a("s_mov_b32 s100, 0xffffff")
            s.label(le)
        def do_touch():
            a("s_mov_b32 exec_lo, s100"); a("s_mov_b32 exec_hi, 0")
            a("buffer_load_dword v93, v92, s[48:51], s98 offen")
            a("s_mov_b64 exec, -1"); a("s_add_u32 s98, s98, s99")
        tpre = s.opt.get("tpre", 2)
        if touch:
            for _ in range(tpre if touch == 2 else 5): do_touch()
        SB = (12, 52)
        def reads(st, slot):
            R = []
            if s.m16:
                W = [f"ds_read_b64_tr_b16 v[{SB[st]+8*T+4*u+2*hh}:{SB[st]+8*T+4*u+2*hh+1}], v{2+T} offset:{slot*12288 + u*6144 + hh*256}" for T in range(3) for u in range(2) for hh in range(2)]
                X = [f"ds_read_b128 v[{SB[st]+24+4*nt}:{SB[st]+24+4*nt+3}], v5 offset:{slot*8192 + nt*1024}" for nt in range(4)]
                return [X[0], W[0], W[1], X[1], X[2], X[3]] + W[2:]
            for sub in range(2):
                W = []
                for T in range(3):
                    for hh in range(2):
                        r = SB[st] + 12 * sub + 4 * T + 2 * hh
                        W.append(f"ds_read_b64_tr_b16 v[{r}:{r+1}], v{2+T} offset:{slot*12288 + sub*1024 + hh*256}")
                X = [f"ds_read_b128 v[{SB[st]+24+8*sub+4*nt}:{SB[st]+24+8*sub+4*nt+3}], v{5+sub} offset:{slot*8192 + nt*2048}" for nt in range(2)]
                R += [X[0], W[0], W[1], X[1], W[2], W[3], W[4], W[5]]
            return R
        def mfmas(st):
            M = []
            if s.m16:
                seq = [(T, u, nt) for T in range(3) for u in range(2) for nt in range(4)]
                mo = s.opt.get("mord", 0)
                if mo == 1: seq = [(T, u, nt) for nt in range(4) for T in range(3) for u in range(2)]
                if mo == 2: seq = [(T, u, nt if (2 * T + u) % 2 == 0 else 3 - nt) for T in range(3) for u in range(2) for nt in range(4)]
                for (T, u, nt) in seq:
                    if True:
                        if True:
                            o = 160 + 16 * (2 * T + nt // 2) + 8 * u + 4 * (nt & 1); w = SB[st] + 8 * T + 4 * u; x = SB[st] + 24 + 4 * nt
                            M.append(f"v_mfma_f32_16x16x32_bf16 v[{o}:{o+3}], v[{w}:{w+3}], v[{x}:{x+3}], v[{o}:{o+3}]")
                return M
            for sub in range(2):
                for T in range(3):
                    for nt in range(2):
                        o = 160 + 16 * (2 * T + nt); w = SB[st] + 12 * sub + 4 * T; x = SB[st] + 24 + 8 * sub + 4 * nt
                        M.append(f"v_mfma_f32_32x32x16_bf16 v[{o}:{o+15}], v[{w}:{w+3}], v[{x}:{x+3}], v[{o}:{o+15}]")
            return M
        a("s_mov_b32 s86, 0")
        a("s_waitcnt lgkmcnt(0)")
        s.kwait()
        if s.opt.get("ctouch", 1):
            lct = s.newlab("L_ct")
            a("s_cmp_lg_u32 s3, 1"); a(f"s_cbranch_scc1 {lct}")
            a("s_getpc_b64 s[76:77]")
            s.label("L_pc")
            a(f"s_sub_u32 s76, s76, L_pc-{KN}"); a("s_subb_u32 s77, s77, 0")
            a("s_mul_i32 s78, s5, 7"); a("v_add_u32 v50, s78, v1"); a("v_lshlrev_b32 v50, 7, v50"); a(f"v_min_u32 v50, L_codeend-{KN}-4, v50")
            a("s_mov_b64 exec, 0x7f"); a("global_load_dword v51, v50, s[76:77]"); a("s_mov_b64 exec, -1")
            s.label(lct)
        a("s_barrier")
        s.kv_pre()
        a("s_waitcnt vmcnt(0)")
        a("s_barrier")
        for r in reads(0, 0): a(r)
        a("s_waitcnt lgkmcnt(0)")
        s.label("L_g1")
        for slot in range(4):
            M = mfmas(slot & 1); R = reads((slot + 1) & 1, (slot + 1) & 3)
            if s.opt.get("stamps", 0) == 2:
                a("s_memtime s[96:97]"); a(f"s_add_u32 m0, s86, {41 + slot}"); a("s_waitcnt lgkmcnt(0)"); a("v_writelane_b32 v11, s96, m0")
            a(M[0])
            if s.m16: a(M[1])
            if slot == 3:
                lnb = s.newlab("L_nb"); a("s_cmp_eq_u32 s86, 16"); a(f"s_cbranch_scc1 {lnb}"); a("s_barrier"); s.label(lnb)
            else: a("s_barrier")
            if s.m16:
                rp = s.opt.get("rp", 1)
                ri = 0; mi = 2
                while ri < 16:
                    for _ in range(2 if (rp == 2 and mi % 2 == 0) else 1):
                        if ri < 16: a(R[ri]); ri += 1
                    a(M[mi]); mi += 1
                M = M[:6] + M[mi:]
            else:
                for i in range(5):
                    for r in R[3 * i:3 * i + 3]: a(r)
                    a(M[1 + i])
                a(R[15])
            if touch == 2 and slot == s.opt.get("tslot", 0):
                lt = s.newlab("L_nt")
                a(f"s_cmp_ge_u32 s86, {4 * (5 - tpre)}"); a(f"s_cbranch_scc1 {lt}"); do_touch(); s.label(lt)
            for m in M[6:]: a(m)
            a("s_waitcnt lgkmcnt(0)")
            if slot == 0:
                a("s_cmp_eq_u32 s86, 0"); a("s_cbranch_scc1 L_kv")
                s.label("L_kvret")
        a("s_add_u32 s86, s86, 4")
        a("s_cmp_lt_u32 s86, 20"); a("s_cbranch_scc1 L_g1")
        s.stamp(1)
        if s.opt.get("g1only"): a("s_branch L_fin2")
        if s.opt.get("xidle"): s.lds_set(2, L_XG2, 1); a("s_branch L_final")
        a(f"v_mov_b32 v116, {L_EPOCH}"); a("v_mov_b32 v117, 1"); a("s_mov_b64 exec, 1"); a(f"ds_add_u32 v116, v117 offset:{L_XCNT - L_EPOCH}"); a("s_mov_b64 exec, -1")
        a("ds_read_b128 v[116:119], v116"); a("s_waitcnt lgkmcnt(0)")
        a("v_readfirstlane_b32 s72, v116"); a("v_readfirstlane_b32 s73, v117"); a("v_readfirstlane_b32 s76, v119"); a("s_nop 1")
        lfa = s.newlab("L_faok")
        a("s_cmp_lg_u32 s76, 0"); a(f"s_cbranch_scc1 {lfa}")
        a("v_lshlrev_b32 v114, 3, v1")
        a("s_lshl_b32 s76, s10, 9"); a(f"s_add_u32 s76, s76, {WS_FA}")
        s.poll(112, 114, "s76")
        s.label(lfa)
        s.stamp(2)
        if s.opt.get("g2map", 1): a("s_mul_i32 s78, s11, 3"); a("s_lshr_b32 s78, s78, 1"); a("s_mul_i32 s79, s12, 3"); a("s_add_u32 s78, s78, s79")
        else: a("s_mul_i32 s78, s10, 3"); a("s_lshr_b32 s78, s78, 1"); a("s_mul_i32 s79, s13, 3"); a("s_add_u32 s78, s78, s79")
        a("s_cmp_ge_u32 s78, 12"); a("s_cselect_b32 s79, 12, 0"); a("s_sub_u32 s78, s78, s79")
        if s.opt.get("g2rot") == 0: a("s_mov_b32 s78, 0")
        a("s_mul_i32 s79, s3, 12")
        a(f"s_mul_i32 s80, s10, {WBS}"); a(f"s_add_u32 s80, s80, {WS_WB}")
        a(f"s_mul_i32 s81, s9, {HBS}"); a(f"s_add_u32 s81, s81, {WS_HB}")
        a("s_mul_i32 s92, s3, 20480")
        PERM = {0: list(range(12)), 1: [0, 1, 3, 6, 9, 2, 4, 7, 10, 5, 8, 11], 2: [0, 3, 6, 9, 1, 4, 7, 10, 2, 5, 8, 11], 3: [0, 1, 2, 3, 6, 9, 4, 7, 10, 5, 8, 11]}[s.opt.get("kperm", 2)]
        def kt_of(i, dst):
            i = PERM[i]
            a(f"s_add_u32 s{dst}, s78, {i}"); a(f"s_cmp_ge_u32 s{dst}, 12"); a(f"s_cselect_b32 s82, 12, 0"); a(f"s_sub_u32 s{dst}, s{dst}, s82")
            a(f"s_add_u32 s{dst}, s{dst}, s79")
        def wb_loads(i):
            kt_of(i, 83); a("s_mul_i32 s83, s83, 5120"); a("s_add_u32 s83, s83, s80")
            r = 12 + 20 * (i % 5)
            for dt in range(5):
                if dt < 4: s.vmem(("wb", i), f"buffer_load_dwordx4 v[{r+4*dt}:{r+4*dt+3}], v7, s[44:47], s83 offen offset:{dt*1024} sc1")
                else: s.vmem(("wb", i), f"buffer_load_dwordx4 v[{r+4*dt}:{r+4*dt+3}], v8, s[44:47], s83 offen sc1")
        def wb_dma(i):
            kt_of(i, 83); a("s_mul_i32 s83, s83, 5120"); a("s_add_u32 s83, s83, s80")
            a(f"s_add_u32 m0, s92, {(i - 5) * 5120}"); a("s_nop 0")
            for dt in range(4):
                s.vmem(("wd", i), f"buffer_load_dwordx4 v7, s[44:47], s83 offen offset:{dt*1024} sc1 lds")
            a(f"s_add_u32 m0, s92, {(i - 5) * 5120 + 4096}"); a("s_nop 0")
            s.vmem(("wd", i), f"buffer_load_dwordx4 v8, s[44:47], s83 offen sc1 lds")
        def wb_lds(i):
            r = 12 + 20 * (i % 5)
            for dt in range(5): a(f"ds_read_b128 v[{r+4*dt}:{r+4*dt+3}], v10 offset:{(i - 5) * 5120 + dt*1024}")
        def hb_loads(i):
            kt_of(i, 83); a("s_lshl_b32 s83, s83, 12"); a("s_add_u32 s83, s83, s81")
            r = 112 + 16 * (i % 4)
            for sb in range(4):
                s.vmem(("hb", i), f"buffer_load_dwordx4 v[{r+4*sb}:{r+4*sb+3}], v7, s[44:47], s83 offen offset:{sb*1024} {s.opt.get('hsc', 'sc1')}")
        wq = [(i, dt) for i in range(5) for dt in range(5)]
        def wb_some(n):
            for _ in range(n):
                if not wq: return
                i, dt = wq.pop(0)
                if dt == 0: kt_of(i, 98); a("s_mul_i32 s98, s98, 5120"); a("s_add_u32 s98, s98, s80")
                r = 12 + 20 * (i % 5)
                if dt < 4: s.vmem(("wb", i), f"buffer_load_dwordx4 v[{r+4*dt}:{r+4*dt+3}], v7, s[44:47], s98 offen offset:{dt*1024} sc1")
                else: s.vmem(("wb", i), f"buffer_load_dwordx4 v[{r+4*dt}:{r+4*dt+3}], v8, s[44:47], s98 offen sc1")
        wpt = s.opt.get("wpt", 1)
        wb_some(s.opt.get("npre", 0))
        a("s_mov_b32 s84, 0xbfb8aa3b"); a("s_mov_b32 s85, 0xbfb8aa3b")
        a("s_lshl_b32 s87, s6, 1"); a("s_add_u32 s87, s87, s74")
        a(f"s_mul_i32 s88, s87, {HBS}")
        a("s_mul_i32 s89, s7, 6"); a("s_mul_i32 s90, s75, 3"); a("s_add_u32 s89, s89, s90")
        for T in range(3):
            a(f"s_add_u32 s90, s89, {T}"); a("s_and_b32 s91, s90, 1"); a("s_lshr_b32 s90, s90, 1")
            a("s_lshl_b32 s90, s90, 12"); a("s_lshl_b32 s91, s91, 9"); a("s_add_u32 s90, s90, s91"); a("s_add_u32 s90, s90, s88")
            for nt in range(2):
                ti = 2 * T + nt
                o = 160 + 16 * ti; p = 120 + 4 * ti
                if ti < s.opt.get("pkt", 0):
                    for e in range(4): a(f"v_pk_mul_f32 v[{o+2*e}:{o+2*e+1}], v[{o+2*e}:{o+2*e+1}], s[84:85]")
                    for e in range(8): a(f"v_exp_f32 v{o+e}, v{o+e}")
                    for e in range(4): a(f"v_pk_add_f32 v[{o+2*e}:{o+2*e+1}], v[{o+2*e}:{o+2*e+1}], 1.0 op_sel_hi:[1,0]")
                    for e in range(8): a(f"v_rcp_f32 v{o+e}, v{o+e}")
                    for e in range(4): a(f"v_pk_mul_f32 v[{o+2*e}:{o+2*e+1}], v[{o+2*e}:{o+2*e+1}], v[{o+8+2*e}:{o+9+2*e}]")
                else:
                    for e in range(8): a(f"v_mul_f32 v{o+e}, s84, v{o+e}")
                    for e in range(8): a(f"v_exp_f32 v{o+e}, v{o+e}")
                    for e in range(8): a(f"v_add_f32 v{o+e}, 1.0, v{o+e}")
                    for e in range(8): a(f"v_rcp_f32 v{o+e}, v{o+e}")
                    for e in range(8): a(f"v_mul_f32 v{o+e}, v{o+e}, v{o+8+e}")
                for e in range(4): a(f"v_cvt_pk_bf16_f32 v{p+e}, v{o+2*e}, v{o+2*e+1}")
                if s.m16:
                    a("s_nop 1"); a(f"v_permlane16_swap_b32 v{p}, v{p+2}"); a(f"v_permlane16_swap_b32 v{p+1}, v{p+3}")
                s.vmem("hst", f"buffer_store_dwordx4 v[{p}:{p+3}], v9, s[44:47], s90 offen offset:{nt*2048} sc1")
                if ti < 5: wb_some(wpt)
        a("s_setprio 0")
        s.stamp(3)
        wb_some(s.opt.get("wmid", 6))
        s.vm_wait({"hst"})
        a("s_lshl_b32 s90, s87, 8"); a("s_lshl_b32 s91, s7, 4"); a("s_add_u32 s90, s90, s91"); a("s_lshl_b32 s91, s75, 3"); a("s_add_u32 s90, s90, s91")
        a(f"s_add_u32 s90, s90, {WS_FH}")
        s.write_flag(144, 90)
        s.lds_set(2, L_XH, 1)
        s.stamp(4)
        wb_some(25)
        s.lds_wait(L_XCNT, 1, 4, 148)
        a("v_min_u32 v114, 7, v1"); a("v_lshlrev_b32 v114, 3, v114")
        a("s_lshl_b32 s90, s9, 8"); a("s_lshl_b32 s91, s3, 6"); a("s_add_u32 s90, s90, s91"); a(f"s_add_u32 s90, s90, {WS_FH}")
        p1 = s.opt.get("p1at", 2)
        for i in range(5, 9):
            if i - 5 == p1: s.vmem("p1", "buffer_load_dwordx2 v[148:149], v114, s[44:47], s90 offen sc1")
            wb_dma(i)
        a("v_add_u32 v10, s92, v7")
        if p1 >= 0:
            lgo = s.newlab("L_go")
            s.vm_wait({"p1"})
            keep = list(s.vm)
            a("v_cmp_ne_u64 vcc, s[72:73], v[148:149]"); a("s_nop 1"); a(f"s_cbranch_vccz {lgo}")
            s.poll(112, 114, "s90")
            s.label(lgo)
            s.vm = keep
        else: s.poll(112, 114, "s90")
        s.stamp(5)
        if s.opt.get("g2prio", 0): a(f"s_setprio {s.opt.get('g2prio')}")
        h0 = s.opt.get("h0", 1)
        for i in range(h0): hb_loads(i)
        for i in range(12):
            if i == s.opt.get("xga", -1): s.lds_set(2, L_XG2, 1)
            if i == s.opt.get("xg2", 7): s.lds_set(2, L_XG2, 2)
            s.vm_wait({("hb", i), ("wb", i)})
            if i == 0:
                for k in range(h0, 4): hb_loads(k)
            s.stamp(16 + i, 3)
            if 5 <= i < 9: a("s_waitcnt lgkmcnt(0)")
            rw = 12 + 20 * (i % 5); rh = 112 + 16 * (i % 4)
            n = i + 4
            extra = {k: [] for k in range(20)}
            if n < 12:
                extra[0].append(lambda n=n: (kt_of(n, 83), a("s_mul_i32 s98, s83, 5120"), a("s_add_u32 s98, s98, s80"), a("s_lshl_b32 s83, s83, 12"), a("s_add_u32 s83, s83, s81")))
                for sb in range(4):
                    extra[5 * sb + 4].append(lambda n=n, sb=sb: s.vmem(("hb", n), f"buffer_load_dwordx4 v[{rh+4*sb}:{rh+4*sb+3}], v7, s[44:47], s83 offen offset:{sb*1024} sc1"))
                if n >= 5:
                    r = 12 + 20 * (n % 5)
                    for dt in range(5):
                        if n < 9: f = lambda n=n, dt=dt, r=r: a(f"ds_read_b128 v[{r+4*dt}:{r+4*dt+3}], v10 offset:{(n - 5) * 5120 + dt*1024}")
                        elif dt < 4: f = lambda n=n, dt=dt, r=r: s.vmem(("wb", n), f"buffer_load_dwordx4 v[{r+4*dt}:{r+4*dt+3}], v7, s[44:47], s98 offen offset:{dt*1024} sc1")
                        else: f = lambda n=n, dt=dt, r=r: s.vmem(("wb", n), f"buffer_load_dwordx4 v[{r+4*dt}:{r+4*dt+3}], v8, s[44:47], s98 offen sc1")
                        extra[4 * dt + 2].append(f)
            def pw(k):
                sb, dt = divmod(k, 5); o = 176 + 4 * (4 * dt + sb)
                a(f"ds_write_b128 v12, v[{o}:{o+3}] offset:{sb*5120 + dt*64}")
            if i == 11:
                extra[0].append(lambda: (a("v_and_b32 v12, 15, v1"), a("v_lshrrev_b32 v13, 4, v1"), a("v_bfe_u32 v14, v1, 1, 2"), a("v_xor_b32 v13, v13, v14")))
                extra[1].append(lambda: (a("v_mul_u32_u24 v12, 320, v12"), a("v_lshl_add_u32 v12, v13, 4, v12"), a("v_add_u32 v12, s92, v12")))
                for k in range(12): extra[k + 8].append(lambda k=k: pw(k))
            for sb in range(4):
                for dt in range(5):
                    o = 176 + 4 * (4 * dt + sb)
                    c = "0" if i == 0 else f"v[{o}:{o+3}]"
                    a(f"v_mfma_f32_16x16x32_bf16 v[{o}:{o+3}], v[{rw+4*dt}:{rw+4*dt+3}], v[{rh+4*sb}:{rh+4*sb+3}], {c}")
                    for f in extra[5 * sb + dt]: f()
        s.stamp(6)
        for k in range(12, 20):
            if k == 19: a("s_nop 0")
            pw(k)
        s.stamp(7)

    def final(s):
        a = s.a
        s.label("L_final")
        a("s_setprio 0")
        s.srd(48, 38, 2621440)
        a(f"s_mul_i32 s74, s9, {64*1280}"); a("s_mul_i32 s75, s10, 160"); a("s_add_u32 s74, s74, s75")
        def addr(n, b):
            a(f"v_mul_u32_u24 v13, 6554, v{n}"); a("v_lshrrev_b32 v13, 16, v13")
            a("v_mul_u32_u24 v14, 10, v13"); a(f"v_sub_u32 v14, v{n}, v14")
            a("v_bfe_u32 v15, v13, 1, 2"); a(f"v_lshlrev_b32 v{b}, 1, v14"); a(f"v_xor_b32 v{b}, v{b}, v15"); a(f"v_xor_b32 v{b+1}, 1, v{b}")
            a("v_mul_u32_u24 v15, 320, v13"); a(f"v_lshl_add_u32 v{b}, v{b}, 4, v15"); a(f"v_lshl_add_u32 v{b+1}, v{b+1}, 4, v15")
            a(f"v_lshlrev_b32 v{b+2}, 4, v{n}"); a(f"v_add_u32 v{b+2}, {L_QT}, v{b+2}")
            a(f"v_lshlrev_b32 v{b+3}, 2, v13"); a(f"v_add_u32 v{b+3}, {L_GF}, v{b+3}")
            a(f"v_mul_u32_u24 v{b+4}, 1120, v13"); a(f"v_lshl_add_u32 v{b+4}, v{n}, 4, v{b+4}")
        def rd(b, d):
            for w in range(4):
                a(f"ds_read_b128 v[{d+8*w}:{d+3+8*w}], v{b} offset:{w*20480}")
                a(f"ds_read_b128 v[{d+4+8*w}:{d+7+8*w}], v{b+1} offset:{w*20480}")
            a(f"ds_read_b128 v[{d+32}:{d+35}], v{b+2}"); a(f"ds_read_b32 v{d+36}, v{b+3}")
        def comp(b, d):
            for e in range(4):
                a(f"v_pk_add_f32 v[{d+2*e}:{d+1+2*e}], v[{d+2*e}:{d+1+2*e}], v[{d+8+2*e}:{d+9+2*e}]")
                a(f"v_pk_add_f32 v[{d+16+2*e}:{d+17+2*e}], v[{d+16+2*e}:{d+17+2*e}], v[{d+24+2*e}:{d+25+2*e}]")
            a(f"v_sub_f32 v{d+36}, 1.0, v{d+36}"); a(f"v_cvt_pk_bf16_f32 v{d+36}, v{d+36}, v{d+36}"); a(f"v_and_b32 v{d+36}, 0xffff0000, v{d+36}")
            for e in range(4):
                a(f"v_pk_add_f32 v[{d+2*e}:{d+1+2*e}], v[{d+2*e}:{d+1+2*e}], v[{d+16+2*e}:{d+17+2*e}]")
            for e in range(4):
                a(f"v_lshlrev_b32 v{d+8+2*e}, 16, v{d+32+e}"); a(f"v_and_b32 v{d+9+2*e}, 0xffff0000, v{d+32+e}")
                a(f"v_pk_fma_f32 v[{d+8+2*e}:{d+9+2*e}], v[{d+2*e}:{d+1+2*e}], v[{d+36}:{d+37}], v[{d+8+2*e}:{d+9+2*e}] op_sel_hi:[1,0,1]")
            for e in range(4): a(f"v_cvt_pk_bf16_f32 v{d+32+e}, v{d+8+2*e}, v{d+9+2*e}")
            a(f"buffer_store_dwordx4 v[{d+32}:{d+35}], v{b+4}, s[48:51], s74 offen {s.opt.get('ost', '')}")
        addr(0, 16)
        a("s_lshl_b32 s75, s3, 4"); a("s_add_u32 s75, s75, 512"); a("v_and_b32 v12, 15, v1"); a("v_add_u32 v12, s75, v12")
        addr(12, 24)
        a("s_waitcnt lgkmcnt(0)"); a("s_barrier")
        s.stamp(12)
        rd(16, 32)
        a("s_mov_b64 exec, 0xffff");
        rd(24, 72)
        a("s_mov_b64 exec, -1")
        a("s_waitcnt lgkmcnt(10)")
        comp(16, 32)
        a("s_waitcnt lgkmcnt(0)")
        a("s_mov_b64 exec, 0xffff")
        comp(24, 72)
        a("s_mov_b64 exec, -1")
        s.label("L_fin2")
        if s.opt.get("stamps"):
            s.stamp(13)
            a("s_waitcnt vmcnt(0)")
            s.stamp(14)
            a("s_memrealtime s[96:97]"); a("s_waitcnt lgkmcnt(0)"); a("v_writelane_b32 v11, s96, 15")
            a("s_lshl_b32 s74, s2, 3"); a("s_add_u32 s74, s74, s3"); a("s_lshl_b32 s74, s74, 8"); a(f"s_add_u32 s74, s74, {WS_STAMP}")
            a("v_lshlrev_b32 v12, 2, v1")
            a("buffer_store_dword v11, v12, s[44:47], s74 offen")
            if s.opt.get("dbgout"):
                ld = s.newlab("L_dbo")
                a("s_cmp_lg_u32 s2, 9"); a(f"s_cbranch_scc1 {ld}"); a("s_cmp_lg_u32 s3, 0"); a(f"s_cbranch_scc1 {ld}")
                s.srd(64, 40, 256)
                a("v_readlane_b32 s74, v11, 0"); a("s_nop 1"); a("v_subrev_u32 v11, s74, v11")
                a("v_add_u32 v12, 4, v12")
                a("s_mov_b64 exec, 0x7ffe"); a("buffer_store_dword v11, v12, s[64:67], 0 offen"); a("s_mov_b64 exec, -1")
                s.label(ld)
        s.label("L_end")
        a("s_endpgm")

    def kv_pre(s):
        a = s.a
        a("v_mul_u32_u24 v90, 3277, v1"); a("v_lshrrev_b32 v90, 16, v90"); a("v_mul_u32_u24 v91, 20, v90"); a("v_sub_u32 v91, v1, v91")
        a(f"s_mul_i32 s76, s74, {CV_SZ}"); a(f"s_add_u32 s76, s76, {L_CV + 2*CV_SZ}")
        a("v_lshlrev_b32 v95, 5, v91"); a("v_add_u32 v95, s76, v95")
        a(f"s_mul_i32 s77, s75, {16*192}"); a("s_add_u32 s76, s76, s77"); a("s_and_b32 s77, s10, 1"); a("s_lshl_b32 s77, s77, 5"); a("s_add_u32 s76, s76, s77")
        a(f"v_mul_u32_u24 v10, {6*192}, v90"); a("v_lshl_add_u32 v10, v91, 3, v10"); a("v_add_u32 v10, s76, v10")
        a("s_lshl_b32 s77, s3, 3"); a("v_mul_u32_u24 v85, 3, v90"); a("v_add_u32 v85, s77, v85"); a("v_and_b32 v86, 7, v91")
        for m in range(3):
            a(f"v_sub_u32 v87, {29+m}, v85"); a("v_lshrrev_b32 v88, 2, v87"); a("v_xor_b32 v88, v88, v86"); a("v_lshlrev_b32 v88, 4, v88")
            a("v_and_b32 v87, 3, v87"); a("v_lshl_add_u32 v88, v87, 2, v88"); a(f"v_lshl_add_u32 v{92+m}, v91, 7, v88")
            a(f"v_add_u32 v{92+m}, {L_T}, v{92+m}")
    def kv_main(s):
        a = s.a
        s.label("L_kv")
        a("s_barrier")
        s.stamp(8)
        a(f"ds_read_b128 v[42:45], v95 offset:{SC_SHK}"); a(f"ds_read_b128 v[46:49], v95 offset:{SC_SHK + 16}")
        for i in range(9): a(f"ds_read_b64 v[{12+2*i}:{13+2*i}], v10 offset:{SC_K + 192*i}")
        a("s_waitcnt lgkmcnt(9)")
        for i in range(6): a(f"ds_read_b64 v[{30+2*i}:{31+2*i}], v10 offset:{SC_V + 192*i}")
        for e in range(4):
            a(f"v_lshlrev_b32 v{96+e}, 16, v{42+2*e}"); a(f"v_and_b32 v{100+e}, 0xffff0000, v{42+2*e}")
            a(f"v_lshlrev_b32 v{104+e}, 16, v{43+2*e}"); a(f"v_and_b32 v{108+e}, 0xffff0000, v{43+2*e}")
        a("s_waitcnt lgkmcnt(0)")
        s.ex(60)
        for d in range(2):
            for i in range(9):
                a(f"v_lshlrev_b32 v{112+2*i}, 16, v{12+2*i+d}"); a(f"v_and_b32 v{113+2*i}, 0xffff0000, v{12+2*i+d}")
            for i in range(6):
                a(f"v_lshlrev_b32 v{130+2*i}, 16, v{30+2*i+d}"); a(f"v_and_b32 v{131+2*i}, 0xffff0000, v{30+2*i+d}")
            for r in range(6):
                a(f"v_pk_mul_f32 v[{142+2*r}:{143+2*r}], v[{112+2*r}:{113+2*r}], v[{108+2*d}:{109+2*d}]")
            for j in (2, 1, 0):
                for r in range(6):
                    k = 112 + 2 * (r + 3 - j); w = 96 + 4 * j + 2 * d
                    a(f"v_pk_fma_f32 v[{142+2*r}:{143+2*r}], v[{k}:{k+1}], v[{w}:{w+1}], v[{142+2*r}:{143+2*r}]")
            for r in range(6):
                a(f"v_pk_mul_f32 v[{142+2*r}:{143+2*r}], v[{142+2*r}:{143+2*r}], v[{130+2*r}:{131+2*r}]")
            for e in range(2):
                for m in range(3):
                    hi = 4 - 2 * m
                    a(f"v_cvt_pk_bf16_f32 v{154+3*e+m}, v{142+2*(hi+1)+e}, v{142+2*hi+e}")
            for m in (1, 2, 0):
                if m == 0: a("s_mov_b32 exec_hi, 0xff")
                for e in range(2):
                    a(f"ds_write_b32 v{92+m}, v{154+3*e+m} offset:{(2*d+e)*2560}")
            a("s_mov_b32 exec_hi, 0xfffffff")
        a("s_mov_b64 exec, -1")
        s.stamp(9)
        a("s_branch L_kvret")
        s.label("L_codeend")

    def build(s):
        s.kvt = s.opt.get("kvt", 6); s.m16 = s.opt.get("m16", 1); s.pre = s.opt.get("pre", 1) and s.opt.get("gearly", 1)
        s.nt = "nt" if s.opt.get("nt", 1) else ""
        hdr = open("gated_mix__ssm_conv_h3__glu_gated_glu__prompt.s.ref").read().split("; Override launch")[0]
        out = hdr + f"; @launch grid=(256,1,1) block=(512,1,1) lds={LDS_TOTAL}\n"
        out += '.amdgcn_target "amdgcn-amd-amdhsa--gfx950"\n.text\n' + f".globl {KN}\n.p2align 8\n.type {KN},@function\n{KN}:\n"
        s.prologue(); s.loader(); s.chore(); s.ywave(); s.xwave(); s.final(); s.kv_main()
        out += "\n".join(s.L) + "\n"
        out += f""".section .rodata,"a"
.p2align 6
.amdhsa_kernel {KN}
  .amdhsa_next_free_vgpr 256
  .amdhsa_next_free_sgpr 102
  .amdhsa_accum_offset 256
  .amdhsa_group_segment_fixed_size 0
  .amdhsa_kernarg_size 112
  .amdhsa_user_sgpr_count 2
  .amdhsa_user_sgpr_kernarg_segment_ptr 1
  .amdhsa_system_sgpr_workgroup_id_x 1
.end_amdhsa_kernel
"""
        return out

if __name__ == "__main__":
    opt = {}
    outp = sys.argv[1]
    for x in sys.argv[2:]:
        k, v = x.split("=")
        if "," in v: opt[k] = tuple(int(z) for z in v.split(","))
        else:
            try: opt[k] = int(v)
            except ValueError: opt[k] = v
    open(outp, "w").write(Gen(opt).build())
```

```python
import sys
KN = "gated_mix__ssm_conv_h3__glu_gated_glu__prompt_kernel"

WS_HB = 0x000000; WS_WB = 0x610000; HBS = 48*4096 + 128; WBS = 48*5120 + 128; WS_KT = 0x800000; WS_YT = 0xB00000
WS_G = 0xE00000; WS_FA = 0xE10000; WS_FB = 0xE12000; WS_FH = 0xE14000; WS_FY = 0xE16000
WS_STAMP = 0xF00000
TS = 4224
L_XR = 0; L_WR = 32768; L_CV = 81920; CV_SZ = 17728; H_SZ = 8448; L_QT = 152832; L_MISC = 163072; LDS_TOTAL = 163840
CV_A = 0; CV_B = 4224; CV_U0 = 0; CV_U1 = 4616
L_FULL = L_MISC; L_FREE = L_MISC + 16; L_EPOCH = L_MISC + 32; L_QDONE = L_MISC + 40; L_SDONE = L_MISC + 48; L_XG2 = L_MISC + 56; L_XH = L_MISC + 60; L_FBOK = L_MISC + 28; L_XCNT = L_MISC + 52; L_GF = L_MISC + 256
SC_K = 0; SC_V = 6720; SC_SHK = 13440; L_T = L_CV; L_WDS = L_CV + CV_SZ
SPIN_MAX = 30000
NCONV = 160

class Gen:
    def __init__(s, opt):
        s.L = []; s.opt = opt; s.vm = []; s.lab = 0; s.vstamp = 11
    def a(s, x): s.L.append("    " + x)
    def label(s, x): s.L.append(x + ":")
    def newlab(s, p="L"):
        s.lab += 1; return f"{p}_{s.lab}"
    def vm_reset(s): s.vm = []
    def vmem(s, tag, ins): s.a(ins); s.vm.append(tag)
    def vm_wait(s, tags):
        idx = -1
        for i, t in enumerate(s.vm):
            if t in tags: idx = i
        if idx < 0: return
        n = len(s.vm) - 1 - idx
        assert n <= 63
        s.a(f"s_waitcnt vmcnt({n})")
        s.vm = s.vm[idx + 1:]
    def vm_wait_all(s):
        s.a("s_waitcnt vmcnt(0)"); s.vm = []
    def ex(s, n):
        if n >= 64: s.a("s_mov_b64 exec, -1")
        elif n > 32: s.a("s_mov_b32 exec_lo, -1"); s.a(f"s_mov_b32 exec_hi, {hex((1 << (n - 32)) - 1)}")
        elif n == 32: s.a("s_mov_b32 exec_hi, 0")
        else: s.a(f"s_mov_b32 exec_lo, {hex((1 << n) - 1)}"); s.a("s_mov_b32 exec_hi, 0")
    def srd(s, d, p, nbytes):
        s.a(f"s_mov_b32 s{d}, s{p}"); s.a(f"s_and_b32 s{d+1}, s{p+1}, 0xffff")
        s.a(f"s_mov_b32 s{d+2}, {nbytes}"); s.a(f"s_mov_b32 s{d+3}, 0x20000")
    def stamp(s, idx, lvl=1):
        if s.opt.get("stamps", 0) >= 1 and (lvl == 1 or s.opt.get("stamps", 0) == lvl):
            s.a("s_memtime s[96:97]"); s.a("s_waitcnt lgkmcnt(0)")
            s.a(f"v_writelane_b32 v{s.vstamp}, s96, {idx}")
            if s.opt.get("rt") and lvl == 1 and idx < 15:
                s.a("s_memrealtime s[96:97]"); s.a("s_waitcnt lgkmcnt(0)"); s.a(f"v_writelane_b32 v{s.vstamp}, s96, {idx + 40}")
    def poll(s, vflag, voff, soff, scnt=94, slp=None):
        l0 = s.newlab("L_poll"); l1 = s.newlab("L_pdone")
        s.a(f"s_mov_b32 s{scnt}, {SPIN_MAX}")
        s.label(l0)
        s.a(f"buffer_load_dwordx2 v[{vflag}:{vflag+1}], v{voff}, s[44:47], {soff} offen sc1")
        s.a("s_waitcnt vmcnt(0)")
        s.a(f"v_cmp_ne_u64 vcc, s[72:73], v[{vflag}:{vflag+1}]")
        s.a("s_nop 1")
        s.a(f"s_cbranch_vccz {l1}")
        slp = s.opt.get("slp", 4) if slp is None else slp
        if slp: s.a(f"s_sleep {slp}")
        s.a(f"s_sub_u32 s{scnt}, s{scnt}, 1")
        s.a(f"s_cbranch_scc0 {l0}")
        s.label(l1)
        s.vm = []
    def lds_wait(s, addr, nw, need, vt, scache=None, scnt=94, slp=0):
        a = s.a
        sc = scache if scache is not None else 95
        l0 = s.newlab("L_lw"); l1 = s.newlab("L_lwd")
        if scache is not None:
            a(f"s_cmp_ge_u32 s{sc}, {need}"); a(f"s_cbranch_scc1 {l1}")
        a(f"s_mov_b32 s{scnt}, {SPIN_MAX * 8}")
        a(f"v_mov_b32 v{vt+4}, {addr}")
        s.label(l0)
        if nw == 1: a(f"ds_read_b32 v{vt}, v{vt+4}")
        elif nw == 2: a(f"ds_read_b64 v[{vt}:{vt+1}], v{vt+4}")
        else: a(f"ds_read_b128 v[{vt}:{vt+3}], v{vt+4}")
        a("s_waitcnt lgkmcnt(0)")
        if nw == 2: a(f"v_min_u32 v{vt}, v{vt}, v{vt+1}")
        if nw == 4: a(f"v_min_u32 v{vt}, v{vt}, v{vt+1}"); a(f"v_min3_u32 v{vt}, v{vt}, v{vt+2}, v{vt+3}")
        a("s_nop 0")
        a(f"v_readfirstlane_b32 s{sc}, v{vt}")
        a("s_nop 1")
        a(f"s_cmp_ge_u32 s{sc}, {need}"); a(f"s_cbranch_scc1 {l1}")
        if slp: a(f"s_sleep {slp}")
        a(f"s_sub_u32 s{scnt}, s{scnt}, 1"); a(f"s_cbranch_scc0 {l0}")
        s.label(l1)
    def read_epoch(s, vt):
        a = s.a; l0 = s.newlab("L_re"); l1 = s.newlab("L_red")
        a(f"s_mov_b32 s94, {SPIN_MAX * 8}"); a(f"v_mov_b32 v{vt+2}, {L_EPOCH}")
        s.label(l0)
        a(f"ds_read_b64 v[{vt}:{vt+1}], v{vt+2}")
        a("s_waitcnt lgkmcnt(0)")
        a(f"v_readfirstlane_b32 s72, v{vt}"); a(f"v_readfirstlane_b32 s73, v{vt+1}"); a("s_nop 1")
        a("s_cmp_lg_u32 s73, 0"); a(f"s_cbranch_scc1 {l1}")
        a("s_sub_u32 s94, s94, 1"); a(f"s_cbranch_scc0 {l0}")
        s.label(l1)
    def write_flag(s, vt, sreg):
        s.a(f"v_mov_b32 v{vt}, s72"); s.a(f"v_mov_b32 v{vt+1}, s73"); s.a(f"v_mov_b32 v{vt+2}, 0")
        s.a("s_mov_b64 exec, 1")
        s.vmem("flag", f"buffer_store_dwordx2 v[{vt}:{vt+1}], v{vt+2}, s[44:47], s{sreg} offen sc1")
        s.a("s_mov_b64 exec, -1")
    def h_own(s, syreg):
        a = s.a
        a("s_lshl_b32 s76, s14, 2"); a(f"s_add_u32 s76, s76, s{syreg}"); a("s_lshl_b32 s76, s76, 12")
        for i in range(4):
            s.vmem("h", f"buffer_load_dwordx4 v[{164+4*i}:{167+4*i}], v12, s[60:63], s76 offen offset:{i*1024} {s.nt}")
    def tile_loads(s, base, reg):
        a = s.a
        for i in range(3):
            a(f"s_add_u32 s74, s88, {base + i*8*TS}")
            if i == 2: a("s_mov_b32 exec_hi, 0")
            a(f"buffer_load_dwordx4 v[{reg+4*i}:{reg+4*i+3}], v77, s[44:47], s74 offen sc1")
            if i == 2: a("s_mov_b64 exec, -1")
    def ap_addr(s):
        a = s.a
        a("v_sub_u32 v78, 63, v1"); a("v_lshlrev_b32 v78, 2, v78")
        a("s_mul_i32 s87, s10, 80"); a("s_mul_i32 s88, s83, 20"); a("s_add_u32 s87, s87, s88")
        a(f"s_mul_i32 s88, s87, {TS}"); a("s_lshl_b32 s75, s9, 7"); a("s_sub_u32 s88, s88, s75"); a("s_add_u32 s88, s88, 3968")
        a("v_lshrrev_b32 v77, 3, v1"); a(f"v_mul_u32_u24 v77, {TS}, v77"); a("v_and_b32 v79, 7, v1"); a("v_lshl_add_u32 v77, v79, 4, v77")
    def ap_loads(s):
        a = s.a
        a("s_lshl_b32 s74, s9, 8"); a(f"s_add_u32 s74, s74, {WS_G}")
        a("buffer_load_dword v76, v78, s[44:47], s74 offen sc1")
        s.tile_loads(WS_KT, 64)
    def kwait(s):
        if not s.opt.get("stamps") and s.opt.get("early", 1):
            s.a("s_waitcnt lgkmcnt(0)")
            s.srd(44, 42, 0x10000000)
    def lds_set(s, vt, addr_sreg_or_const, val):
        s.a(f"v_mov_b32 v{vt}, {addr_sreg_or_const}"); s.a(f"v_mov_b32 v{vt+1}, {val}"); s.a(f"ds_write_b32 v{vt}, v{vt+1}")

    def prologue(s):
        a = s.a
        a("s_cmp_ge_u32 s2, 256"); a("s_cbranch_scc1 L_end")
        a("s_load_dwordx16 s[16:31], s[0:1], 0")
        a("s_load_dwordx8 s[32:39], s[0:1], 64")
        a("s_load_dwordx4 s[40:43], s[0:1], 96")
        a("v_lshrrev_b32 v2, 6, v0")
        a("v_and_b32 v1, 63, v0")
        a("v_readfirstlane_b32 s3, v2")
        a("s_and_b32 s4, s2, 7"); a("s_lshr_b32 s5, s2, 3")
        a("s_lshr_b32 s6, s4, 2"); a("s_lshl_b32 s6, s6, 3"); a("s_and_b32 s11, s5, 7"); a("s_add_u32 s6, s6, s11")
        a("s_and_b32 s7, s4, 3"); a("s_lshl_b32 s7, s7, 2"); a("s_lshr_b32 s12, s5, 3"); a("s_add_u32 s7, s7, s12")
        a("s_lshl_b32 s8, s12, 1"); a("s_add_u32 s8, s8, s11"); a("s_and_b32 s8, s8, 7")
        if s.opt.get("g2map", 1):
            a("s_lshr_b32 s9, s4, 1"); a("s_lshl_b32 s9, s9, 3"); a("s_add_u32 s9, s9, s11")
            a("s_and_b32 s10, s4, 1"); a("s_lshl_b32 s10, s10, 2"); a("s_add_u32 s10, s10, s12")
        else:
            a("s_lshl_b32 s9, s4, 2"); a("s_and_b32 s13, s5, 3"); a("s_add_u32 s9, s9, s13"); a("s_lshr_b32 s10, s5, 2")
        if s.opt.get("cmap", 0):
            a("s_mul_i32 s14, s5, 5"); a("s_add_u32 s14, s14, s4"); a("s_cmp_lt_u32 s4, 5"); a("s_cselect_b32 s14, s14, 255")
        else: a("s_mov_b32 s14, s2")
        if s.opt.get("stamps"): a("v_mov_b32 v11, 0")
        a("v_lshlrev_b32 v12, 4, v1")
        if s.opt.get("stamps") or not s.opt.get("early", 1):
            a("s_waitcnt lgkmcnt(0)")
            s.srd(44, 42, 0x10000000)
        s.stamp(0)
        if s.opt.get("stamps"):
            a("s_memrealtime s[96:97]"); a("s_waitcnt lgkmcnt(0)"); a("v_writelane_b32 v11, s96, 62")
        a("s_cmp_lt_u32 s3, 4"); a("s_cbranch_scc1 L_X")
        a("s_cmp_ge_u32 s3, 6"); a("s_cbranch_scc1 L_C")

    def loader(s):
        a = s.a; s.vm_reset()
        s.label("L_L")
        a(f"s_setprio {s.opt.get('lprio', 3)}")
        a("s_sub_u32 s74, s3, 4")
        a("v_lshrrev_b32 v4, 2, v1"); a("v_mul_u32_u24 v2, 3072, v4")
        a("v_and_b32 v5, 3, v1")
        if s.m16: a("v_lshrrev_b32 v6, 5, v1"); a("v_lshlrev_b32 v6, 1, v6"); a("v_xor_b32 v6, v6, v5")
        else: a("s_lshl_b32 s75, s74, 1"); a("v_xor_b32 v6, s75, v5")
        a("v_lshl_add_u32 v2, v6, 4, v2")
        a("s_mul_i32 s75, s7, 192"); a("v_add_u32 v2, s75, v2")
        a("v_mul_u32_u24 v3, 1280, v4")
        if s.m16:
            a("v_lshrrev_b32 v7, 5, v1"); a("v_bfe_u32 v6, v1, 4, 1"); a("v_xor_b32 v6, v6, v7"); a("v_lshl_add_u32 v6, v6, 1, v7"); a("v_xor_b32 v6, v6, v5")
        else:
            a("v_lshrrev_b32 v6, 4, v1"); a("s_lshl_b32 s75, s74, 2"); a("v_add_u32 v6, s75, v6")
            a("v_lshrrev_b32 v7, 1, v6"); a("v_xor_b32 v6, v6, v7"); a("v_and_b32 v6, 3, v6"); a("v_xor_b32 v6, v6, v5")
        a("v_lshl_add_u32 v3, v6, 4, v3")
        a("s_lshl_b32 s75, s6, 3"); a("s_add_u32 s75, s75, s74"); a(f"s_mul_i32 s75, s75, {16*1280}"); a("v_add_u32 v3, s75, v3")
        a("s_lshl_b32 s78, s74, 10")
        a(f"s_mul_i32 s79, s74, 6144"); a(f"s_add_u32 s79, s79, {L_WR}")
        s.kwait()
        s.srd(48, 16, 2621440)
        a("s_cmp_eq_u32 s74, 0")
        a("s_cselect_b32 s52, s30, s32"); a("s_cselect_b32 s53, s31, s33"); a("s_and_b32 s53, s53, 0xffff")
        a("s_mov_b32 s54, 1966080"); a("s_mov_b32 s55, 0x20000")
        groups = s.opt.get("groups", (1,) * 10)
        if s.opt.get("cyc", 1): a("s_mul_i32 s8, s8, 5"); a("s_lshr_b32 s8, s8, 2")
        def dsel(D):
            if s.opt.get("cyc", 1):
                a(f"s_add_u32 s80, s8, {D}"); a("s_cmp_ge_u32 s80, 10"); a("s_cselect_b32 s15, 10, 0"); a("s_sub_u32 s80, s80, s15")
                return
            b = 0
            for g in groups:
                if D < b + g: break
                b += g
            if g == 1: a(f"s_mov_b32 s80, {D}"); return
            assert g in (2, 4, 8)
            src = "s8" if g == 8 else ("s14" if g == 4 else "s15")
            a(f"s_add_u32 s80, {src}, {D - b}"); a(f"s_and_b32 s80, s80, {g - 1}")
            if b: a(f"s_add_u32 s80, s80, {b}")
        def issue_x(D):
            dsel(D); a("s_lshl_b32 s81, s80, 7")
            for gi in range(4):
                for h in range(2):
                    t = 2 * D + h
                    a(f"s_add_u32 m0, s78, {L_XR + (t & 3) * 8192 + gi * 2048}")
                    a(f"s_add_u32 s82, s81, {gi * 32 * 1280 + h * 64}")
                    s.vmem(("x", t), f"buffer_load_dwordx4 v3, s[48:51], s82 offen lds")
        def issue_w(t):
            dsel(t >> 1); a(f"s_mul_i32 s81, s80, {64*3072}")
            for rh in range(2):
                for pc in range(3):
                    a(f"s_add_u32 m0, s79, {(t & 3) * 12288 + pc * 2048 + rh * 1024}")
                    a(f"s_add_u32 s82, s81, {(32 * (t & 1) + 16 * rh) * 3072 + pc * 64}")
                    s.vmem(("w", t), f"buffer_load_dwordx4 v2, s[52:55], s82 offen lds")
        def publish(t):
            s.vm_wait({("x", t), ("w", t), ("x", t | 1)})
            s.stamp(40 + t, 2)
            a("s_barrier")
            s.stamp(16 + t, 2)
        issue_w(0); issue_x(0); issue_w(1)
        a("s_barrier")
        publish(0); publish(1)
        if s.opt.get("lx1", 0):
            issue_x(1)
            a("s_barrier")
            issue_w(2)
        elif s.opt.get("rtouch", 2):
            a("s_barrier")
            issue_x(1); issue_w(2)
        else:
            issue_x(1); issue_w(2)
            a("s_barrier")
        issue_w(3)
        hold = -5
        pend = []
        for n in range(1, 17):
            if n % 2 == 0 and n + 2 < 20: pend.append(lambda n=n: issue_x((n + 2) // 2))
            if n + 3 < 20: pend.append(lambda n=n: issue_w(n + 3))
            if n != hold:
                for f in pend: f()
                pend = []
            if n == s.opt.get("hmid", 7): s.srd(60, 24, 2621440); s.h_own(74)
            hp_ = s.opt.get("hp", 19)
            if s.opt.get("hmid", 7) and hp_ < 17 and n in (hp_, hp_ + 1):
                s.vm_wait({"h"})
                lh_ = s.newlab("L_nh"); a(f"s_cmp_ge_u32 s14, {NCONV}"); a(f"s_cbranch_scc1 {lh_}")
                a("s_mov_b32 s83, s74"); a(f"s_mul_i32 s84, s74, {CV_SZ}"); a(f"s_add_u32 s84, s84, {L_CV}")
                s.h_copies(84, 164, n - hp_); a("s_mov_b32 s74, s83"); s.label(lh_)
            if n < 16: publish(n + 1)
        a("s_mov_b32 s83, s74")
        a("s_branch L_Yt")

    def row_loads(s, srd, nrows, vfirst, vrest, reg, tag, nt):
        a = s.a
        for i in range((nrows + 4) // 5):
            n = min(5, nrows - 5 * i)
            if i == 0 or n < 5: s.ex(12 * n)
            r = reg + 4 * i
            if i == 0: s.vmem(tag, f"buffer_load_dwordx4 v[{r}:{r+3}], v{vfirst}, s[{srd}:{srd+3}], 0 offen {nt}")
            else:
                a(f"s_mov_b32 s77, {6400*(i-1)}")
                s.vmem(tag, f"buffer_load_dwordx4 v[{r}:{r+3}], v{vrest}, s[{srd}:{srd+3}], s77 offen {nt}")
        a("s_mov_b64 exec, -1")
    def dma_rows(s, srd, nrows, vfirst, vrest, ldsbase_s, ldsoff, tag, nt):
        a = s.a
        for i in range((nrows + 4) // 5):
            a(f"s_add_u32 m0, s{ldsbase_s}, {ldsoff + 960*i}")
            n = min(5, nrows - 5 * i)
            if i == 0 or n < 5: s.ex(12 * n)
            if i == 0: s.vmem(tag, f"buffer_load_dwordx4 v{vfirst}, s[{srd}:{srd+3}], 0 offen {nt} lds")
            else:
                a(f"s_mov_b32 s77, {6400*(i-1)}")
                s.vmem(tag, f"buffer_load_dwordx4 v{vrest}, s[{srd}:{srd+3}], s77 offen {nt} lds")
        a("s_mov_b64 exec, -1")
    def img_write(s, sbase, off, n, reg):
        a = s.a
        a(f"v_add_u32 v13, s{sbase}, v12"); s.ex(60)
        for i in range(n): a(f"ds_write_b128 v13, v[{reg+4*i}:{reg+4*i+3}] offset:{off + 960*i}")
        a("s_mov_b64 exec, -1")
    def h_copies(s, sbase, reg, half=None):
        a = s.a
        a(f"v_add_u32 v13, s{sbase}, v12")
        for i in (range(4) if half is None else range(2 * half, 2 * half + 2)):
            r = reg + 4 * i
            if i == 0: a("v_mov_b32 v234, 0")
            else:
                a(f"v_readlane_b32 s74, v{r-1}, 63"); a("s_nop 1"); a("v_mov_b32 v234, s74")
            a("s_nop 1")
            a(f"v_mov_b32_dpp v234, v{r+3} wave_shr:1 row_mask:0xf bank_mask:0xf")
            a(f"ds_write_b128 v13, v[{r}:{r+3}] offset:{CV_B + 64 + i*1024}")
            a(f"v_alignbit_b32 v236, v{r}, v234, 16")
            a(f"v_alignbit_b32 v237, v{r+1}, v{r}, 16")
            a(f"v_alignbit_b32 v238, v{r+2}, v{r+1}, 16")
            a(f"v_alignbit_b32 v239, v{r+3}, v{r+2}, 16")
            a(f"ds_write_b128 v13, v[236:239] offset:{CV_A + 64 + i*1024}")
        if half == 0: return
        a("v_lshrrev_b32 v234, 2, v1"); a("v_and_b32 v235, 1, v234"); a("v_mul_u32_u24 v235, 4160, v235")
        a("v_lshrrev_b32 v234, 1, v234"); a(f"v_mul_u32_u24 v234, {CV_B}, v234"); a("v_add_u32 v235, v235, v234")
        a("v_and_b32 v234, 3, v1"); a("v_lshl_add_u32 v235, v234, 4, v235"); a(f"v_add_u32 v235, s{sbase}, v235")
        for r in range(236, 240): a(f"v_mov_b32 v{r}, 0")
        s.ex(16)
        a("ds_write_b128 v235, v[236:239]")
        a("s_mov_b64 exec, -1")
    def u_addr(s, sbase):
        a = s.a
        def swz(dst, off):
            a(f"v_add_u32 v{dst}, {off}, v12"); a(f"v_lshrrev_b32 v41, 3, v{dst}"); a("v_and_b32 v41, 32, v41"); a(f"v_xor_b32 v{dst}, v{dst}, v41")
            a(f"v_add_u32 v{dst}, s{sbase}, v{dst}"); a(f"v_subrev_u32 v{dst}, 64, v{dst}")
        swz(14, 68); swz(15, 80); swz(40, 72)
        a(f"v_add_u32 v13, s{sbase}, v12")
        for r in range(32, 36): a(f"v_mov_b32 v{r}, 0")
        s.ex(34); a("ds_write_b128 v13, v[32:35] offset:4096")
        s.ex(33); a(f"ds_write_b128 v13, v[32:35] offset:{CV_U1 + 4096 - 8}")
        a("s_mov_b64 exec, 1"); a("ds_write_b128 v13, v[32:35]")
        a("s_mov_b64 exec, -1")
    def u_stage(s, reg, nwait0):
        a = s.a
        for i in range(4):
            a(f"s_waitcnt vmcnt({nwait0 + 3 - i})")
            r = reg + 4 * i
            a(f"ds_write_b64 v40, v[{r}:{r+1}] offset:{CV_U1 + i*1024}")
            a(f"ds_write_b64 v15, v[{r+2}:{r+3}] offset:{CV_U1 + i*1024}")
            a(f"ds_write_b64 v14, v[{r}:{r+1}] offset:{i*1024}") if False else None
            a(f"ds_write_b32 v14, v{r} offset:{i*1024}")
            a(f"ds_write_b64 v14, v[{r+1}:{r+2}] offset:{i*1024 + 4}") if False else None
            a(f"ds_write_b32 v14, v{r+1} offset:{i*1024 + 4}")
            a(f"ds_write_b32 v14, v{r+2} offset:{i*1024 + 8}")
            a(f"ds_write_b32 v15, v{r+3} offset:{i*1024}")

    def chore(s):
        a = s.a; s.vm_reset(); nt = s.nt
        s.label("L_C")
        a(f"s_setprio {s.opt.get('cprio', 2)}")
        a("s_sub_u32 s78, s3, 6")
        a(f"s_mul_i32 s79, s78, {CV_SZ}"); a(f"s_add_u32 s79, s79, {L_CV}")
        a(f"s_add_u32 s84, s79, {2*CV_SZ}")
        a("s_mul_i32 s93, s78, 4800"); a(f"s_add_u32 s93, s93, {L_WDS}")
        a("s_and_b32 s85, s10, 1"); a("s_lshl_b32 s85, s85, 5")
        a("s_mul_i32 s80, s10, 160"); a("s_sub_u32 s80, s80, s85")
        a("s_lshl_b32 s81, s9, 6"); a("s_lshl_b32 s74, s78, 5"); a("s_add_u32 s81, s81, s74")
        a("v_mul_u32_u24 v4, 5462, v1"); a("v_lshrrev_b32 v4, 16, v4")
        a("v_mul_u32_u24 v5, 12, v4"); a("v_sub_u32 v5, v1, v5")
        a("v_mul_u32_u24 v6, 1280, v4"); a("v_lshl_add_u32 v6, v5, 4, v6"); a("v_add_u32 v6, s80, v6")
        a("s_mul_i32 s74, s9, 48"); a("s_mul_i32 s75, s78, 24"); a("s_add_u32 s74, s74, s75"); a("s_mul_i32 s74, s74, 1280")
        a("v_add_u32 v16, s74, v6"); a("v_add_u32 v17, 6400, v16")
        a("s_mul_i32 s74, s81, 1280")
        a("v_add_u32 v20, s74, v6"); a("v_add_u32 v21, 6400, v20")
        a(f"v_subrev_u32 v18, {3*1280}, v20"); a("v_add_u32 v19, 6400, v18")
        s.kwait()
        s.srd(64, 40, 256)
        l = s.newlab("L_noep")
        a("s_cmp_lg_u32 s2, 0"); a(f"s_cbranch_scc1 {l}"); a("s_cmp_lg_u32 s78, 0"); a(f"s_cbranch_scc1 {l}")
        a("s_memrealtime s[74:75]"); a("s_waitcnt lgkmcnt(0)"); a("s_or_b32 s75, s75, 0x40000000")
        a("v_mov_b32 v8, s74"); a("v_mov_b32 v9, s75"); a("v_mov_b32 v10, 0")
        a("s_mov_b64 exec, 1"); a("buffer_store_dwordx2 v[8:9], v10, s[64:67], 0 offen sc1"); a("s_mov_b64 exec, -1")
        s.label(l)
        s.srd(48, 18, 2621440); s.srd(52, 20, 2621440); s.srd(56, 22, 5120); s.srd(60, 24, 2621440)
        s.srd(68, 16, 2621440); s.srd(88, 34, 1966080)
        a("v_mov_b32 v23, 0"); a("v_mov_b32 v37, 1")
        if s.opt.get("ticket", 0):
            lt = s.newlab("L_tk")
            a("s_cmp_eq_u32 s78, 0"); a(f"s_cbranch_scc1 {lt}")
            a("s_mov_b64 exec, 1"); a("buffer_atomic_add v37, v23, s[64:67], 0 offen offset:64 sc0"); a("s_mov_b64 exec, -1")
            s.label(lt)
        elif s.opt.get("cmap", 0):
            a("s_mul_i32 s74, s5, 5"); a("s_add_u32 s74, s74, s4"); a("s_cmp_lt_u32 s4, 5"); a("s_cselect_b32 s74, s74, 255"); a("v_mov_b32 v37, s74")
        else: a("v_mov_b32 v37, s2")
        a("s_barrier")
        s.dma_rows(48, 35, 18, 19, 84, SC_K, "k", nt)
        s.dma_rows(52, 32, 20, 21, 84, SC_V, "k", nt)
        a("s_mul_i32 s75, s10, 640"); a(f"s_add_u32 m0, s84, {SC_SHK}"); s.ex(40)
        s.vmem("k", "buffer_load_dwordx4 v12, s[56:59], s75 offen lds")
        a("s_mov_b64 exec, -1")
        s.vmem("ep", "buffer_load_dwordx2 v[38:39], v23, s[64:67], 0 offen sc1")
        s.stamp(40, 2); a("s_barrier")
        if s.opt.get("rtouch", 2):
            a("s_mov_b32 s76, 0x986431"); a("s_bitcmp1_b32 s11, 0"); a("s_cselect_b32 s76, 0x975420, s76")
            a("v_lshrrev_b32 v240, 4, v1"); a("v_lshlrev_b32 v240, 2, v240"); a("v_lshrrev_b32_e64 v241, v240, s76"); a("v_and_b32 v241, 15, v241")
            a("s_lshr_b32 s76, s76, 16"); a("v_lshrrev_b32_e64 v242, v240, s76"); a("v_and_b32 v242, 15, v242")
            a("v_and_b32 v243, 15, v1"); a("v_mul_u32_u24 v243, 1280, v243")
            a("v_lshl_add_u32 v241, v241, 7, v243"); a("v_lshl_add_u32 v242, v242, 7, v243")
            a("s_lshl_b32 s76, s6, 3"); a("s_lshl_b32 s77, s12, 1"); a("s_add_u32 s76, s76, s77"); a("s_add_u32 s76, s76, s78"); a(f"s_mul_i32 s98, s76, {16*1280}")
            a("v_bfe_u32 v243, v1, 4, 1"); a(f"v_mul_u32_u24 v243, {5*64*3072}, v243"); a("v_bfe_u32 v244, v1, 1, 3"); a("v_mul_u32_u24 v244, 3072, v244"); a("v_add_u32 v243, v243, v244")
            a("v_and_b32 v244, 1, v1"); a("v_lshl_add_u32 v243, v244, 7, v243")
            a("s_mul_i32 s76, s7, 192"); a("s_and_b32 s76, s76, 0xffffff80"); a(f"s_mul_i32 s77, s11, {8*3072}"); a("s_add_u32 s76, s76, s77"); a(f"s_add_u32 s99, s76, {4*64*3072}")
            a("s_cmp_eq_u32 s78, 0")
            a("s_cselect_b32 s48, s30, s32"); a("s_cselect_b32 s49, s31, s33"); a("s_and_b32 s49, s49, 0xffff"); a("s_mov_b32 s50, 1966080"); a("s_mov_b32 s51, 0x20000")
        s.stamp(41, 2); a("s_barrier")
        if s.opt.get("rtouch", 2):
            a("s_mov_b32 exec_hi, 0")
            s.vmem("t", "buffer_load_dword v250, v243, s[48:51], s99 offen")
            if s.opt.get("rtouch", 2) == 1:
                s.vmem("t", "buffer_load_dword v251, v242, s[68:71], s98 offen")
                a("s_mov_b64 exec, -1")
                s.vmem("t", "buffer_load_dword v252, v241, s[68:71], s98 offen")
            a("s_mov_b64 exec, -1")
        if not s.opt.get("wdlate", 0): s.dma_rows(88, 24, 16, 17, 93, 0, "wd", nt)
        if s.opt.get("tlb", 0):
            def tlbt():
                l1 = s.newlab("L_t1"); l2 = s.newlab("L_t2")
                a("s_cmp_eq_u32 s78, 1"); a(f"s_cbranch_scc1 {l1}")
                a(f"s_mov_b32 s76, {HBS}"); a("v_mul_lo_u32 v253, v1, s76"); a(f"s_mov_b32 s76, {WS_HB + HBS - 128}")
                s.ex(32); a("buffer_load_dword v254, v253, s[44:47], s76 offen")
                a(f"s_mov_b32 s76, {WBS}"); a("v_mul_lo_u32 v253, v1, s76"); a(f"s_mov_b32 s76, {WS_WB + WBS - 128}")
                s.ex(8); a("buffer_load_dword v254, v253, s[44:47], s76 offen")
                a(f"s_mov_b32 s76, {64*TS}"); a("s_mov_b64 exec, -1"); a("v_mul_lo_u32 v253, v1, s76"); a(f"s_mov_b32 s76, {WS_KT + 4096}")
                s.ex(10); a("buffer_load_dword v254, v253, s[44:47], s76 offen")
                a(f"s_branch {l2}")
                s.label(l1)
                a(f"s_mov_b32 s76, {64*TS}"); a("v_mul_lo_u32 v253, v1, s76"); a(f"s_mov_b32 s76, {WS_YT + 4096}")
                s.ex(10); a("buffer_load_dword v254, v253, s[44:47], s76 offen")
                a("v_lshlrev_b32 v253, 18, v1")
                a("buffer_load_dword v254, v253, s[60:63], 0 offen")
                a("s_mov_b32 s48, s38"); a("s_and_b32 s49, s39, 0xffff"); a("s_mov_b32 s50, 2621440"); a("s_mov_b32 s51, 0x20000")
                a("buffer_load_dword v254, v253, s[48:51], 0 offen")
                s.label(l2)
                a("s_mov_b64 exec, -1")
                for _ in range(3): s.vm.append("t")
            tlbt()
        if s.opt.get("htouch", 0):
            a("s_lshl_b32 s76, s2, 1"); a("s_add_u32 s76, s76, s78"); a("s_mul_i32 s76, s76, 5120"); a("v_lshlrev_b32 v253, 7, v1")
            s.ex(40); s.vmem("t", "buffer_load_dword v254, v253, s[60:63], s76 offen"); a("s_mov_b64 exec, -1")
        a("s_lshr_b32 s74, s85, 4"); a("v_subrev_u32 v7, s74, v5")
        a("v_cmp_gt_u32 s[86:87], 10, v7"); a("v_cmp_gt_u32 vcc, 60, v1"); a("s_and_b64 s[86:87], s[86:87], vcc")
        a("v_mul_u32_u24 v22, 160, v4"); a("v_lshl_add_u32 v22, v7, 4, v22")
        a(f"s_mul_i32 s76, s78, 5120"); a(f"s_add_u32 s76, s76, {L_QT}"); a("v_add_u32 v22, s76, v22")
        a("s_lshl_b32 s75, s9, 6"); a("s_lshl_b32 s76, s10, 3"); a("s_add_u32 s75, s75, s76"); a("s_lshl_b32 s76, s78, 2"); a("s_add_u32 s82, s75, s76")
        a("v_lshrrev_b32 v14, 4, v1"); a("v_mul_u32_u24 v14, 1280, v14"); a("v_and_b32 v15, 15, v1"); a("v_lshlrev_b32 v15, 4, v15"); a("v_add_u32 v14, v14, v15")
        a("v_and_b32 v240, 15, v1"); a("v_lshrrev_b32 v241, 4, v1")
        a("v_lshrrev_b32 v242, 2, v240"); a("v_mul_u32_u24 v242, 192, v242"); a("v_and_b32 v243, 3, v240"); a("v_lshl_add_u32 v242, v243, 3, v242")
        a(f"v_add_u32 v242, s93, v242"); a("v_add_u32 v242, s85, v242")
        a("s_mul_i32 s74, s9, 6"); a("s_mul_i32 s75, s78, 3"); a("s_add_u32 s74, s74, s75")
        for p in range(4):
            a(f"v_add_u32 v243, {4*p}, v241"); a("v_mul_u32_u24 v244, 52, v243"); a("v_lshrrev_b32 v244, 8, v244")
            a("v_mul_u32_u24 v245, 5, v244"); a("v_sub_u32 v245, v243, v245")
            a(f"v_mul_u32_u24 v{24+p}, 1536, v244"); a(f"v_lshl_add_u32 v{24+p}, v245, 5, v{24+p}"); a(f"v_add_u32 v{24+p}, v{24+p}, v242")
            a("v_add_u32 v244, s74, v244"); a("v_lshrrev_b32 v247, 2, v244"); a(f"v_mul_u32_u24 v{28+p}, 5120, v247")
            a("v_and_b32 v244, 3, v244"); a(f"v_lshl_add_u32 v{28+p}, v244, 8, v{28+p}"); a(f"v_lshl_add_u32 v{28+p}, v245, 10, v{28+p}")
            a(f"v_lshl_add_u32 v{28+p}, v240, 4, v{28+p}")
        a("v_lshrrev_b32 v6, 3, v1"); a("v_and_b32 v7, 7, v1"); a("s_mul_i32 s74, s78, 40"); a("v_add_u32 v6, s74, v6")
        for i in range(5):
            a(f"v_add_u32 v8, {8*i}, v6"); a("v_mul_u32_u24 v9, 3277, v8"); a("v_lshrrev_b32 v9, 16, v9")
            a("v_mul_u32_u24 v10, 20, v9"); a("v_sub_u32 v8, v8, v10")
            a("v_lshl_add_u32 v9, v8, 2, v9"); a("v_xor_b32 v8, v8, v7"); a("v_and_b32 v8, 7, v8"); a("v_lshlrev_b32 v8, 4, v8")
            a(f"v_mul_u32_u24 v9, {TS}, v9"); a(f"v_add_u32 v{32+i}, v9, v8")
        a("v_mov_b32 v23, 0")
        sched = {t: [] for t in range(21)}
        dl = s.opt.get("dl", 3)
        def rowl(srd, nrows, vfirst, vrest, reg, tag, ntf):
            out = []
            for i in range((nrows + 4) // 5):
                def f(i=i):
                    n = min(5, nrows - 5 * i); r = reg + 4 * i
                    s.ex(12 * n)
                    if i == 0: s.vmem(tag, f"buffer_load_dwordx4 v[{r}:{r+3}], v{vfirst}, s[{srd}:{srd+3}], 0 offen {ntf}")
                    else:
                        a(f"s_mov_b32 s77, {6400*(i-1)}")
                        s.vmem(tag, f"buffer_load_dwordx4 v[{r}:{r+3}], v{vrest}, s[{srd}:{srd+3}], s77 offen {ntf}")
                    a("s_mov_b64 exec, -1")
                out.append(f)
            return out
        Lk = rowl(48, 35, 18, 19, 40, "k", nt); Lv = rowl(52, 32, 20, 21, 68, "v", nt); Lw = rowl(88, 24, 16, 17, 96, "wd", nt)
        Lq = rowl(68, 32, 20, 21, 196, "q", "")
        def lshk():
            a("s_mul_i32 s75, s10, 640"); s.ex(40)
            s.vmem("v", "buffer_load_dwordx4 v[116:119], v12, s[56:59], s75 offen")
            a("s_mov_b64 exec, -1")
        def lgx(i):
            a("s_mul_i32 s75, s82, 1280")
            s.vmem("gx", f"buffer_load_dwordx4 v[{124+4*i}:{127+4*i}], v14, s[68:71], s75 offen offset:{i*256}")
        def lgw():
            s.srd(56, 36, 1280)
            for i in range(5):
                s.vmem("gx", f"buffer_load_dwordx4 v[{144+4*i}:{147+4*i}], v15, s[56:59], 0 offen offset:{i*256}")
        def lh(i):
            a("s_lshl_b32 s74, s14, 2"); a(f"s_add_u32 s74, s74, {2*(i//4)}"); a("s_add_u32 s74, s74, s78"); a("s_lshl_b32 s74, s74, 12")
            s.vmem("h", f"buffer_load_dwordx4 v[{164+4*i}:{167+4*i}], v12, s[60:63], s74 offen offset:{(i&3)*1024} {nt}")
        def two(f, g): return lambda: (f(), g())
        cold = Lk + [two(Lv[0], lshk)] + Lv[1:] + Lw
        def w1(): s.vm_wait({"k"}); s.stamp(2); s.img_write(84, SC_K, 7, 40)
        def w2():
            s.vm_wait({"v"}); s.img_write(84, SC_V, 7, 68)
            s.ex(40); a(f"ds_write_b128 v13, v[116:119] offset:{SC_SHK}"); a("s_mov_b64 exec, -1")
        def w3(): s.vm_wait({"wd"}); s.img_write(93, 0, 5, 96); a("s_waitcnt lgkmcnt(0)")
        def wd(part=0):
            for p in range(4 if part != 2 else 0):
                a(f"ds_read_b64_tr_b16 v[{96+4*p}:{97+4*p}], v{24+p}")
                a(f"ds_read_b64_tr_b16 v[{98+4*p}:{99+4*p}], v{24+p} offset:768")
            if part == 1: return
            a(f"s_mul_i32 s74, s10, {WBS}"); a(f"s_add_u32 s74, s74, {WS_WB}")
            a("s_waitcnt lgkmcnt(0)")
            for p in range(4):
                if p == 3: s.ex(48)
                s.vmem("st", f"buffer_store_dwordx4 v[{96+4*p}:{99+4*p}], v{28+p}, s[44:47], s74 offen sc1")
            a("s_mov_b64 exec, -1")
        def epoch():
            s.vm_wait({"ep"})
            l0 = s.newlab("L_ep"); l1_ = s.newlab("L_epd")
            a(f"s_mov_b32 s94, {SPIN_MAX}")
            s.label(l0)
            a("v_readfirstlane_b32 s72, v38"); a("v_readfirstlane_b32 s73, v39"); a("s_nop 1")
            a("s_cmp_lg_u32 s73, 0"); a(f"s_cbranch_scc1 {l1_}")
            a("buffer_load_dwordx2 v[38:39], v23, s[64:67], 0 offen sc1")
            a("s_waitcnt vmcnt(0)")
            a("s_sub_u32 s94, s94, 1"); a(f"s_cbranch_scc0 {l0}")
            s.label(l1_)
            a(f"v_mov_b32 v242, {L_EPOCH}"); a("ds_write_b64 v242, v[38:39]")
            lt2 = s.newlab("L_tk")
            a("s_cmp_eq_u32 s78, 0"); a(f"s_cbranch_scc1 {lt2}")
            a("s_mov_b64 exec, 1"); a("ds_write_b32 v242, v37 offset:16"); a("s_mov_b64 exec, -1")
            s.label(lt2)
        def gate():
            s.vm_wait({"gx"})
            a("v_mov_b32 v240, 0"); a("v_mov_b32 v241, 0")
            for i in range(20): a(f"v_dot2_f32_bf16 v{240 + (i & 1)}, v{124+i}, v{144+i}, v{240 + (i & 1)}")
        def gate2():
            a("s_nop 2")
            a("v_add_f32 v240, v240, v241"); a("s_nop 1")
            for ctl in ("quad_perm:[1,0,3,2]", "quad_perm:[2,3,0,1]", "row_half_mirror", "row_mirror"):
                a(f"v_add_f32_dpp v240, v240, v240 {ctl} row_mask:0xf bank_mask:0xf"); a("s_nop 1")
            a("v_cvt_pk_bf16_f32 v240, v240, v240"); a("v_and_b32 v240, 0xffff0000, v240")
            a("v_mul_f32 v240, 0xbfb8aa3b, v240"); a("v_exp_f32 v240, v240"); a("s_nop 0"); a("v_add_f32 v240, 1.0, v240")
            a("v_rcp_f32 v240, v240"); a("s_nop 0")
            a("v_cvt_pk_bf16_f32 v240, v240, v240"); a("v_and_b32 v240, 0xffff0000, v240")
            a("s_lshl_b32 s74, s82, 2"); a(f"s_add_u32 s74, s74, {WS_G}")
            a("v_lshrrev_b32 v241, 4, v1"); a("v_lshlrev_b32 v241, 2, v241")
            a("s_mov_b32 exec_lo, 0x00010001"); a("s_mov_b32 exec_hi, 0x00010001")
            s.vmem("st", "buffer_store_dword v240, v241, s[44:47], s74 offen sc1")
            a("s_mov_b64 exec, -1")
        def qc():
            a("s_mov_b64 exec, s[86:87]")
            for i in range(7):
                if i == 6: a("s_and_b32 exec_lo, exec_lo, 0xffffff"); a("s_mov_b32 exec_hi, 0")
                a(f"ds_write_b128 v22, v[{196+4*i}:{199+4*i}] offset:{800*i}")
            a("s_mov_b64 exec, -1")
        def ktst_rd():
            a("s_mul_i32 s74, s78, 5120"); a(f"s_add_u32 s74, s74, {L_T}"); a("v_add_u32 v13, s74, v12")
            for i in range(5): a(f"ds_read_b128 v[{40+4*i}:{43+4*i}], v13 offset:{i*1024}")
        def ktst_st():
            a(f"s_mul_i32 s74, s10, {80*TS}"); a("s_lshl_b32 s75, s9, 7"); a("s_sub_u32 s74, s74, s75")
            a(f"s_add_u32 s74, s74, {WS_KT + 3968}")
            for i in range(5):
                s.vmem("st", f"buffer_store_dwordx4 v[{40+4*i}:{43+4*i}], v{32+i}, s[44:47], s74 offen sc1")
        def hc(base, reg, half):
            s.vm_wait({"h"})
            l = s.newlab("L_nh"); a(f"s_cmp_ge_u32 s14, {NCONV}"); a(f"s_cbranch_scc1 {l}")
            s.h_copies(base, reg, half); s.label(l)
        def flagsA():
            s.vm_wait({"st"})
            a("s_lshl_b32 s74, s10, 9"); a("s_lshl_b32 s75, s9, 4"); a("s_add_u32 s74, s74, s75"); a("s_lshl_b32 s76, s78, 3"); a("s_add_u32 s74, s74, s76")
            a(f"s_add_u32 s74, s74, {WS_FA}")
            s.write_flag(244, 74)
            s.stamp(5)
        def flagsB():
            lb = s.newlab("L_nb")
            a("s_cmp_lt_u32 s83, 2"); a(f"s_cbranch_scc1 {lb}")
            a("s_waitcnt vmcnt(0)")
            a("s_lshl_b32 s76, s78, 3")
            a("s_lshl_b32 s74, s9, 7"); a("s_lshl_b32 s75, s10, 4"); a("s_add_u32 s74, s74, s75"); a("s_add_u32 s74, s74, s76"); a(f"s_add_u32 s74, s74, {WS_FB}")
            s.write_flag(8, 74)
            s.label(lb)
        KVT = s.kvt
        ge = s.opt.get("gearly", 1)
        if ge == 1:
            for i in range(5): lgx(i)
            lgw()
        he = s.opt.get("hearly", 0)
        if he == 1:
            for i in range(8): lh(i)
        s.vm_wait({"k"}); s.stamp(2)
        a("s_barrier")
        if s.opt.get("wdlate", 0) == 1: s.dma_rows(88, 24, 16, 17, 93, 0, "wd", nt)
        if s.opt.get("wdlate", 0) == 2: sched[2].append(lambda: s.dma_rows(88, 24, 16, 17, 93, 0, "wd", nt))
        if he == 2:
            for i in range(8): lh(i)
        if he:
            for j, (b, r, hf) in enumerate(((79, 164, 0), (79, 164, 1), (84, 180, 0), (84, 180, 1))):
                sched[8 + j].append(lambda b=b, r=r, hf=hf: hc(b, r, hf))
        epoch()
        ts = s.opt.get("ts", 3)
        if s.opt.get("mst", 0):
            sched[ts].append(lambda: (ktst_rd(), s.vm_wait({"wd"}), wd(1)))
            sched[ts + 1].append(lambda: (a("s_waitcnt lgkmcnt(0)"), ktst_st(), wd(2), s.stamp(3)))
        else:
            sched[ts].append(lambda: (ktst_rd(), a("s_waitcnt lgkmcnt(0)"), ktst_st()))
            sched[ts + 1].append(lambda: (s.vm_wait({"wd"}), wd(), s.stamp(3)))
        tf = s.opt.get("tf", 7); sched[tf].append(flagsA)
        tg = s.opt.get("tg", 16)
        if ge:
            if ge == 2: sched[2] += [lambda i=i: lgx(i) for i in range(5)] + [lgw]
            sched[ts + (0 if ge == 2 else -1) + s.opt.get("gd", 0)].append(gate)
            sched[ts + 1 + s.opt.get("gd", 0)].insert(0, gate2)
            def fb_now():
                a("s_lshl_b32 s76, s78, 3")
                a("s_lshl_b32 s74, s9, 7"); a("s_lshl_b32 s75, s10, 4"); a("s_add_u32 s74, s74, s75"); a("s_add_u32 s74, s74, s76"); a(f"s_add_u32 s74, s74, {WS_FB}")
                s.write_flag(248, 74)
            sched[tf].append(fb_now)
            s.flagsB = lambda: None
        else:
            sched[tg - 4] += [lambda i=i: lgx(i) for i in range(5)] + [lgw]
            sched[tg - 1].append(gate); sched[tg].append(gate2)
            s.flagsB = flagsB
        tp = s.opt.get("tp", 13)
        def fa_ld():
            a(f"v_mov_b32 v2, {L_SDONE}"); a("ds_read_b32 v2, v2"); a("s_waitcnt lgkmcnt(0)"); a("v_readfirstlane_b32 s14, v2"); a("s_nop 1")
            a("s_mul_i32 s74, s14, 3277"); a("s_lshr_b32 s74, s74, 16"); a("s_min_u32 s74, s74, 7")
            a("s_cmp_eq_u32 s78, 0"); a("s_cselect_b32 s74, s74, s10"); a("s_lshl_b32 s74, s74, 9"); a(f"s_add_u32 s74, s74, {WS_FA}")
            a("v_lshlrev_b32 v2, 3, v1")
            s.vmem("fa", "buffer_load_dwordx2 v[4:5], v2, s[44:47], s74 offen sc1")
            if s.pre:
                a("v_min_u32 v3, 15, v1"); a("v_lshlrev_b32 v3, 3, v3"); a("s_lshl_b32 s74, s9, 7"); a(f"s_add_u32 s74, s74, {WS_FB}")
                s.vmem("fa", "buffer_load_dwordx2 v[6:7], v3, s[44:47], s74 offen sc1")
        def fa_ck():
            s.vm_wait({"fa"})
            if s.pre:
                a("v_cmp_ne_u64 vcc, s[72:73], v[6:7]"); a("s_nop 1")
                lf2 = s.newlab("L_nf")
                a(f"s_cbranch_vccnz {lf2}")
                s.lds_set(8, L_FBOK, 1)
                s.label(lf2)
            a("v_cmp_ne_u64 vcc, s[72:73], v[4:5]"); a("s_nop 1")
            lf = s.newlab("L_nf")
            a(f"s_cbranch_vccnz {lf}")
            a("s_lshl_b32 s74, s78, 2"); a(f"s_add_u32 s74, s74, {L_QDONE}"); s.lds_set(8, "s74", 1)
            s.label(lf)
        if s.opt.get("hmid", 7): sched[s.opt.get("hmid", 7)].append(lambda: (a("s_add_u32 s83, s78, 2"), s.h_own(83)))
        if s.opt.get("hmid", 7) and s.opt.get("hp", 19) < 17:
            for hf in range(2): sched[s.opt.get("hp") + hf].append(lambda hf=hf: hc(84, 164, hf))
        sched[4].append(lambda: a("s_waitcnt lgkmcnt(0)"))
        sched[tp].append(fa_ld); sched[tp + 2].insert(0, fa_ck); sched[tp + 3].append(lambda: a("s_waitcnt lgkmcnt(0)"))
        tq = s.opt.get("tq", 14)
        sched[tq] += Lq
        if s.opt.get("qearly", 0): sched[tq + 2].append(lambda: (s.vm_wait({"q"}), qc()))
        for t in range(2, 17):
            s.stamp(40 + t, 2)
            a("s_barrier")
            if not s.opt.get("noc"):
                for f in sched[t]: f()
        assert all(not sched[t] for t in range(17, 21))
        s.qc = qc
        a("s_add_u32 s83, s78, 2")

    def ywave(s):
        a = s.a; s.vm_reset()
        s.label("L_Yt")
        a(f"s_mul_i32 s84, s83, {CV_SZ}"); a(f"s_add_u32 s84, s84, {L_CV}"); a(f"s_add_u32 s93, s84, {H_SZ}")
        s.srd(60, 24, 2621440)
        a(f"v_mov_b32 v16, {L_EPOCH}"); a("ds_read_b32 v20, v16 offset:16"); a(f"v_mov_b32 v21, {L_FBOK}"); a("ds_read_b32 v21, v21"); a("ds_read_b128 v[16:19], v16")
        a("v_lshlrev_b32 v2, 3, v1")
        a("s_waitcnt lgkmcnt(0)")
        a("v_readfirstlane_b32 s14, v20"); a("v_readfirstlane_b32 s15, v21")
        a("v_readfirstlane_b32 s72, v16"); a("v_readfirstlane_b32 s73, v17"); a("v_readfirstlane_b32 s99, v18")
        a("s_mul_i32 s98, s14, 3277"); a("s_lshr_b32 s98, s98, 16"); a("s_lshl_b32 s98, s98, 9"); a(f"s_add_u32 s98, s98, {WS_FA}")
        a("s_lshl_b32 s85, s14, 2"); a("s_add_u32 s85, s85, s83"); a("s_lshl_b32 s74, s85, 12")
        a(f"s_mul_i32 s100, s85, {TS}"); a(f"s_add_u32 s100, s100, {WS_KT}")
        a("s_waitcnt vmcnt(20)"); s.stamp(57, 2); a("s_barrier"); s.stamp(33, 2)
        a(f"s_cmp_lt_u32 s14, {NCONV}"); a("s_cselect_b32 s99, s99, 0")
        a("s_cmp_lg_u32 s99, 0"); a("s_cselect_b32 s101, s100, 0x7ff00000")
        a("s_cmp_lg_u32 s99, 0"); a("s_cselect_b32 s75, 0x7ff00000, s98")
        a(f"s_cmp_lt_u32 s14, {NCONV}"); a("s_cselect_b32 s75, s75, 0x7ff00000")
        a("buffer_load_dwordx2 v[4:5], v2, s[44:47], s75 offen sc1")
        nh = 0 if (s.opt.get("hearly", 0) or s.opt.get("hmid", 7)) else 4
        for i in range(nh):
            a(f"buffer_load_dwordx4 v[{164+4*i}:{167+4*i}], v12, s[60:63], s74 offen offset:{i*1024} {'' if s.opt.get('htouch', 0) else s.nt}")
        for i in range(4):
            a(f"buffer_load_dwordx4 v[{48+4*i}:{51+4*i}], v12, s[44:47], s101 offen offset:{i*1024} sc1")
        lq = s.newlab("L_nq")
        a(f"s_waitcnt vmcnt({11 + nh})")
        if not s.opt.get("qearly", 0):
            a("s_cmp_lt_u32 s83, 2"); a(f"s_cbranch_scc1 {lq}")
            a(f"s_waitcnt vmcnt({5 + nh})")
            s.qc()
            s.label(lq)
        hp = s.opt.get("hp", 19) if s.opt.get("hmid", 7) else 0
        def hcp():
            lh_ = s.newlab("L_nh"); a(f"s_cmp_ge_u32 s14, {NCONV}"); a(f"s_cbranch_scc1 {lh_}")
            s.h_copies(84, 164); s.label(lh_)
        s.stamp(58, 2); a("s_barrier"); s.stamp(34, 2)
        if hp == 18: hcp()
        s.u_addr(93)
        a(f"s_waitcnt vmcnt({5 + nh})"); a("s_waitcnt lgkmcnt(0)")
        s.stamp(59, 2); a("s_barrier"); s.stamp(35, 2)
        s.ap_addr()
        s.stamp(1)
        if s.opt.get("g1only"): a("s_branch L_fin2")
        if s.opt.get("noconv"): a("s_branch L_apart")
        lcv = s.newlab("L_cvgo")
        a(f"s_cmp_lt_u32 s14, {NCONV}"); a(f"s_cbranch_scc1 {lcv}")
        s.flagsB()
        a("s_branch L_apart")
        s.label(lcv)
        a(f"s_setprio {s.opt.get('sprio', 1)}")
        lk2 = s.newlab("L_hk")
        a("s_cmp_lg_u32 s99, 0"); a(f"s_cbranch_scc1 {lk2}")
        lk3 = s.newlab("L_hk")
        a(f"s_waitcnt vmcnt({4 + nh})")
        a("v_cmp_ne_u64 vcc, s[72:73], v[4:5]"); a("s_nop 1"); a(f"s_cbranch_vccz {lk3}")
        s.poll(4, 2, "s98")
        s.label(lk3)
        for i in range(4):
            a(f"buffer_load_dwordx4 v[{48+4*i}:{51+4*i}], v12, s[44:47], s100 offen offset:{i*1024} sc1")
        s.label(lk2)
        s.stamp(6)
        if hp == 19: s.h_copies(84, 164)
        if nh:
            a("s_waitcnt vmcnt(4)")
            s.h_copies(84, 164)
        s.u_stage(48, 0)
        s.flagsB()
        if s.pre and not s.opt.get("pit", 0):
            lnp0 = s.newlab("L_np")
            a("s_cmp_lg_u32 s15, 1"); a(f"s_cbranch_scc1 {lnp0}")
            s.ap_loads(); a("s_mov_b32 s15, 2")
            s.label(lnp0)
        s.stamp(7)
        if s.opt.get("sprio", 1) != 1: a("s_setprio 1")
        a("v_add_u32 v13, s93, v12")
        a("v_and_b32 v2, 15, v1"); a("v_lshrrev_b32 v3, 4, v1"); a("v_and_b32 v4, 1, v2"); a("v_lshrrev_b32 v5, 1, v2")
        a(f"v_mul_u32_u24 v6, {CV_B}, v4"); a("v_lshl_add_u32 v6, v3, 4, v6"); a("v_lshl_add_u32 v6, v5, 3, v6"); a("v_add_u32 v6, s84, v6")
        a("v_lshlrev_b32 v7, 4, v3"); a("v_lshlrev_b32 v8, 6, v5"); a("v_sub_u32 v7, v7, v8"); a("v_add_u32 v7, 512, v7")
        a(f"v_mul_u32_u24 v9, {CV_U1}, v4"); a("v_add_u32 v9, s93, v9"); a("v_subrev_u32 v9, 64, v9")
        def baddr():
            a("v_lshrrev_b32 v10, 3, v7"); a("v_and_b32 v10, 32, v10"); a("v_xor_b32 v10, v10, v7"); a("v_add_u32 v10, v10, v9"); a("v_add_u32 v7, 64, v7")
        SA = (96, 160); SB = (128, 192)
        def reads(st, par):
            R = []
            for c in range(8):
                for hh in range(2):
                    R.append(f"ds_read_b64 v[{SA[st]+4*c+2*hh}:{SA[st]+4*c+2*hh+1}], v6 offset:{512*c + 8*hh + 64*par}")
                for hh in range(2):
                    R.append(f"ds_read_b64 v[{SB[st]+4*c+2*hh}:{SB[st]+4*c+2*hh+1}], v10 offset:{512*(7-c) + 8*hh}")
            return R
        def mfmas(st, full=True):
            M = []
            for aa in range(8):
                for c in (range(aa + 1) if full else [aa]):
                    b = aa - c; o = 224 + 4 * aa
                    M.append(f"v_mfma_f32_16x16x32_bf16 v[{o}:{o+3}], v[{SA[st]+4*c}:{SA[st]+4*c+3}], v[{SB[st]+4*b}:{SB[st]+4*b+3}], v[{o}:{o+3}]")
            return M
        def inter(M, R):
            a("s_waitcnt lgkmcnt(12)")
            for mi, m in enumerate(M):
                if mi == 15: a("s_waitcnt lgkmcnt(15)")
                a(m)
                if mi < len(R): a(R[mi])
        baddr()
        a("s_waitcnt lgkmcnt(0)")
        for r in reads(0, 0): a(r)
        for r in range(224, 256): a(f"v_mov_b32 v{r}, 0")
        a("s_mov_b32 s86, 0")
        s.label("L_cv")
        baddr()
        inter(mfmas(0), reads(1, 1))
        a("v_add_u32 v6, 128, v6"); baddr()
        inter(mfmas(1), reads(0, 0))
        a("s_add_u32 s86, s86, 1")
        if s.pre and s.opt.get("pit", 0):
            lnp0 = s.newlab("L_np")
            a(f"s_cmp_lg_u32 s86, {s.opt.get('pit', 0)}"); a(f"s_cbranch_scc1 {lnp0}")
            a("s_cmp_lg_u32 s15, 1"); a(f"s_cbranch_scc1 {lnp0}")
            s.ap_loads(); a("s_mov_b32 s15, 2")
            s.label(lnp0)
        a("s_cmp_lt_u32 s86, 4"); a("s_cbranch_scc1 L_cv")
        a("s_waitcnt lgkmcnt(0)")
        for m in mfmas(0, False): a(m)
        a("v_lshlrev_b32 v8, 4, v3"); a("v_lshl_add_u32 v8, v4, 2, v8"); a("v_lshl_add_u32 v8, v5, 6, v8")
        a(f"v_sub_u32 v8, {CV_U0 + 2*(2046 - 4) - 512}, v8"); a("v_add_u32 v8, s93, v8")
        a("s_nop 4")
        for t in range(8):
            o = 224 + 4 * t
            a(f"v_cvt_pk_bf16_f32 v{16+2*t}, v{o+3}, v{o+2}")
            a(f"v_cvt_pk_bf16_f32 v{17+2*t}, v{o+1}, v{o}")
        for t in range(8):
            off = 128 if t % 2 == 0 else 0
            a(f"ds_write2_b32 v8, v{16+2*t}, v{17+2*t} offset0:{off} offset1:{off+2}")
            if t % 2 == 1 and t < 7: a("v_subrev_u32 v8, 1024, v8")
        a("s_waitcnt lgkmcnt(0)")
        for i in range(4): a(f"ds_read_b128 v[{32+4*i}:{35+4*i}], v13 offset:{CV_U0 + i*1024}")
        a(f"s_mul_i32 s74, s85, {TS}"); a(f"s_add_u32 s74, s74, {WS_YT}")
        for i in range(4):
            a(f"s_waitcnt lgkmcnt({3-i})")
            a(f"buffer_store_dwordx4 v[{32+4*i}:{35+4*i}], v12, s[44:47], s74 offen offset:{i*1024} sc1")
        s.stamp(8)
        a("s_waitcnt vmcnt(0)")
        a("s_lshl_b32 s74, s85, 3"); a(f"s_add_u32 s74, s74, {WS_FY}")
        s.write_flag(48, 74)
        a("s_setprio 0")
        s.label("L_apart")
        a("s_setprio 0")
        if s.opt.get("xh", 1): s.lds_wait(L_XH, 1, 1, 148, slp=2)
        s.stamp(9)
        lpre = s.newlab("L_pre"); lnp = s.newlab("L_np")
        a("s_cmp_eq_u32 s15, 2"); a(f"s_cbranch_scc1 {lpre}")
        a("s_cmp_eq_u32 s15, 1"); a(f"s_cbranch_scc1 {lnp}")
        a("v_min_u32 v2, 15, v1"); a("v_lshlrev_b32 v2, 3, v2")
        a("s_lshl_b32 s74, s9, 7"); a(f"s_add_u32 s74, s74, {WS_FB}")
        s.poll(4, 2, "s74")
        s.label(lnp)
        s.ap_loads()
        a("s_waitcnt vmcnt(0)")
        s.label(lpre)
        a("v_sub_u32 v3, 63, v1")
        tile_loads = s.tile_loads
        a("s_lshl_b32 s74, s87, 1"); a("s_add_u32 s26, s26, s74"); a("s_addc_u32 s27, s27, 0")
        a("s_load_dwordx8 s[48:55], s[26:27], 0"); a("s_load_dwordx2 s[56:57], s[26:27], 32")
        a("v_add_u32 v13, s84, v12")
        a("v_mul_u32_u24 v7, 160, v3"); a("s_mul_i32 s74, s83, 40"); a(f"s_add_u32 s74, s74, {L_QT}"); a("v_add_u32 v7, s74, v7")
        for gq in range(5): a(f"ds_read_b64 v[{80+2*gq}:{81+2*gq}], v7 offset:{8*gq}")
        for i in range(3):
            if i == 2: a("s_mov_b32 exec_hi, 0")
            a(f"ds_write_b128 v13, v[{64+4*i}:{67+4*i}] offset:{i*1024}")
            if i == 2: a("s_mov_b64 exec, -1")
        a("v_and_b32 v8, 15, v1"); a("v_lshrrev_b32 v9, 2, v8"); a("v_lshlrev_b32 v9, 7, v9"); a("v_and_b32 v8, 3, v8"); a("v_lshl_add_u32 v9, v8, 3, v9")
        a("v_lshrrev_b32 v8, 4, v1"); a("v_lshl_add_u32 v9, v8, 5, v9"); a("v_add_u32 v9, s84, v9")
        a(f"v_add_u32 v2, {L_GF}, v78"); a("ds_write_b32 v2, v76")
        a("s_waitcnt lgkmcnt(0)")
        for gq in range(5): a(f"ds_read_b64_tr_b16 v[{150+2*gq}:{151+2*gq}], v9 offset:{512*gq}")
        for gq in range(5):
            for e in range(2):
                r = 96 + 4 * gq + 2 * e
                a(f"v_lshlrev_b32 v{r}, 16, v{80+2*gq+e}"); a(f"v_and_b32 v{r+1}, 0xffff0000, v{80+2*gq+e}")
                a(f"v_mul_f32 v{r}, v{r}, v76"); a(f"v_mul_f32 v{r+1}, v{r+1}, v76")
        a("s_waitcnt lgkmcnt(0)")
        for gq in range(5):
            for e in range(2):
                sd = 48 + 2 * gq + e; r = 120 + 4 * gq + 2 * e
                a(f"s_lshl_b32 s58, s{sd}, 16"); a(f"s_and_b32 s59, s{sd}, 0xffff0000")
                a(f"v_lshlrev_b32 v{r}, 16, v{150+2*gq+e}"); a(f"v_and_b32 v{r+1}, 0xffff0000, v{150+2*gq+e}")
                a(f"v_mul_f32 v{r}, s58, v{r}"); a(f"v_mul_f32 v{r+1}, s59, v{r+1}")
        s.lds_wait(L_XG2, 1, 1, 160, slp=2)
        a("v_min_u32 v2, 19, v1"); a("v_lshlrev_b32 v2, 3, v2")
        a("s_lshl_b32 s74, s87, 3"); a(f"s_add_u32 s74, s74, {WS_FY}")
        if not s.opt.get("noconv"): s.poll(146, 2, "s74", slp=s.opt.get("yslp", 12))
        s.stamp(10)
        if s.opt.get("aprio", 2): a(f"s_setprio {s.opt.get('aprio', 2)}")
        if s.opt.get("xga", -1) >= 0: s.lds_wait(L_XG2, 1, 2, 160, slp=1)
        tile_loads(WS_YT, 16)
        for i in range(3):
            a(f"s_waitcnt vmcnt({2-i})")
            if i == 2: a("s_mov_b32 exec_hi, 0")
            a(f"ds_write_b128 v13, v[{16+4*i}:{19+4*i}] offset:{i*1024}")
            if i == 2: a("s_mov_b64 exec, -1")
        a("s_waitcnt lgkmcnt(0)")
        for gq in range(5): a(f"ds_read_b64_tr_b16 v[{150+2*gq}:{151+2*gq}], v9 offset:{512*gq}")
        for gq in range(5):
            a("s_waitcnt lgkmcnt(4)")
            for e in range(2):
                a(f"v_lshlrev_b32 v144, 16, v{150+2*gq+e}"); a(f"v_and_b32 v145, 0xffff0000, v{150+2*gq+e}")
                a(f"v_add_f32 v144, v144, v{120+4*gq+2*e}"); a(f"v_add_f32 v145, v145, v{121+4*gq+2*e}")
                a(f"v_mul_f32 v144, v144, v{96+4*gq+2*e}"); a(f"v_mul_f32 v145, v145, v{97+4*gq+2*e}")
                a(f"v_cvt_pk_bf16_f32 v{80+2*gq+e}, v144, v145")
            a(f"ds_write_b64 v7, v[{80+2*gq}:{81+2*gq}] offset:{8*gq}")
        s.stamp(11)
        a("s_branch L_final")

    def xwave(s):
        a = s.a; s.vm_reset()
        s.label("L_X")
        a("s_setprio 2")
        a("v_mov_b32 v16, 0"); a("v_mov_b32 v17, 0"); a("v_mov_b32 v18, 0"); a("v_mov_b32 v19, 0")
        a(f"v_add_u32 v20, {L_MISC}, v12")
        a("s_mov_b64 exec, 15"); a("ds_write_b128 v20, v[16:19]"); a("s_mov_b64 exec, -1")
        a("s_lshr_b32 s74, s3, 1"); a("s_and_b32 s75, s3, 1")
        if s.m16:
            a("v_lshrrev_b32 v14, 5, v1")
            a("v_bfe_u32 v13, v1, 3, 1"); a("v_bfe_u32 v15, v1, 2, 1"); a("v_xor_b32 v15, v15, v13"); a("v_lshl_add_u32 v13, v15, 1, v13")
            a("v_lshrrev_b32 v16, 4, v1"); a("v_xor_b32 v13, v13, v16")
            a("v_and_b32 v17, 15, v1"); a("v_lshlrev_b32 v17, 6, v17"); a("s_lshl_b32 s76, s74, 12"); a("v_add_u32 v17, s76, v17"); a("v_lshl_add_u32 v5, v13, 4, v17")
            a("v_bfe_u32 v15, v1, 4, 1")
            a("v_bfe_u32 v17, v1, 2, 2"); a("v_lshl_add_u32 v16, v16, 3, v17"); a("v_lshlrev_b32 v16, 6, v16")
            a("v_and_b32 v17, 3, v1"); a("v_lshl_add_u32 v16, v17, 3, v16"); a(f"v_add_u32 v16, {L_WR}, v16")
        else:
            a("v_and_b32 v20, 31, v1"); a("v_lshrrev_b32 v13, 2, v20"); a("v_lshrrev_b32 v14, 1, v13"); a("v_xor_b32 v13, v13, v14"); a("v_and_b32 v13, 3, v13")
            a("v_lshrrev_b32 v14, 5, v1"); a("v_xor_b32 v15, v14, v13"); a("v_xor_b32 v16, 2, v15")
            a("v_lshlrev_b32 v17, 6, v20"); a("s_lshl_b32 s76, s74, 12"); a("v_add_u32 v17, s76, v17")
            a("v_lshl_add_u32 v5, v15, 4, v17"); a("v_lshl_add_u32 v6, v16, 4, v17")
            a("v_bfe_u32 v15, v1, 4, 1"); a("v_bfe_u32 v16, v1, 2, 2"); a("v_lshl_add_u32 v16, v14, 3, v16"); a("v_lshlrev_b32 v16, 6, v16")
            a("v_mul_u32_u24 v17, 6144, v15"); a("v_add_u32 v16, v16, v17")
            a("v_and_b32 v17, 1, v1"); a("v_lshl_add_u32 v16, v17, 4, v16"); a("v_bfe_u32 v17, v1, 1, 1"); a("v_lshl_add_u32 v16, v17, 3, v16")
            a(f"v_add_u32 v16, {L_WR}, v16")
        a("s_mul_i32 s76, s75, 3")
        for T in range(3):
            a(f"s_add_u32 s77, s76, {T}"); a("s_and_b32 s78, s77, 1"); a("s_lshr_b32 s77, s77, 1"); a("s_lshl_b32 s77, s77, 11")
            a("v_xor_b32 v17, s78, v15"); a(f"v_lshl_add_u32 v{2+T}, v17, 5, v16"); a(f"v_add_u32 v{2+T}, s77, v{2+T}")
        a("v_mov_b32 v7, v12"); a("v_add_u32 v8, 4096, v7")
        a("v_bfe_u32 v9, v1, 4, 1"); a("v_lshlrev_b32 v9, 10, v9"); a("v_lshl_add_u32 v9, v14, 8, v9"); a("v_and_b32 v17, 15, v1"); a("v_lshl_add_u32 v9, v17, 4, v9")
        for r in range(160, 256): a(f"v_mov_b32 v{r}, 0")
        touch = s.opt.get("touch", 0)
        if touch:
            lw = s.newlab("L_tw"); le = s.newlab("L_te")
            a("s_cmp_ge_u32 s3, 2"); a(f"s_cbranch_scc1 {lw}")
            s.srd(48, 16, 2621440)
            a("s_lshr_b32 s76, s4, 2"); a("s_lshl_b32 s76, s76, 6"); a("s_lshl_b32 s77, s5, 1"); a("s_add_u32 s76, s76, s77"); a("s_add_u32 s76, s76, s3")
            a(f"s_mul_i32 s98, s76, {16*1280}")
            a("v_and_b32 v92, 15, v1"); a("v_mul_u32_u24 v92, 1280, v92"); a("v_bfe_u32 v93, v1, 4, 1"); a("v_lshl_add_u32 v92, v93, 7, v92")
            a("s_mov_b32 s99, 256"); a("s_mov_b32 s100, -1")
            a(f"s_branch {le}")
            s.label(lw)
            a("s_cmp_eq_u32 s3, 2")
            a("s_cselect_b32 s48, s30, s32"); a("s_cselect_b32 s49, s31, s33"); a("s_and_b32 s49, s49, 0xffff")
            a("s_mov_b32 s50, 1966080"); a("s_mov_b32 s51, 0x20000")
            a("v_mul_u32_u24 v93, 5462, v1"); a("v_lshrrev_b32 v93, 16, v93"); a("v_mul_u32_u24 v94, 12, v93"); a("v_sub_u32 v94, v1, v94")
            a("v_cmp_lt_u32 vcc, 5, v94"); a(f"v_mul_u32_u24 v92, {64*3072}, v93"); a(f"v_mov_b32 v95, {3072 - 768}"); a("v_cndmask_b32 v95, 0, v95, vcc")
            a("v_lshl_add_u32 v92, v94, 7, v92"); a("v_add_u32 v92, v92, v95")
            a("s_and_b32 s76, s4, 3"); a("s_mul_i32 s76, s76, 768"); a(f"s_mul_i32 s77, s5, {2*3072}"); a("s_add_u32 s98, s76, s77")
            a(f"s_mov_b32 s99, {2*64*3072}"); a("s_mov_b32 s100, 0xffffff")
            s.label(le)
        def do_touch():
            a("s_mov_b32 exec_lo, s100"); a("s_mov_b32 exec_hi, 0")
            a("buffer_load_dword v93, v92, s[48:51], s98 offen")
            a("s_mov_b64 exec, -1"); a("s_add_u32 s98, s98, s99")
        tpre = s.opt.get("tpre", 2)
        if touch:
            for _ in range(tpre if touch == 2 else 5): do_touch()
        SB = (12, 52)
        def reads(st, slot):
            R = []
            if s.m16:
                W = [f"ds_read_b64_tr_b16 v[{SB[st]+8*T+4*u+2*hh}:{SB[st]+8*T+4*u+2*hh+1}], v{2+T} offset:{slot*12288 + u*6144 + hh*256}" for T in range(3) for u in range(2) for hh in range(2)]
                X = [f"ds_read_b128 v[{SB[st]+24+4*nt}:{SB[st]+24+4*nt+3}], v5 offset:{slot*8192 + nt*1024}" for nt in range(4)]
                return [X[0], W[0], W[1], X[1], X[2], X[3]] + W[2:]
            for sub in range(2):
                W = []
                for T in range(3):
                    for hh in range(2):
                        r = SB[st] + 12 * sub + 4 * T + 2 * hh
                        W.append(f"ds_read_b64_tr_b16 v[{r}:{r+1}], v{2+T} offset:{slot*12288 + sub*1024 + hh*256}")
                X = [f"ds_read_b128 v[{SB[st]+24+8*sub+4*nt}:{SB[st]+24+8*sub+4*nt+3}], v{5+sub} offset:{slot*8192 + nt*2048}" for nt in range(2)]
                R += [X[0], W[0], W[1], X[1], W[2], W[3], W[4], W[5]]
            return R
        def mfmas(st):
            M = []
            if s.m16:
                seq = [(T, u, nt) for T in range(3) for u in range(2) for nt in range(4)]
                mo = s.opt.get("mord", 0)
                if mo == 1: seq = [(T, u, nt) for nt in range(4) for T in range(3) for u in range(2)]
                if mo == 2: seq = [(T, u, nt if (2 * T + u) % 2 == 0 else 3 - nt) for T in range(3) for u in range(2) for nt in range(4)]
                for (T, u, nt) in seq:
                    if True:
                        if True:
                            o = 160 + 16 * (2 * T + nt // 2) + 8 * u + 4 * (nt & 1); w = SB[st] + 8 * T + 4 * u; x = SB[st] + 24 + 4 * nt
                            M.append(f"v_mfma_f32_16x16x32_bf16 v[{o}:{o+3}], v[{w}:{w+3}], v[{x}:{x+3}], v[{o}:{o+3}]")
                return M
            for sub in range(2):
                for T in range(3):
                    for nt in range(2):
                        o = 160 + 16 * (2 * T + nt); w = SB[st] + 12 * sub + 4 * T; x = SB[st] + 24 + 8 * sub + 4 * nt
                        M.append(f"v_mfma_f32_32x32x16_bf16 v[{o}:{o+15}], v[{w}:{w+3}], v[{x}:{x+3}], v[{o}:{o+15}]")
            return M
        a("s_mov_b32 s86, 0")
        a("s_waitcnt lgkmcnt(0)")
        s.kwait()
        if s.opt.get("ctouch", 1):
            lct = s.newlab("L_ct")
            a("s_cmp_lg_u32 s3, 1"); a(f"s_cbranch_scc1 {lct}")
            a("s_getpc_b64 s[76:77]")
            s.label("L_pc")
            a(f"s_sub_u32 s76, s76, L_pc-{KN}"); a("s_subb_u32 s77, s77, 0")
            a("s_mul_i32 s78, s5, 7"); a("v_add_u32 v50, s78, v1"); a("v_lshlrev_b32 v50, 7, v50"); a(f"v_min_u32 v50, L_codeend-{KN}-4, v50")
            a("s_mov_b64 exec, 0x7f"); a("global_load_dword v51, v50, s[76:77]"); a("s_mov_b64 exec, -1")
            s.label(lct)
        a("s_barrier")
        s.kv_pre()
        a("s_waitcnt vmcnt(0)")
        a("s_barrier")
        for r in reads(0, 0): a(r)
        a("s_waitcnt lgkmcnt(0)")
        s.label("L_g1")
        for slot in range(4):
            M = mfmas(slot & 1); R = reads((slot + 1) & 1, (slot + 1) & 3)
            if s.opt.get("stamps", 0) == 2:
                a("s_memtime s[96:97]"); a(f"s_add_u32 m0, s86, {41 + slot}"); a("s_waitcnt lgkmcnt(0)"); a("v_writelane_b32 v11, s96, m0")
            a(M[0])
            if s.m16: a(M[1])
            if slot == 3:
                lnb = s.newlab("L_nb"); a("s_cmp_eq_u32 s86, 16"); a(f"s_cbranch_scc1 {lnb}"); a("s_barrier"); s.label(lnb)
            else: a("s_barrier")
            if s.m16:
                rp = s.opt.get("rp", 1)
                ri = 0; mi = 2
                while ri < 16:
                    for _ in range(2 if (rp == 2 and mi % 2 == 0) else 1):
                        if ri < 16: a(R[ri]); ri += 1
                    a(M[mi]); mi += 1
                M = M[:6] + M[mi:]
            else:
                for i in range(5):
                    for r in R[3 * i:3 * i + 3]: a(r)
                    a(M[1 + i])
                a(R[15])
            if touch == 2 and slot == s.opt.get("tslot", 0):
                lt = s.newlab("L_nt")
                a(f"s_cmp_ge_u32 s86, {4 * (5 - tpre)}"); a(f"s_cbranch_scc1 {lt}"); do_touch(); s.label(lt)
            for m in M[6:]: a(m)
            a("s_waitcnt lgkmcnt(0)")
            if slot == 0:
                a("s_cmp_eq_u32 s86, 0"); a("s_cbranch_scc1 L_kv")
                s.label("L_kvret")
        a("s_add_u32 s86, s86, 4")
        a("s_cmp_lt_u32 s86, 20"); a("s_cbranch_scc1 L_g1")
        s.stamp(1)
        if s.opt.get("g1only"): a("s_branch L_fin2")
        if s.opt.get("xidle"): s.lds_set(2, L_XG2, 1); a("s_branch L_final")
        a(f"v_mov_b32 v116, {L_EPOCH}"); a("v_mov_b32 v117, 1"); a("s_mov_b64 exec, 1"); a(f"ds_add_u32 v116, v117 offset:{L_XCNT - L_EPOCH}"); a("s_mov_b64 exec, -1")
        a("ds_read_b128 v[116:119], v116"); a("s_waitcnt lgkmcnt(0)")
        a("v_readfirstlane_b32 s72, v116"); a("v_readfirstlane_b32 s73, v117"); a("v_readfirstlane_b32 s76, v119"); a("s_nop 1")
        lfa = s.newlab("L_faok")
        a("s_cmp_lg_u32 s76, 0"); a(f"s_cbranch_scc1 {lfa}")
        a("v_lshlrev_b32 v114, 3, v1")
        a("s_lshl_b32 s76, s10, 9"); a(f"s_add_u32 s76, s76, {WS_FA}")
        s.poll(112, 114, "s76")
        s.label(lfa)
        s.stamp(2)
        if s.opt.get("g2map", 1): a("s_mul_i32 s78, s11, 3"); a("s_lshr_b32 s78, s78, 1"); a("s_mul_i32 s79, s12, 3"); a("s_add_u32 s78, s78, s79")
        else: a("s_mul_i32 s78, s10, 3"); a("s_lshr_b32 s78, s78, 1"); a("s_mul_i32 s79, s13, 3"); a("s_add_u32 s78, s78, s79")
        a("s_cmp_ge_u32 s78, 12"); a("s_cselect_b32 s79, 12, 0"); a("s_sub_u32 s78, s78, s79")
        if s.opt.get("g2rot") == 0: a("s_mov_b32 s78, 0")
        a("s_mul_i32 s79, s3, 12")
        a(f"s_mul_i32 s80, s10, {WBS}"); a(f"s_add_u32 s80, s80, {WS_WB}")
        a(f"s_mul_i32 s81, s9, {HBS}"); a(f"s_add_u32 s81, s81, {WS_HB}")
        a("s_mul_i32 s92, s3, 20480")
        PERM = {0: list(range(12)), 1: [0, 1, 3, 6, 9, 2, 4, 7, 10, 5, 8, 11], 2: [0, 3, 6, 9, 1, 4, 7, 10, 2, 5, 8, 11], 3: [0, 1, 2, 3, 6, 9, 4, 7, 10, 5, 8, 11]}[s.opt.get("kperm", 2)]
        L0 = s.opt.get("l0", 5)
        def kt_of(i, dst):
            i = PERM[i]
            a(f"s_add_u32 s{dst}, s78, {i}"); a(f"s_cmp_ge_u32 s{dst}, 12"); a(f"s_cselect_b32 s82, 12, 0"); a(f"s_sub_u32 s{dst}, s{dst}, s82")
            a(f"s_add_u32 s{dst}, s{dst}, s79")
        def wb_loads(i):
            kt_of(i, 83); a("s_mul_i32 s83, s83, 5120"); a("s_add_u32 s83, s83, s80")
            r = 12 + 20 * (i % 5)
            for dt in range(5):
                if dt < 4: s.vmem(("wb", i), f"buffer_load_dwordx4 v[{r+4*dt}:{r+4*dt+3}], v7, s[44:47], s83 offen offset:{dt*1024} sc1")
                else: s.vmem(("wb", i), f"buffer_load_dwordx4 v[{r+4*dt}:{r+4*dt+3}], v8, s[44:47], s83 offen sc1")
        def wb_dma(i):
            kt_of(i, 83); a("s_mul_i32 s83, s83, 5120"); a("s_add_u32 s83, s83, s80")
            a(f"s_add_u32 m0, s92, {(i - L0) * 5120}"); a("s_nop 0")
            for dt in range(4):
                s.vmem(("wd", i), f"buffer_load_dwordx4 v7, s[44:47], s83 offen offset:{dt*1024} sc1 lds")
            a(f"s_add_u32 m0, s92, {(i - L0) * 5120 + 4096}"); a("s_nop 0")
            s.vmem(("wd", i), f"buffer_load_dwordx4 v8, s[44:47], s83 offen sc1 lds")
        def wb_lds(i):
            r = 12 + 20 * (i % 5)
            for dt in range(5): a(f"ds_read_b128 v[{r+4*dt}:{r+4*dt+3}], v10 offset:{(i - L0) * 5120 + dt*1024}")
        def hb_loads(i):
            kt_of(i, 83); a("s_lshl_b32 s83, s83, 12"); a("s_add_u32 s83, s83, s81")
            r = 112 + 16 * (i % 4)
            for sb in range(4):
                s.vmem(("hb", i), f"buffer_load_dwordx4 v[{r+4*sb}:{r+4*sb+3}], v7, s[44:47], s83 offen offset:{sb*1024} {s.opt.get('hsc', 'sc1')}")
        wq = [(i, dt) for i in range(5) for dt in range(5)]
        def wb_some(n):
            for _ in range(n):
                if not wq: return
                i, dt = wq.pop(0)
                if dt == 0: kt_of(i, 98); a("s_mul_i32 s98, s98, 5120"); a("s_add_u32 s98, s98, s80")
                r = 12 + 20 * (i % 5)
                if dt < 4: s.vmem(("wb", i), f"buffer_load_dwordx4 v[{r+4*dt}:{r+4*dt+3}], v7, s[44:47], s98 offen offset:{dt*1024} sc1")
                else: s.vmem(("wb", i), f"buffer_load_dwordx4 v[{r+4*dt}:{r+4*dt+3}], v8, s[44:47], s98 offen sc1")
        wpt = s.opt.get("wpt", 1)
        wb_some(s.opt.get("npre", 0))
        a("s_mov_b32 s84, 0xbfb8aa3b"); a("s_mov_b32 s85, 0xbfb8aa3b")
        a("s_lshl_b32 s87, s6, 1"); a("s_add_u32 s87, s87, s74")
        a(f"s_mul_i32 s88, s87, {HBS}")
        a("s_mul_i32 s89, s7, 6"); a("s_mul_i32 s90, s75, 3"); a("s_add_u32 s89, s89, s90")
        for T in range(3):
            a(f"s_add_u32 s90, s89, {T}"); a("s_and_b32 s91, s90, 1"); a("s_lshr_b32 s90, s90, 1")
            a("s_lshl_b32 s90, s90, 12"); a("s_lshl_b32 s91, s91, 9"); a("s_add_u32 s90, s90, s91"); a("s_add_u32 s90, s90, s88")
            for nt in range(2):
                ti = 2 * T + nt
                o = 160 + 16 * ti; p = 120 + 4 * ti
                if ti < s.opt.get("pkt", 6):
                    for e in range(4): a(f"v_pk_mul_f32 v[{o+2*e}:{o+2*e+1}], v[{o+2*e}:{o+2*e+1}], s[84:85]")
                    for e in range(8): a(f"v_exp_f32 v{o+e}, v{o+e}")
                    for e in range(4): a(f"v_pk_add_f32 v[{o+2*e}:{o+2*e+1}], v[{o+2*e}:{o+2*e+1}], 1.0 op_sel_hi:[1,0]")
                    for e in range(8): a(f"v_rcp_f32 v{o+e}, v{o+e}")
                    for e in range(4): a(f"v_pk_mul_f32 v[{o+2*e}:{o+2*e+1}], v[{o+2*e}:{o+2*e+1}], v[{o+8+2*e}:{o+9+2*e}]")
                else:
                    for e in range(8): a(f"v_mul_f32 v{o+e}, s84, v{o+e}")
                    for e in range(8): a(f"v_exp_f32 v{o+e}, v{o+e}")
                    for e in range(8): a(f"v_add_f32 v{o+e}, 1.0, v{o+e}")
                    for e in range(8): a(f"v_rcp_f32 v{o+e}, v{o+e}")
                    for e in range(8): a(f"v_mul_f32 v{o+e}, v{o+e}, v{o+8+e}")
                for e in range(4): a(f"v_cvt_pk_bf16_f32 v{p+e}, v{o+2*e}, v{o+2*e+1}")
                if s.m16:
                    a("s_nop 1"); a(f"v_permlane16_swap_b32 v{p}, v{p+2}"); a(f"v_permlane16_swap_b32 v{p+1}, v{p+3}")
                s.vmem("hst", f"buffer_store_dwordx4 v[{p}:{p+3}], v9, s[44:47], s90 offen offset:{nt*2048} sc1")
                if ti < 5: wb_some(wpt)
        a("s_setprio 0")
        s.stamp(3)
        wb_some(s.opt.get("wmid", 4))
        s.vm_wait({"hst"})
        a("s_lshl_b32 s90, s87, 8"); a("s_lshl_b32 s91, s7, 4"); a("s_add_u32 s90, s90, s91"); a("s_lshl_b32 s91, s75, 3"); a("s_add_u32 s90, s90, s91")
        a(f"s_add_u32 s90, s90, {WS_FH}")
        s.write_flag(144, 90)
        s.lds_set(2, L_XH, 1)
        s.stamp(4)
        wb_some(25)
        s.lds_wait(L_XCNT, 1, 4, 148)
        a("v_min_u32 v114, 7, v1"); a("v_lshlrev_b32 v114, 3, v114")
        a("s_lshl_b32 s90, s9, 8"); a("s_lshl_b32 s91, s3, 6"); a("s_add_u32 s90, s90, s91"); a(f"s_add_u32 s90, s90, {WS_FH}")
        p1 = s.opt.get("p1at", 2)
        for i in range(L0, L0 + 4):
            if i - L0 == p1: s.vmem("p1", "buffer_load_dwordx2 v[148:149], v114, s[44:47], s90 offen sc1")
            wb_dma(i)
        a("v_add_u32 v10, s92, v7")
        if p1 >= 0:
            lgo = s.newlab("L_go")
            s.vm_wait({"p1"})
            keep = list(s.vm)
            a("v_cmp_ne_u64 vcc, s[72:73], v[148:149]"); a("s_nop 1"); a(f"s_cbranch_vccz {lgo}")
            s.poll(112, 114, "s90")
            s.label(lgo)
            s.vm = keep
        else: s.poll(112, 114, "s90")
        s.stamp(5)
        if s.opt.get("g2prio", 0): a(f"s_setprio {s.opt.get('g2prio')}")
        h0 = s.opt.get("h0", 1)
        for i in range(h0): hb_loads(i)
        for i in range(12):
            if i == s.opt.get("xga", -1): s.lds_set(2, L_XG2, 1)
            if i == s.opt.get("xg2", 7): s.lds_set(2, L_XG2, 2)
            s.vm_wait({("hb", i), ("wb", i)})
            if i == 0:
                for k in range(h0, 4): hb_loads(k)
            s.stamp(16 + i, 3)
            if L0 <= i < L0 + 4: a("s_waitcnt lgkmcnt(0)")
            rw = 12 + 20 * (i % 5); rh = 112 + 16 * (i % 4)
            n = i + 4
            extra = {k: [] for k in range(20)}
            if n < 12:
                extra[0].append(lambda n=n: (kt_of(n, 83), a("s_mul_i32 s98, s83, 5120"), a("s_add_u32 s98, s98, s80"), a("s_lshl_b32 s83, s83, 12"), a("s_add_u32 s83, s83, s81")))
                for sb in range(4):
                    extra[5 * sb + 4].append(lambda n=n, sb=sb: s.vmem(("hb", n), f"buffer_load_dwordx4 v[{rh+4*sb}:{rh+4*sb+3}], v7, s[44:47], s83 offen offset:{sb*1024} sc1"))
                if n >= 5:
                    r = 12 + 20 * (n % 5)
                    for dt in range(5):
                        if L0 <= n < L0 + 4: f = lambda n=n, dt=dt, r=r: a(f"ds_read_b128 v[{r+4*dt}:{r+4*dt+3}], v10 offset:{(n - L0) * 5120 + dt*1024}")
                        elif dt < 4: f = lambda n=n, dt=dt, r=r: s.vmem(("wb", n), f"buffer_load_dwordx4 v[{r+4*dt}:{r+4*dt+3}], v7, s[44:47], s98 offen offset:{dt*1024} sc1")
                        else: f = lambda n=n, dt=dt, r=r: s.vmem(("wb", n), f"buffer_load_dwordx4 v[{r+4*dt}:{r+4*dt+3}], v8, s[44:47], s98 offen sc1")
                        extra[4 * dt + 2].append(f)
            def pw(k):
                sb, dt = divmod(k, 5); o = 176 + 4 * (4 * dt + sb)
                a(f"ds_write_b128 v12, v[{o}:{o+3}] offset:{sb*5120 + dt*64}")
            if i == 11:
                extra[0].append(lambda: (a("v_and_b32 v12, 15, v1"), a("v_lshrrev_b32 v13, 4, v1"), a("v_bfe_u32 v14, v1, 1, 2"), a("v_xor_b32 v13, v13, v14")))
                extra[1].append(lambda: (a("v_mul_u32_u24 v12, 320, v12"), a("v_lshl_add_u32 v12, v13, 4, v12"), a("v_add_u32 v12, s92, v12")))
                for k in range(12): extra[k + 8].append(lambda k=k: pw(k))
            for sb in range(4):
                for dt in range(5):
                    o = 176 + 4 * (4 * dt + sb)
                    c = "0" if i == 0 else f"v[{o}:{o+3}]"
                    a(f"v_mfma_f32_16x16x32_bf16 v[{o}:{o+3}], v[{rw+4*dt}:{rw+4*dt+3}], v[{rh+4*sb}:{rh+4*sb+3}], {c}")
                    for f in extra[5 * sb + dt]: f()
        s.stamp(6)
        for k in range(12, 20):
            if k == 19: a("s_nop 0")
            pw(k)
        s.stamp(7)

    def final(s):
        a = s.a
        s.label("L_final")
        a("s_setprio 0")
        s.srd(48, 38, 2621440)
        a(f"s_mul_i32 s74, s9, {64*1280}"); a("s_mul_i32 s75, s10, 160"); a("s_add_u32 s74, s74, s75")
        def addr(n, b):
            a(f"v_mul_u32_u24 v13, 6554, v{n}"); a("v_lshrrev_b32 v13, 16, v13")
            a("v_mul_u32_u24 v14, 10, v13"); a(f"v_sub_u32 v14, v{n}, v14")
            a("v_bfe_u32 v15, v13, 1, 2"); a(f"v_lshlrev_b32 v{b}, 1, v14"); a(f"v_xor_b32 v{b}, v{b}, v15"); a(f"v_xor_b32 v{b+1}, 1, v{b}")
            a("v_mul_u32_u24 v15, 320, v13"); a(f"v_lshl_add_u32 v{b}, v{b}, 4, v15"); a(f"v_lshl_add_u32 v{b+1}, v{b+1}, 4, v15")
            a(f"v_lshlrev_b32 v{b+2}, 4, v{n}"); a(f"v_add_u32 v{b+2}, {L_QT}, v{b+2}")
            a(f"v_lshlrev_b32 v{b+3}, 2, v13"); a(f"v_add_u32 v{b+3}, {L_GF}, v{b+3}")
            a(f"v_mul_u32_u24 v{b+4}, 1120, v13"); a(f"v_lshl_add_u32 v{b+4}, v{n}, 4, v{b+4}")
        def rd(b, d):
            for w in range(4):
                a(f"ds_read_b128 v[{d+8*w}:{d+3+8*w}], v{b} offset:{w*20480}")
                a(f"ds_read_b128 v[{d+4+8*w}:{d+7+8*w}], v{b+1} offset:{w*20480}")
            a(f"ds_read_b128 v[{d+32}:{d+35}], v{b+2}"); a(f"ds_read_b32 v{d+36}, v{b+3}")
        def comp(b, d):
            for e in range(4):
                a(f"v_pk_add_f32 v[{d+2*e}:{d+1+2*e}], v[{d+2*e}:{d+1+2*e}], v[{d+8+2*e}:{d+9+2*e}]")
                a(f"v_pk_add_f32 v[{d+16+2*e}:{d+17+2*e}], v[{d+16+2*e}:{d+17+2*e}], v[{d+24+2*e}:{d+25+2*e}]")
            a(f"v_sub_f32 v{d+36}, 1.0, v{d+36}"); a(f"v_cvt_pk_bf16_f32 v{d+36}, v{d+36}, v{d+36}"); a(f"v_and_b32 v{d+36}, 0xffff0000, v{d+36}")
            for e in range(4):
                a(f"v_pk_add_f32 v[{d+2*e}:{d+1+2*e}], v[{d+2*e}:{d+1+2*e}], v[{d+16+2*e}:{d+17+2*e}]")
            for e in range(4):
                a(f"v_lshlrev_b32 v{d+8+2*e}, 16, v{d+32+e}"); a(f"v_and_b32 v{d+9+2*e}, 0xffff0000, v{d+32+e}")
                a(f"v_pk_fma_f32 v[{d+8+2*e}:{d+9+2*e}], v[{d+2*e}:{d+1+2*e}], v[{d+36}:{d+37}], v[{d+8+2*e}:{d+9+2*e}] op_sel_hi:[1,0,1]")
            for e in range(4): a(f"v_cvt_pk_bf16_f32 v{d+32+e}, v{d+8+2*e}, v{d+9+2*e}")
            a(f"buffer_store_dwordx4 v[{d+32}:{d+35}], v{b+4}, s[48:51], s74 offen {s.opt.get('ost', '')}")
        addr(0, 16)
        a("s_lshl_b32 s75, s3, 4"); a("s_add_u32 s75, s75, 512"); a("v_and_b32 v12, 15, v1"); a("v_add_u32 v12, s75, v12")
        addr(12, 24)
        a("s_waitcnt lgkmcnt(0)"); a("s_barrier")
        s.stamp(12)
        rd(16, 32)
        a("s_mov_b64 exec, 0xffff");
        rd(24, 72)
        a("s_mov_b64 exec, -1")
        a("s_waitcnt lgkmcnt(10)")
        comp(16, 32)
        a("s_waitcnt lgkmcnt(0)")
        a("s_mov_b64 exec, 0xffff")
        comp(24, 72)
        a("s_mov_b64 exec, -1")
        s.label("L_fin2")
        if s.opt.get("stamps"):
            s.stamp(13)
            a("s_waitcnt vmcnt(0)")
            s.stamp(14)
            a("s_memrealtime s[96:97]"); a("s_waitcnt lgkmcnt(0)"); a("v_writelane_b32 v11, s96, 15")
            a("s_lshl_b32 s74, s2, 3"); a("s_add_u32 s74, s74, s3"); a("s_lshl_b32 s74, s74, 8"); a(f"s_add_u32 s74, s74, {WS_STAMP}")
            a("v_lshlrev_b32 v12, 2, v1")
            a("buffer_store_dword v11, v12, s[44:47], s74 offen")
            if s.opt.get("dbgout"):
                ld = s.newlab("L_dbo")
                a("s_cmp_lg_u32 s2, 9"); a(f"s_cbranch_scc1 {ld}"); a("s_cmp_lg_u32 s3, 0"); a(f"s_cbranch_scc1 {ld}")
                s.srd(64, 40, 256)
                a("v_readlane_b32 s74, v11, 0"); a("s_nop 1"); a("v_subrev_u32 v11, s74, v11")
                a("v_add_u32 v12, 4, v12")
                a("s_mov_b64 exec, 0x7ffe"); a("buffer_store_dword v11, v12, s[64:67], 0 offen"); a("s_mov_b64 exec, -1")
                s.label(ld)
        s.label("L_end")
        a("s_endpgm")

    def kv_pre(s):
        a = s.a
        a("v_mul_u32_u24 v90, 3277, v1"); a("v_lshrrev_b32 v90, 16, v90"); a("v_mul_u32_u24 v91, 20, v90"); a("v_sub_u32 v91, v1, v91")
        a(f"s_mul_i32 s76, s74, {CV_SZ}"); a(f"s_add_u32 s76, s76, {L_CV + 2*CV_SZ}")
        a("v_lshlrev_b32 v95, 5, v91"); a("v_add_u32 v95, s76, v95")
        a(f"s_mul_i32 s77, s75, {16*192}"); a("s_add_u32 s76, s76, s77"); a("s_and_b32 s77, s10, 1"); a("s_lshl_b32 s77, s77, 5"); a("s_add_u32 s76, s76, s77")
        a(f"v_mul_u32_u24 v10, {6*192}, v90"); a("v_lshl_add_u32 v10, v91, 3, v10"); a("v_add_u32 v10, s76, v10")
        a("s_lshl_b32 s77, s3, 3"); a("v_mul_u32_u24 v85, 3, v90"); a("v_add_u32 v85, s77, v85"); a("v_and_b32 v86, 7, v91")
        for m in range(3):
            a(f"v_sub_u32 v87, {29+m}, v85"); a("v_lshrrev_b32 v88, 2, v87"); a("v_xor_b32 v88, v88, v86"); a("v_lshlrev_b32 v88, 4, v88")
            a("v_and_b32 v87, 3, v87"); a("v_lshl_add_u32 v88, v87, 2, v88"); a(f"v_lshl_add_u32 v{92+m}, v91, 7, v88")
            a(f"v_add_u32 v{92+m}, {L_T}, v{92+m}")
    def kv_main(s):
        a = s.a
        s.label("L_kv")
        a("s_barrier")
        s.stamp(8)
        a(f"ds_read_b128 v[42:45], v95 offset:{SC_SHK}"); a(f"ds_read_b128 v[46:49], v95 offset:{SC_SHK + 16}")
        for i in range(9): a(f"ds_read_b64 v[{12+2*i}:{13+2*i}], v10 offset:{SC_K + 192*i}")
        a("s_waitcnt lgkmcnt(9)")
        for i in range(6): a(f"ds_read_b64 v[{30+2*i}:{31+2*i}], v10 offset:{SC_V + 192*i}")
        for e in range(4):
            a(f"v_lshlrev_b32 v{96+e}, 16, v{42+2*e}"); a(f"v_and_b32 v{100+e}, 0xffff0000, v{42+2*e}")
            a(f"v_lshlrev_b32 v{104+e}, 16, v{43+2*e}"); a(f"v_and_b32 v{108+e}, 0xffff0000, v{43+2*e}")
        a("s_waitcnt lgkmcnt(0)")
        s.ex(60)
        for d in range(2):
            for i in range(9):
                a(f"v_lshlrev_b32 v{112+2*i}, 16, v{12+2*i+d}"); a(f"v_and_b32 v{113+2*i}, 0xffff0000, v{12+2*i+d}")
            for i in range(6):
                a(f"v_lshlrev_b32 v{130+2*i}, 16, v{30+2*i+d}"); a(f"v_and_b32 v{131+2*i}, 0xffff0000, v{30+2*i+d}")
            for r in range(6):
                a(f"v_pk_mul_f32 v[{142+2*r}:{143+2*r}], v[{112+2*r}:{113+2*r}], v[{108+2*d}:{109+2*d}]")
            for j in (2, 1, 0):
                for r in range(6):
                    k = 112 + 2 * (r + 3 - j); w = 96 + 4 * j + 2 * d
                    a(f"v_pk_fma_f32 v[{142+2*r}:{143+2*r}], v[{k}:{k+1}], v[{w}:{w+1}], v[{142+2*r}:{143+2*r}]")
            for r in range(6):
                a(f"v_pk_mul_f32 v[{142+2*r}:{143+2*r}], v[{142+2*r}:{143+2*r}], v[{130+2*r}:{131+2*r}]")
            for e in range(2):
                for m in range(3):
                    hi = 4 - 2 * m
                    a(f"v_cvt_pk_bf16_f32 v{154+3*e+m}, v{142+2*(hi+1)+e}, v{142+2*hi+e}")
            for m in (1, 2, 0):
                if m == 0: a("s_mov_b32 exec_hi, 0xff")
                for e in range(2):
                    a(f"ds_write_b32 v{92+m}, v{154+3*e+m} offset:{(2*d+e)*2560}")
            a("s_mov_b32 exec_hi, 0xfffffff")
        a("s_mov_b64 exec, -1")
        s.stamp(9)
        a("s_branch L_kvret")
        s.label("L_codeend")

    def build(s):
        s.kvt = s.opt.get("kvt", 6); s.m16 = s.opt.get("m16", 1); s.pre = s.opt.get("pre", 1) and s.opt.get("gearly", 1)
        s.nt = "nt" if s.opt.get("nt", 1) else ""
        hdr = open("gated_mix__ssm_conv_h3__glu_gated_glu__prompt.s.ref").read().split("; Override launch")[0]
        out = hdr + f"; @launch grid=(256,1,1) block=(512,1,1) lds={LDS_TOTAL}\n"
        out += '.amdgcn_target "amdgcn-amd-amdhsa--gfx950"\n.text\n' + f".globl {KN}\n.p2align 8\n.type {KN},@function\n{KN}:\n"
        s.prologue(); s.loader(); s.chore(); s.ywave(); s.xwave(); s.final(); s.kv_main()
        out += "\n".join(s.L) + "\n"
        out += f""".section .rodata,"a"
.p2align 6
.amdhsa_kernel {KN}
  .amdhsa_next_free_vgpr 256
  .amdhsa_next_free_sgpr 102
  .amdhsa_accum_offset 256
  .amdhsa_group_segment_fixed_size 0
  .amdhsa_kernarg_size 112
  .amdhsa_user_sgpr_count 2
  .amdhsa_user_sgpr_kernarg_segment_ptr 1
  .amdhsa_system_sgpr_workgroup_id_x 1
.end_amdhsa_kernel
"""
        return out

if __name__ == "__main__":
    opt = {}
    outp = sys.argv[1]
    for x in sys.argv[2:]:
        k, v = x.split("=")
        if "," in v: opt[k] = tuple(int(z) for z in v.split(","))
        else:
            try: opt[k] = int(v)
            except ValueError: opt[k] = v
    open(outp, "w").write(Gen(opt).build())
```

```python
import sys
KN = "gated_mix__ssm_conv_h3__glu_gated_glu__prompt_kernel"

WS_HB = 0x000000; WS_WB = 0x610000; HBS = 48*4096 + 128; WBS = 48*5120 + 128; WS_KT = 0x800000; WS_YT = 0xB00000
WS_G = 0xE00000; WS_FA = 0xE10000; WS_FB = 0xE12000; WS_FH = 0xE14000; WS_FY = 0xE16000
WS_STAMP = 0xF00000
TS = 4224
L_XR = 0; L_WR = 32768; L_CV = 81920; CV_SZ = 17728; H_SZ = 8448; L_QT = 152832; L_MISC = 163072; LDS_TOTAL = 163840
CV_A = 0; CV_B = 4224; CV_U0 = 0; CV_U1 = 4616
L_FULL = L_MISC; L_FREE = L_MISC + 16; L_EPOCH = L_MISC + 32; L_QDONE = L_MISC + 40; L_SDONE = L_MISC + 48; L_XG2 = L_MISC + 56; L_XH = L_MISC + 60; L_FBOK = L_MISC + 28; L_XCNT = L_MISC + 52; L_GF = L_MISC + 256
SC_K = 0; SC_V = 6720; SC_SHK = 13440; L_T = L_CV; L_WDS = L_CV + CV_SZ
SPIN_MAX = 30000
NCONV = 160

DOC = '''; ---------------------------------------------------------------------------------------------
; ---------------------------------------------------------------------------------------------
'''
NOTE = {'L_L': 'loader waves', 'L_C': 'chore waves', 'L_Yt': 'waves 4-7: last GEMM1 stages, conv operand staging', 'L_cv': 'long conv main loop (two K steps per trip)',
        'L_apart': 'g*q*(y + kv*D) for the output tile', 'L_X': 'GEMM waves', 'L_g1': 'GEMM1 main loop (four K stages per trip)', 'L_final': 'combine the four K-split partial sums and store',
        'L_kv': 'short conv * v, written transposed (run once, after the first GEMM1 stage)'}

class Gen:
    def __init__(s, opt):
        s.L = []; s.opt = opt; s.vm = []; s.lab = 0; s.vstamp = 11
    def a(s, x): s.L.append("    " + x)
    def label(s, x):
        if x in NOTE: s.L.append("; ---- " + NOTE[x])
        s.L.append(x + ":")
    def newlab(s, p="L"):
        s.lab += 1; return f"{p}_{s.lab}"
    def vm_reset(s): s.vm = []
    def vmem(s, tag, ins): s.a(ins); s.vm.append(tag)
    def vm_wait(s, tags):
        idx = -1
        for i, t in enumerate(s.vm):
            if t in tags: idx = i
        if idx < 0: return
        n = len(s.vm) - 1 - idx
        assert n <= 63
        s.a(f"s_waitcnt vmcnt({n})")
        s.vm = s.vm[idx + 1:]
    def vm_wait_all(s):
        s.a("s_waitcnt vmcnt(0)"); s.vm = []
    def ex(s, n):
        if n >= 64: s.a("s_mov_b64 exec, -1")
        elif n > 32: s.a("s_mov_b32 exec_lo, -1"); s.a(f"s_mov_b32 exec_hi, {hex((1 << (n - 32)) - 1)}")
        elif n == 32: s.a("s_mov_b32 exec_hi, 0")
        else: s.a(f"s_mov_b32 exec_lo, {hex((1 << n) - 1)}"); s.a("s_mov_b32 exec_hi, 0")
    def srd(s, d, p, nbytes):
        s.a(f"s_mov_b32 s{d}, s{p}"); s.a(f"s_and_b32 s{d+1}, s{p+1}, 0xffff")
        s.a(f"s_mov_b32 s{d+2}, {nbytes}"); s.a(f"s_mov_b32 s{d+3}, 0x20000")
    def stamp(s, idx, lvl=1):
        if s.opt.get("stamps", 0) >= 1 and (lvl == 1 or s.opt.get("stamps", 0) == lvl):
            s.a("s_memtime s[96:97]"); s.a("s_waitcnt lgkmcnt(0)")
            s.a(f"v_writelane_b32 v{s.vstamp}, s96, {idx}")
            if s.opt.get("rt") and lvl == 1 and idx < 15:
                s.a("s_memrealtime s[96:97]"); s.a("s_waitcnt lgkmcnt(0)"); s.a(f"v_writelane_b32 v{s.vstamp}, s96, {idx + 40}")
    def poll(s, vflag, voff, soff, scnt=94, slp=None):
        l0 = s.newlab("L_poll"); l1 = s.newlab("L_pdone")
        s.a(f"s_mov_b32 s{scnt}, {SPIN_MAX}")
        s.label(l0)
        s.a(f"buffer_load_dwordx2 v[{vflag}:{vflag+1}], v{voff}, s[44:47], {soff} offen sc1")
        s.a("s_waitcnt vmcnt(0)")
        s.a(f"v_cmp_ne_u64 vcc, s[72:73], v[{vflag}:{vflag+1}]")
        s.a("s_nop 1")
        s.a(f"s_cbranch_vccz {l1}")
        slp = s.opt.get("slp", 4) if slp is None else slp
        if slp: s.a(f"s_sleep {slp}")
        s.a(f"s_sub_u32 s{scnt}, s{scnt}, 1")
        s.a(f"s_cbranch_scc0 {l0}")
        s.label(l1)
        s.vm = []
    def lds_wait(s, addr, nw, need, vt, scache=None, scnt=94, slp=0):
        a = s.a
        sc = scache if scache is not None else 95
        l0 = s.newlab("L_lw"); l1 = s.newlab("L_lwd")
        if scache is not None:
            a(f"s_cmp_ge_u32 s{sc}, {need}"); a(f"s_cbranch_scc1 {l1}")
        a(f"s_mov_b32 s{scnt}, {SPIN_MAX * 8}")
        a(f"v_mov_b32 v{vt+4}, {addr}")
        s.label(l0)
        if nw == 1: a(f"ds_read_b32 v{vt}, v{vt+4}")
        elif nw == 2: a(f"ds_read_b64 v[{vt}:{vt+1}], v{vt+4}")
        else: a(f"ds_read_b128 v[{vt}:{vt+3}], v{vt+4}")
        a("s_waitcnt lgkmcnt(0)")
        if nw == 2: a(f"v_min_u32 v{vt}, v{vt}, v{vt+1}")
        if nw == 4: a(f"v_min_u32 v{vt}, v{vt}, v{vt+1}"); a(f"v_min3_u32 v{vt}, v{vt}, v{vt+2}, v{vt+3}")
        a("s_nop 0")
        a(f"v_readfirstlane_b32 s{sc}, v{vt}")
        a("s_nop 1")
        a(f"s_cmp_ge_u32 s{sc}, {need}"); a(f"s_cbranch_scc1 {l1}")
        if slp: a(f"s_sleep {slp}")
        a(f"s_sub_u32 s{scnt}, s{scnt}, 1"); a(f"s_cbranch_scc0 {l0}")
        s.label(l1)
    def read_epoch(s, vt):
        a = s.a; l0 = s.newlab("L_re"); l1 = s.newlab("L_red")
        a(f"s_mov_b32 s94, {SPIN_MAX * 8}"); a(f"v_mov_b32 v{vt+2}, {L_EPOCH}")
        s.label(l0)
        a(f"ds_read_b64 v[{vt}:{vt+1}], v{vt+2}")
        a("s_waitcnt lgkmcnt(0)")
        a(f"v_readfirstlane_b32 s72, v{vt}"); a(f"v_readfirstlane_b32 s73, v{vt+1}"); a("s_nop 1")
        a("s_cmp_lg_u32 s73, 0"); a(f"s_cbranch_scc1 {l1}")
        a("s_sub_u32 s94, s94, 1"); a(f"s_cbranch_scc0 {l0}")
        s.label(l1)
    def write_flag(s, vt, sreg):
        s.a(f"v_mov_b32 v{vt}, s72"); s.a(f"v_mov_b32 v{vt+1}, s73"); s.a(f"v_mov_b32 v{vt+2}, 0")
        s.a("s_mov_b64 exec, 1")
        s.vmem("flag", f"buffer_store_dwordx2 v[{vt}:{vt+1}], v{vt+2}, s[44:47], s{sreg} offen sc1")
        s.a("s_mov_b64 exec, -1")
    def h_own(s, syreg):
        a = s.a
        a("s_lshl_b32 s76, s14, 2"); a(f"s_add_u32 s76, s76, s{syreg}"); a("s_lshl_b32 s76, s76, 12")
        for i in range(4):
            s.vmem("h", f"buffer_load_dwordx4 v[{164+4*i}:{167+4*i}], v12, s[60:63], s76 offen offset:{i*1024} {s.nt}")
    def tile_loads(s, base, reg):
        a = s.a
        for i in range(3):
            a(f"s_add_u32 s74, s88, {base + i*8*TS}")
            if i == 2: a("s_mov_b32 exec_hi, 0")
            a(f"buffer_load_dwordx4 v[{reg+4*i}:{reg+4*i+3}], v77, s[44:47], s74 offen sc1")
            if i == 2: a("s_mov_b64 exec, -1")
    def ap_addr(s):
        a = s.a
        a("v_sub_u32 v78, 63, v1"); a("v_lshlrev_b32 v78, 2, v78")
        a("s_mul_i32 s87, s10, 80"); a("s_mul_i32 s88, s83, 20"); a("s_add_u32 s87, s87, s88")
        a(f"s_mul_i32 s88, s87, {TS}"); a("s_lshl_b32 s75, s9, 7"); a("s_sub_u32 s88, s88, s75"); a("s_add_u32 s88, s88, 3968")
        a("v_lshrrev_b32 v77, 3, v1"); a(f"v_mul_u32_u24 v77, {TS}, v77"); a("v_and_b32 v79, 7, v1"); a("v_lshl_add_u32 v77, v79, 4, v77")
    def ap_loads(s):
        a = s.a
        a("s_lshl_b32 s74, s9, 8"); a(f"s_add_u32 s74, s74, {WS_G}")
        a("buffer_load_dword v76, v78, s[44:47], s74 offen sc1")
        s.tile_loads(WS_KT, 64)
    def kwait(s):
        if not s.opt.get("stamps") and s.opt.get("early", 1):
            s.a("s_waitcnt lgkmcnt(0)")
            s.srd(44, 42, 0x10000000)
    def lds_set(s, vt, addr_sreg_or_const, val):
        s.a(f"v_mov_b32 v{vt}, {addr_sreg_or_const}"); s.a(f"v_mov_b32 v{vt+1}, {val}"); s.a(f"ds_write_b32 v{vt}, v{vt+1}")

    def prologue(s):
        a = s.a
        a("s_cmp_ge_u32 s2, 256"); a("s_cbranch_scc1 L_end")
        a("s_load_dwordx16 s[16:31], s[0:1], 0")
        a("s_load_dwordx8 s[32:39], s[0:1], 64")
        a("s_load_dwordx4 s[40:43], s[0:1], 96")
        a("v_lshrrev_b32 v2, 6, v0")
        a("v_and_b32 v1, 63, v0")
        a("v_readfirstlane_b32 s3, v2")
        a("s_and_b32 s4, s2, 7"); a("s_lshr_b32 s5, s2, 3")
        a("s_lshr_b32 s6, s4, 2"); a("s_lshl_b32 s6, s6, 3"); a("s_and_b32 s11, s5, 7"); a("s_add_u32 s6, s6, s11")
        a("s_and_b32 s7, s4, 3"); a("s_lshl_b32 s7, s7, 2"); a("s_lshr_b32 s12, s5, 3"); a("s_add_u32 s7, s7, s12")
        a("s_lshl_b32 s8, s12, 1"); a("s_add_u32 s8, s8, s11"); a("s_and_b32 s8, s8, 7")
        if s.opt.get("g2map", 1):
            a("s_lshr_b32 s9, s4, 1"); a("s_lshl_b32 s9, s9, 3"); a("s_add_u32 s9, s9, s11")
            a("s_and_b32 s10, s4, 1"); a("s_lshl_b32 s10, s10, 2"); a("s_add_u32 s10, s10, s12")
        else:
            a("s_lshl_b32 s9, s4, 2"); a("s_and_b32 s13, s5, 3"); a("s_add_u32 s9, s9, s13"); a("s_lshr_b32 s10, s5, 2")
        if s.opt.get("cmap", 0):
            a("s_mul_i32 s14, s5, 5"); a("s_add_u32 s14, s14, s4"); a("s_cmp_lt_u32 s4, 5"); a("s_cselect_b32 s14, s14, 255")
        else: a("s_mov_b32 s14, s2")
        if s.opt.get("stamps"): a("v_mov_b32 v11, 0")
        a("v_lshlrev_b32 v12, 4, v1")
        if s.opt.get("stamps") or not s.opt.get("early", 1):
            a("s_waitcnt lgkmcnt(0)")
            s.srd(44, 42, 0x10000000)
        s.stamp(0)
        if s.opt.get("stamps"):
            a("s_memrealtime s[96:97]"); a("s_waitcnt lgkmcnt(0)"); a("v_writelane_b32 v11, s96, 62")
        a("s_cmp_lt_u32 s3, 4"); a("s_cbranch_scc1 L_X")
        a("s_cmp_ge_u32 s3, 6"); a("s_cbranch_scc1 L_C")

    def loader(s):
        a = s.a; s.vm_reset()
        s.label("L_L")
        a(f"s_setprio {s.opt.get('lprio', 3)}")
        a("s_sub_u32 s74, s3, 4")
        a("v_lshrrev_b32 v4, 2, v1"); a("v_mul_u32_u24 v2, 3072, v4")
        a("v_and_b32 v5, 3, v1")
        if s.m16: a("v_lshrrev_b32 v6, 5, v1"); a("v_lshlrev_b32 v6, 1, v6"); a("v_xor_b32 v6, v6, v5")
        else: a("s_lshl_b32 s75, s74, 1"); a("v_xor_b32 v6, s75, v5")
        a("v_lshl_add_u32 v2, v6, 4, v2")
        a("s_mul_i32 s75, s7, 192"); a("v_add_u32 v2, s75, v2")
        a("v_mul_u32_u24 v3, 1280, v4")
        if s.m16:
            a("v_lshrrev_b32 v7, 5, v1"); a("v_bfe_u32 v6, v1, 4, 1"); a("v_xor_b32 v6, v6, v7"); a("v_lshl_add_u32 v6, v6, 1, v7"); a("v_xor_b32 v6, v6, v5")
        else:
            a("v_lshrrev_b32 v6, 4, v1"); a("s_lshl_b32 s75, s74, 2"); a("v_add_u32 v6, s75, v6")
            a("v_lshrrev_b32 v7, 1, v6"); a("v_xor_b32 v6, v6, v7"); a("v_and_b32 v6, 3, v6"); a("v_xor_b32 v6, v6, v5")
        a("v_lshl_add_u32 v3, v6, 4, v3")
        a("s_lshl_b32 s75, s6, 3"); a("s_add_u32 s75, s75, s74"); a(f"s_mul_i32 s75, s75, {16*1280}"); a("v_add_u32 v3, s75, v3")
        a("s_lshl_b32 s78, s74, 10")
        a(f"s_mul_i32 s79, s74, 6144"); a(f"s_add_u32 s79, s79, {L_WR}")
        s.kwait()
        s.srd(48, 16, 2621440)
        a("s_cmp_eq_u32 s74, 0")
        a("s_cselect_b32 s52, s30, s32"); a("s_cselect_b32 s53, s31, s33"); a("s_and_b32 s53, s53, 0xffff")
        a("s_mov_b32 s54, 1966080"); a("s_mov_b32 s55, 0x20000")
        groups = s.opt.get("groups", (1,) * 10)
        if s.opt.get("cyc", 1): a("s_mul_i32 s8, s8, 5"); a("s_lshr_b32 s8, s8, 2")
        def dsel(D):
            if s.opt.get("cyc", 1):
                a(f"s_add_u32 s80, s8, {D}"); a("s_cmp_ge_u32 s80, 10"); a("s_cselect_b32 s15, 10, 0"); a("s_sub_u32 s80, s80, s15")
                return
            b = 0
            for g in groups:
                if D < b + g: break
                b += g
            if g == 1: a(f"s_mov_b32 s80, {D}"); return
            assert g in (2, 4, 8)
            src = "s8" if g == 8 else ("s14" if g == 4 else "s15")
            a(f"s_add_u32 s80, {src}, {D - b}"); a(f"s_and_b32 s80, s80, {g - 1}")
            if b: a(f"s_add_u32 s80, s80, {b}")
        def issue_x(D):
            dsel(D); a("s_lshl_b32 s81, s80, 7")
            for gi in range(4):
                for h in range(2):
                    t = 2 * D + h
                    a(f"s_add_u32 m0, s78, {L_XR + (t & 3) * 8192 + gi * 2048}")
                    a(f"s_add_u32 s82, s81, {gi * 32 * 1280 + h * 64}")
                    s.vmem(("x", t), f"buffer_load_dwordx4 v3, s[48:51], s82 offen lds")
        def issue_w(t):
            dsel(t >> 1); a(f"s_mul_i32 s81, s80, {64*3072}")
            for rh in range(2):
                for pc in range(3):
                    a(f"s_add_u32 m0, s79, {(t & 3) * 12288 + pc * 2048 + rh * 1024}")
                    a(f"s_add_u32 s82, s81, {(32 * (t & 1) + 16 * rh) * 3072 + pc * 64}")
                    s.vmem(("w", t), f"buffer_load_dwordx4 v2, s[52:55], s82 offen lds")
        def publish(t):
            s.vm_wait({("x", t), ("w", t), ("x", t | 1)})
            s.stamp(40 + t, 2)
            a("s_barrier")
            s.stamp(16 + t, 2)
        issue_w(0); issue_x(0); issue_w(1)
        a("s_barrier")
        publish(0); publish(1)
        if s.opt.get("lx1", 0):
            issue_x(1)
            a("s_barrier")
            issue_w(2)
        elif s.opt.get("rtouch", 2):
            a("s_barrier")
            issue_x(1); issue_w(2)
        else:
            issue_x(1); issue_w(2)
            a("s_barrier")
        issue_w(3)
        hold = -5
        pend = []
        for n in range(1, 17):
            if n % 2 == 0 and n + 2 < 20: pend.append(lambda n=n: issue_x((n + 2) // 2))
            if n + 3 < 20: pend.append(lambda n=n: issue_w(n + 3))
            if n != hold:
                for f in pend: f()
                pend = []
            if n == s.opt.get("hmid", 7): s.srd(60, 24, 2621440); s.h_own(74)
            hp_ = s.opt.get("hp", 19)
            if s.opt.get("hmid", 7) and hp_ < 17 and n in (hp_, hp_ + 1):
                s.vm_wait({"h"})
                lh_ = s.newlab("L_nh"); a(f"s_cmp_ge_u32 s14, {NCONV}"); a(f"s_cbranch_scc1 {lh_}")
                a("s_mov_b32 s83, s74"); a(f"s_mul_i32 s84, s74, {CV_SZ}"); a(f"s_add_u32 s84, s84, {L_CV}")
                s.h_copies(84, 164, n - hp_); a("s_mov_b32 s74, s83"); s.label(lh_)
            if n < 16: publish(n + 1)
        a("s_mov_b32 s83, s74")
        a("s_branch L_Yt")

    def row_loads(s, srd, nrows, vfirst, vrest, reg, tag, nt):
        a = s.a
        for i in range((nrows + 4) // 5):
            n = min(5, nrows - 5 * i)
            if i == 0 or n < 5: s.ex(12 * n)
            r = reg + 4 * i
            if i == 0: s.vmem(tag, f"buffer_load_dwordx4 v[{r}:{r+3}], v{vfirst}, s[{srd}:{srd+3}], 0 offen {nt}")
            else:
                a(f"s_mov_b32 s77, {6400*(i-1)}")
                s.vmem(tag, f"buffer_load_dwordx4 v[{r}:{r+3}], v{vrest}, s[{srd}:{srd+3}], s77 offen {nt}")
        a("s_mov_b64 exec, -1")
    def dma_rows(s, srd, nrows, vfirst, vrest, ldsbase_s, ldsoff, tag, nt):
        a = s.a
        for i in range((nrows + 4) // 5):
            a(f"s_add_u32 m0, s{ldsbase_s}, {ldsoff + 960*i}")
            n = min(5, nrows - 5 * i)
            if i == 0 or n < 5: s.ex(12 * n)
            if i == 0: s.vmem(tag, f"buffer_load_dwordx4 v{vfirst}, s[{srd}:{srd+3}], 0 offen {nt} lds")
            else:
                a(f"s_mov_b32 s77, {6400*(i-1)}")
                s.vmem(tag, f"buffer_load_dwordx4 v{vrest}, s[{srd}:{srd+3}], s77 offen {nt} lds")
        a("s_mov_b64 exec, -1")
    def img_write(s, sbase, off, n, reg):
        a = s.a
        a(f"v_add_u32 v13, s{sbase}, v12"); s.ex(60)
        for i in range(n): a(f"ds_write_b128 v13, v[{reg+4*i}:{reg+4*i+3}] offset:{off + 960*i}")
        a("s_mov_b64 exec, -1")
    def h_copies(s, sbase, reg, half=None):
        a = s.a
        a(f"v_add_u32 v13, s{sbase}, v12")
        for i in (range(4) if half is None else range(2 * half, 2 * half + 2)):
            r = reg + 4 * i
            if i == 0: a("v_mov_b32 v234, 0")
            else:
                a(f"v_readlane_b32 s74, v{r-1}, 63"); a("s_nop 1"); a("v_mov_b32 v234, s74")
            a("s_nop 1")
            a(f"v_mov_b32_dpp v234, v{r+3} wave_shr:1 row_mask:0xf bank_mask:0xf")
            a(f"ds_write_b128 v13, v[{r}:{r+3}] offset:{CV_B + 64 + i*1024}")
            a(f"v_alignbit_b32 v236, v{r}, v234, 16")
            a(f"v_alignbit_b32 v237, v{r+1}, v{r}, 16")
            a(f"v_alignbit_b32 v238, v{r+2}, v{r+1}, 16")
            a(f"v_alignbit_b32 v239, v{r+3}, v{r+2}, 16")
            a(f"ds_write_b128 v13, v[236:239] offset:{CV_A + 64 + i*1024}")
        if half == 0: return
        a("v_lshrrev_b32 v234, 2, v1"); a("v_and_b32 v235, 1, v234"); a("v_mul_u32_u24 v235, 4160, v235")
        a("v_lshrrev_b32 v234, 1, v234"); a(f"v_mul_u32_u24 v234, {CV_B}, v234"); a("v_add_u32 v235, v235, v234")
        a("v_and_b32 v234, 3, v1"); a("v_lshl_add_u32 v235, v234, 4, v235"); a(f"v_add_u32 v235, s{sbase}, v235")
        for r in range(236, 240): a(f"v_mov_b32 v{r}, 0")
        s.ex(16)
        a("ds_write_b128 v235, v[236:239]")
        a("s_mov_b64 exec, -1")
    def u_addr(s, sbase):
        a = s.a
        def swz(dst, off):
            a(f"v_add_u32 v{dst}, {off}, v12"); a(f"v_lshrrev_b32 v41, 3, v{dst}"); a("v_and_b32 v41, 32, v41"); a(f"v_xor_b32 v{dst}, v{dst}, v41")
            a(f"v_add_u32 v{dst}, s{sbase}, v{dst}"); a(f"v_subrev_u32 v{dst}, 64, v{dst}")
        swz(14, 68); swz(15, 80); swz(40, 72)
        a(f"v_add_u32 v13, s{sbase}, v12")
        for r in range(32, 36): a(f"v_mov_b32 v{r}, 0")
        s.ex(34); a("ds_write_b128 v13, v[32:35] offset:4096")
        s.ex(33); a(f"ds_write_b128 v13, v[32:35] offset:{CV_U1 + 4096 - 8}")
        a("s_mov_b64 exec, 1"); a("ds_write_b128 v13, v[32:35]")
        a("s_mov_b64 exec, -1")
    def u_stage(s, reg, nwait0):
        a = s.a
        for i in range(4):
            a(f"s_waitcnt vmcnt({nwait0 + 3 - i})")
            r = reg + 4 * i
            a(f"ds_write_b64 v40, v[{r}:{r+1}] offset:{CV_U1 + i*1024}")
            a(f"ds_write_b64 v15, v[{r+2}:{r+3}] offset:{CV_U1 + i*1024}")
            a(f"ds_write_b64 v14, v[{r}:{r+1}] offset:{i*1024}") if False else None
            a(f"ds_write_b32 v14, v{r} offset:{i*1024}")
            a(f"ds_write_b64 v14, v[{r+1}:{r+2}] offset:{i*1024 + 4}") if False else None
            a(f"ds_write_b32 v14, v{r+1} offset:{i*1024 + 4}")
            a(f"ds_write_b32 v14, v{r+2} offset:{i*1024 + 8}")
            a(f"ds_write_b32 v15, v{r+3} offset:{i*1024}")

    def chore(s):
        a = s.a; s.vm_reset(); nt = s.nt
        s.label("L_C")
        a(f"s_setprio {s.opt.get('cprio', 2)}")
        a("s_sub_u32 s78, s3, 6")
        a(f"s_mul_i32 s79, s78, {CV_SZ}"); a(f"s_add_u32 s79, s79, {L_CV}")
        a(f"s_add_u32 s84, s79, {2*CV_SZ}")
        a("s_mul_i32 s93, s78, 4800"); a(f"s_add_u32 s93, s93, {L_WDS}")
        a("s_and_b32 s85, s10, 1"); a("s_lshl_b32 s85, s85, 5")
        a("s_mul_i32 s80, s10, 160"); a("s_sub_u32 s80, s80, s85")
        a("s_lshl_b32 s81, s9, 6"); a("s_lshl_b32 s74, s78, 5"); a("s_add_u32 s81, s81, s74")
        a("v_mul_u32_u24 v4, 5462, v1"); a("v_lshrrev_b32 v4, 16, v4")
        a("v_mul_u32_u24 v5, 12, v4"); a("v_sub_u32 v5, v1, v5")
        a("v_mul_u32_u24 v6, 1280, v4"); a("v_lshl_add_u32 v6, v5, 4, v6"); a("v_add_u32 v6, s80, v6")
        a("s_mul_i32 s74, s9, 48"); a("s_mul_i32 s75, s78, 24"); a("s_add_u32 s74, s74, s75"); a("s_mul_i32 s74, s74, 1280")
        a("v_add_u32 v16, s74, v6"); a("v_add_u32 v17, 6400, v16")
        a("s_mul_i32 s74, s81, 1280")
        a("v_add_u32 v20, s74, v6"); a("v_add_u32 v21, 6400, v20")
        a(f"v_subrev_u32 v18, {3*1280}, v20"); a("v_add_u32 v19, 6400, v18")
        s.kwait()
        s.srd(64, 40, 256)
        l = s.newlab("L_noep")
        a("s_cmp_lg_u32 s2, 0"); a(f"s_cbranch_scc1 {l}"); a("s_cmp_lg_u32 s78, 0"); a(f"s_cbranch_scc1 {l}")
        a("s_memrealtime s[74:75]"); a("s_waitcnt lgkmcnt(0)"); a("s_or_b32 s75, s75, 0x40000000")
        a("v_mov_b32 v8, s74"); a("v_mov_b32 v9, s75"); a("v_mov_b32 v10, 0")
        a("s_mov_b64 exec, 1"); a("buffer_store_dwordx2 v[8:9], v10, s[64:67], 0 offen sc1"); a("s_mov_b64 exec, -1")
        s.label(l)
        s.srd(48, 18, 2621440); s.srd(52, 20, 2621440); s.srd(56, 22, 5120); s.srd(60, 24, 2621440)
        s.srd(68, 16, 2621440); s.srd(88, 34, 1966080)
        a("v_mov_b32 v23, 0"); a("v_mov_b32 v37, 1")
        if s.opt.get("ticket", 0):
            lt = s.newlab("L_tk")
            a("s_cmp_eq_u32 s78, 0"); a(f"s_cbranch_scc1 {lt}")
            a("s_mov_b64 exec, 1"); a("buffer_atomic_add v37, v23, s[64:67], 0 offen offset:64 sc0"); a("s_mov_b64 exec, -1")
            s.label(lt)
        elif s.opt.get("cmap", 0):
            a("s_mul_i32 s74, s5, 5"); a("s_add_u32 s74, s74, s4"); a("s_cmp_lt_u32 s4, 5"); a("s_cselect_b32 s74, s74, 255"); a("v_mov_b32 v37, s74")
        else: a("v_mov_b32 v37, s2")
        a("s_barrier")
        s.dma_rows(48, 35, 18, 19, 84, SC_K, "k", nt)
        s.dma_rows(52, 32, 20, 21, 84, SC_V, "k", nt)
        a("s_mul_i32 s75, s10, 640"); a(f"s_add_u32 m0, s84, {SC_SHK}"); s.ex(40)
        s.vmem("k", "buffer_load_dwordx4 v12, s[56:59], s75 offen lds")
        a("s_mov_b64 exec, -1")
        s.vmem("ep", "buffer_load_dwordx2 v[38:39], v23, s[64:67], 0 offen sc1")
        s.stamp(40, 2); a("s_barrier")
        if s.opt.get("rtouch", 2):
            a("s_mov_b32 s76, 0x986431"); a("s_bitcmp1_b32 s11, 0"); a("s_cselect_b32 s76, 0x975420, s76")
            a("v_lshrrev_b32 v240, 4, v1"); a("v_lshlrev_b32 v240, 2, v240"); a("v_lshrrev_b32_e64 v241, v240, s76"); a("v_and_b32 v241, 15, v241")
            a("s_lshr_b32 s76, s76, 16"); a("v_lshrrev_b32_e64 v242, v240, s76"); a("v_and_b32 v242, 15, v242")
            a("v_and_b32 v243, 15, v1"); a("v_mul_u32_u24 v243, 1280, v243")
            a("v_lshl_add_u32 v241, v241, 7, v243"); a("v_lshl_add_u32 v242, v242, 7, v243")
            a("s_lshl_b32 s76, s6, 3"); a("s_lshl_b32 s77, s12, 1"); a("s_add_u32 s76, s76, s77"); a("s_add_u32 s76, s76, s78"); a(f"s_mul_i32 s98, s76, {16*1280}")
            a("v_bfe_u32 v243, v1, 4, 1"); a(f"v_mul_u32_u24 v243, {5*64*3072}, v243"); a("v_bfe_u32 v244, v1, 1, 3"); a("v_mul_u32_u24 v244, 3072, v244"); a("v_add_u32 v243, v243, v244")
            a("v_and_b32 v244, 1, v1"); a("v_lshl_add_u32 v243, v244, 7, v243")
            a("s_mul_i32 s76, s7, 192"); a("s_and_b32 s76, s76, 0xffffff80"); a(f"s_mul_i32 s77, s11, {8*3072}"); a("s_add_u32 s76, s76, s77"); a(f"s_add_u32 s99, s76, {4*64*3072}")
            a("s_cmp_eq_u32 s78, 0")
            a("s_cselect_b32 s48, s30, s32"); a("s_cselect_b32 s49, s31, s33"); a("s_and_b32 s49, s49, 0xffff"); a("s_mov_b32 s50, 1966080"); a("s_mov_b32 s51, 0x20000")
        s.stamp(41, 2); a("s_barrier")
        if s.opt.get("rtouch", 2):
            a("s_mov_b32 exec_hi, 0")
            s.vmem("t", "buffer_load_dword v250, v243, s[48:51], s99 offen")
            if s.opt.get("rtouch", 2) == 1:
                s.vmem("t", "buffer_load_dword v251, v242, s[68:71], s98 offen")
                a("s_mov_b64 exec, -1")
                s.vmem("t", "buffer_load_dword v252, v241, s[68:71], s98 offen")
            a("s_mov_b64 exec, -1")
        if not s.opt.get("wdlate", 0): s.dma_rows(88, 24, 16, 17, 93, 0, "wd", nt)
        if s.opt.get("tlb", 0):
            def tlbt():
                l1 = s.newlab("L_t1"); l2 = s.newlab("L_t2")
                a("s_cmp_eq_u32 s78, 1"); a(f"s_cbranch_scc1 {l1}")
                a(f"s_mov_b32 s76, {HBS}"); a("v_mul_lo_u32 v253, v1, s76"); a(f"s_mov_b32 s76, {WS_HB + HBS - 128}")
                s.ex(32); a("buffer_load_dword v254, v253, s[44:47], s76 offen")
                a(f"s_mov_b32 s76, {WBS}"); a("v_mul_lo_u32 v253, v1, s76"); a(f"s_mov_b32 s76, {WS_WB + WBS - 128}")
                s.ex(8); a("buffer_load_dword v254, v253, s[44:47], s76 offen")
                a(f"s_mov_b32 s76, {64*TS}"); a("s_mov_b64 exec, -1"); a("v_mul_lo_u32 v253, v1, s76"); a(f"s_mov_b32 s76, {WS_KT + 4096}")
                s.ex(10); a("buffer_load_dword v254, v253, s[44:47], s76 offen")
                a(f"s_branch {l2}")
                s.label(l1)
                a(f"s_mov_b32 s76, {64*TS}"); a("v_mul_lo_u32 v253, v1, s76"); a(f"s_mov_b32 s76, {WS_YT + 4096}")
                s.ex(10); a("buffer_load_dword v254, v253, s[44:47], s76 offen")
                a("v_lshlrev_b32 v253, 18, v1")
                a("buffer_load_dword v254, v253, s[60:63], 0 offen")
                a("s_mov_b32 s48, s38"); a("s_and_b32 s49, s39, 0xffff"); a("s_mov_b32 s50, 2621440"); a("s_mov_b32 s51, 0x20000")
                a("buffer_load_dword v254, v253, s[48:51], 0 offen")
                s.label(l2)
                a("s_mov_b64 exec, -1")
                for _ in range(3): s.vm.append("t")
            tlbt()
        if s.opt.get("htouch", 0):
            a("s_lshl_b32 s76, s2, 1"); a("s_add_u32 s76, s76, s78"); a("s_mul_i32 s76, s76, 5120"); a("v_lshlrev_b32 v253, 7, v1")
            s.ex(40); s.vmem("t", "buffer_load_dword v254, v253, s[60:63], s76 offen"); a("s_mov_b64 exec, -1")
        a("s_lshr_b32 s74, s85, 4"); a("v_subrev_u32 v7, s74, v5")
        a("v_cmp_gt_u32 s[86:87], 10, v7"); a("v_cmp_gt_u32 vcc, 60, v1"); a("s_and_b64 s[86:87], s[86:87], vcc")
        a("v_mul_u32_u24 v22, 160, v4"); a("v_lshl_add_u32 v22, v7, 4, v22")
        a(f"s_mul_i32 s76, s78, 5120"); a(f"s_add_u32 s76, s76, {L_QT}"); a("v_add_u32 v22, s76, v22")
        a("s_lshl_b32 s75, s9, 6"); a("s_lshl_b32 s76, s10, 3"); a("s_add_u32 s75, s75, s76"); a("s_lshl_b32 s76, s78, 2"); a("s_add_u32 s82, s75, s76")
        a("v_lshrrev_b32 v14, 4, v1"); a("v_mul_u32_u24 v14, 1280, v14"); a("v_and_b32 v15, 15, v1"); a("v_lshlrev_b32 v15, 4, v15"); a("v_add_u32 v14, v14, v15")
        a("v_and_b32 v240, 15, v1"); a("v_lshrrev_b32 v241, 4, v1")
        a("v_lshrrev_b32 v242, 2, v240"); a("v_mul_u32_u24 v242, 192, v242"); a("v_and_b32 v243, 3, v240"); a("v_lshl_add_u32 v242, v243, 3, v242")
        a(f"v_add_u32 v242, s93, v242"); a("v_add_u32 v242, s85, v242")
        a("s_mul_i32 s74, s9, 6"); a("s_mul_i32 s75, s78, 3"); a("s_add_u32 s74, s74, s75")
        for p in range(4):
            a(f"v_add_u32 v243, {4*p}, v241"); a("v_mul_u32_u24 v244, 52, v243"); a("v_lshrrev_b32 v244, 8, v244")
            a("v_mul_u32_u24 v245, 5, v244"); a("v_sub_u32 v245, v243, v245")
            a(f"v_mul_u32_u24 v{24+p}, 1536, v244"); a(f"v_lshl_add_u32 v{24+p}, v245, 5, v{24+p}"); a(f"v_add_u32 v{24+p}, v{24+p}, v242")
            a("v_add_u32 v244, s74, v244"); a("v_lshrrev_b32 v247, 2, v244"); a(f"v_mul_u32_u24 v{28+p}, 5120, v247")
            a("v_and_b32 v244, 3, v244"); a(f"v_lshl_add_u32 v{28+p}, v244, 8, v{28+p}"); a(f"v_lshl_add_u32 v{28+p}, v245, 10, v{28+p}")
            a(f"v_lshl_add_u32 v{28+p}, v240, 4, v{28+p}")
        a("v_lshrrev_b32 v6, 3, v1"); a("v_and_b32 v7, 7, v1"); a("s_mul_i32 s74, s78, 40"); a("v_add_u32 v6, s74, v6")
        for i in range(5):
            a(f"v_add_u32 v8, {8*i}, v6"); a("v_mul_u32_u24 v9, 3277, v8"); a("v_lshrrev_b32 v9, 16, v9")
            a("v_mul_u32_u24 v10, 20, v9"); a("v_sub_u32 v8, v8, v10")
            a("v_lshl_add_u32 v9, v8, 2, v9"); a("v_xor_b32 v8, v8, v7"); a("v_and_b32 v8, 7, v8"); a("v_lshlrev_b32 v8, 4, v8")
            a(f"v_mul_u32_u24 v9, {TS}, v9"); a(f"v_add_u32 v{32+i}, v9, v8")
        a("v_mov_b32 v23, 0")
        sched = {t: [] for t in range(21)}
        dl = s.opt.get("dl", 3)
        def rowl(srd, nrows, vfirst, vrest, reg, tag, ntf):
            out = []
            for i in range((nrows + 4) // 5):
                def f(i=i):
                    n = min(5, nrows - 5 * i); r = reg + 4 * i
                    s.ex(12 * n)
                    if i == 0: s.vmem(tag, f"buffer_load_dwordx4 v[{r}:{r+3}], v{vfirst}, s[{srd}:{srd+3}], 0 offen {ntf}")
                    else:
                        a(f"s_mov_b32 s77, {6400*(i-1)}")
                        s.vmem(tag, f"buffer_load_dwordx4 v[{r}:{r+3}], v{vrest}, s[{srd}:{srd+3}], s77 offen {ntf}")
                    a("s_mov_b64 exec, -1")
                out.append(f)
            return out
        Lk = rowl(48, 35, 18, 19, 40, "k", nt); Lv = rowl(52, 32, 20, 21, 68, "v", nt); Lw = rowl(88, 24, 16, 17, 96, "wd", nt)
        Lq = rowl(68, 32, 20, 21, 196, "q", "")
        def lshk():
            a("s_mul_i32 s75, s10, 640"); s.ex(40)
            s.vmem("v", "buffer_load_dwordx4 v[116:119], v12, s[56:59], s75 offen")
            a("s_mov_b64 exec, -1")
        def lgx(i):
            a("s_mul_i32 s75, s82, 1280")
            s.vmem("gx", f"buffer_load_dwordx4 v[{124+4*i}:{127+4*i}], v14, s[68:71], s75 offen offset:{i*256}")
        def lgw():
            s.srd(56, 36, 1280)
            for i in range(5):
                s.vmem("gx", f"buffer_load_dwordx4 v[{144+4*i}:{147+4*i}], v15, s[56:59], 0 offen offset:{i*256}")
        def lh(i):
            a("s_lshl_b32 s74, s14, 2"); a(f"s_add_u32 s74, s74, {2*(i//4)}"); a("s_add_u32 s74, s74, s78"); a("s_lshl_b32 s74, s74, 12")
            s.vmem("h", f"buffer_load_dwordx4 v[{164+4*i}:{167+4*i}], v12, s[60:63], s74 offen offset:{(i&3)*1024} {nt}")
        def two(f, g): return lambda: (f(), g())
        cold = Lk + [two(Lv[0], lshk)] + Lv[1:] + Lw
        def w1(): s.vm_wait({"k"}); s.stamp(2); s.img_write(84, SC_K, 7, 40)
        def w2():
            s.vm_wait({"v"}); s.img_write(84, SC_V, 7, 68)
            s.ex(40); a(f"ds_write_b128 v13, v[116:119] offset:{SC_SHK}"); a("s_mov_b64 exec, -1")
        def w3(): s.vm_wait({"wd"}); s.img_write(93, 0, 5, 96); a("s_waitcnt lgkmcnt(0)")
        def wd(part=0):
            for p in range(4 if part != 2 else 0):
                a(f"ds_read_b64_tr_b16 v[{96+4*p}:{97+4*p}], v{24+p}")
                a(f"ds_read_b64_tr_b16 v[{98+4*p}:{99+4*p}], v{24+p} offset:768")
            if part == 1: return
            a(f"s_mul_i32 s74, s10, {WBS}"); a(f"s_add_u32 s74, s74, {WS_WB}")
            a("s_waitcnt lgkmcnt(0)")
            for p in range(4):
                if p == 3: s.ex(48)
                s.vmem("st", f"buffer_store_dwordx4 v[{96+4*p}:{99+4*p}], v{28+p}, s[44:47], s74 offen sc1")
            a("s_mov_b64 exec, -1")
        def epoch():
            s.vm_wait({"ep"})
            l0 = s.newlab("L_ep"); l1_ = s.newlab("L_epd")
            a(f"s_mov_b32 s94, {SPIN_MAX}")
            s.label(l0)
            a("v_readfirstlane_b32 s72, v38"); a("v_readfirstlane_b32 s73, v39"); a("s_nop 1")
            a("s_cmp_lg_u32 s73, 0"); a(f"s_cbranch_scc1 {l1_}")
            a("buffer_load_dwordx2 v[38:39], v23, s[64:67], 0 offen sc1")
            a("s_waitcnt vmcnt(0)")
            a("s_sub_u32 s94, s94, 1"); a(f"s_cbranch_scc0 {l0}")
            s.label(l1_)
            a(f"v_mov_b32 v242, {L_EPOCH}"); a("ds_write_b64 v242, v[38:39]")
            lt2 = s.newlab("L_tk")
            a("s_cmp_eq_u32 s78, 0"); a(f"s_cbranch_scc1 {lt2}")
            a("s_mov_b64 exec, 1"); a("ds_write_b32 v242, v37 offset:16"); a("s_mov_b64 exec, -1")
            s.label(lt2)
        def gate():
            s.vm_wait({"gx"})
            a("v_mov_b32 v240, 0"); a("v_mov_b32 v241, 0")
            for i in range(20): a(f"v_dot2_f32_bf16 v{240 + (i & 1)}, v{124+i}, v{144+i}, v{240 + (i & 1)}")
        def gate2():
            a("s_nop 2")
            a("v_add_f32 v240, v240, v241"); a("s_nop 1")
            for ctl in ("quad_perm:[1,0,3,2]", "quad_perm:[2,3,0,1]", "row_half_mirror", "row_mirror"):
                a(f"v_add_f32_dpp v240, v240, v240 {ctl} row_mask:0xf bank_mask:0xf"); a("s_nop 1")
            a("v_cvt_pk_bf16_f32 v240, v240, v240"); a("v_and_b32 v240, 0xffff0000, v240")
            a("v_mul_f32 v240, 0xbfb8aa3b, v240"); a("v_exp_f32 v240, v240"); a("s_nop 0"); a("v_add_f32 v240, 1.0, v240")
            a("v_rcp_f32 v240, v240"); a("s_nop 0")
            a("v_cvt_pk_bf16_f32 v240, v240, v240"); a("v_and_b32 v240, 0xffff0000, v240")
            a("s_lshl_b32 s74, s82, 2"); a(f"s_add_u32 s74, s74, {WS_G}")
            a("v_lshrrev_b32 v241, 4, v1"); a("v_lshlrev_b32 v241, 2, v241")
            a("s_mov_b32 exec_lo, 0x00010001"); a("s_mov_b32 exec_hi, 0x00010001")
            s.vmem("st", "buffer_store_dword v240, v241, s[44:47], s74 offen sc1")
            a("s_mov_b64 exec, -1")
        def qc():
            a("s_mov_b64 exec, s[86:87]")
            for i in range(7):
                if i == 6: a("s_and_b32 exec_lo, exec_lo, 0xffffff"); a("s_mov_b32 exec_hi, 0")
                a(f"ds_write_b128 v22, v[{196+4*i}:{199+4*i}] offset:{800*i}")
            a("s_mov_b64 exec, -1")
        def ktst_rd():
            a("s_mul_i32 s74, s78, 5120"); a(f"s_add_u32 s74, s74, {L_T}"); a("v_add_u32 v13, s74, v12")
            for i in range(5): a(f"ds_read_b128 v[{40+4*i}:{43+4*i}], v13 offset:{i*1024}")
        def ktst_st():
            a(f"s_mul_i32 s74, s10, {80*TS}"); a("s_lshl_b32 s75, s9, 7"); a("s_sub_u32 s74, s74, s75")
            a(f"s_add_u32 s74, s74, {WS_KT + 3968}")
            for i in range(5):
                s.vmem("st", f"buffer_store_dwordx4 v[{40+4*i}:{43+4*i}], v{32+i}, s[44:47], s74 offen sc1")
        def hc(base, reg, half):
            s.vm_wait({"h"})
            l = s.newlab("L_nh"); a(f"s_cmp_ge_u32 s14, {NCONV}"); a(f"s_cbranch_scc1 {l}")
            s.h_copies(base, reg, half); s.label(l)
        def flagsA():
            s.vm_wait({"st"})
            a("s_lshl_b32 s74, s10, 9"); a("s_lshl_b32 s75, s9, 4"); a("s_add_u32 s74, s74, s75"); a("s_lshl_b32 s76, s78, 3"); a("s_add_u32 s74, s74, s76")
            a(f"s_add_u32 s74, s74, {WS_FA}")
            s.write_flag(244, 74)
            s.stamp(5)
        def flagsB():
            lb = s.newlab("L_nb")
            a("s_cmp_lt_u32 s83, 2"); a(f"s_cbranch_scc1 {lb}")
            a("s_waitcnt vmcnt(0)")
            a("s_lshl_b32 s76, s78, 3")
            a("s_lshl_b32 s74, s9, 7"); a("s_lshl_b32 s75, s10, 4"); a("s_add_u32 s74, s74, s75"); a("s_add_u32 s74, s74, s76"); a(f"s_add_u32 s74, s74, {WS_FB}")
            s.write_flag(8, 74)
            s.label(lb)
        KVT = s.kvt
        ge = s.opt.get("gearly", 1)
        if ge == 1:
            for i in range(5): lgx(i)
            lgw()
        he = s.opt.get("hearly", 0)
        if he == 1:
            for i in range(8): lh(i)
        s.vm_wait({"k"}); s.stamp(2)
        a("s_barrier")
        if s.opt.get("wdlate", 0) == 1: s.dma_rows(88, 24, 16, 17, 93, 0, "wd", nt)
        if s.opt.get("wdlate", 0) == 2: sched[2].append(lambda: s.dma_rows(88, 24, 16, 17, 93, 0, "wd", nt))
        if he == 2:
            for i in range(8): lh(i)
        if he:
            for j, (b, r, hf) in enumerate(((79, 164, 0), (79, 164, 1), (84, 180, 0), (84, 180, 1))):
                sched[8 + j].append(lambda b=b, r=r, hf=hf: hc(b, r, hf))
        epoch()
        ts = s.opt.get("ts", 3)
        if s.opt.get("mst", 0):
            sched[ts].append(lambda: (ktst_rd(), s.vm_wait({"wd"}), wd(1)))
            sched[ts + 1].append(lambda: (a("s_waitcnt lgkmcnt(0)"), ktst_st(), wd(2), s.stamp(3)))
        else:
            sched[ts].append(lambda: (ktst_rd(), a("s_waitcnt lgkmcnt(0)"), ktst_st()))
            sched[ts + 1].append(lambda: (s.vm_wait({"wd"}), wd(), s.stamp(3)))
        tf = s.opt.get("tf", 7); sched[tf].append(flagsA)
        tg = s.opt.get("tg", 16)
        if ge:
            if ge == 2: sched[2] += [lambda i=i: lgx(i) for i in range(5)] + [lgw]
            sched[ts + (0 if ge == 2 else -1) + s.opt.get("gd", 0)].append(gate)
            sched[ts + 1 + s.opt.get("gd", 0)].insert(0, gate2)
            def fb_now():
                a("s_lshl_b32 s76, s78, 3")
                a("s_lshl_b32 s74, s9, 7"); a("s_lshl_b32 s75, s10, 4"); a("s_add_u32 s74, s74, s75"); a("s_add_u32 s74, s74, s76"); a(f"s_add_u32 s74, s74, {WS_FB}")
                s.write_flag(248, 74)
            sched[tf].append(fb_now)
            s.flagsB = lambda: None
        else:
            sched[tg - 4] += [lambda i=i: lgx(i) for i in range(5)] + [lgw]
            sched[tg - 1].append(gate); sched[tg].append(gate2)
            s.flagsB = flagsB
        tp = s.opt.get("tp", 13)
        def fa_ld():
            a(f"v_mov_b32 v2, {L_SDONE}"); a("ds_read_b32 v2, v2"); a("s_waitcnt lgkmcnt(0)"); a("v_readfirstlane_b32 s14, v2"); a("s_nop 1")
            a("s_mul_i32 s74, s14, 3277"); a("s_lshr_b32 s74, s74, 16"); a("s_min_u32 s74, s74, 7")
            a("s_cmp_eq_u32 s78, 0"); a("s_cselect_b32 s74, s74, s10"); a("s_lshl_b32 s74, s74, 9"); a(f"s_add_u32 s74, s74, {WS_FA}")
            a("v_lshlrev_b32 v2, 3, v1")
            s.vmem("fa", "buffer_load_dwordx2 v[4:5], v2, s[44:47], s74 offen sc1")
            if s.pre:
                a("v_min_u32 v3, 15, v1"); a("v_lshlrev_b32 v3, 3, v3"); a("s_lshl_b32 s74, s9, 7"); a(f"s_add_u32 s74, s74, {WS_FB}")
                s.vmem("fa", "buffer_load_dwordx2 v[6:7], v3, s[44:47], s74 offen sc1")
        def fa_ck():
            s.vm_wait({"fa"})
            if s.pre:
                a("v_cmp_ne_u64 vcc, s[72:73], v[6:7]"); a("s_nop 1")
                lf2 = s.newlab("L_nf")
                a(f"s_cbranch_vccnz {lf2}")
                s.lds_set(8, L_FBOK, 1)
                s.label(lf2)
            a("v_cmp_ne_u64 vcc, s[72:73], v[4:5]"); a("s_nop 1")
            lf = s.newlab("L_nf")
            a(f"s_cbranch_vccnz {lf}")
            a("s_lshl_b32 s74, s78, 2"); a(f"s_add_u32 s74, s74, {L_QDONE}"); s.lds_set(8, "s74", 1)
            s.label(lf)
        if s.opt.get("hmid", 7): sched[s.opt.get("hmid", 7)].append(lambda: (a("s_add_u32 s83, s78, 2"), s.h_own(83)))
        if s.opt.get("hmid", 7) and s.opt.get("hp", 19) < 17:
            for hf in range(2): sched[s.opt.get("hp") + hf].append(lambda hf=hf: hc(84, 164, hf))
        sched[4].append(lambda: a("s_waitcnt lgkmcnt(0)"))
        sched[tp].append(fa_ld); sched[tp + 2].insert(0, fa_ck); sched[tp + 3].append(lambda: a("s_waitcnt lgkmcnt(0)"))
        tq = s.opt.get("tq", 14)
        sched[tq] += Lq
        if s.opt.get("qearly", 0): sched[tq + 2].append(lambda: (s.vm_wait({"q"}), qc()))
        for t in range(2, 17):
            s.stamp(40 + t, 2)
            a("s_barrier")
            if not s.opt.get("noc"):
                for f in sched[t]: f()
        assert all(not sched[t] for t in range(17, 21))
        s.qc = qc
        a("s_add_u32 s83, s78, 2")

    def ywave(s):
        a = s.a; s.vm_reset()
        s.label("L_Yt")
        a(f"s_mul_i32 s84, s83, {CV_SZ}"); a(f"s_add_u32 s84, s84, {L_CV}"); a(f"s_add_u32 s93, s84, {H_SZ}")
        s.srd(60, 24, 2621440)
        a(f"v_mov_b32 v16, {L_EPOCH}"); a("ds_read_b32 v20, v16 offset:16"); a(f"v_mov_b32 v21, {L_FBOK}"); a("ds_read_b32 v21, v21"); a("ds_read_b128 v[16:19], v16")
        a("v_lshlrev_b32 v2, 3, v1")
        a("s_waitcnt lgkmcnt(0)")
        a("v_readfirstlane_b32 s14, v20"); a("v_readfirstlane_b32 s15, v21")
        a("v_readfirstlane_b32 s72, v16"); a("v_readfirstlane_b32 s73, v17"); a("v_readfirstlane_b32 s99, v18")
        a("s_mul_i32 s98, s14, 3277"); a("s_lshr_b32 s98, s98, 16"); a("s_lshl_b32 s98, s98, 9"); a(f"s_add_u32 s98, s98, {WS_FA}")
        a("s_lshl_b32 s85, s14, 2"); a("s_add_u32 s85, s85, s83"); a("s_lshl_b32 s74, s85, 12")
        a(f"s_mul_i32 s100, s85, {TS}"); a(f"s_add_u32 s100, s100, {WS_KT}")
        a("s_waitcnt vmcnt(20)"); s.stamp(57, 2); a("s_barrier"); s.stamp(33, 2)
        a(f"s_cmp_lt_u32 s14, {NCONV}"); a("s_cselect_b32 s99, s99, 0")
        a("s_cmp_lg_u32 s99, 0"); a("s_cselect_b32 s101, s100, 0x7ff00000")
        a("s_cmp_lg_u32 s99, 0"); a("s_cselect_b32 s75, 0x7ff00000, s98")
        a(f"s_cmp_lt_u32 s14, {NCONV}"); a("s_cselect_b32 s75, s75, 0x7ff00000")
        a("buffer_load_dwordx2 v[4:5], v2, s[44:47], s75 offen sc1")
        nh = 0 if (s.opt.get("hearly", 0) or s.opt.get("hmid", 7)) else 4
        for i in range(nh):
            a(f"buffer_load_dwordx4 v[{164+4*i}:{167+4*i}], v12, s[60:63], s74 offen offset:{i*1024} {'' if s.opt.get('htouch', 0) else s.nt}")
        for i in range(4):
            a(f"buffer_load_dwordx4 v[{48+4*i}:{51+4*i}], v12, s[44:47], s101 offen offset:{i*1024} sc1")
        lq = s.newlab("L_nq")
        a(f"s_waitcnt vmcnt({11 + nh})")
        if not s.opt.get("qearly", 0):
            a("s_cmp_lt_u32 s83, 2"); a(f"s_cbranch_scc1 {lq}")
            a(f"s_waitcnt vmcnt({5 + nh})")
            s.qc()
            s.label(lq)
        hp = s.opt.get("hp", 19) if s.opt.get("hmid", 7) else 0
        def hcp():
            lh_ = s.newlab("L_nh"); a(f"s_cmp_ge_u32 s14, {NCONV}"); a(f"s_cbranch_scc1 {lh_}")
            s.h_copies(84, 164); s.label(lh_)
        s.stamp(58, 2); a("s_barrier"); s.stamp(34, 2)
        if hp == 18: hcp()
        s.u_addr(93)
        a(f"s_waitcnt vmcnt({5 + nh})"); a("s_waitcnt lgkmcnt(0)")
        s.stamp(59, 2); a("s_barrier"); s.stamp(35, 2)
        s.ap_addr()
        s.stamp(1)
        if s.opt.get("g1only"): a("s_branch L_fin2")
        if s.opt.get("noconv"): a("s_branch L_apart")
        lcv = s.newlab("L_cvgo")
        a(f"s_cmp_lt_u32 s14, {NCONV}"); a(f"s_cbranch_scc1 {lcv}")
        s.flagsB()
        a("s_branch L_apart")
        s.label(lcv)
        a(f"s_setprio {s.opt.get('sprio', 1)}")
        lk2 = s.newlab("L_hk")
        a("s_cmp_lg_u32 s99, 0"); a(f"s_cbranch_scc1 {lk2}")
        lk3 = s.newlab("L_hk")
        a(f"s_waitcnt vmcnt({4 + nh})")
        a("v_cmp_ne_u64 vcc, s[72:73], v[4:5]"); a("s_nop 1"); a(f"s_cbranch_vccz {lk3}")
        s.poll(4, 2, "s98")
        s.label(lk3)
        for i in range(4):
            a(f"buffer_load_dwordx4 v[{48+4*i}:{51+4*i}], v12, s[44:47], s100 offen offset:{i*1024} sc1")
        s.label(lk2)
        s.stamp(6)
        if hp == 19: s.h_copies(84, 164)
        if nh:
            a("s_waitcnt vmcnt(4)")
            s.h_copies(84, 164)
        s.u_stage(48, 0)
        s.flagsB()
        if s.pre and not s.opt.get("pit", 0):
            lnp0 = s.newlab("L_np")
            a("s_cmp_lg_u32 s15, 1"); a(f"s_cbranch_scc1 {lnp0}")
            s.ap_loads(); a("s_mov_b32 s15, 2")
            s.label(lnp0)
        s.stamp(7)
        if s.opt.get("sprio", 1) != 1: a("s_setprio 1")
        a("v_add_u32 v13, s93, v12")
        a("v_and_b32 v2, 15, v1"); a("v_lshrrev_b32 v3, 4, v1"); a("v_and_b32 v4, 1, v2"); a("v_lshrrev_b32 v5, 1, v2")
        a(f"v_mul_u32_u24 v6, {CV_B}, v4"); a("v_lshl_add_u32 v6, v3, 4, v6"); a("v_lshl_add_u32 v6, v5, 3, v6"); a("v_add_u32 v6, s84, v6")
        a("v_lshlrev_b32 v7, 4, v3"); a("v_lshlrev_b32 v8, 6, v5"); a("v_sub_u32 v7, v7, v8"); a("v_add_u32 v7, 512, v7")
        a(f"v_mul_u32_u24 v9, {CV_U1}, v4"); a("v_add_u32 v9, s93, v9"); a("v_subrev_u32 v9, 64, v9")
        def baddr():
            a("v_lshrrev_b32 v10, 3, v7"); a("v_and_b32 v10, 32, v10"); a("v_xor_b32 v10, v10, v7"); a("v_add_u32 v10, v10, v9"); a("v_add_u32 v7, 64, v7")
        SA = (96, 160); SB = (128, 192)
        def reads(st, par):
            R = []
            for c in range(8):
                for hh in range(2):
                    R.append(f"ds_read_b64 v[{SA[st]+4*c+2*hh}:{SA[st]+4*c+2*hh+1}], v6 offset:{512*c + 8*hh + 64*par}")
                for hh in range(2):
                    R.append(f"ds_read_b64 v[{SB[st]+4*c+2*hh}:{SB[st]+4*c+2*hh+1}], v10 offset:{512*(7-c) + 8*hh}")
            return R
        def mfmas(st, full=True):
            M = []
            for aa in range(8):
                for c in (range(aa + 1) if full else [aa]):
                    b = aa - c; o = 224 + 4 * aa
                    M.append(f"v_mfma_f32_16x16x32_bf16 v[{o}:{o+3}], v[{SA[st]+4*c}:{SA[st]+4*c+3}], v[{SB[st]+4*b}:{SB[st]+4*b+3}], v[{o}:{o+3}]")
            return M
        def inter(M, R):
            a("s_waitcnt lgkmcnt(12)")
            for mi, m in enumerate(M):
                if mi == 15: a("s_waitcnt lgkmcnt(15)")
                a(m)
                if mi < len(R): a(R[mi])
        baddr()
        a("s_waitcnt lgkmcnt(0)")
        for r in reads(0, 0): a(r)
        for r in range(224, 256): a(f"v_mov_b32 v{r}, 0")
        a("s_mov_b32 s86, 0")
        s.label("L_cv")
        baddr()
        inter(mfmas(0), reads(1, 1))
        a("v_add_u32 v6, 128, v6"); baddr()
        inter(mfmas(1), reads(0, 0))
        a("s_add_u32 s86, s86, 1")
        if s.pre and s.opt.get("pit", 0):
            lnp0 = s.newlab("L_np")
            a(f"s_cmp_lg_u32 s86, {s.opt.get('pit', 0)}"); a(f"s_cbranch_scc1 {lnp0}")
            a("s_cmp_lg_u32 s15, 1"); a(f"s_cbranch_scc1 {lnp0}")
            s.ap_loads(); a("s_mov_b32 s15, 2")
            s.label(lnp0)
        a("s_cmp_lt_u32 s86, 4"); a("s_cbranch_scc1 L_cv")
        a("s_waitcnt lgkmcnt(0)")
        for m in mfmas(0, False): a(m)
        a("v_lshlrev_b32 v8, 4, v3"); a("v_lshl_add_u32 v8, v4, 2, v8"); a("v_lshl_add_u32 v8, v5, 6, v8")
        a(f"v_sub_u32 v8, {CV_U0 + 2*(2046 - 4) - 512}, v8"); a("v_add_u32 v8, s93, v8")
        a("s_nop 4")
        for t in range(8):
            o = 224 + 4 * t
            a(f"v_cvt_pk_bf16_f32 v{16+2*t}, v{o+3}, v{o+2}")
            a(f"v_cvt_pk_bf16_f32 v{17+2*t}, v{o+1}, v{o}")
        for t in range(8):
            off = 128 if t % 2 == 0 else 0
            a(f"ds_write2_b32 v8, v{16+2*t}, v{17+2*t} offset0:{off} offset1:{off+2}")
            if t % 2 == 1 and t < 7: a("v_subrev_u32 v8, 1024, v8")
        a("s_waitcnt lgkmcnt(0)")
        for i in range(4): a(f"ds_read_b128 v[{32+4*i}:{35+4*i}], v13 offset:{CV_U0 + i*1024}")
        a(f"s_mul_i32 s74, s85, {TS}"); a(f"s_add_u32 s74, s74, {WS_YT}")
        for i in range(4):
            a(f"s_waitcnt lgkmcnt({3-i})")
            a(f"buffer_store_dwordx4 v[{32+4*i}:{35+4*i}], v12, s[44:47], s74 offen offset:{i*1024} sc1")
        s.stamp(8)
        a("s_waitcnt vmcnt(0)")
        a("s_lshl_b32 s74, s85, 3"); a(f"s_add_u32 s74, s74, {WS_FY}")
        s.write_flag(48, 74)
        a("s_setprio 0")
        s.label("L_apart")
        a("s_setprio 0")
        if s.opt.get("xh", 1): s.lds_wait(L_XH, 1, 1, 148, slp=2)
        s.stamp(9)
        lpre = s.newlab("L_pre"); lnp = s.newlab("L_np")
        a("s_cmp_eq_u32 s15, 2"); a(f"s_cbranch_scc1 {lpre}")
        a("s_cmp_eq_u32 s15, 1"); a(f"s_cbranch_scc1 {lnp}")
        a("v_min_u32 v2, 15, v1"); a("v_lshlrev_b32 v2, 3, v2")
        a("s_lshl_b32 s74, s9, 7"); a(f"s_add_u32 s74, s74, {WS_FB}")
        s.poll(4, 2, "s74")
        s.label(lnp)
        s.ap_loads()
        a("s_waitcnt vmcnt(0)")
        s.label(lpre)
        a("v_sub_u32 v3, 63, v1")
        tile_loads = s.tile_loads
        a("s_lshl_b32 s74, s87, 1"); a("s_add_u32 s26, s26, s74"); a("s_addc_u32 s27, s27, 0")
        a("s_load_dwordx8 s[48:55], s[26:27], 0"); a("s_load_dwordx2 s[56:57], s[26:27], 32")
        a("v_add_u32 v13, s84, v12")
        a("v_mul_u32_u24 v7, 160, v3"); a("s_mul_i32 s74, s83, 40"); a(f"s_add_u32 s74, s74, {L_QT}"); a("v_add_u32 v7, s74, v7")
        for gq in range(5): a(f"ds_read_b64 v[{80+2*gq}:{81+2*gq}], v7 offset:{8*gq}")
        for i in range(3):
            if i == 2: a("s_mov_b32 exec_hi, 0")
            a(f"ds_write_b128 v13, v[{64+4*i}:{67+4*i}] offset:{i*1024}")
            if i == 2: a("s_mov_b64 exec, -1")
        a("v_and_b32 v8, 15, v1"); a("v_lshrrev_b32 v9, 2, v8"); a("v_lshlrev_b32 v9, 7, v9"); a("v_and_b32 v8, 3, v8"); a("v_lshl_add_u32 v9, v8, 3, v9")
        a("v_lshrrev_b32 v8, 4, v1"); a("v_lshl_add_u32 v9, v8, 5, v9"); a("v_add_u32 v9, s84, v9")
        a(f"v_add_u32 v2, {L_GF}, v78"); a("ds_write_b32 v2, v76")
        a("s_waitcnt lgkmcnt(0)")
        for gq in range(5): a(f"ds_read_b64_tr_b16 v[{150+2*gq}:{151+2*gq}], v9 offset:{512*gq}")
        for gq in range(5):
            for e in range(2):
                r = 96 + 4 * gq + 2 * e
                a(f"v_lshlrev_b32 v{r}, 16, v{80+2*gq+e}"); a(f"v_and_b32 v{r+1}, 0xffff0000, v{80+2*gq+e}")
                a(f"v_mul_f32 v{r}, v{r}, v76"); a(f"v_mul_f32 v{r+1}, v{r+1}, v76")
        a("s_waitcnt lgkmcnt(0)")
        for gq in range(5):
            for e in range(2):
                sd = 48 + 2 * gq + e; r = 120 + 4 * gq + 2 * e
                a(f"s_lshl_b32 s58, s{sd}, 16"); a(f"s_and_b32 s59, s{sd}, 0xffff0000")
                a(f"v_lshlrev_b32 v{r}, 16, v{150+2*gq+e}"); a(f"v_and_b32 v{r+1}, 0xffff0000, v{150+2*gq+e}")
                a(f"v_mul_f32 v{r}, s58, v{r}"); a(f"v_mul_f32 v{r+1}, s59, v{r+1}")
        s.lds_wait(L_XG2, 1, 1, 160, slp=2)
        a("v_min_u32 v2, 19, v1"); a("v_lshlrev_b32 v2, 3, v2")
        a("s_lshl_b32 s74, s87, 3"); a(f"s_add_u32 s74, s74, {WS_FY}")
        if not s.opt.get("noconv"): s.poll(146, 2, "s74", slp=s.opt.get("yslp", 12))
        s.stamp(10)
        if s.opt.get("aprio", 2): a(f"s_setprio {s.opt.get('aprio', 2)}")
        if s.opt.get("xga", -1) >= 0: s.lds_wait(L_XG2, 1, 2, 160, slp=1)
        tile_loads(WS_YT, 16)
        for i in range(3):
            a(f"s_waitcnt vmcnt({2-i})")
            if i == 2: a("s_mov_b32 exec_hi, 0")
            a(f"ds_write_b128 v13, v[{16+4*i}:{19+4*i}] offset:{i*1024}")
            if i == 2: a("s_mov_b64 exec, -1")
        a("s_waitcnt lgkmcnt(0)")
        for gq in range(5): a(f"ds_read_b64_tr_b16 v[{150+2*gq}:{151+2*gq}], v9 offset:{512*gq}")
        for gq in range(5):
            a("s_waitcnt lgkmcnt(4)")
            for e in range(2):
                a(f"v_lshlrev_b32 v144, 16, v{150+2*gq+e}"); a(f"v_and_b32 v145, 0xffff0000, v{150+2*gq+e}")
                a(f"v_add_f32 v144, v144, v{120+4*gq+2*e}"); a(f"v_add_f32 v145, v145, v{121+4*gq+2*e}")
                a(f"v_mul_f32 v144, v144, v{96+4*gq+2*e}"); a(f"v_mul_f32 v145, v145, v{97+4*gq+2*e}")
                a(f"v_cvt_pk_bf16_f32 v{80+2*gq+e}, v144, v145")
            a(f"ds_write_b64 v7, v[{80+2*gq}:{81+2*gq}] offset:{8*gq}")
        s.stamp(11)
        a("s_branch L_final")

    def xwave(s):
        a = s.a; s.vm_reset()
        s.label("L_X")
        a("s_setprio 2")
        a("v_mov_b32 v16, 0"); a("v_mov_b32 v17, 0"); a("v_mov_b32 v18, 0"); a("v_mov_b32 v19, 0")
        a(f"v_add_u32 v20, {L_MISC}, v12")
        a("s_mov_b64 exec, 15"); a("ds_write_b128 v20, v[16:19]"); a("s_mov_b64 exec, -1")
        a("s_lshr_b32 s74, s3, 1"); a("s_and_b32 s75, s3, 1")
        if s.m16:
            a("v_lshrrev_b32 v14, 5, v1")
            a("v_bfe_u32 v13, v1, 3, 1"); a("v_bfe_u32 v15, v1, 2, 1"); a("v_xor_b32 v15, v15, v13"); a("v_lshl_add_u32 v13, v15, 1, v13")
            a("v_lshrrev_b32 v16, 4, v1"); a("v_xor_b32 v13, v13, v16")
            a("v_and_b32 v17, 15, v1"); a("v_lshlrev_b32 v17, 6, v17"); a("s_lshl_b32 s76, s74, 12"); a("v_add_u32 v17, s76, v17"); a("v_lshl_add_u32 v5, v13, 4, v17")
            a("v_bfe_u32 v15, v1, 4, 1")
            a("v_bfe_u32 v17, v1, 2, 2"); a("v_lshl_add_u32 v16, v16, 3, v17"); a("v_lshlrev_b32 v16, 6, v16")
            a("v_and_b32 v17, 3, v1"); a("v_lshl_add_u32 v16, v17, 3, v16"); a(f"v_add_u32 v16, {L_WR}, v16")
        else:
            a("v_and_b32 v20, 31, v1"); a("v_lshrrev_b32 v13, 2, v20"); a("v_lshrrev_b32 v14, 1, v13"); a("v_xor_b32 v13, v13, v14"); a("v_and_b32 v13, 3, v13")
            a("v_lshrrev_b32 v14, 5, v1"); a("v_xor_b32 v15, v14, v13"); a("v_xor_b32 v16, 2, v15")
            a("v_lshlrev_b32 v17, 6, v20"); a("s_lshl_b32 s76, s74, 12"); a("v_add_u32 v17, s76, v17")
            a("v_lshl_add_u32 v5, v15, 4, v17"); a("v_lshl_add_u32 v6, v16, 4, v17")
            a("v_bfe_u32 v15, v1, 4, 1"); a("v_bfe_u32 v16, v1, 2, 2"); a("v_lshl_add_u32 v16, v14, 3, v16"); a("v_lshlrev_b32 v16, 6, v16")
            a("v_mul_u32_u24 v17, 6144, v15"); a("v_add_u32 v16, v16, v17")
            a("v_and_b32 v17, 1, v1"); a("v_lshl_add_u32 v16, v17, 4, v16"); a("v_bfe_u32 v17, v1, 1, 1"); a("v_lshl_add_u32 v16, v17, 3, v16")
            a(f"v_add_u32 v16, {L_WR}, v16")
        a("s_mul_i32 s76, s75, 3")
        for T in range(3):
            a(f"s_add_u32 s77, s76, {T}"); a("s_and_b32 s78, s77, 1"); a("s_lshr_b32 s77, s77, 1"); a("s_lshl_b32 s77, s77, 11")
            a("v_xor_b32 v17, s78, v15"); a(f"v_lshl_add_u32 v{2+T}, v17, 5, v16"); a(f"v_add_u32 v{2+T}, s77, v{2+T}")
        a("v_mov_b32 v7, v12"); a("v_add_u32 v8, 4096, v7")
        a("v_bfe_u32 v9, v1, 4, 1"); a("v_lshlrev_b32 v9, 10, v9"); a("v_lshl_add_u32 v9, v14, 8, v9"); a("v_and_b32 v17, 15, v1"); a("v_lshl_add_u32 v9, v17, 4, v9")
        for r in range(160, 256): a(f"v_mov_b32 v{r}, 0")
        touch = s.opt.get("touch", 0)
        if touch:
            lw = s.newlab("L_tw"); le = s.newlab("L_te")
            a("s_cmp_ge_u32 s3, 2"); a(f"s_cbranch_scc1 {lw}")
            s.srd(48, 16, 2621440)
            a("s_lshr_b32 s76, s4, 2"); a("s_lshl_b32 s76, s76, 6"); a("s_lshl_b32 s77, s5, 1"); a("s_add_u32 s76, s76, s77"); a("s_add_u32 s76, s76, s3")
            a(f"s_mul_i32 s98, s76, {16*1280}")
            a("v_and_b32 v92, 15, v1"); a("v_mul_u32_u24 v92, 1280, v92"); a("v_bfe_u32 v93, v1, 4, 1"); a("v_lshl_add_u32 v92, v93, 7, v92")
            a("s_mov_b32 s99, 256"); a("s_mov_b32 s100, -1")
            a(f"s_branch {le}")
            s.label(lw)
            a("s_cmp_eq_u32 s3, 2")
            a("s_cselect_b32 s48, s30, s32"); a("s_cselect_b32 s49, s31, s33"); a("s_and_b32 s49, s49, 0xffff")
            a("s_mov_b32 s50, 1966080"); a("s_mov_b32 s51, 0x20000")
            a("v_mul_u32_u24 v93, 5462, v1"); a("v_lshrrev_b32 v93, 16, v93"); a("v_mul_u32_u24 v94, 12, v93"); a("v_sub_u32 v94, v1, v94")
            a("v_cmp_lt_u32 vcc, 5, v94"); a(f"v_mul_u32_u24 v92, {64*3072}, v93"); a(f"v_mov_b32 v95, {3072 - 768}"); a("v_cndmask_b32 v95, 0, v95, vcc")
            a("v_lshl_add_u32 v92, v94, 7, v92"); a("v_add_u32 v92, v92, v95")
            a("s_and_b32 s76, s4, 3"); a("s_mul_i32 s76, s76, 768"); a(f"s_mul_i32 s77, s5, {2*3072}"); a("s_add_u32 s98, s76, s77")
            a(f"s_mov_b32 s99, {2*64*3072}"); a("s_mov_b32 s100, 0xffffff")
            s.label(le)
        def do_touch():
            a("s_mov_b32 exec_lo, s100"); a("s_mov_b32 exec_hi, 0")
            a("buffer_load_dword v93, v92, s[48:51], s98 offen")
            a("s_mov_b64 exec, -1"); a("s_add_u32 s98, s98, s99")
        tpre = s.opt.get("tpre", 2)
        if touch:
            for _ in range(tpre if touch == 2 else 5): do_touch()
        SB = (12, 52)
        def reads(st, slot):
            R = []
            if s.m16:
                W = [f"ds_read_b64_tr_b16 v[{SB[st]+8*T+4*u+2*hh}:{SB[st]+8*T+4*u+2*hh+1}], v{2+T} offset:{slot*12288 + u*6144 + hh*256}" for T in range(3) for u in range(2) for hh in range(2)]
                X = [f"ds_read_b128 v[{SB[st]+24+4*nt}:{SB[st]+24+4*nt+3}], v5 offset:{slot*8192 + nt*1024}" for nt in range(4)]
                return [X[0], W[0], W[1], X[1], X[2], X[3]] + W[2:]
            for sub in range(2):
                W = []
                for T in range(3):
                    for hh in range(2):
                        r = SB[st] + 12 * sub + 4 * T + 2 * hh
                        W.append(f"ds_read_b64_tr_b16 v[{r}:{r+1}], v{2+T} offset:{slot*12288 + sub*1024 + hh*256}")
                X = [f"ds_read_b128 v[{SB[st]+24+8*sub+4*nt}:{SB[st]+24+8*sub+4*nt+3}], v{5+sub} offset:{slot*8192 + nt*2048}" for nt in range(2)]
                R += [X[0], W[0], W[1], X[1], W[2], W[3], W[4], W[5]]
            return R
        def mfmas(st):
            M = []
            if s.m16:
                seq = [(T, u, nt) for T in range(3) for u in range(2) for nt in range(4)]
                mo = s.opt.get("mord", 0)
                if mo == 1: seq = [(T, u, nt) for nt in range(4) for T in range(3) for u in range(2)]
                if mo == 2: seq = [(T, u, nt if (2 * T + u) % 2 == 0 else 3 - nt) for T in range(3) for u in range(2) for nt in range(4)]
                for (T, u, nt) in seq:
                    if True:
                        if True:
                            o = 160 + 16 * (2 * T + nt // 2) + 8 * u + 4 * (nt & 1); w = SB[st] + 8 * T + 4 * u; x = SB[st] + 24 + 4 * nt
                            M.append(f"v_mfma_f32_16x16x32_bf16 v[{o}:{o+3}], v[{w}:{w+3}], v[{x}:{x+3}], v[{o}:{o+3}]")
                return M
            for sub in range(2):
                for T in range(3):
                    for nt in range(2):
                        o = 160 + 16 * (2 * T + nt); w = SB[st] + 12 * sub + 4 * T; x = SB[st] + 24 + 8 * sub + 4 * nt
                        M.append(f"v_mfma_f32_32x32x16_bf16 v[{o}:{o+15}], v[{w}:{w+3}], v[{x}:{x+3}], v[{o}:{o+15}]")
            return M
        a("s_mov_b32 s86, 0")
        a("s_waitcnt lgkmcnt(0)")
        s.kwait()
        if s.opt.get("ctouch", 1):
            lct = s.newlab("L_ct")
            a("s_cmp_lg_u32 s3, 1"); a(f"s_cbranch_scc1 {lct}")
            a("s_getpc_b64 s[76:77]")
            s.label("L_pc")
            a(f"s_sub_u32 s76, s76, L_pc-{KN}"); a("s_subb_u32 s77, s77, 0")
            a("s_mul_i32 s78, s5, 7"); a("v_add_u32 v50, s78, v1"); a("v_lshlrev_b32 v50, 7, v50"); a(f"v_min_u32 v50, L_codeend-{KN}-4, v50")
            a("s_mov_b64 exec, 0x7f"); a("global_load_dword v51, v50, s[76:77]"); a("s_mov_b64 exec, -1")
            s.label(lct)
        a("s_barrier")
        s.kv_pre()
        a("s_waitcnt vmcnt(0)")
        a("s_barrier")
        for r in reads(0, 0): a(r)
        a("s_waitcnt lgkmcnt(0)")
        s.label("L_g1")
        for slot in range(4):
            M = mfmas(slot & 1); R = reads((slot + 1) & 1, (slot + 1) & 3)
            if s.opt.get("stamps", 0) == 2:
                a("s_memtime s[96:97]"); a(f"s_add_u32 m0, s86, {41 + slot}"); a("s_waitcnt lgkmcnt(0)"); a("v_writelane_b32 v11, s96, m0")
            a(M[0])
            if s.m16: a(M[1])
            if slot == 3:
                lnb = s.newlab("L_nb"); a("s_cmp_eq_u32 s86, 16"); a(f"s_cbranch_scc1 {lnb}"); a("s_barrier"); s.label(lnb)
            else: a("s_barrier")
            if s.m16:
                rp = s.opt.get("rp", 1)
                ri = 0; mi = 2
                while ri < 16:
                    for _ in range(2 if (rp == 2 and mi % 2 == 0) else 1):
                        if ri < 16: a(R[ri]); ri += 1
                    a(M[mi]); mi += 1
                M = M[:6] + M[mi:]
            else:
                for i in range(5):
                    for r in R[3 * i:3 * i + 3]: a(r)
                    a(M[1 + i])
                a(R[15])
            if touch == 2 and slot == s.opt.get("tslot", 0):
                lt = s.newlab("L_nt")
                a(f"s_cmp_ge_u32 s86, {4 * (5 - tpre)}"); a(f"s_cbranch_scc1 {lt}"); do_touch(); s.label(lt)
            for m in M[6:]: a(m)
            a("s_waitcnt lgkmcnt(0)")
            if slot == 0:
                a("s_cmp_eq_u32 s86, 0"); a("s_cbranch_scc1 L_kv")
                s.label("L_kvret")
        a("s_add_u32 s86, s86, 4")
        a("s_cmp_lt_u32 s86, 20"); a("s_cbranch_scc1 L_g1")
        s.stamp(1)
        if s.opt.get("g1only"): a("s_branch L_fin2")
        if s.opt.get("xidle"): s.lds_set(2, L_XG2, 1); a("s_branch L_final")
        a(f"v_mov_b32 v116, {L_EPOCH}"); a("v_mov_b32 v117, 1"); a("s_mov_b64 exec, 1"); a(f"ds_add_u32 v116, v117 offset:{L_XCNT - L_EPOCH}"); a("s_mov_b64 exec, -1")
        a("ds_read_b128 v[116:119], v116"); a("s_waitcnt lgkmcnt(0)")
        a("v_readfirstlane_b32 s72, v116"); a("v_readfirstlane_b32 s73, v117"); a("v_readfirstlane_b32 s76, v119"); a("s_nop 1")
        lfa = s.newlab("L_faok")
        a("s_cmp_lg_u32 s76, 0"); a(f"s_cbranch_scc1 {lfa}")
        a("v_lshlrev_b32 v114, 3, v1")
        a("s_lshl_b32 s76, s10, 9"); a(f"s_add_u32 s76, s76, {WS_FA}")
        s.poll(112, 114, "s76")
        s.label(lfa)
        s.stamp(2)
        if s.opt.get("g2map", 1): a("s_mul_i32 s78, s11, 3"); a("s_lshr_b32 s78, s78, 1"); a("s_mul_i32 s79, s12, 3"); a("s_add_u32 s78, s78, s79")
        else: a("s_mul_i32 s78, s10, 3"); a("s_lshr_b32 s78, s78, 1"); a("s_mul_i32 s79, s13, 3"); a("s_add_u32 s78, s78, s79")
        a("s_cmp_ge_u32 s78, 12"); a("s_cselect_b32 s79, 12, 0"); a("s_sub_u32 s78, s78, s79")
        if s.opt.get("g2rot") == 0: a("s_mov_b32 s78, 0")
        a("s_mul_i32 s79, s3, 12")
        a(f"s_mul_i32 s80, s10, {WBS}"); a(f"s_add_u32 s80, s80, {WS_WB}")
        a(f"s_mul_i32 s81, s9, {HBS}"); a(f"s_add_u32 s81, s81, {WS_HB}")
        a("s_mul_i32 s92, s3, 20480")
        PERM = {0: list(range(12)), 1: [0, 1, 3, 6, 9, 2, 4, 7, 10, 5, 8, 11], 2: [0, 3, 6, 9, 1, 4, 7, 10, 2, 5, 8, 11], 3: [0, 1, 2, 3, 6, 9, 4, 7, 10, 5, 8, 11]}[s.opt.get("kperm", 2)]
        L0 = s.opt.get("l0", 5)
        def kt_of(i, dst):
            i = PERM[i]
            a(f"s_add_u32 s{dst}, s78, {i}"); a(f"s_cmp_ge_u32 s{dst}, 12"); a(f"s_cselect_b32 s82, 12, 0"); a(f"s_sub_u32 s{dst}, s{dst}, s82")
            a(f"s_add_u32 s{dst}, s{dst}, s79")
        def wb_loads(i):
            kt_of(i, 83); a("s_mul_i32 s83, s83, 5120"); a("s_add_u32 s83, s83, s80")
            r = 12 + 20 * (i % 5)
            for dt in range(5):
                if dt < 4: s.vmem(("wb", i), f"buffer_load_dwordx4 v[{r+4*dt}:{r+4*dt+3}], v7, s[44:47], s83 offen offset:{dt*1024} sc1")
                else: s.vmem(("wb", i), f"buffer_load_dwordx4 v[{r+4*dt}:{r+4*dt+3}], v8, s[44:47], s83 offen sc1")
        def wb_dma(i):
            kt_of(i, 83); a("s_mul_i32 s83, s83, 5120"); a("s_add_u32 s83, s83, s80")
            a(f"s_add_u32 m0, s92, {(i - L0) * 5120}"); a("s_nop 0")
            for dt in range(4):
                s.vmem(("wd", i), f"buffer_load_dwordx4 v7, s[44:47], s83 offen offset:{dt*1024} sc1 lds")
            a(f"s_add_u32 m0, s92, {(i - L0) * 5120 + 4096}"); a("s_nop 0")
            s.vmem(("wd", i), f"buffer_load_dwordx4 v8, s[44:47], s83 offen sc1 lds")
        def wb_lds(i):
            r = 12 + 20 * (i % 5)
            for dt in range(5): a(f"ds_read_b128 v[{r+4*dt}:{r+4*dt+3}], v10 offset:{(i - L0) * 5120 + dt*1024}")
        def hb_loads(i):
            kt_of(i, 83); a("s_lshl_b32 s83, s83, 12"); a("s_add_u32 s83, s83, s81")
            r = 112 + 16 * (i % 4)
            for sb in range(4):
                s.vmem(("hb", i), f"buffer_load_dwordx4 v[{r+4*sb}:{r+4*sb+3}], v7, s[44:47], s83 offen offset:{sb*1024} {s.opt.get('hsc', 'sc1')}")
        wq = [(i, dt) for i in range(5) for dt in range(5)]
        def wb_some(n):
            for _ in range(n):
                if not wq: return
                i, dt = wq.pop(0)
                if dt == 0: kt_of(i, 98); a("s_mul_i32 s98, s98, 5120"); a("s_add_u32 s98, s98, s80")
                r = 12 + 20 * (i % 5)
                if dt < 4: s.vmem(("wb", i), f"buffer_load_dwordx4 v[{r+4*dt}:{r+4*dt+3}], v7, s[44:47], s98 offen offset:{dt*1024} sc1")
                else: s.vmem(("wb", i), f"buffer_load_dwordx4 v[{r+4*dt}:{r+4*dt+3}], v8, s[44:47], s98 offen sc1")
        wpt = s.opt.get("wpt", 1)
        wb_some(s.opt.get("npre", 0))
        a("s_mov_b32 s84, 0xbfb8aa3b"); a("s_mov_b32 s85, 0xbfb8aa3b")
        a("s_lshl_b32 s87, s6, 1"); a("s_add_u32 s87, s87, s74")
        a(f"s_mul_i32 s88, s87, {HBS}")
        a("s_mul_i32 s89, s7, 6"); a("s_mul_i32 s90, s75, 3"); a("s_add_u32 s89, s89, s90")
        for T in range(3):
            a(f"s_add_u32 s90, s89, {T}"); a("s_and_b32 s91, s90, 1"); a("s_lshr_b32 s90, s90, 1")
            a("s_lshl_b32 s90, s90, 12"); a("s_lshl_b32 s91, s91, 9"); a("s_add_u32 s90, s90, s91"); a("s_add_u32 s90, s90, s88")
            for nt in range(2):
                ti = 2 * T + nt
                o = 160 + 16 * ti; p = 120 + 4 * ti
                if ti < s.opt.get("pkt", 6):
                    for e in range(4): a(f"v_pk_mul_f32 v[{o+2*e}:{o+2*e+1}], v[{o+2*e}:{o+2*e+1}], s[84:85]")
                    for e in range(8): a(f"v_exp_f32 v{o+e}, v{o+e}")
                    for e in range(4): a(f"v_pk_add_f32 v[{o+2*e}:{o+2*e+1}], v[{o+2*e}:{o+2*e+1}], 1.0 op_sel_hi:[1,0]")
                    for e in range(8): a(f"v_rcp_f32 v{o+e}, v{o+e}")
                    for e in range(4): a(f"v_pk_mul_f32 v[{o+2*e}:{o+2*e+1}], v[{o+2*e}:{o+2*e+1}], v[{o+8+2*e}:{o+9+2*e}]")
                else:
                    for e in range(8): a(f"v_mul_f32 v{o+e}, s84, v{o+e}")
                    for e in range(8): a(f"v_exp_f32 v{o+e}, v{o+e}")
                    for e in range(8): a(f"v_add_f32 v{o+e}, 1.0, v{o+e}")
                    for e in range(8): a(f"v_rcp_f32 v{o+e}, v{o+e}")
                    for e in range(8): a(f"v_mul_f32 v{o+e}, v{o+e}, v{o+8+e}")
                for e in range(4): a(f"v_cvt_pk_bf16_f32 v{p+e}, v{o+2*e}, v{o+2*e+1}")
                if s.m16:
                    a("s_nop 1"); a(f"v_permlane16_swap_b32 v{p}, v{p+2}"); a(f"v_permlane16_swap_b32 v{p+1}, v{p+3}")
                s.vmem("hst", f"buffer_store_dwordx4 v[{p}:{p+3}], v9, s[44:47], s90 offen offset:{nt*2048} sc1")
                if ti < 5: wb_some(wpt)
        a("s_setprio 0")
        s.stamp(3)
        wb_some(s.opt.get("wmid", 4))
        s.vm_wait({"hst"})
        a("s_lshl_b32 s90, s87, 8"); a("s_lshl_b32 s91, s7, 4"); a("s_add_u32 s90, s90, s91"); a("s_lshl_b32 s91, s75, 3"); a("s_add_u32 s90, s90, s91")
        a(f"s_add_u32 s90, s90, {WS_FH}")
        s.write_flag(144, 90)
        s.lds_set(2, L_XH, 1)
        s.stamp(4)
        wb_some(25)
        s.lds_wait(L_XCNT, 1, 4, 148)
        a("v_min_u32 v114, 7, v1"); a("v_lshlrev_b32 v114, 3, v114")
        a("s_lshl_b32 s90, s9, 8"); a("s_lshl_b32 s91, s3, 6"); a("s_add_u32 s90, s90, s91"); a(f"s_add_u32 s90, s90, {WS_FH}")
        p1 = s.opt.get("p1at", 2)
        for i in range(L0, L0 + 4):
            if i - L0 == p1: s.vmem("p1", "buffer_load_dwordx2 v[148:149], v114, s[44:47], s90 offen sc1")
            wb_dma(i)
        a("v_add_u32 v10, s92, v7")
        if p1 >= 0:
            lgo = s.newlab("L_go")
            s.vm_wait({"p1"})
            keep = list(s.vm)
            a("v_cmp_ne_u64 vcc, s[72:73], v[148:149]"); a("s_nop 1"); a(f"s_cbranch_vccz {lgo}")
            s.poll(112, 114, "s90")
            s.label(lgo)
            s.vm = keep
        else: s.poll(112, 114, "s90")
        s.stamp(5)
        if s.opt.get("g2prio", 0): a(f"s_setprio {s.opt.get('g2prio')}")
        h0 = s.opt.get("h0", 1)
        for i in range(h0): hb_loads(i)
        for i in range(12):
            if i == s.opt.get("xga", -1): s.lds_set(2, L_XG2, 1)
            if i == s.opt.get("xg2", 7): s.lds_set(2, L_XG2, 2)
            s.vm_wait({("hb", i), ("wb", i)})
            if i == 0:
                for k in range(h0, 4): hb_loads(k)
            s.stamp(16 + i, 3)
            if L0 <= i < L0 + 4: a("s_waitcnt lgkmcnt(0)")
            rw = 12 + 20 * (i % 5); rh = 112 + 16 * (i % 4)
            n = i + 4
            extra = {k: [] for k in range(20)}
            if n < 12:
                extra[0].append(lambda n=n: (kt_of(n, 83), a("s_mul_i32 s98, s83, 5120"), a("s_add_u32 s98, s98, s80"), a("s_lshl_b32 s83, s83, 12"), a("s_add_u32 s83, s83, s81")))
                for sb in range(4):
                    extra[5 * sb + 4].append(lambda n=n, sb=sb: s.vmem(("hb", n), f"buffer_load_dwordx4 v[{rh+4*sb}:{rh+4*sb+3}], v7, s[44:47], s83 offen offset:{sb*1024} sc1"))
                if n >= 5:
                    r = 12 + 20 * (n % 5)
                    for dt in range(5):
                        if L0 <= n < L0 + 4: f = lambda n=n, dt=dt, r=r: a(f"ds_read_b128 v[{r+4*dt}:{r+4*dt+3}], v10 offset:{(n - L0) * 5120 + dt*1024}")
                        elif dt < 4: f = lambda n=n, dt=dt, r=r: s.vmem(("wb", n), f"buffer_load_dwordx4 v[{r+4*dt}:{r+4*dt+3}], v7, s[44:47], s98 offen offset:{dt*1024} sc1")
                        else: f = lambda n=n, dt=dt, r=r: s.vmem(("wb", n), f"buffer_load_dwordx4 v[{r+4*dt}:{r+4*dt+3}], v8, s[44:47], s98 offen sc1")
                        extra[4 * dt + 2].append(f)
            def pw(k):
                sb, dt = divmod(k, 5); o = 176 + 4 * (4 * dt + sb)
                a(f"ds_write_b128 v12, v[{o}:{o+3}] offset:{sb*5120 + dt*64}")
            if i == 11:
                extra[0].append(lambda: (a("v_and_b32 v12, 15, v1"), a("v_lshrrev_b32 v13, 4, v1"), a("v_bfe_u32 v14, v1, 1, 2"), a("v_xor_b32 v13, v13, v14")))
                extra[1].append(lambda: (a("v_mul_u32_u24 v12, 320, v12"), a("v_lshl_add_u32 v12, v13, 4, v12"), a("v_add_u32 v12, s92, v12")))
                for k in range(12): extra[k + 8].append(lambda k=k: pw(k))
            for sb in range(4):
                for dt in range(5):
                    o = 176 + 4 * (4 * dt + sb)
                    c = "0" if i == 0 else f"v[{o}:{o+3}]"
                    a(f"v_mfma_f32_16x16x32_bf16 v[{o}:{o+3}], v[{rw+4*dt}:{rw+4*dt+3}], v[{rh+4*sb}:{rh+4*sb+3}], {c}")
                    for f in extra[5 * sb + dt]: f()
        s.stamp(6)
        for k in range(12, 20):
            if k == 19: a("s_nop 0")
            pw(k)
        s.stamp(7)

    def final(s):
        a = s.a
        s.label("L_final")
        a("s_setprio 0")
        s.srd(48, 38, 2621440)
        a(f"s_mul_i32 s74, s9, {64*1280}"); a("s_mul_i32 s75, s10, 160"); a("s_add_u32 s74, s74, s75")
        def addr(n, b):
            a(f"v_mul_u32_u24 v13, 6554, v{n}"); a("v_lshrrev_b32 v13, 16, v13")
            a("v_mul_u32_u24 v14, 10, v13"); a(f"v_sub_u32 v14, v{n}, v14")
            a("v_bfe_u32 v15, v13, 1, 2"); a(f"v_lshlrev_b32 v{b}, 1, v14"); a(f"v_xor_b32 v{b}, v{b}, v15"); a(f"v_xor_b32 v{b+1}, 1, v{b}")
            a("v_mul_u32_u24 v15, 320, v13"); a(f"v_lshl_add_u32 v{b}, v{b}, 4, v15"); a(f"v_lshl_add_u32 v{b+1}, v{b+1}, 4, v15")
            a(f"v_lshlrev_b32 v{b+2}, 4, v{n}"); a(f"v_add_u32 v{b+2}, {L_QT}, v{b+2}")
            a(f"v_lshlrev_b32 v{b+3}, 2, v13"); a(f"v_add_u32 v{b+3}, {L_GF}, v{b+3}")
            a(f"v_mul_u32_u24 v{b+4}, 1120, v13"); a(f"v_lshl_add_u32 v{b+4}, v{n}, 4, v{b+4}")
        def rd(b, d):
            for w in range(4):
                a(f"ds_read_b128 v[{d+8*w}:{d+3+8*w}], v{b} offset:{w*20480}")
                a(f"ds_read_b128 v[{d+4+8*w}:{d+7+8*w}], v{b+1} offset:{w*20480}")
            a(f"ds_read_b128 v[{d+32}:{d+35}], v{b+2}"); a(f"ds_read_b32 v{d+36}, v{b+3}")
        def comp(b, d):
            for e in range(4):
                a(f"v_pk_add_f32 v[{d+2*e}:{d+1+2*e}], v[{d+2*e}:{d+1+2*e}], v[{d+8+2*e}:{d+9+2*e}]")
                a(f"v_pk_add_f32 v[{d+16+2*e}:{d+17+2*e}], v[{d+16+2*e}:{d+17+2*e}], v[{d+24+2*e}:{d+25+2*e}]")
            a(f"v_sub_f32 v{d+36}, 1.0, v{d+36}"); a(f"v_cvt_pk_bf16_f32 v{d+36}, v{d+36}, v{d+36}"); a(f"v_and_b32 v{d+36}, 0xffff0000, v{d+36}")
            for e in range(4):
                a(f"v_pk_add_f32 v[{d+2*e}:{d+1+2*e}], v[{d+2*e}:{d+1+2*e}], v[{d+16+2*e}:{d+17+2*e}]")
            for e in range(4):
                a(f"v_lshlrev_b32 v{d+8+2*e}, 16, v{d+32+e}"); a(f"v_and_b32 v{d+9+2*e}, 0xffff0000, v{d+32+e}")
                a(f"v_pk_fma_f32 v[{d+8+2*e}:{d+9+2*e}], v[{d+2*e}:{d+1+2*e}], v[{d+36}:{d+37}], v[{d+8+2*e}:{d+9+2*e}] op_sel_hi:[1,0,1]")
            for e in range(4): a(f"v_cvt_pk_bf16_f32 v{d+32+e}, v{d+8+2*e}, v{d+9+2*e}")
            a(f"buffer_store_dwordx4 v[{d+32}:{d+35}], v{b+4}, s[48:51], s74 offen {s.opt.get('ost', '')}")
        addr(0, 16)
        a("s_lshl_b32 s75, s3, 4"); a("s_add_u32 s75, s75, 512"); a("v_and_b32 v12, 15, v1"); a("v_add_u32 v12, s75, v12")
        addr(12, 24)
        a("s_waitcnt lgkmcnt(0)"); a("s_barrier")
        s.stamp(12)
        rd(16, 32)
        a("s_mov_b64 exec, 0xffff");
        rd(24, 72)
        a("s_mov_b64 exec, -1")
        a("s_waitcnt lgkmcnt(10)")
        comp(16, 32)
        a("s_waitcnt lgkmcnt(0)")
        a("s_mov_b64 exec, 0xffff")
        comp(24, 72)
        a("s_mov_b64 exec, -1")
        s.label("L_fin2")
        if s.opt.get("stamps"):
            s.stamp(13)
            a("s_waitcnt vmcnt(0)")
            s.stamp(14)
            a("s_memrealtime s[96:97]"); a("s_waitcnt lgkmcnt(0)"); a("v_writelane_b32 v11, s96, 15")
            a("s_lshl_b32 s74, s2, 3"); a("s_add_u32 s74, s74, s3"); a("s_lshl_b32 s74, s74, 8"); a(f"s_add_u32 s74, s74, {WS_STAMP}")
            a("v_lshlrev_b32 v12, 2, v1")
            a("buffer_store_dword v11, v12, s[44:47], s74 offen")
            if s.opt.get("dbgout"):
                ld = s.newlab("L_dbo")
                a("s_cmp_lg_u32 s2, 9"); a(f"s_cbranch_scc1 {ld}"); a("s_cmp_lg_u32 s3, 0"); a(f"s_cbranch_scc1 {ld}")
                s.srd(64, 40, 256)
                a("v_readlane_b32 s74, v11, 0"); a("s_nop 1"); a("v_subrev_u32 v11, s74, v11")
                a("v_add_u32 v12, 4, v12")
                a("s_mov_b64 exec, 0x7ffe"); a("buffer_store_dword v11, v12, s[64:67], 0 offen"); a("s_mov_b64 exec, -1")
                s.label(ld)
        s.label("L_end")
        a("s_endpgm")

    def kv_pre(s):
        a = s.a
        a("v_mul_u32_u24 v90, 3277, v1"); a("v_lshrrev_b32 v90, 16, v90"); a("v_mul_u32_u24 v91, 20, v90"); a("v_sub_u32 v91, v1, v91")
        a(f"s_mul_i32 s76, s74, {CV_SZ}"); a(f"s_add_u32 s76, s76, {L_CV + 2*CV_SZ}")
        a("v_lshlrev_b32 v95, 5, v91"); a("v_add_u32 v95, s76, v95")
        a(f"s_mul_i32 s77, s75, {16*192}"); a("s_add_u32 s76, s76, s77"); a("s_and_b32 s77, s10, 1"); a("s_lshl_b32 s77, s77, 5"); a("s_add_u32 s76, s76, s77")
        a(f"v_mul_u32_u24 v10, {6*192}, v90"); a("v_lshl_add_u32 v10, v91, 3, v10"); a("v_add_u32 v10, s76, v10")
        a("s_lshl_b32 s77, s3, 3"); a("v_mul_u32_u24 v85, 3, v90"); a("v_add_u32 v85, s77, v85"); a("v_and_b32 v86, 7, v91")
        for m in range(3):
            a(f"v_sub_u32 v87, {29+m}, v85"); a("v_lshrrev_b32 v88, 2, v87"); a("v_xor_b32 v88, v88, v86"); a("v_lshlrev_b32 v88, 4, v88")
            a("v_and_b32 v87, 3, v87"); a("v_lshl_add_u32 v88, v87, 2, v88"); a(f"v_lshl_add_u32 v{92+m}, v91, 7, v88")
            a(f"v_add_u32 v{92+m}, {L_T}, v{92+m}")
    def kv_main(s):
        a = s.a
        s.label("L_kv")
        a("s_barrier")
        s.stamp(8)
        a(f"ds_read_b128 v[42:45], v95 offset:{SC_SHK}"); a(f"ds_read_b128 v[46:49], v95 offset:{SC_SHK + 16}")
        for i in range(9): a(f"ds_read_b64 v[{12+2*i}:{13+2*i}], v10 offset:{SC_K + 192*i}")
        a("s_waitcnt lgkmcnt(9)")
        for i in range(6): a(f"ds_read_b64 v[{30+2*i}:{31+2*i}], v10 offset:{SC_V + 192*i}")
        for e in range(4):
            a(f"v_lshlrev_b32 v{96+e}, 16, v{42+2*e}"); a(f"v_and_b32 v{100+e}, 0xffff0000, v{42+2*e}")
            a(f"v_lshlrev_b32 v{104+e}, 16, v{43+2*e}"); a(f"v_and_b32 v{108+e}, 0xffff0000, v{43+2*e}")
        a("s_waitcnt lgkmcnt(0)")
        s.ex(60)
        for d in range(2):
            for i in range(9):
                a(f"v_lshlrev_b32 v{112+2*i}, 16, v{12+2*i+d}"); a(f"v_and_b32 v{113+2*i}, 0xffff0000, v{12+2*i+d}")
            for i in range(6):
                a(f"v_lshlrev_b32 v{130+2*i}, 16, v{30+2*i+d}"); a(f"v_and_b32 v{131+2*i}, 0xffff0000, v{30+2*i+d}")
            for r in range(6):
                a(f"v_pk_mul_f32 v[{142+2*r}:{143+2*r}], v[{112+2*r}:{113+2*r}], v[{108+2*d}:{109+2*d}]")
            for j in (2, 1, 0):
                for r in range(6):
                    k = 112 + 2 * (r + 3 - j); w = 96 + 4 * j + 2 * d
                    a(f"v_pk_fma_f32 v[{142+2*r}:{143+2*r}], v[{k}:{k+1}], v[{w}:{w+1}], v[{142+2*r}:{143+2*r}]")
            for r in range(6):
                a(f"v_pk_mul_f32 v[{142+2*r}:{143+2*r}], v[{142+2*r}:{143+2*r}], v[{130+2*r}:{131+2*r}]")
            for e in range(2):
                for m in range(3):
                    hi = 4 - 2 * m
                    a(f"v_cvt_pk_bf16_f32 v{154+3*e+m}, v{142+2*(hi+1)+e}, v{142+2*hi+e}")
            for m in (1, 2, 0):
                if m == 0: a("s_mov_b32 exec_hi, 0xff")
                for e in range(2):
                    a(f"ds_write_b32 v{92+m}, v{154+3*e+m} offset:{(2*d+e)*2560}")
            a("s_mov_b32 exec_hi, 0xfffffff")
        a("s_mov_b64 exec, -1")
        s.stamp(9)
        a("s_branch L_kvret")
        s.label("L_codeend")

    def build(s):
        s.kvt = s.opt.get("kvt", 6); s.m16 = s.opt.get("m16", 1); s.pre = s.opt.get("pre", 1) and s.opt.get("gearly", 1)
        s.nt = "nt" if s.opt.get("nt", 0) else ""
        hdr = open("gated_mix__ssm_conv_h3__glu_gated_glu__prompt.s.ref").read().split("; Override launch")[0]
        out = hdr + f"; @launch grid=(256,1,1) block=(512,1,1) lds={LDS_TOTAL}\n"
        out += '.amdgcn_target "amdgcn-amd-amdhsa--gfx950"\n' + DOC + '.text\n' + f".globl {KN}\n.p2align 8\n.type {KN},@function\n{KN}:\n"
        s.prologue(); s.loader(); s.chore(); s.ywave(); s.xwave(); s.final(); s.kv_main()
        out += "\n".join(s.L) + "\n"
        out += f""".section .rodata,"a"
.p2align 6
.amdhsa_kernel {KN}
  .amdhsa_next_free_vgpr 256
  .amdhsa_next_free_sgpr 102
  .amdhsa_accum_offset 256
  .amdhsa_group_segment_fixed_size 0
  .amdhsa_kernarg_size 112
  .amdhsa_user_sgpr_count 2
  .amdhsa_user_sgpr_kernarg_segment_ptr 1
  .amdhsa_system_sgpr_workgroup_id_x 1
.end_amdhsa_kernel
"""
        return out

if __name__ == "__main__":
    opt = {}
    outp = sys.argv[1]
    for x in sys.argv[2:]:
        k, v = x.split("=")
        if "," in v: opt[k] = tuple(int(z) for z in v.split(","))
        else:
            try: opt[k] = int(v)
            except ValueError: opt[k] = v
    open(outp, "w").write(Gen(opt).build())
```
